```python
import torch

def _softmax(x, axis=-1):
    return torch.softmax(x, dim=axis)
def _gelu(x):
    return torch.nn.functional.gelu(x, approximate="tanh")
def _silu(x):
    return torch.nn.functional.silu(x)
def _sigmoid(x):
    return torch.sigmoid(x)
def _layernorm(x, axis=-1, eps=1e-5):
    m = x.mean(dim=axis, keepdim=True)
    v = x.var(dim=axis, keepdim=True, unbiased=False)
    return (x - m) / torch.sqrt(v + eps)
def _scatter_add(tgt, idx, src, axis=0):
    return tgt.clone().index_add_(axis, idx, src)
def _segment_sum(src, seg, n):
    out = torch.zeros((n,) + src.shape[1:], dtype=src.dtype)
    return out.index_add_(0, seg, src)
def _pad(x, pw):
    flat = tuple(v for pair in reversed(pw) for v in pair)
    return torch.nn.functional.pad(x, flat)

kernel_name = 'sequential_preLN__sliding_block_cached__swiglu_ffn__decode'

def setup_inputs():

    _w = (lambda a: (lambda t: t.to(torch.bfloat16) if t.is_floating_point() else t)(torch.as_tensor(a)))
    def _A_setup():
        B, Sq, D = 1, 1, 512
        Hq, Hkv, Sk, Dh = 32, 32, 32768, 128
        assert Hq % Hkv == 0, (Hq, Hkv)
        return {
            "x": _w((lambda *s: torch.randn(*s, dtype=torch.bfloat16) * 0.05)(B, Sq, D)),
            "k_cache": _w((lambda *s: torch.randn(*s, dtype=torch.bfloat16) * 3.2)(B, Hkv, Sk, Dh)),
            "v_cache": _w((lambda *s: torch.randn(*s, dtype=torch.bfloat16) * 0.4)(B, Hkv, Sk, Dh)),
            "wq": _w((lambda *s: torch.randn(*s, dtype=torch.bfloat16) * 3.2)(D, Hq * Dh) * (D ** -0.5)),
            "wo": _w((lambda *s: torch.randn(*s, dtype=torch.bfloat16) * 0.4)(Hq * Dh, D) * ((Hq * Dh) ** -0.5)),
        }
    _A_in = _A_setup()

    def _B_setup():
        B, S, D, F = 1, 1, 512, 1376
        return {
            "x": _w((lambda *s: torch.randn(*s, dtype=torch.bfloat16) * 0.05)(B, S, D)),
            "w_gate": _w((lambda *s: torch.randn(*s, dtype=torch.bfloat16) * 0.05)(D, F)),
            "w_up": _w((lambda *s: torch.randn(*s, dtype=torch.bfloat16) * 0.05)(D, F)),
            "w_down": _w((lambda *s: torch.randn(*s, dtype=torch.bfloat16) * 0.05)(F, D)),
        }
    _B_in = _B_setup()

    return {
        "A_x": _A_in["x"],
        "A_k_cache": _A_in["k_cache"],
        "A_v_cache": _A_in["v_cache"],
        "A_wq": _A_in["wq"],
        "A_wo": _A_in["wo"],
        "B_x": _B_in["x"],
        "B_w_gate": _B_in["w_gate"],
        "B_w_up": _B_in["w_up"],
        "B_w_down": _B_in["w_down"],
    }

def reference(A_x, A_k_cache, A_v_cache, A_wq, A_wo, B_x, B_w_gate, B_w_up, B_w_down):
    def _A_ref(x, k_cache, v_cache, wq, wo):
        B, Sq, D = x.shape
        Hq, Dh = 32, 128
        Hkv, Sk = k_cache.shape[1], k_cache.shape[2]
        W = min(4096, max(256, Sk // 4))
        rep = Hq // Hkv
        q = (lambda x, *d: x.permute(*d))((x @ wq).reshape(B, Sq, Hq, Dh), 0, 2, 1, 3)
        k = (lambda x, n, axis: torch.repeat_interleave(x, n, dim=axis))(k_cache[:, :, Sk - W:, :], rep, axis=1)
        v = (lambda x, n, axis: torch.repeat_interleave(x, n, dim=axis))(v_cache[:, :, Sk - W:, :], rep, axis=1)
        scores = torch.einsum("bhqd,bhkd->bhqk", q, k) * (Dh ** -0.5)
        p = _softmax(scores, axis=-1)
        o = torch.einsum("bhqk,bhkd->bhqd", p, v)
        return (lambda x, *d: x.permute(*d))(o, 0, 2, 1, 3).reshape(B, Sq, Hq * Dh) @ wo

    def _B_ref(x, w_gate, w_up, w_down):
        g = _silu(x @ w_gate)
        u = x @ w_up
        return (g * u) @ w_down

    x = A_x
    h = x + _A_ref(_layernorm(x, axis=-1), A_k_cache, A_v_cache, A_wq, A_wo)
    h2 = h + _B_ref(_layernorm(h, axis=-1), B_w_gate, B_w_up, B_w_down)
    return h2
```

```python
import re

TRANS = ("v_exp_f32", "v_log_f32", "v_rcp_f32", "v_rsq_f32", "v_sqrt_f32", "v_sin_f32", "v_cos_f32")
_REG = re.compile(r"^-?\|?(?:abs\()?([vsa])(?:(\d+)|\[(\d+):(\d+)\])\)?\|?$")


def regs(tok):
    tok = tok.strip()
    if tok == "vcc":
        return {("s", 106), ("s", 107)}
    if tok in ("vcc_lo", "vcc_hi"):
        return {("s", 106 + (tok == "vcc_hi"))}
    if tok == "exec":
        return {("s", 126), ("s", 127)}
    m = _REG.match(tok)
    if not m:
        return set()
    f = m.group(1)
    lo, hi = (int(m.group(2)),) * 2 if m.group(2) else (int(m.group(3)), int(m.group(4)))
    return {(f, i) for i in range(lo, hi + 1)}


def split_ops(rest):
    ops, depth, cur = [], 0, ""
    for ch in rest + ",":
        if ch in "[(":
            depth += 1
        elif ch in "])":
            depth -= 1
        if ch == "," and depth == 0:
            if cur.strip():
                ops.append(cur.strip())
            cur = ""
        else:
            cur += ch
    if ops:
        parts = ops[-1].split()
        ops[-1] = parts[0]
        mods = parts[1:]
    else:
        mods = []
    return ops, mods


class Ins:
    def __init__(self, text):
        self.text = text
        t = text.split(";")[0].strip()
        self.label = t.endswith(":")
        self.directive = t.startswith(".") and not self.label
        self.mn = "" if (self.label or self.directive or not t) else t.split()[0]
        self.rd, self.wr = set(), set()
        self.kind = None
        self.srcc = set()
        self.srcab = set()
        self.lanesel = set()
        self.states = 1
        if not self.mn:
            self.states = 0
            return
        mn = self.mn
        ops, mods = split_ops(t[len(mn):])
        self.ops, self.mods = ops, mods
        R = [regs(o) for o in ops]
        allr = lambda xs: set().union(*xs) if xs else set()
        self.dpp = mn.endswith("_dpp")
        if mn == "s_nop":
            self.kind = "salu"; self.states = int(ops[0], 0) + 1
        elif mn.startswith("v_mfma"):
            self.kind = "mfma"; self.wr = R[0]; self.srcab = R[1] | R[2]; self.srcc = R[3]; self.rd = self.srcab | self.srcc
            self.passes = 8 if "32x32" in mn else 4
        elif mn.startswith("v_"):
            self.kind = "valu"
            if mn.startswith("v_permlane"):
                self.wr = R[0] | R[1]; self.rd = R[0] | R[1]
            elif mn.startswith(("v_add_co", "v_sub_co", "v_addc_co", "v_subb_co", "v_mad_u64", "v_div_scale")):
                self.wr = R[0] | R[1]; self.rd = allr(R[2:])
            else:
                self.wr = R[0]; self.rd = allr(R[1:])
                if mn.startswith(("v_fmac", "v_dot2c", "v_writelane")) or self.dpp:
                    self.rd |= R[0]
                if mn.startswith("v_cndmask") and len(ops) == 3:
                    self.rd |= regs("vcc")
                if mn.startswith(("v_readlane", "v_writelane")):
                    self.lanesel = R[2]
            if mn.startswith("v_dot2"):
                self.srcc = R[3] if len(R) > 3 else R[0]
                self.srcab = R[1] | R[2]
        elif mn.startswith("ds_"):
            self.kind = "ds"
            if mn.startswith(("ds_read", "ds_bpermute", "ds_permute", "ds_swizzle")) or "_rtn" in mn:
                self.wr = R[0]; self.rd = allr(R[1:])
            else:
                self.rd = allr(R)
        elif mn.startswith(("buffer_wb", "buffer_inv")):
            self.kind = "salu"
        elif mn.startswith(("buffer_", "global_")):
            self.kind = "vmem"
            if "_load" in mn and "lds" not in mods and "_lds_" not in mn:
                self.wr = R[0]; self.rd = allr(R[1:])
            elif "atomic" in mn and "sc0" in mods:
                self.wr = R[0]; self.rd = allr(R)
            else:
                self.rd = allr(R)
            self.wide_store = ("store" in mn and mn.endswith(("x3", "x4")))
            if self.wide_store:
                self.sdata = R[0] if mn.startswith("buffer_") else R[1]
        else:
            self.kind = "salu"
            if ops and not mn.startswith(("s_cmp", "s_cbranch", "s_branch", "s_waitcnt", "s_barrier", "s_sleep", "s_setprio", "s_bitcmp", "s_endpgm")):
                self.wr = R[0]; self.rd = allr(R[1:])
            else:
                self.rd = allr(R)


def need(p, c):
    n = 0
    vw = {r for r in p.wr if r[0] in "va"}
    sw = {r for r in p.wr if r[0] == "s"}
    if p.kind == "valu":
        isdot = p.mn.startswith("v_dot2")
        if vw:
            hit = vw & c.rd
            if c.kind == "valu":
                if hit and (c.dpp or c.mn.startswith("v_permlane")): n = max(n, 2)
                if hit and c.mn.startswith(("v_readlane", "v_readfirstlane")): n = max(n, 1)
                if hit and p.mn.startswith(TRANS) and not c.mn.startswith(TRANS): n = max(n, 1)
                if "sdwa" in p.mn and (hit or vw & c.wr): n = max(n, 1)
            if c.kind in ("ds", "vmem") and hit and p.mn.startswith(TRANS): n = max(n, 1)
            if c.kind == "mfma" and hit: n = max(n, 2)
            if isdot and (hit or vw & c.wr):
                same = c.mn == p.mn
                if not (same and not (vw & c.srcab)): n = max(n, 3)
        if sw:
            if c.kind in ("valu", "mfma") and sw & c.rd: n = max(n, 2)
            if c.kind == "valu" and sw & c.lanesel: n = max(n, 4)
            if c.kind == "vmem" and sw & c.rd: n = max(n, 5)
    if p.kind == "mfma":
        far = {4: 8, 8: 12}[p.passes]
        if c.kind == "mfma":
            if vw & c.srcab: n = max(n, far)
            if vw & c.srcc and (c.srcc != vw or c.passes != p.passes): n = max(n, far - 2)
        elif c.kind in ("valu", "vmem", "ds"):
            if vw & (c.rd | c.wr): n = max(n, far)
        if c.kind == "valu" and p.srcc & c.wr: n = max(n, {4: 3, 8: 7}[p.passes])
    if p.kind == "vmem" and p.wide_store and c.kind in ("valu", "mfma", "vmem", "ds") and p.sdata & c.wr:
        n = max(n, 2)
    return n


class Asm:
    def __init__(self):
        self.ins = []
        self.vm = []

    def __call__(self, text):
        for line in text.split("\n"):
            line = line.strip()
            if line:
                self.ins.append(Ins(line))

    def vmem(self, text, name=None):
        self(text)
        self.vm.append(name)

    def wait_vm(self, name):
        i = max(k for k, n in enumerate(self.vm) if n == name)
        n = len(self.vm) - 1 - i
        assert n <= 63, n
        self(f"s_waitcnt vmcnt({n})")

    def vm_reset(self):
        self.vm = []

    def render(self):
        ins = self.ins
        labels = {c.text.split(":")[0].strip(): i for i, c in enumerate(ins) if c.label}
        jumps = {}
        for i, c in enumerate(ins):
            if c.mn.startswith(("s_cbranch", "s_branch")):
                jumps.setdefault(labels[c.ops[0]], []).append(i)
        pads = [0] * len(ins)

        def preds(i):
            out = list(jumps.get(i, []))
            if i > 0 and ins[i - 1].mn not in ("s_branch", "s_endpgm"):
                out.append(i - 1)
            return out

        for i, c in enumerate(ins):
            if not c.mn:
                continue
            pad = 0
            stack = [(p, 0) for p in preds(i)]
            seen = {}
            while stack:
                j, dist = stack.pop()
                if seen.get(j, 99) <= dist:
                    continue
                seen[j] = dist
                p = ins[j]
                if p.mn:
                    pad = max(pad, need(p, c) - dist)
                d2 = dist + p.states + pads[j]
                if d2 < 12:
                    stack.extend((q, d2) for q in preds(j))
            pads[i] = pad
        out = []
        for c, pad in zip(ins, pads):
            if pad > 0:
                out.append(f"    s_nop {pad - 1}")
            out.append(("    " if c.mn else "") + c.text)
        return "\n".join(out) + "\n"
```

```python
import sys
from asmlib import Asm

KNAME = "sequential_preLN__sliding_block_cached__swiglu_ffn__decode_kernel"
HEADER = open("sequential_preLN__sliding_block_cached__swiglu_ffn__decode.s.ref").read().split("; Override launch")[0]

LOG2E = 0x3FB8AA3B
SCALE = 0x3DB504F3
EPS = 0x3727C5AC

SLOT = 640
MB1 = 0
MB2 = 256 * SLOT
MB3 = MB2 + 8 * 2048
CLR_END = MB2 + 256 * 512
STAMP = 1 << 20
WS_SIZE = 2 << 20
L_QP, L_QB, L_ST, L_ROLE, L_OP, L_P16, L_LN, L_END = 0, 4096, 6144, 6208, 6272, 14464, 18560, 18688

NT2, NT1, NF = 43, 64, 4
DPPF = "row_mask:0xf bank_mask:0xf"

sH, sSP, sW, sROT, sBUD = 3, 4, 5, 6, 7
pX, pK, pV, pWQ, pWO, pWG, pWU, pWD, pOUT, pDBG, pWS = 8, 10, 12, 14, 16, 20, 22, 24, 26, 28, 30
rK, rV, rQ, rX, rWS, rDBG, rT = 32, 36, 40, 44, 48, 52, 56
sOFF = 60
sT0, sT1, sT2, sT3 = 76, 77, 78, 79
sROLE, sSLOT = 80, 81
sE = 82
sSTAMP = 84
vL, vKV, vQO = 1, 2, 3
vSEL, vA, vD, vPK, vB = 4, 8, 16, 20, 21
vT = 22
KREG, VREG, QREG = 48, 112, 176
NV = 240


def q4(r): return f"v[{r}:{r+3}]"
def q2(r): return f"v[{r}:{r+1}]"
def srd(r): return f"s[{r}:{r+3}]"


def gen(W=8, stamps=False, budget=1 << 20, static_roles=False, ticket_at=13, qpol="nt", rotq=True):
    a = Asm()
    nstamp = [0]

    def stamp(i):
        if stamps:
            a(f"s_memrealtime s[{sSTAMP+2*i}:{sSTAMP+2*i+1}]")

    def mksrd(r, p, size, add=None):
        if add is None:
            a(f"s_mov_b32 s{r}, s{p}"); a(f"s_mov_b32 s{r+1}, s{p+1}")
        else:
            a(f"s_add_u32 s{r}, s{p}, s{add}"); a(f"s_addc_u32 s{r+1}, s{p+1}, 0")
        a(f"s_mov_b32 s{r+2}, {size}"); a(f"s_mov_b32 s{r+3}, 0x20000")

    def bf16r(d, s):
        a(f"v_cvt_pk_bf16_f32 v{d}, v{s}, v{s}"); a(f"v_and_b32 v{d}, 0xffff0000, v{d}")

    def wave_red(op, v, s):
        for m in ("quad_perm:[1,0,3,2]", "quad_perm:[2,3,0,1]", "row_half_mirror", "row_mirror"):
            a(f"{op}_dpp v{v}, v{v}, v{v} {m} {DPPF}")
        a(f"{op}_dpp v{v}, v{v}, v{v} row_bcast:15 row_mask:0xa bank_mask:0xf")
        a(f"{op}_dpp v{v}, v{v}, v{v} row_bcast:31 row_mask:0xc bank_mask:0xf")
        a(f"v_readlane_b32 s{s}, v{v}, 63")

    def red8(op, v):
        for m in ("quad_perm:[1,0,3,2]", "quad_perm:[2,3,0,1]", "row_half_mirror"):
            a(f"{op}_dpp v{v}, v{v}, v{v} {m} {DPPF}")

    def build_a(j):
        A = vA + 4 * (j & 1)
        a(f"v_mov_b32_dpp v{vB}, v{vPK} row_newbcast:{j} {DPPF}")
        for r in range(4):
            a(f"v_perm_b32 v{A+r}, v{vB}, v{vB}, v{vSEL+r}")

    def mfma(j, b, first):
        A = vA + 4 * (j & 1)
        a(f"v_mfma_f32_16x16x32_bf16 {q4(vD)}, {q4(A)}, {q4(b)}, {'0' if first else q4(vD)}")

    def tred4(v):
        a(f"v_permlane32_swap_b32 v{v}, v{v+2}"); a(f"v_permlane32_swap_b32 v{v+1}, v{v+3}")
        a(f"v_add_f32 v{v}, v{v}, v{v+2}"); a(f"v_add_f32 v{v+1}, v{v+1}, v{v+3}")
        a(f"v_permlane16_swap_b32 v{v}, v{v+1}")
        a(f"v_add_f32 v{v}, v{v}, v{v+1}")

    def red16(vaddr, base, ps, v):
        for t in range(4):
            a(f"ds_read_b128 {q4(v+4*t)}, v{vaddr} offset:{base + t*ps}")
        a("s_waitcnt lgkmcnt(0)")
        for i in range(4):
            a(f"v_add_f32 v{v+i}, v{v+i}, v{v+4+i}"); a(f"v_add_f32 v{v+8+i}, v{v+8+i}, v{v+12+i}")
        for i in range(4):
            a(f"v_add_f32 v{v+i}, v{v+i}, v{v+8+i}")
        tred4(v)

    npoll = [0]

    def poll(loads, regs_, tmp):
        n = npoll[0]; npoll[0] += 1
        a(f"L_poll{n}:")
        for ld in loads: a(ld)
        a(f"s_sub_u32 s{sBUD}, s{sBUD}, 1"); a("s_cbranch_scc1 L_exit")
        a("s_waitcnt vmcnt(0)")
        rs = list(regs_)
        a(f"v_max3_u32 v{tmp}, v{rs[0]}, v{rs[1]}, v{rs[2]}" if len(rs) > 2 else f"v_max_u32 v{tmp}, v{rs[0]}, v{rs[1]}")
        rs = rs[3:]
        while rs:
            if len(rs) >= 2:
                a(f"v_max3_u32 v{tmp}, v{tmp}, v{rs[0]}, v{rs[1]}"); rs = rs[2:]
            else:
                a(f"v_max_u32 v{tmp}, v{tmp}, v{rs[0]}"); rs = rs[1:]
        a(f"v_cmp_eq_u32 vcc, -1, v{tmp}")
        a(f"s_cbranch_vccnz L_poll{n}")

    def ln_finish(vmean, vvar, vr):
        bf16r(vmean, vmean); bf16r(vvar, vvar)
        a(f"v_add_f32 v{vvar}, {EPS:#x}, v{vvar}"); bf16r(vvar, vvar)
        a(f"v_sqrt_f32 v{vvar}, v{vvar}"); bf16r(vvar, vvar)
        a(f"v_rcp_f32 v{vr}, v{vvar}")

    a(f"{KNAME}:")
    if stamps:
        for i in range(2, 18): a(f"s_mov_b32 s{sSTAMP+i}, 0")
    stamp(0)
    a("s_cmp_ge_u32 s2, 256"); a("s_cbranch_scc1 L_end")
    a(f"s_load_dwordx16 s[8:23], s[0:1], 0"); a(f"s_load_dwordx8 s[24:31], s[0:1], 64")
    a(f"s_and_b32 s{sH}, s2, 31"); a(f"s_lshr_b32 s{sSP}, s2, 5")
    a(f"v_lshrrev_b32 v{vT}, 6, v0"); a(f"v_and_b32 v{vL}, 63, v0")
    a(f"v_readfirstlane_b32 s{sW}, v{vT}")
    a(f"v_lshlrev_b32 v{vKV}, 4, v0")
    a(f"s_lshl_b32 s{sROT}, s{sSP}, 1"); a(f"s_add_u32 s{sROT}, s{sROT}, s{sH}")
    for j in range(16):
        a(f"s_add_u32 s{sT0}, s{sROT}, {j}"); a(f"s_and_b32 s{sT0}, s{sT0}, 15"); a(f"s_lshl_b32 s{sOFF+j}, s{sT0}, 13")
    a(f"s_lshl_b32 s{sT0}, s{sH}, 23"); a(f"s_lshl_b32 s{sT1}, s{sSP}, 17"); a(f"s_add_u32 s{sT0}, s{sT0}, s{sT1}")
    a(f"s_add_u32 s{sT0}, s{sT0}, {(32768-4096)*256}")
    a(f"s_mov_b32 s{sBUD}, {budget}")
    a(f"s_lshl_b32 s{sSLOT}, s{sH}, 3"); a(f"s_add_u32 s{sSLOT}, s{sSLOT}, s{sSP}"); a(f"s_mul_i32 s{sSLOT}, s{sSLOT}, {SLOT}")
    vG, vC = vT, vT + 1
    a(f"v_lshrrev_b32 v{vG}, 4, v0")
    a(f"v_and_b32 v{vC}, 15, v0")
    a(f"v_lshlrev_b32 v{vQO}, 13, v{vG}"); a(f"v_lshl_add_u32 v{vQO}, v{vC}, 4, v{vQO}")
    a(f"s_lshl_b32 s{sT1}, s{sH}, 8"); a(f"v_add_u32 v{vQO}, s{sT1}, v{vQO}")
    vXO = vT + 2
    if rotq:
        a(f"v_add_u32 v{vXO}, s{sROT}, v{vC}"); a(f"v_and_b32 v{vXO}, 15, v{vXO}")
    else:
        a(f"v_add_u32 v{vXO}, s{sH}, v{vC}"); a(f"v_and_b32 v{vXO}, 15, v{vXO}")
    a(f"v_lshl_add_u32 v{vXO}, v{vXO}, 5, v{vG}"); a(f"v_lshlrev_b32 v{vXO}, 1, v{vXO}")
    vXA = vT + 3
    a(f"v_lshlrev_b32 v{vXA}, 4, v{vL}")
    a("s_waitcnt lgkmcnt(0)")
    stamp(1)
    mksrd(rK, pK, 0x20000, sT0)

    seq = [("k", 0), ("xa", 0), ("xo", 0), ("q", 0)]
    for j in range(1, 16): seq += [("k", j), ("q", j)]
    seq += [("v", j) for j in range(16)]
    pos = {op: i for i, op in enumerate(seq)}
    issued = [0]
    XA, XO = 28, 27

    def issue_to(n):
        while issued[0] < min(n, len(seq)):
            kind, j = seq[issued[0]]
            if kind == "k": a.vmem(f"buffer_load_dwordx4 {q4(KREG+4*j)}, v{vKV}, {srd(rK)}, s{sOFF+j} offen nt", (kind, j))
            elif kind == "v":
                if j == ticket_at: ticket()
                a.vmem(f"buffer_load_dwordx4 {q4(VREG+4*j)}, v{vKV}, {srd(rV)}, s{sOFF+j} offen nt", (kind, j))
            elif kind == "q":
                if rotq:
                    a(f"s_lshl_b32 s{sT3}, s{sOFF+j}, 5")
                else:
                    a(f"s_add_u32 s{sT3}, s{sH}, {j}"); a(f"s_and_b32 s{sT3}, s{sT3}, 15"); a(f"s_lshl_b32 s{sT3}, s{sT3}, 18")
                a.vmem(f"buffer_load_dwordx4 {q4(QREG+4*j)}, v{vQO}, {srd(rQ)}, s{sT3} offen {qpol}", (kind, j))
            elif kind == "xa": a.vmem(f"buffer_load_dwordx4 {q4(XA)}, v{vXA}, {srd(rX)}, 0 offen", (kind, j))
            elif kind == "xo": a.vmem(f"buffer_load_ushort v{XO}, v{vXO}, {srd(rX)}, 0 offen", (kind, j))
            issued[0] += 1

    vTK = 47

    def ticket():
        a(f"s_cmp_lg_u32 s{sW}, 0"); a("s_cbranch_scc1 L_noticket")
        a(f"v_mov_b32 v{vTK}, 0x10000"); a("s_mov_b64 exec, 1")
        a(f"buffer_atomic_add v{vTK}, off, {srd(rDBG)}, 0 sc0")
        a("s_mov_b64 exec, -1")
        a("L_noticket:")

    issue_to(1)
    mksrd(rX, pX, 1024); mksrd(rQ, pWQ, 0x400000)
    issue_to(4)
    mksrd(rV, pV, 0x20000, sT0); mksrd(rWS, pWS, WS_SIZE); mksrd(rDBG, pDBG, 256)
    a(f"s_cmp_lg_u32 s{sW}, 7"); a("s_cbranch_scc1 L_noclear")
    c0 = 40
    for i in range(4): a(f"v_mov_b32 v{c0+i}, -1")
    a(f"s_lshl_b32 s{sT1}, s2, 9"); a(f"s_add_u32 s{sT1}, s{sT1}, {MB2}")
    a("s_mov_b32 exec_hi, 0")
    a(f"buffer_store_dwordx4 {q4(c0)}, v{vXA}, {srd(rWS)}, s{sT1} offen sc1")
    a(f"s_mov_b32 exec_hi, 0xff")
    a(f"buffer_store_dwordx4 {q4(c0)}, v{vXA}, {srd(rWS)}, s{sSLOT} offen sc1")
    a("s_mov_b64 exec, -1")
    a("L_noclear:")
    issue_to(W)
    t0, t1, t2 = 32, 33, 34
    a(f"v_and_b32 v{t0}, 8, v0"); a(f"v_mov_b32 v{t1}, 0x0100"); a(f"v_mov_b32 v{t2}, 0x0302")
    a(f"v_cmp_ne_u32 vcc, 0, v{t0}"); a(f"v_cndmask_b32 v{t1}, v{t1}, v{t2}, vcc")
    a(f"v_or_b32 v{t2}, 0x0c0c0000, v{t1}")
    a(f"v_lshlrev_b32 v{t1}, 16, v{t1}"); a(f"v_or_b32 v{t1}, 0x0c0c, v{t1}")
    a(f"v_and_b32 v{t0}, 1, v0"); a(f"v_cmp_ne_u32 vcc, 0, v{t0}"); a(f"v_cndmask_b32 v{t1}, v{t2}, v{t1}, vcc")
    a(f"v_bfe_u32 v{t0}, v0, 1, 2"); a(f"v_mov_b32 v{t2}, 0x0c0c0c0c")
    for r in range(4):
        a(f"v_cmp_eq_u32 vcc, {r}, v{t0}"); a(f"v_cndmask_b32 v{vSEL+r}, v{t2}, v{t1}, vcc")

    a.wait_vm(("xo", 0))
    stamp(2)
    U = 32
    for i in range(4):
        a(f"v_lshlrev_b32 v{U+2*i}, 16, v{XA+i}"); a(f"v_and_b32 v{U+2*i+1}, 0xffff0000, v{XA+i}")
    S, M_, R_ = 40, 41, 42
    a(f"v_add_f32 v{S}, v{U}, v{U+1}")
    for i in range(2, 8): a(f"v_add_f32 v{S}, v{S}, v{U+i}")
    wave_red("v_add_f32", S, sT1)
    a(f"v_mov_b32 v{M_}, 0x3b000000"); a(f"v_mul_f32 v{M_}, s{sT1}, v{M_}")
    for i in range(8): a(f"v_sub_f32 v{U+i}, v{U+i}, v{M_}")
    a(f"v_mul_f32 v{S}, v{U}, v{U}")
    for i in range(1, 8): a(f"v_fmac_f32 v{S}, v{U+i}, v{U+i}")
    wave_red("v_add_f32", S, sT1)
    a(f"v_mov_b32 v{S}, 0x3b000000"); a(f"v_mul_f32 v{S}, s{sT1}, v{S}")
    ln_finish(M_, S, R_)
    a(f"v_lshlrev_b32 v{XO}, 16, v{XO}"); a(f"v_sub_f32 v{XO}, v{XO}, v{M_}"); bf16r(XO, XO)
    a(f"v_mul_f32 v{XO}, v{XO}, v{R_}")
    a(f"v_cvt_pk_bf16_f32 v{vPK}, v{XO}, 0")

    for j in range(16):
        issue_to(pos[("q", j)] + W)
        build_a(j)
        a.wait_vm(("q", j))
        mfma(j, QREG + 4 * j, j == 0)
        if j == 3:
            a(f"s_cmp_lg_u32 s{sW}, 7"); a("s_cbranch_scc1 L_nocount")
            a(f"v_mov_b32 v{vTK}, 1"); a("s_mov_b64 exec, 1")
            a(f"buffer_atomic_add v{vTK}, off, {srd(rDBG)}, 0")
            a("s_mov_b64 exec, -1")
            a("L_nocount:")
    vAD = vT
    a(f"v_and_b32 v{vAD}, 15, v0"); a(f"v_bfe_u32 v{vAD+1}, v0, 4, 1")
    a(f"v_lshlrev_b32 v{vAD}, 5, v{vAD}"); a(f"v_lshl_add_u32 v{vAD}, v{vAD+1}, 4, v{vAD}")
    a(f"s_lshl_b32 s{sT1}, s{sW}, 9"); a(f"v_add_u32 v{vAD+1}, s{sT1}, v{vAD}")
    a("s_mov_b32 exec_hi, 0")
    a(f"ds_write_b128 v{vAD+1}, {q4(vD)} offset:{L_QP}")
    a("s_mov_b64 exec, -1")
    a("s_waitcnt lgkmcnt(0)"); a("s_barrier")
    stamp(3)
    a(f"v_lshlrev_b32 v{vAD+1}, 3, v{vL}")
    P = 24
    for w in range(8): a(f"ds_read_b64 {q2(P+2*w)}, v{vAD+1} offset:{L_QP + 512*w}")
    issue_to(issued[0] + 1)
    a(f"s_lshl_b32 s{sT1}, s{sW}, 8")
    a(f"v_lshl_add_u32 v{vAD+1}, v{vL}, 2, s{sT1}")
    a("s_waitcnt lgkmcnt(0)")
    for st in (8, 4, 2):
        for i in range(st): a(f"v_add_f32 v{P+i}, v{P+i}, v{P+i+st}")
    a(f"v_cvt_pk_bf16_f32 v{P}, v{P}, v{P+1}")
    a(f"ds_write_b32 v{vAD+1}, v{P} offset:{L_QB}")
    a(f"v_and_b32 v{vAD+1}, 15, v0"); a(f"v_lshl_add_u32 v{vAD+1}, v{vAD+1}, 4, s{sT1}")
    QP = 40
    a(f"ds_read_b128 {q4(QP)}, v{vAD+1} offset:{L_QB}")
    a.wait_vm(("k", 15))
    a("s_waitcnt lgkmcnt(0)")

    SJ = 24
    for i in range(4):
        for j in range(16):
            a(f"v_dot2_f32_bf16 v{SJ+j}, v{KREG+4*j+i}, v{QP+i}, {'0' if i == 0 else 'v%d' % (SJ+j)}")
        if i == 1: issue_to(issued[0] + 1)
    for j in range(8):
        a(f"v_add_f32_dpp v{SJ+j}, v{SJ+j}, v{SJ+j} row_ror:8 row_mask:0xf bank_mask:0x3")
    for j in range(8):
        a(f"v_add_f32_dpp v{SJ+j}, v{SJ+j+8}, v{SJ+j+8} row_ror:8 row_mask:0xf bank_mask:0xc")
    for j in range(4):
        a(f"v_add_f32_dpp v{SJ+j}, v{SJ+j}, v{SJ+j} row_half_mirror row_mask:0xf bank_mask:0x5")
    for j in range(4):
        a(f"v_add_f32_dpp v{SJ+j}, v{SJ+j+4}, v{SJ+j+4} row_half_mirror row_mask:0xf bank_mask:0xa")
    for j in range(4):
        a(f"v_add_f32_dpp v{SJ+j}, v{SJ+j}, v{SJ+j} quad_perm:[1,0,3,2] {DPPF}")
    a("s_mov_b32 vcc_lo, 0xaaaaaaaa"); a("s_mov_b32 vcc_hi, 0xaaaaaaaa")
    a(f"v_cndmask_b32 v{SJ}, v{SJ}, v{SJ+1}, vcc"); a(f"v_cndmask_b32 v{SJ+2}, v{SJ+2}, v{SJ+3}, vcc")
    a(f"v_add_f32_dpp v{SJ}, v{SJ}, v{SJ} quad_perm:[2,3,0,1] {DPPF}")
    a(f"v_add_f32_dpp v{SJ+2}, v{SJ+2}, v{SJ+2} quad_perm:[2,3,0,1] {DPPF}")
    a("s_mov_b32 vcc_lo, 0xcccccccc"); a("s_mov_b32 vcc_hi, 0xcccccccc")
    SC = SJ
    a(f"v_cndmask_b32 v{SC}, v{SJ}, v{SJ+2}, vcc")
    issue_to(issued[0] + 1)
    bf16r(SC, SC); a(f"v_mul_f32 v{SC}, {SCALE:#x}, v{SC}"); bf16r(SC, SC)
    T = 26
    a(f"v_mov_b32 v{T}, v{SC}"); wave_red("v_max_f32", T, sT1)
    a(f"v_subrev_f32 v{T}, s{sT1}, v{SC}"); a(f"v_mul_f32 v{T}, {LOG2E:#x}, v{T}"); a(f"v_exp_f32 v{T}, v{T}")
    wave_red("v_add_f32", T, sT2)
    a(f"v_mov_b32 v{T}, s{sT1}"); a(f"v_mov_b32 v{T+1}, s{sT2}")
    a(f"s_lshl_b32 s{sT1}, s{sW}, 3"); a(f"v_mov_b32 v{T+2}, s{sT1}")
    a("s_mov_b64 exec, 1"); a(f"ds_write_b64 v{T+2}, {q2(T)} offset:{L_ST}"); a("s_mov_b64 exec, -1")
    a(f"v_and_b32 v{T+2}, 7, v0"); a(f"v_lshlrev_b32 v{T+2}, 3, v{T+2}")
    a("s_waitcnt lgkmcnt(0)"); a("s_barrier")
    a(f"ds_read_b64 {q2(T)}, v{T+2} offset:{L_ST}")
    issue_to(issued[0] + 1)
    a("s_waitcnt lgkmcnt(0)")
    MM = 30
    a(f"v_mov_b32 v{MM}, v{T}"); red8("v_max_f32", MM)
    a(f"v_sub_f32 v{T}, v{T}, v{MM}"); a(f"v_sub_f32 v{SC}, v{SC}, v{MM}")
    a(f"v_mul_f32 v{T}, {LOG2E:#x}, v{T}"); a(f"v_mul_f32 v{SC}, {LOG2E:#x}, v{SC}")
    a(f"v_exp_f32 v{T}, v{T}"); a(f"v_exp_f32 v{SC}, v{SC}")
    a(f"v_mul_f32 v{MM+1}, v{T}, v{T+1}"); red8("v_add_f32", MM + 1)
    a(f"s_cmp_lg_u32 s{sW}, 7"); a("s_cbranch_scc1 L_noml")
    a("s_mov_b64 exec, 1")
    a(f"buffer_store_dwordx2 {q2(MM)}, off, {srd(rWS)}, s{sSLOT} offset:512 sc1")
    a("s_mov_b64 exec, -1")
    a("L_noml:")
    bf16r(T, SC); a(f"v_sub_f32 v{T}, v{SC}, v{T}")
    a(f"v_cvt_pk_bf16_f32 v{vPK}, v{SC}, v{T}")
    stamp(4)

    for j in range(16):
        issue_to(pos[("v", j)] + W)
        build_a(j)
        a.wait_vm(("v", j))
        mfma(j, VREG + 4 * j, j == 0)
        if j == max(ticket_at, 12):
            a(f"s_cmp_lg_u32 s{sW}, 0"); a("s_cbranch_scc1 L_norole")
            a(f"v_readfirstlane_b32 s{sROLE}, v{vTK}")
            a(f"s_and_b32 s{sT1}, s{sROLE}, 0xffff"); a(f"s_lshr_b32 s{sROLE}, s{sROLE}, 16")
            a(f"s_cmp_eq_u32 s{sT1}, 256"); a("s_cbranch_scc1 L_cleared")
            a("L_waitclear:")
            a(f"buffer_load_dword v{vTK}, off, {srd(rDBG)}, 0 sc1")
            a(f"s_sub_u32 s{sBUD}, s{sBUD}, 1"); a("s_cbranch_scc1 L_exit")
            a("s_waitcnt vmcnt(0)")
            a(f"v_readfirstlane_b32 s{sT1}, v{vTK}"); a(f"s_and_b32 s{sT1}, s{sT1}, 0xffff")
            a(f"s_cmp_eq_u32 s{sT1}, 256"); a("s_cbranch_scc0 L_waitclear")
            a("L_cleared:")
            if static_roles: a(f"s_mov_b32 s{sROLE}, s2")
            a(f"v_mov_b32 v{vTK}, s{sROLE}"); a(f"v_mov_b32 v{vTK-1}, 0")
            a(f"ds_write_b32 v{vTK-1}, v{vTK} offset:{L_ROLE}")
            a("L_norole:")
    a(f"v_lshrrev_b32 v{vAD+1}, 5, v0"); a(f"v_lshl_add_u32 v{vAD+1}, v{vAD+1}, 9, v{vAD}")
    vRA, vCO = 44, 45
    a(f"v_and_b32 v{vCO}, 15, v0"); a(f"v_bfe_u32 v{vRA}, v0, 4, 2")
    a(f"v_lshlrev_b32 v{vCO}, 4, v{vCO}")
    a(f"v_lshl_add_u32 v{43}, v{vRA}, 11, v{vCO}")
    a(f"s_lshl_b32 s{sT1}, s{sW}, 8"); a(f"v_add_u32 v{43}, s{sT1}, v{43}")
    a(f"ds_write_b128 v{vAD+1}, {q4(vD)} offset:{L_OP}")
    a(f"v_lshl_add_u32 v{42}, v{vRA}, 10, v{vCO}")
    a(f"v_lshl_add_u32 v{vCO}, v{vRA}, 2, v{vCO}")
    a(f"v_mov_b32 v{vRA}, 0")
    a("s_waitcnt lgkmcnt(0)"); a("s_barrier")
    stamp(5)
    a(f"ds_read_b32 v{vTK}, v{vRA} offset:{L_ROLE}")
    a(f"s_cmp_ge_u32 s{sW}, 2"); a("s_cbranch_scc1 L_nopub")
    red16(43, L_OP, 512, 24)
    a(f"s_add_u32 s{sT1}, s{sT1}, s{sSLOT}")
    a(f"buffer_store_dword v24, v{vCO}, {srd(rWS)}, s{sT1} offen sc1")
    a("L_nopub:")
    a("s_waitcnt lgkmcnt(0)")
    a(f"v_readfirstlane_b32 s{sROLE}, v{vTK}")
    stamp(6)
    vRA16 = 42
    vG2, vJ, vSH, vC3, vPR = 24, 25, 26, 27, 46
    a(f"v_bfe_u32 v{vG2}, v0, 4, 2"); a(f"v_and_b32 v{vJ}, 7, v0"); a(f"v_bfe_u32 v{vSH}, v0, 3, 1")
    a(f"s_cmp_lt_u32 s{sROLE}, {NT2}"); a("s_cbranch_scc1 L_T2")
    a(f"s_cmp_lt_u32 s{sROLE}, {NT2+NT1}"); a("s_cbranch_scc1 L_T1")
    a(f"s_cmp_lt_u32 s{sROLE}, {NT2+NT1+NF}"); a("s_cbranch_scc1 L_F")
    a("s_branch L_exit")

    def p16_write():
        a(f"v_lshrrev_b32 v{vT}, 5, v0"); a(f"v_and_b32 v{vT+1}, 7, v0"); a(f"v_lshlrev_b32 v{vT}, 8, v{vT}")
        a(f"v_lshl_add_u32 v{vT}, v{vT+1}, 5, v{vT}"); a(f"v_bfe_u32 v{vT+1}, v0, 4, 1"); a(f"v_lshl_add_u32 v{vT}, v{vT+1}, 4, v{vT}")

    def p16_store():
        a("s_mov_b32 exec_lo, 0x00ff00ff"); a("s_mov_b32 exec_hi, 0xff00ff00")
        a(f"ds_write_b128 v{vT}, {q4(vD)} offset:{L_P16}")
        a("s_mov_b64 exec, -1")
        a("s_waitcnt lgkmcnt(0)"); a("s_barrier")

    def sum4pairs(v, c=None):
        if c is None:
            for i in range(2):
                a(f"v_add_f32 v{v+i}, v{v+i}, v{v+2+i}"); a(f"v_add_f32 v{v+4+i}, v{v+4+i}, v{v+6+i}")
            for i in range(2): a(f"v_add_f32 v{v+i}, v{v+i}, v{v+4+i}")
        else:
            for i in range(2): a(f"v_mul_f32 v{v+i}, v{v+i}, v{c}")
            for t in range(1, 4):
                for i in range(2): a(f"v_fmac_f32 v{v+i}, v{v+2*t+i}, v{c+2*t}")
        for i in range(2): a(f"v_add_f32_dpp v{v+i}, v{v+i}, v{v+i} row_ror:8 {DPPF}")

    a("L_T1:")
    a(f"s_sub_u32 s{sROLE}, s{sROLE}, {NT2}")
    sA, sB = sT2, sT3
    a(f"s_lshr_b32 s{sA}, s{sROLE}, 3"); a(f"s_and_b32 s{sB}, s{sROLE}, 7")
    mksrd(rT, pWO, 0x400000)
    vO = 28
    a(f"v_lshl_add_u32 v{vO}, v{vG2}, 4, v{vSH}"); a(f"v_lshlrev_b32 v{vO}, 10, v{vO}"); a(f"v_lshl_add_u32 v{vO}, v{vJ}, 4, v{vO}")
    a(f"s_lshl_b32 s{sT0}, s{sA}, 19"); a(f"s_lshl_b32 s{sT1}, s{sW}, 16"); a(f"s_add_u32 s{sT0}, s{sT0}, s{sT1}")
    a(f"s_lshl_b32 s{sT1}, s{sB}, 7"); a(f"s_add_u32 s{sT0}, s{sT0}, s{sT1}")
    for j in range(8):
        a(f"buffer_load_dwordx4 {q4(QREG+4*j)}, v{vO}, {srd(rT)}, s{sT0} offen offset:{(j&1)*2048} nt")
        if j & 1: a(f"s_add_u32 s{sT0}, s{sT0}, 4096")
    a(f"s_lshl_b32 s{sT0}, s{sA}, 2"); a(f"s_lshr_b32 s{sT1}, s{sW}, 1"); a(f"s_add_u32 s{sT0}, s{sT0}, s{sT1}")
    a(f"s_mul_i32 s{sT0}, s{sT0}, {8*SLOT}")
    a(f"v_mul_u32_u24 v{vO}, {4*SLOT}, v{vSH}")
    a(f"v_lshl_add_u32 v{vO+1}, v{vG2}, 3, v{vJ}"); a(f"v_lshl_add_u32 v{vO+1}, v{vO+1}, 3, v{vO}")
    a(f"s_and_b32 s{sT1}, s{sW}, 1"); a(f"s_lshl_b32 s{sT1}, s{sT1}, 8"); a(f"s_add_u32 s{sT1}, s{sT1}, s{sT0}")
    p16_write()
    ML = 32
    poll([f"buffer_load_dwordx2 {q2(ML+2*t)}, v{vO}, {srd(rWS)}, s{sT0} offen offset:{512 + t*SLOT} sc1" for t in range(4)],
         range(ML, ML + 8), 40)
    a(f"v_max3_f32 v40, v{ML}, v{ML+2}, v{ML+4}"); a(f"v_max_f32 v40, v40, v{ML+6}")
    a(f"v_max_f32_dpp v40, v40, v40 row_ror:8 {DPPF}")
    for t in range(4): a(f"v_sub_f32 v{ML+2*t}, v{ML+2*t}, v40")
    for t in range(4): a(f"v_mul_f32 v{ML+2*t}, {LOG2E:#x}, v{ML+2*t}")
    for t in range(4): a(f"v_exp_f32 v{ML+2*t}, v{ML+2*t}")
    a(f"v_mul_f32 v40, v{ML}, v{ML+1}")
    for t in range(1, 4): a(f"v_fmac_f32 v40, v{ML+2*t}, v{ML+2*t+1}")
    a(f"v_add_f32_dpp v40, v40, v40 row_ror:8 {DPPF}")
    a("v_rcp_f32 v40, v40")
    for t in range(4): a(f"v_mul_f32 v{ML+2*t}, v{ML+2*t}, v40")
    OG = KREG
    stamp(7)
    poll([f"buffer_load_dwordx2 {q2(OG+2*t)}, v{vO+1}, {srd(rWS)}, s{sT1} offen offset:{t*SLOT} sc1" for t in range(4)],
         range(OG, OG + 8), 40)
    stamp(8)
    sum4pairs(OG, ML)
    a(f"v_cvt_pk_bf16_f32 v{vPK}, v{OG}, v{OG+1}")
    for j in range(8):
        build_a(j); mfma(j, QREG + 4 * j, j == 0)
    p16_store()
    a(f"s_cmp_lg_u32 s{sW}, 0"); a("s_cbranch_scc1 L_exit")
    red16(vRA16, L_P16, 256, 24)
    a(f"s_lshl_b32 s{sT0}, s{sA}, 11"); a(f"s_lshl_b32 s{sT1}, s{sB}, 8"); a(f"s_add_u32 s{sT0}, s{sT0}, s{sT1}"); a(f"s_add_u32 s{sT0}, s{sT0}, {MB2}")
    a(f"buffer_store_dword v24, v{vCO}, {srd(rWS)}, s{sT0} offen sc1")
    a("s_branch L_exit")

    a("L_T2:")
    vAD64 = 28
    a(f"v_lshl_add_u32 v30, v{vG2}, 4, v{vSH}"); a(f"s_lshl_b32 s{sT0}, s{sW}, 6"); a(f"v_add_u32 v30, s{sT0}, v30")
    a(f"v_mul_u32_u24 v30, 2752, v30")
    a(f"v_and_b32 v31, 3, v0"); a(f"v_lshl_add_u32 v30, v31, 4, v30")
    a(f"s_lshl_b32 s{sT0}, s{sROLE}, 6"); a(f"s_add_u32 s{sT0}, s{sT0}, 2752"); a(f"v_add_u32 v30, s{sT0}, v30")
    a(f"v_mov_b32 v{vAD64}, s{pWG}"); a(f"v_mov_b32 v{vAD64+1}, s{pWG+1}")
    a(f"v_mov_b32 v32, s{pWU}"); a(f"v_mov_b32 v33, s{pWU+1}")
    a("s_mov_b32 vcc_lo, 0xf0f0f0f0"); a("s_mov_b32 vcc_hi, 0xf0f0f0f0")
    a(f"v_cndmask_b32 v{vAD64}, v{vAD64}, v32, vcc"); a(f"v_cndmask_b32 v{vAD64+1}, v{vAD64+1}, v33, vcc")
    a("v_mov_b32 v31, 0")
    a(f"v_lshl_add_u64 {q2(vAD64)}, {q2(30)}, 0, {q2(vAD64)}")
    a(f"s_mov_b32 s{sE}, {4*2752}"); a(f"s_mov_b32 s{sE+1}, 0")
    for j in range(8):
        a(f"global_load_dwordx4 {q4(QREG+4*j)}, {q2(vAD64)}, off offset:{2752 if j & 1 else -2752} nt")
        if j & 1 and j < 7: a(f"v_lshl_add_u64 {q2(vAD64)}, {q2(vAD64)}, 0, s[{sE}:{sE+1}]")
    mksrd(rT, pWD, 1376 * 1024)
    a(f"v_lshl_add_u32 v30, v{vG2}, 3, v{vSH}"); a("v_lshlrev_b32 v30, 10, v30"); a(f"v_lshl_add_u32 v30, v{vJ}, 4, v30")
    a(f"s_lshl_b32 s{sT0}, s{sROLE}, 15"); a(f"s_lshl_b32 s{sT1}, s{sW}, 7"); a(f"s_add_u32 s{sT0}, s{sT0}, s{sT1}")
    DW = QREG + 32
    for j in range(4):
        a(f"buffer_load_dwordx4 {q4(DW+4*j)}, v30, {srd(rT)}, s{sT0} offen offset:{(j&1)*2048} nt")
        if j == 1: a(f"s_add_u32 s{sT0}, s{sT0}, 4096")
    a(f"v_lshl_add_u32 v30, v{vG2}, 3, v{vJ}")
    a(f"v_lshlrev_b32 v31, 2, v30")
    XP = 41
    a(f"buffer_load_dword v{XP}, v31, {srd(rX)}, s{sT1} offen")
    a(f"v_lshlrev_b32 v30, 3, v30"); a(f"v_lshl_add_u32 v30, v{vSH}, 13, v30")
    a(f"s_lshl_b32 s{sT0}, s{sW}, 8"); a(f"s_add_u32 s{sT0}, s{sT0}, {MB2}"); a(f"s_add_u32 s{sT1}, s{sT0}, 4096")
    p16_write()
    vGU = 43
    a(f"v_bfe_u32 v{vGU}, v0, 2, 2"); a(f"v_lshlrev_b32 v{vGU}, 10, v{vGU}"); a(f"v_lshl_add_u32 v{vGU}, v{vG2}, 5, v{vGU}")
    a(f"v_and_b32 v31, 3, v0"); a(f"v_lshl_add_u32 v{vGU}, v31, 3, v{vGU}")
    vY2 = 46
    a(f"v_and_b32 v{vY2}, 1, v{vG2}"); a(f"v_lshlrev_b32 v{vY2}, 4, v{vY2}"); a(f"v_lshl_add_u32 v{vY2}, v{vJ}, 5, v{vY2}")
    a(f"v_lshrrev_b32 v31, 1, v{vG2}"); a(f"v_lshl_add_u32 v{vY2}, v31, 3, v{vY2}")
    a(f"v_lshlrev_b32 v{vJ}, 3, v{vJ}")
    a(f"s_lshl_b32 s{sT2}, s{sW}, 3"); a(f"v_mov_b32 v{vSH}, s{sT2}")
    a(f"s_lshl_b32 s{sT2}, s{sROLE}, 11"); a(f"s_add_u32 s{sT2}, s{sT2}, s{sT0}"); a(f"s_add_u32 s{sT2}, s{sT2}, {MB3-MB2}")
    HG = 32
    stamp(7)
    poll([f"buffer_load_dwordx2 {q2(HG+2*t)}, v30, {srd(rWS)}, s{sT1 if t >= 2 else sT0} offen offset:{(t&1)*2048} sc1" for t in range(4)],
         range(HG, HG + 8), 40)
    stamp(8)
    sum4pairs(HG)
    a(f"v_cvt_pk_bf16_f32 v{HG}, v{HG}, v{HG+1}")
    a(f"v_lshlrev_b32 v{HG+2}, 16, v{XP}"); a(f"v_and_b32 v{HG+3}, 0xffff0000, v{XP}")
    a(f"v_and_b32 v{HG+1}, 0xffff0000, v{HG}"); a(f"v_lshlrev_b32 v{HG}, 16, v{HG}")
    a(f"v_add_f32 v{HG}, v{HG}, v{HG+2}"); a(f"v_add_f32 v{HG+1}, v{HG+1}, v{HG+3}")
    a(f"v_cvt_pk_bf16_f32 v{HG}, v{HG}, v{HG+1}")
    a(f"v_and_b32 v{HG+1}, 0xffff0000, v{HG}"); a(f"v_lshlrev_b32 v{HG}, 16, v{HG}")
    a(f"v_readfirstlane_b32 s{sT3}, v{HG}")
    a(f"v_subrev_f32 v{HG+2}, s{sT3}, v{HG}"); a(f"v_subrev_f32 v{HG+3}, s{sT3}, v{HG+1}")
    a(f"v_add_f32 v{HG+4}, v{HG+2}, v{HG+3}")
    a(f"v_mul_f32 v{HG+5}, v{HG+2}, v{HG+2}"); a(f"v_fmac_f32 v{HG+5}, v{HG+3}, v{HG+3}")
    for m in ("quad_perm:[1,0,3,2] " + DPPF, "quad_perm:[2,3,0,1] " + DPPF, "row_half_mirror " + DPPF,
              "row_bcast:15 row_mask:0xa bank_mask:0xf", "row_bcast:31 row_mask:0xc bank_mask:0xf"):
        for i in (4, 5): a(f"v_add_f32_dpp v{HG+i}, v{HG+i}, v{HG+i} {m}")
    a(f"v_mul_f32 v{HG+2}, 0x3c800000, v{HG+4}")
    a(f"v_fma_f32 v{HG+5}, -v{HG+2}, v{HG+4}, v{HG+5}")
    a(f"v_add_f32 v{HG+4}, s{sT3}, v{HG+2}")
    a("s_mov_b32 exec_lo, 0"); a("s_mov_b32 exec_hi, 0x80000000")
    a(f"ds_write_b64 v{vSH}, {q2(HG+4)} offset:{L_LN}")
    a("s_mov_b64 exec, -1")
    a("s_waitcnt lgkmcnt(0)"); a("s_barrier")
    a(f"ds_read_b64 {q2(HG+4)}, v{vJ} offset:{L_LN}")
    a("s_waitcnt lgkmcnt(0)")
    a(f"v_mov_b32 v{HG+2}, v{HG+4}"); red8("v_add_f32", HG + 2)
    a(f"v_mul_f32 v{HG+2}, 0x3e000000, v{HG+2}")
    a(f"v_sub_f32 v{HG+4}, v{HG+4}, v{HG+2}"); a(f"v_mul_f32 v{HG+3}, 0x42800000, v{HG+4}")
    a(f"v_fmac_f32 v{HG+5}, v{HG+3}, v{HG+4}")
    red8("v_add_f32", HG + 5)
    a(f"v_mul_f32 v{HG+5}, 0x3b000000, v{HG+5}")
    ln_finish(HG + 2, HG + 5, HG + 3)
    a(f"v_sub_f32 v{HG}, v{HG}, v{HG+2}"); a(f"v_sub_f32 v{HG+1}, v{HG+1}, v{HG+2}")
    a(f"v_cvt_pk_bf16_f32 v{HG}, v{HG}, v{HG+1}")
    a(f"v_and_b32 v{HG+1}, 0xffff0000, v{HG}"); a(f"v_lshlrev_b32 v{HG}, 16, v{HG}")
    a(f"v_mul_f32 v{HG}, v{HG}, v{HG+3}"); a(f"v_mul_f32 v{HG+1}, v{HG+1}, v{HG+3}")
    a(f"v_cvt_pk_bf16_f32 v{vPK}, v{HG}, v{HG+1}")
    for j in range(8):
        build_a(j); mfma(j, QREG + 4 * j, j == 0)
    p16_store()
    GU = KREG
    for t in range(4):
        a(f"ds_read_b64 {q2(GU+4*t)}, v{vGU} offset:{L_P16 + 256*t}")
        a(f"ds_read_b64 {q2(GU+4*t+2)}, v{vGU} offset:{L_P16 + 256*t + 128}")
    a("s_waitcnt lgkmcnt(0)")
    for i in range(4):
        a(f"v_add_f32 v{GU+i}, v{GU+i}, v{GU+4+i}"); a(f"v_add_f32 v{GU+8+i}, v{GU+8+i}, v{GU+12+i}")
    for i in range(4): a(f"v_add_f32 v{GU+i}, v{GU+i}, v{GU+8+i}")
    for m in ("row_ror:4", "row_ror:8"):
        for i in range(4): a(f"v_add_f32_dpp v{GU+i}, v{GU+i}, v{GU+i} {m} {DPPF}")
    a(f"v_cvt_pk_bf16_f32 v{GU}, v{GU}, v{GU+1}"); a(f"v_cvt_pk_bf16_f32 v{GU+2}, v{GU+2}, v{GU+3}")
    a(f"v_and_b32 v{GU+1}, 0xffff0000, v{GU}"); a(f"v_lshlrev_b32 v{GU}, 16, v{GU}")
    a(f"v_and_b32 v{GU+3}, 0xffff0000, v{GU+2}"); a(f"v_lshlrev_b32 v{GU+2}, 16, v{GU+2}")
    for i in range(2): a(f"v_mul_f32 v{GU+4+i}, {LOG2E ^ 0x80000000:#x}, v{GU+i}")
    for i in range(2): a(f"v_exp_f32 v{GU+4+i}, v{GU+4+i}")
    for i in range(2): a(f"v_add_f32 v{GU+4+i}, 1.0, v{GU+4+i}")
    for i in range(2): a(f"v_rcp_f32 v{GU+4+i}, v{GU+4+i}")
    for i in range(2): a(f"v_mul_f32 v{GU+i}, v{GU+i}, v{GU+4+i}")
    a(f"v_cvt_pk_bf16_f32 v{GU}, v{GU}, v{GU+1}")
    a(f"v_and_b32 v{GU+1}, 0xffff0000, v{GU}"); a(f"v_lshlrev_b32 v{GU}, 16, v{GU}")
    for i in range(2): a(f"v_mul_f32 v{GU+i}, v{GU+i}, v{GU+2+i}")
    a(f"v_cvt_pk_bf16_f32 v{vPK}, v{GU}, v{GU+1}")
    for j in range(4):
        build_a(j); mfma(j, DW + 4 * j, j == 0)
    for r in range(4): a(f"v_mov_b32_dpp v{vD+r}, v{vD+r} row_ror:8 row_mask:0xc bank_mask:0xf")
    a(f"v_permlane32_swap_b32 v{vD}, v{vD+2}"); a(f"v_permlane32_swap_b32 v{vD+1}, v{vD+3}")
    a(f"v_add_f32 v{vD}, v{vD}, v{vD+2}"); a(f"v_add_f32 v{vD+1}, v{vD+1}, v{vD+3}")
    a("s_mov_b32 exec_lo, 0x00ff00ff"); a("s_mov_b32 exec_hi, 0x00ff00ff")
    a(f"buffer_store_dwordx2 {q2(vD)}, v{vY2}, {srd(rWS)}, s{sT2} offen sc1")
    a("s_mov_b64 exec, -1")
    a("s_branch L_exit")

    a("L_F:")
    a(f"s_sub_u32 s{sROLE}, s{sROLE}, {NT2+NT1}")
    a(f"s_lshl_b32 s{sT0}, s{sROLE}, 3"); a(f"s_add_u32 s{sT0}, s{sT0}, s{sW}")
    mksrd(rT, pOUT, 1024)
    a(f"s_lshl_b32 s{sT3}, s{sT0}, 5")
    a(f"v_and_b32 v28, 3, v0"); a(f"v_lshl_add_u32 v29, v28, 2, v{vG2}"); a("v_lshlrev_b32 v29, 1, v29")
    a(f"buffer_load_ushort v41, v29, {srd(rX)}, s{sT3} offen")
    a(f"v_lshrrev_b32 v30, 2, v{vL}"); a("v_lshlrev_b32 v30, 11, v30"); a("v_lshl_add_u32 v30, v28, 4, v30")
    a(f"s_lshl_b32 s{sT0}, s{sT0}, 6"); a(f"s_add_u32 s{sT0}, s{sT0}, {MB2}")
    for i in range(12): a(f"v_mov_b32 v{KREG+i}, 0")
    for i in range(4): a(f"v_mov_b32 v{32+i}, 0")
    a("s_mov_b32 exec_hi, 0")
    poll([f"buffer_load_dwordx4 {q4(32)}, v30, {srd(rWS)}, s{sT0} offen sc1"], range(32, 36), 40)
    a("s_mov_b64 exec, -1")
    tred4(32)
    for m in ("row_ror:4", "row_ror:8"): a(f"v_add_f32_dpp v32, v32, v32 {m} {DPPF}")
    bf16r(32, 32); a("v_lshlrev_b32 v41, 16, v41"); a("v_add_f32 v32, v32, v41"); bf16r(32, 32)
    a(f"s_add_u32 s{sT0}, s{sT0}, {MB3-MB2}"); a(f"s_add_u32 s{sT1}, s{sT0}, {16*2048}"); a(f"s_add_u32 s{sT2}, s{sT0}, {32*2048}")
    stamp(7)
    poll([f"buffer_load_dwordx4 {q4(KREG)}, v30, {srd(rWS)}, s{sT0} offen sc1",
          f"buffer_load_dwordx4 {q4(KREG+4)}, v30, {srd(rWS)}, s{sT1} offen sc1",
          "s_mov_b32 exec_hi, 0xfff",
          f"buffer_load_dwordx4 {q4(KREG+8)}, v30, {srd(rWS)}, s{sT2} offen sc1",
          "s_mov_b32 exec_hi, -1"], range(KREG, KREG + 12), 40)
    stamp(8)
    for i in range(4): a(f"v_add_f32 v{KREG+i}, v{KREG+i}, v{KREG+4+i}")
    for i in range(4): a(f"v_add_f32 v{KREG+i}, v{KREG+i}, v{KREG+8+i}")
    tred4(KREG)
    for m in ("row_ror:4", "row_ror:8"): a(f"v_add_f32_dpp v{KREG}, v{KREG}, v{KREG} {m} {DPPF}")
    bf16r(KREG, KREG); a(f"v_add_f32 v32, v32, v{KREG}")
    a("v_cvt_pk_bf16_f32 v32, v32, v32")
    a("s_mov_b32 exec_lo, 0x000f000f"); a("s_mov_b32 exec_hi, 0x000f000f")
    a(f"buffer_store_short v32, v29, {srd(rT)}, s{sT3} offen")

    a("L_exit:")
    if stamps:
        a("s_mov_b64 exec, -1")
        a(f"s_memrealtime s[{sE}:{sE+1}]")
        a(f"s_getreg_b32 s{sT0}, hwreg(HW_REG_XCC_ID)")
        a("s_waitcnt lgkmcnt(0)")
        for i in range(9): a(f"v_mov_b32 v{KREG+i}, s{sSTAMP+2*i}")
        a(f"v_mov_b32 v{KREG+9}, s{sE}"); a(f"v_mov_b32 v{KREG+10}, v{vTK}"); a(f"v_mov_b32 v{KREG+11}, s{sT0}")
        a(f"s_lshl_b32 s{sT0}, s2, 3"); a(f"s_add_u32 s{sT0}, s{sT0}, s{sW}"); a(f"s_lshl_b32 s{sT0}, s{sT0}, 6"); a(f"s_add_u32 s{sT0}, s{sT0}, {STAMP}")
        a("s_mov_b64 exec, 1")
        for i in range(3): a(f"buffer_store_dwordx4 {q4(KREG+4*i)}, off, {srd(rWS)}, s{sT0} offset:{16*i}")
    a("L_end:")
    a("s_endpgm")

    out = HEADER + f"; @launch grid=(256,1,1) block=(512,1,1) lds={L_END}\n"
    out += f'.amdgcn_target "amdgcn-amd-amdhsa--gfx950"\n.text\n.globl {KNAME}\n.p2align 8\n.type {KNAME},@function\n'
    out += a.render()
    out += f'''.section .rodata,"a"
.p2align 6
.amdhsa_kernel {KNAME}
  .amdhsa_next_free_vgpr {NV}
  .amdhsa_next_free_sgpr 102
  .amdhsa_accum_offset {NV}
  .amdhsa_group_segment_fixed_size 0
  .amdhsa_kernarg_size 96
  .amdhsa_user_sgpr_count 2
  .amdhsa_user_sgpr_kernarg_segment_ptr 1
  .amdhsa_system_sgpr_workgroup_id_x 1
  .amdhsa_float_denorm_mode_32 3
.end_amdhsa_kernel
'''
    return out


if __name__ == "__main__":
    kw = {}
    for arg in sys.argv[2:]:
        k, v = arg.split("=")
        kw[k] = eval(v)
    open(sys.argv[1], "w").write(gen(**kw))
```

```python
import sys
from asmlib import Asm

KNAME = "sequential_preLN__sliding_block_cached__swiglu_ffn__decode_kernel"
HEADER = open("sequential_preLN__sliding_block_cached__swiglu_ffn__decode.s.ref").read().split("; Override launch")[0]

LOG2E = 0x3FB8AA3B
SCALE = 0x3DB504F3
EPS = 0x3727C5AC

SLOT = 640
MB1 = 0
MB2 = 256 * SLOT
MB3 = MB2 + 8 * 2048
CLR_END = MB2 + 256 * 512
STAMP = 1 << 20
WS_SIZE = 2 << 20
L_QP, L_QB, L_ST, L_ROLE, L_OP, L_P16, L_LN, L_END = 0, 4096, 6144, 6208, 6272, 14464, 18560, 18688

NT2, NT1, NF = 43, 64, 4
DPPF = "row_mask:0xf bank_mask:0xf"

sH, sSP, sW, sROT, sBUD = 3, 4, 5, 6, 7
pX, pK, pV, pWQ, pWO, pWG, pWU, pWD, pOUT, pDBG, pWS = 8, 10, 12, 14, 16, 20, 22, 24, 26, 28, 30
rK, rV, rQ, rX, rWS, rDBG, rT = 32, 36, 40, 44, 48, 52, 56
sOFF = 60
sT0, sT1, sT2, sT3 = 76, 77, 78, 79
sROLE, sSLOT = 80, 81
sE = 82
sSTAMP = 84
vL, vKV, vQO = 1, 2, 3
vSEL, vA, vD, vPK, vB = 4, 8, 16, 20, 21
vT = 22
KREG, VREG, QREG = 48, 112, 176
NV = 240


def q4(r): return f"v[{r}:{r+3}]"
def q2(r): return f"v[{r}:{r+1}]"
def srd(r): return f"s[{r}:{r+3}]"


def gen(W=8, stamps=False, budget=1 << 20, static_roles=False, ticket_at=13, qpol="nt", rotq=True, kvpol="nt", probe=0):
    a = Asm()
    nstamp = [0]

    def stamp(i):
        if stamps:
            a(f"s_memrealtime s[{sSTAMP+2*i}:{sSTAMP+2*i+1}]")

    def mksrd(r, p, size, add=None):
        if add is None:
            a(f"s_mov_b32 s{r}, s{p}"); a(f"s_mov_b32 s{r+1}, s{p+1}")
        else:
            a(f"s_add_u32 s{r}, s{p}, s{add}"); a(f"s_addc_u32 s{r+1}, s{p+1}, 0")
        a(f"s_mov_b32 s{r+2}, {size}"); a(f"s_mov_b32 s{r+3}, 0x20000")

    def bf16r(d, s):
        a(f"v_cvt_pk_bf16_f32 v{d}, v{s}, v{s}"); a(f"v_and_b32 v{d}, 0xffff0000, v{d}")

    def wave_red(op, v, s):
        for m in ("quad_perm:[1,0,3,2]", "quad_perm:[2,3,0,1]", "row_half_mirror", "row_mirror"):
            a(f"{op}_dpp v{v}, v{v}, v{v} {m} {DPPF}")
        a(f"{op}_dpp v{v}, v{v}, v{v} row_bcast:15 row_mask:0xa bank_mask:0xf")
        a(f"{op}_dpp v{v}, v{v}, v{v} row_bcast:31 row_mask:0xc bank_mask:0xf")
        a(f"v_readlane_b32 s{s}, v{v}, 63")

    def red8(op, v):
        for m in ("quad_perm:[1,0,3,2]", "quad_perm:[2,3,0,1]", "row_half_mirror"):
            a(f"{op}_dpp v{v}, v{v}, v{v} {m} {DPPF}")

    def build_a(j):
        A = vA + 4 * (j & 1)
        a(f"v_mov_b32_dpp v{vB}, v{vPK} row_newbcast:{j} {DPPF}")
        for r in range(4):
            a(f"v_perm_b32 v{A+r}, v{vB}, v{vB}, v{vSEL+r}")

    def mfma(j, b, first):
        A = vA + 4 * (j & 1)
        a(f"v_mfma_f32_16x16x32_bf16 {q4(vD)}, {q4(A)}, {q4(b)}, {'0' if first else q4(vD)}")

    def tred4(v):
        a(f"v_permlane32_swap_b32 v{v}, v{v+2}"); a(f"v_permlane32_swap_b32 v{v+1}, v{v+3}")
        a(f"v_add_f32 v{v}, v{v}, v{v+2}"); a(f"v_add_f32 v{v+1}, v{v+1}, v{v+3}")
        a(f"v_permlane16_swap_b32 v{v}, v{v+1}")
        a(f"v_add_f32 v{v}, v{v}, v{v+1}")

    def red16(vaddr, base, ps, v):
        for t in range(4):
            a(f"ds_read_b128 {q4(v+4*t)}, v{vaddr} offset:{base + t*ps}")
        a("s_waitcnt lgkmcnt(0)")
        for i in range(4):
            a(f"v_add_f32 v{v+i}, v{v+i}, v{v+4+i}"); a(f"v_add_f32 v{v+8+i}, v{v+8+i}, v{v+12+i}")
        for i in range(4):
            a(f"v_add_f32 v{v+i}, v{v+i}, v{v+8+i}")
        tred4(v)

    npoll = [0]

    def poll(loads, regs_, tmp):
        n = npoll[0]; npoll[0] += 1
        a(f"L_poll{n}:")
        for ld in loads: a(ld)
        a(f"s_sub_u32 s{sBUD}, s{sBUD}, 1"); a("s_cbranch_scc1 L_exit")
        a("s_waitcnt vmcnt(0)")
        rs = list(regs_)
        a(f"v_max3_u32 v{tmp}, v{rs[0]}, v{rs[1]}, v{rs[2]}" if len(rs) > 2 else f"v_max_u32 v{tmp}, v{rs[0]}, v{rs[1]}")
        rs = rs[3:]
        while rs:
            if len(rs) >= 2:
                a(f"v_max3_u32 v{tmp}, v{tmp}, v{rs[0]}, v{rs[1]}"); rs = rs[2:]
            else:
                a(f"v_max_u32 v{tmp}, v{tmp}, v{rs[0]}"); rs = rs[1:]
        a(f"v_cmp_eq_u32 vcc, -1, v{tmp}")
        a(f"s_cbranch_vccnz L_poll{n}")

    def ln_finish(vmean, vvar, vr):
        bf16r(vmean, vmean); bf16r(vvar, vvar)
        a(f"v_add_f32 v{vvar}, {EPS:#x}, v{vvar}"); bf16r(vvar, vvar)
        a(f"v_sqrt_f32 v{vvar}, v{vvar}"); bf16r(vvar, vvar)
        a(f"v_rcp_f32 v{vr}, v{vvar}")

    a(f"{KNAME}:")
    if stamps:
        for i in range(2, 18): a(f"s_mov_b32 s{sSTAMP+i}, 0")
    stamp(0)
    a("s_cmp_ge_u32 s2, 256"); a("s_cbranch_scc1 L_end")
    a(f"s_load_dwordx16 s[8:23], s[0:1], 0"); a(f"s_load_dwordx8 s[24:31], s[0:1], 64")
    a(f"s_and_b32 s{sH}, s2, 31"); a(f"s_lshr_b32 s{sSP}, s2, 5")
    a(f"v_lshrrev_b32 v{vT}, 6, v0"); a(f"v_and_b32 v{vL}, 63, v0")
    a(f"v_readfirstlane_b32 s{sW}, v{vT}")
    a(f"v_lshlrev_b32 v{vKV}, 4, v0")
    a(f"s_lshl_b32 s{sROT}, s{sSP}, 1"); a(f"s_add_u32 s{sROT}, s{sROT}, s{sH}")
    for j in range(16):
        a(f"s_add_u32 s{sT0}, s{sROT}, {j}"); a(f"s_and_b32 s{sT0}, s{sT0}, 15"); a(f"s_lshl_b32 s{sOFF+j}, s{sT0}, 13")
    a(f"s_lshl_b32 s{sT0}, s{sH}, 23"); a(f"s_lshl_b32 s{sT1}, s{sSP}, 17"); a(f"s_add_u32 s{sT0}, s{sT0}, s{sT1}")
    a(f"s_add_u32 s{sT0}, s{sT0}, {(32768-4096)*256}")
    a(f"s_mov_b32 s{sBUD}, {budget}")
    a(f"s_lshl_b32 s{sSLOT}, s{sH}, 3"); a(f"s_add_u32 s{sSLOT}, s{sSLOT}, s{sSP}"); a(f"s_mul_i32 s{sSLOT}, s{sSLOT}, {SLOT}")
    vG, vC = vT, vT + 1
    a(f"v_lshrrev_b32 v{vG}, 4, v0")
    a(f"v_and_b32 v{vC}, 15, v0")
    a(f"v_lshlrev_b32 v{vQO}, 13, v{vG}"); a(f"v_lshl_add_u32 v{vQO}, v{vC}, 4, v{vQO}")
    a(f"s_lshl_b32 s{sT1}, s{sH}, 8"); a(f"v_add_u32 v{vQO}, s{sT1}, v{vQO}")
    vXO = vT + 2
    if rotq:
        a(f"v_add_u32 v{vXO}, s{sROT}, v{vC}"); a(f"v_and_b32 v{vXO}, 15, v{vXO}")
    else:
        a(f"v_add_u32 v{vXO}, s{sH}, v{vC}"); a(f"v_and_b32 v{vXO}, 15, v{vXO}")
    a(f"v_lshl_add_u32 v{vXO}, v{vXO}, 5, v{vG}"); a(f"v_lshlrev_b32 v{vXO}, 1, v{vXO}")
    vXA = vT + 3
    a(f"v_lshlrev_b32 v{vXA}, 4, v{vL}")
    a("s_waitcnt lgkmcnt(0)")
    stamp(1)
    mksrd(rK, pK, 0x20000, sT0)

    seq = [("k", 0), ("xa", 0), ("xo", 0), ("q", 0)]
    for j in range(1, 16): seq += [("k", j), ("q", j)]
    seq += [("v", j) for j in range(16)]
    pos = {op: i for i, op in enumerate(seq)}
    issued = [0]
    XA, XO = 28, 27

    def issue_to(n):
        while issued[0] < min(n, len(seq)):
            kind, j = seq[issued[0]]
            if kind == "k": a.vmem(f"buffer_load_dwordx4 {q4(KREG+4*j)}, v{vKV}, {srd(rK)}, s{sOFF+j} offen {kvpol}", (kind, j))
            elif kind == "v":
                if j == ticket_at: ticket()
                a.vmem(f"buffer_load_dwordx4 {q4(VREG+4*j)}, v{vKV}, {srd(rV)}, s{sOFF+j} offen {kvpol}", (kind, j))
            elif kind == "q":
                if rotq:
                    a(f"s_lshl_b32 s{sT3}, s{sOFF+j}, 5")
                else:
                    a(f"s_add_u32 s{sT3}, s{sH}, {j}"); a(f"s_and_b32 s{sT3}, s{sT3}, 15"); a(f"s_lshl_b32 s{sT3}, s{sT3}, 18")
                a.vmem(f"buffer_load_dwordx4 {q4(QREG+4*j)}, v{vQO}, {srd(rQ)}, s{sT3} offen {qpol}", (kind, j))
            elif kind == "xa": a.vmem(f"buffer_load_dwordx4 {q4(XA)}, v{vXA}, {srd(rX)}, 0 offen", (kind, j))
            elif kind == "xo": a.vmem(f"buffer_load_ushort v{XO}, v{vXO}, {srd(rX)}, 0 offen", (kind, j))
            issued[0] += 1

    vTK = 47

    def ticket():
        a(f"s_cmp_lg_u32 s{sW}, 0"); a("s_cbranch_scc1 L_noticket")
        a(f"v_mov_b32 v{vTK}, 0x10000"); a("s_mov_b64 exec, 1")
        a(f"buffer_atomic_add v{vTK}, off, {srd(rDBG)}, 0 sc0")
        a("s_mov_b64 exec, -1")
        a("L_noticket:")

    issue_to(1)
    mksrd(rX, pX, 1024); mksrd(rQ, pWQ, 0x400000)
    issue_to(4)
    mksrd(rV, pV, 0x20000, sT0); mksrd(rWS, pWS, WS_SIZE); mksrd(rDBG, pDBG, 256)
    a(f"s_cmp_lg_u32 s{sW}, 7"); a("s_cbranch_scc1 L_noclear")
    c0 = 40
    for i in range(4): a(f"v_mov_b32 v{c0+i}, -1")
    a(f"s_lshl_b32 s{sT1}, s2, 9"); a(f"s_add_u32 s{sT1}, s{sT1}, {MB2}")
    a("s_mov_b32 exec_hi, 0")
    a(f"buffer_store_dwordx4 {q4(c0)}, v{vXA}, {srd(rWS)}, s{sT1} offen sc1")
    a(f"s_mov_b32 exec_hi, 0xff")
    a(f"buffer_store_dwordx4 {q4(c0)}, v{vXA}, {srd(rWS)}, s{sSLOT} offen sc1")
    a("s_mov_b64 exec, -1")
    a("L_noclear:")
    issue_to(W)
    t0, t1, t2 = 32, 33, 34
    a(f"v_and_b32 v{t0}, 8, v0"); a(f"v_mov_b32 v{t1}, 0x0100"); a(f"v_mov_b32 v{t2}, 0x0302")
    a(f"v_cmp_ne_u32 vcc, 0, v{t0}"); a(f"v_cndmask_b32 v{t1}, v{t1}, v{t2}, vcc")
    a(f"v_or_b32 v{t2}, 0x0c0c0000, v{t1}")
    a(f"v_lshlrev_b32 v{t1}, 16, v{t1}"); a(f"v_or_b32 v{t1}, 0x0c0c, v{t1}")
    a(f"v_and_b32 v{t0}, 1, v0"); a(f"v_cmp_ne_u32 vcc, 0, v{t0}"); a(f"v_cndmask_b32 v{t1}, v{t2}, v{t1}, vcc")
    a(f"v_bfe_u32 v{t0}, v0, 1, 2"); a(f"v_mov_b32 v{t2}, 0x0c0c0c0c")
    for r in range(4):
        a(f"v_cmp_eq_u32 vcc, {r}, v{t0}"); a(f"v_cndmask_b32 v{vSEL+r}, v{t2}, v{t1}, vcc")

    a.wait_vm(("xo", 0))
    stamp(2)
    U = 32
    for i in range(4):
        a(f"v_lshlrev_b32 v{U+2*i}, 16, v{XA+i}"); a(f"v_and_b32 v{U+2*i+1}, 0xffff0000, v{XA+i}")
    S, M_, R_ = 40, 41, 42
    a(f"v_add_f32 v{S}, v{U}, v{U+1}")
    for i in range(2, 8): a(f"v_add_f32 v{S}, v{S}, v{U+i}")
    wave_red("v_add_f32", S, sT1)
    a(f"v_mov_b32 v{M_}, 0x3b000000"); a(f"v_mul_f32 v{M_}, s{sT1}, v{M_}")
    for i in range(8): a(f"v_sub_f32 v{U+i}, v{U+i}, v{M_}")
    a(f"v_mul_f32 v{S}, v{U}, v{U}")
    for i in range(1, 8): a(f"v_fmac_f32 v{S}, v{U+i}, v{U+i}")
    wave_red("v_add_f32", S, sT1)
    a(f"v_mov_b32 v{S}, 0x3b000000"); a(f"v_mul_f32 v{S}, s{sT1}, v{S}")
    ln_finish(M_, S, R_)
    a(f"v_lshlrev_b32 v{XO}, 16, v{XO}"); a(f"v_sub_f32 v{XO}, v{XO}, v{M_}"); bf16r(XO, XO)
    a(f"v_mul_f32 v{XO}, v{XO}, v{R_}")
    a(f"v_cvt_pk_bf16_f32 v{vPK}, v{XO}, 0")

    for j in range(16):
        issue_to(pos[("q", j)] + W)
        build_a(j)
        a.wait_vm(("q", j))
        mfma(j, QREG + 4 * j, j == 0)
        if j == 3:
            a(f"s_cmp_lg_u32 s{sW}, 7"); a("s_cbranch_scc1 L_nocount")
            a(f"v_mov_b32 v{vTK}, 1"); a("s_mov_b64 exec, 1")
            a(f"buffer_atomic_add v{vTK}, off, {srd(rDBG)}, 0")
            a("s_mov_b64 exec, -1")
            a("L_nocount:")
    vAD = vT
    a(f"v_and_b32 v{vAD}, 15, v0"); a(f"v_bfe_u32 v{vAD+1}, v0, 4, 1")
    a(f"v_lshlrev_b32 v{vAD}, 5, v{vAD}"); a(f"v_lshl_add_u32 v{vAD}, v{vAD+1}, 4, v{vAD}")
    a(f"s_lshl_b32 s{sT1}, s{sW}, 9"); a(f"v_add_u32 v{vAD+1}, s{sT1}, v{vAD}")
    a("s_mov_b32 exec_hi, 0")
    a(f"ds_write_b128 v{vAD+1}, {q4(vD)} offset:{L_QP}")
    a("s_mov_b64 exec, -1")
    a("s_waitcnt lgkmcnt(0)"); a("s_barrier")
    stamp(3)
    a(f"v_lshlrev_b32 v{vAD+1}, 3, v{vL}")
    P = 24
    for w in range(8): a(f"ds_read_b64 {q2(P+2*w)}, v{vAD+1} offset:{L_QP + 512*w}")
    issue_to(issued[0] + 1)
    a(f"s_lshl_b32 s{sT1}, s{sW}, 8")
    a(f"v_lshl_add_u32 v{vAD+1}, v{vL}, 2, s{sT1}")
    a("s_waitcnt lgkmcnt(0)")
    for st in (8, 4, 2):
        for i in range(st): a(f"v_add_f32 v{P+i}, v{P+i}, v{P+i+st}")
    a(f"v_cvt_pk_bf16_f32 v{P}, v{P}, v{P+1}")
    a(f"ds_write_b32 v{vAD+1}, v{P} offset:{L_QB}")
    a(f"v_and_b32 v{vAD+1}, 15, v0"); a(f"v_lshl_add_u32 v{vAD+1}, v{vAD+1}, 4, s{sT1}")
    QP = 40
    a(f"ds_read_b128 {q4(QP)}, v{vAD+1} offset:{L_QB}")
    a.wait_vm(("k", 15))
    a("s_waitcnt lgkmcnt(0)")

    SJ = 24
    for i in range(4):
        for j in range(16):
            a(f"v_dot2_f32_bf16 v{SJ+j}, v{KREG+4*j+i}, v{QP+i}, {'0' if i == 0 else 'v%d' % (SJ+j)}")
        if i == 1: issue_to(issued[0] + 1)
    for j in range(8):
        a(f"v_add_f32_dpp v{SJ+j}, v{SJ+j}, v{SJ+j} row_ror:8 row_mask:0xf bank_mask:0x3")
    for j in range(8):
        a(f"v_add_f32_dpp v{SJ+j}, v{SJ+j+8}, v{SJ+j+8} row_ror:8 row_mask:0xf bank_mask:0xc")
    for j in range(4):
        a(f"v_add_f32_dpp v{SJ+j}, v{SJ+j}, v{SJ+j} row_half_mirror row_mask:0xf bank_mask:0x5")
    for j in range(4):
        a(f"v_add_f32_dpp v{SJ+j}, v{SJ+j+4}, v{SJ+j+4} row_half_mirror row_mask:0xf bank_mask:0xa")
    for j in range(4):
        a(f"v_add_f32_dpp v{SJ+j}, v{SJ+j}, v{SJ+j} quad_perm:[1,0,3,2] {DPPF}")
    a("s_mov_b32 vcc_lo, 0xaaaaaaaa"); a("s_mov_b32 vcc_hi, 0xaaaaaaaa")
    a(f"v_cndmask_b32 v{SJ}, v{SJ}, v{SJ+1}, vcc"); a(f"v_cndmask_b32 v{SJ+2}, v{SJ+2}, v{SJ+3}, vcc")
    a(f"v_add_f32_dpp v{SJ}, v{SJ}, v{SJ} quad_perm:[2,3,0,1] {DPPF}")
    a(f"v_add_f32_dpp v{SJ+2}, v{SJ+2}, v{SJ+2} quad_perm:[2,3,0,1] {DPPF}")
    a("s_mov_b32 vcc_lo, 0xcccccccc"); a("s_mov_b32 vcc_hi, 0xcccccccc")
    SC = SJ
    a(f"v_cndmask_b32 v{SC}, v{SJ}, v{SJ+2}, vcc")
    issue_to(issued[0] + 1)
    if probe != 1: bf16r(SC, SC)
    a(f"v_mul_f32 v{SC}, {SCALE:#x}, v{SC}")
    if probe not in (1, 2): bf16r(SC, SC)
    T = 26
    a(f"v_mov_b32 v{T}, v{SC}"); wave_red("v_max_f32", T, sT1)
    a(f"v_subrev_f32 v{T}, s{sT1}, v{SC}"); a(f"v_mul_f32 v{T}, {LOG2E:#x}, v{T}"); a(f"v_exp_f32 v{T}, v{T}")
    wave_red("v_add_f32", T, sT2)
    a(f"v_mov_b32 v{T}, s{sT1}"); a(f"v_mov_b32 v{T+1}, s{sT2}")
    a(f"s_lshl_b32 s{sT1}, s{sW}, 3"); a(f"v_mov_b32 v{T+2}, s{sT1}")
    a("s_mov_b64 exec, 1"); a(f"ds_write_b64 v{T+2}, {q2(T)} offset:{L_ST}"); a("s_mov_b64 exec, -1")
    a(f"v_and_b32 v{T+2}, 7, v0"); a(f"v_lshlrev_b32 v{T+2}, 3, v{T+2}")
    a("s_waitcnt lgkmcnt(0)"); a("s_barrier")
    a(f"ds_read_b64 {q2(T)}, v{T+2} offset:{L_ST}")
    issue_to(issued[0] + 1)
    a("s_waitcnt lgkmcnt(0)")
    MM = 30
    a(f"v_mov_b32 v{MM}, v{T}"); red8("v_max_f32", MM)
    a(f"v_sub_f32 v{T}, v{T}, v{MM}"); a(f"v_sub_f32 v{SC}, v{SC}, v{MM}")
    a(f"v_mul_f32 v{T}, {LOG2E:#x}, v{T}"); a(f"v_mul_f32 v{SC}, {LOG2E:#x}, v{SC}")
    a(f"v_exp_f32 v{T}, v{T}"); a(f"v_exp_f32 v{SC}, v{SC}")
    a(f"v_mul_f32 v{MM+1}, v{T}, v{T+1}"); red8("v_add_f32", MM + 1)
    a(f"s_cmp_lg_u32 s{sW}, 7"); a("s_cbranch_scc1 L_noml")
    a("s_mov_b64 exec, 1")
    a(f"buffer_store_dwordx2 {q2(MM)}, off, {srd(rWS)}, s{sSLOT} offset:512 sc1")
    a("s_mov_b64 exec, -1")
    a("L_noml:")
    bf16r(T, SC); a(f"v_sub_f32 v{T}, v{SC}, v{T}")
    a(f"v_cvt_pk_bf16_f32 v{vPK}, v{SC}, v{T}")
    stamp(4)

    for j in range(16):
        issue_to(pos[("v", j)] + W)
        build_a(j)
        a.wait_vm(("v", j))
        mfma(j, VREG + 4 * j, j == 0)
        if j == max(ticket_at, 12):
            a(f"s_cmp_lg_u32 s{sW}, 0"); a("s_cbranch_scc1 L_norole")
            a(f"v_readfirstlane_b32 s{sROLE}, v{vTK}")
            a(f"s_and_b32 s{sT1}, s{sROLE}, 0xffff"); a(f"s_lshr_b32 s{sROLE}, s{sROLE}, 16")
            a(f"s_cmp_eq_u32 s{sT1}, 256"); a("s_cbranch_scc1 L_cleared")
            a("L_waitclear:")
            a(f"buffer_load_dword v{vTK}, off, {srd(rDBG)}, 0 sc1")
            a(f"s_sub_u32 s{sBUD}, s{sBUD}, 1"); a("s_cbranch_scc1 L_exit")
            a("s_waitcnt vmcnt(0)")
            a(f"v_readfirstlane_b32 s{sT1}, v{vTK}"); a(f"s_and_b32 s{sT1}, s{sT1}, 0xffff")
            a(f"s_cmp_eq_u32 s{sT1}, 256"); a("s_cbranch_scc0 L_waitclear")
            a("L_cleared:")
            if static_roles: a(f"s_mov_b32 s{sROLE}, s2")
            a(f"v_mov_b32 v{vTK}, s{sROLE}"); a(f"v_mov_b32 v{vTK-1}, 0")
            a(f"ds_write_b32 v{vTK-1}, v{vTK} offset:{L_ROLE}")
            a("L_norole:")
    a(f"v_lshrrev_b32 v{vAD+1}, 5, v0"); a(f"v_lshl_add_u32 v{vAD+1}, v{vAD+1}, 9, v{vAD}")
    vRA, vCO = 44, 45
    a(f"v_and_b32 v{vCO}, 15, v0"); a(f"v_bfe_u32 v{vRA}, v0, 4, 2")
    a(f"v_lshlrev_b32 v{vCO}, 4, v{vCO}")
    a(f"v_lshl_add_u32 v{43}, v{vRA}, 11, v{vCO}")
    a(f"s_lshl_b32 s{sT1}, s{sW}, 8"); a(f"v_add_u32 v{43}, s{sT1}, v{43}")
    a(f"ds_write_b128 v{vAD+1}, {q4(vD)} offset:{L_OP}")
    a(f"v_lshl_add_u32 v{42}, v{vRA}, 10, v{vCO}")
    a(f"v_lshl_add_u32 v{vCO}, v{vRA}, 2, v{vCO}")
    a(f"v_mov_b32 v{vRA}, 0")
    a("s_waitcnt lgkmcnt(0)"); a("s_barrier")
    stamp(5)
    a(f"ds_read_b32 v{vTK}, v{vRA} offset:{L_ROLE}")
    a(f"s_cmp_ge_u32 s{sW}, 2"); a("s_cbranch_scc1 L_nopub")
    red16(43, L_OP, 512, 24)
    a(f"s_add_u32 s{sT1}, s{sT1}, s{sSLOT}")
    a(f"buffer_store_dword v24, v{vCO}, {srd(rWS)}, s{sT1} offen sc1")
    a("L_nopub:")
    a("s_waitcnt lgkmcnt(0)")
    a(f"v_readfirstlane_b32 s{sROLE}, v{vTK}")
    stamp(6)
    vRA16 = 42
    vG2, vJ, vSH, vC3, vPR = 24, 25, 26, 27, 46
    a(f"v_bfe_u32 v{vG2}, v0, 4, 2"); a(f"v_and_b32 v{vJ}, 7, v0"); a(f"v_bfe_u32 v{vSH}, v0, 3, 1")
    a(f"s_cmp_lt_u32 s{sROLE}, {NT2}"); a("s_cbranch_scc1 L_T2")
    a(f"s_cmp_lt_u32 s{sROLE}, {NT2+NT1}"); a("s_cbranch_scc1 L_T1")
    a(f"s_cmp_lt_u32 s{sROLE}, {NT2+NT1+NF}"); a("s_cbranch_scc1 L_F")
    a("s_branch L_exit")

    def p16_write():
        a(f"v_lshrrev_b32 v{vT}, 5, v0"); a(f"v_and_b32 v{vT+1}, 7, v0"); a(f"v_lshlrev_b32 v{vT}, 8, v{vT}")
        a(f"v_lshl_add_u32 v{vT}, v{vT+1}, 5, v{vT}"); a(f"v_bfe_u32 v{vT+1}, v0, 4, 1"); a(f"v_lshl_add_u32 v{vT}, v{vT+1}, 4, v{vT}")

    def p16_store():
        a("s_mov_b32 exec_lo, 0x00ff00ff"); a("s_mov_b32 exec_hi, 0xff00ff00")
        a(f"ds_write_b128 v{vT}, {q4(vD)} offset:{L_P16}")
        a("s_mov_b64 exec, -1")
        a("s_waitcnt lgkmcnt(0)"); a("s_barrier")

    def sum4pairs(v, c=None):
        if c is None:
            for i in range(2):
                a(f"v_add_f32 v{v+i}, v{v+i}, v{v+2+i}"); a(f"v_add_f32 v{v+4+i}, v{v+4+i}, v{v+6+i}")
            for i in range(2): a(f"v_add_f32 v{v+i}, v{v+i}, v{v+4+i}")
        else:
            for i in range(2): a(f"v_mul_f32 v{v+i}, v{v+i}, v{c}")
            for t in range(1, 4):
                for i in range(2): a(f"v_fmac_f32 v{v+i}, v{v+2*t+i}, v{c+2*t}")
        for i in range(2): a(f"v_add_f32_dpp v{v+i}, v{v+i}, v{v+i} row_ror:8 {DPPF}")

    a("L_T1:")
    a(f"s_sub_u32 s{sROLE}, s{sROLE}, {NT2}")
    sA, sB = sT2, sT3
    a(f"s_lshr_b32 s{sA}, s{sROLE}, 3"); a(f"s_and_b32 s{sB}, s{sROLE}, 7")
    mksrd(rT, pWO, 0x400000)
    vO = 28
    a(f"v_lshl_add_u32 v{vO}, v{vG2}, 4, v{vSH}"); a(f"v_lshlrev_b32 v{vO}, 10, v{vO}"); a(f"v_lshl_add_u32 v{vO}, v{vJ}, 4, v{vO}")
    a(f"s_lshl_b32 s{sT0}, s{sA}, 19"); a(f"s_lshl_b32 s{sT1}, s{sW}, 16"); a(f"s_add_u32 s{sT0}, s{sT0}, s{sT1}")
    a(f"s_lshl_b32 s{sT1}, s{sB}, 7"); a(f"s_add_u32 s{sT0}, s{sT0}, s{sT1}")
    for j in range(8):
        a(f"buffer_load_dwordx4 {q4(QREG+4*j)}, v{vO}, {srd(rT)}, s{sT0} offen offset:{(j&1)*2048} nt")
        if j & 1: a(f"s_add_u32 s{sT0}, s{sT0}, 4096")
    a(f"s_lshl_b32 s{sT0}, s{sA}, 2"); a(f"s_lshr_b32 s{sT1}, s{sW}, 1"); a(f"s_add_u32 s{sT0}, s{sT0}, s{sT1}")
    a(f"s_mul_i32 s{sT0}, s{sT0}, {8*SLOT}")
    a(f"v_mul_u32_u24 v{vO}, {4*SLOT}, v{vSH}")
    a(f"v_lshl_add_u32 v{vO+1}, v{vG2}, 3, v{vJ}"); a(f"v_lshl_add_u32 v{vO+1}, v{vO+1}, 3, v{vO}")
    a(f"s_and_b32 s{sT1}, s{sW}, 1"); a(f"s_lshl_b32 s{sT1}, s{sT1}, 8"); a(f"s_add_u32 s{sT1}, s{sT1}, s{sT0}")
    p16_write()
    ML = 32
    poll([f"buffer_load_dwordx2 {q2(ML+2*t)}, v{vO}, {srd(rWS)}, s{sT0} offen offset:{512 + t*SLOT} sc1" for t in range(4)],
         range(ML, ML + 8), 40)
    a(f"v_max3_f32 v40, v{ML}, v{ML+2}, v{ML+4}"); a(f"v_max_f32 v40, v40, v{ML+6}")
    a(f"v_max_f32_dpp v40, v40, v40 row_ror:8 {DPPF}")
    for t in range(4): a(f"v_sub_f32 v{ML+2*t}, v{ML+2*t}, v40")
    for t in range(4): a(f"v_mul_f32 v{ML+2*t}, {LOG2E:#x}, v{ML+2*t}")
    for t in range(4): a(f"v_exp_f32 v{ML+2*t}, v{ML+2*t}")
    a(f"v_mul_f32 v40, v{ML}, v{ML+1}")
    for t in range(1, 4): a(f"v_fmac_f32 v40, v{ML+2*t}, v{ML+2*t+1}")
    a(f"v_add_f32_dpp v40, v40, v40 row_ror:8 {DPPF}")
    a("v_rcp_f32 v40, v40")
    for t in range(4): a(f"v_mul_f32 v{ML+2*t}, v{ML+2*t}, v40")
    OG = KREG
    stamp(7)
    poll([f"buffer_load_dwordx2 {q2(OG+2*t)}, v{vO+1}, {srd(rWS)}, s{sT1} offen offset:{t*SLOT} sc1" for t in range(4)],
         range(OG, OG + 8), 40)
    stamp(8)
    sum4pairs(OG, ML)
    a(f"v_cvt_pk_bf16_f32 v{vPK}, v{OG}, v{OG+1}")
    for j in range(8):
        build_a(j); mfma(j, QREG + 4 * j, j == 0)
    p16_store()
    a(f"s_cmp_lg_u32 s{sW}, 0"); a("s_cbranch_scc1 L_exit")
    red16(vRA16, L_P16, 256, 24)
    a(f"s_lshl_b32 s{sT0}, s{sA}, 11"); a(f"s_lshl_b32 s{sT1}, s{sB}, 8"); a(f"s_add_u32 s{sT0}, s{sT0}, s{sT1}"); a(f"s_add_u32 s{sT0}, s{sT0}, {MB2}")
    a(f"buffer_store_dword v24, v{vCO}, {srd(rWS)}, s{sT0} offen sc1")
    a("s_branch L_exit")

    a("L_T2:")
    vAD64 = 28
    a(f"v_lshl_add_u32 v30, v{vG2}, 4, v{vSH}"); a(f"s_lshl_b32 s{sT0}, s{sW}, 6"); a(f"v_add_u32 v30, s{sT0}, v30")
    a(f"v_mul_u32_u24 v30, 2752, v30")
    a(f"v_and_b32 v31, 3, v0"); a(f"v_lshl_add_u32 v30, v31, 4, v30")
    a(f"s_lshl_b32 s{sT0}, s{sROLE}, 6"); a(f"s_add_u32 s{sT0}, s{sT0}, 2752"); a(f"v_add_u32 v30, s{sT0}, v30")
    a(f"v_mov_b32 v{vAD64}, s{pWG}"); a(f"v_mov_b32 v{vAD64+1}, s{pWG+1}")
    a(f"v_mov_b32 v32, s{pWU}"); a(f"v_mov_b32 v33, s{pWU+1}")
    a("s_mov_b32 vcc_lo, 0xf0f0f0f0"); a("s_mov_b32 vcc_hi, 0xf0f0f0f0")
    a(f"v_cndmask_b32 v{vAD64}, v{vAD64}, v32, vcc"); a(f"v_cndmask_b32 v{vAD64+1}, v{vAD64+1}, v33, vcc")
    a("v_mov_b32 v31, 0")
    a(f"v_lshl_add_u64 {q2(vAD64)}, {q2(30)}, 0, {q2(vAD64)}")
    a(f"s_mov_b32 s{sE}, {4*2752}"); a(f"s_mov_b32 s{sE+1}, 0")
    for j in range(8):
        a(f"global_load_dwordx4 {q4(QREG+4*j)}, {q2(vAD64)}, off offset:{2752 if j & 1 else -2752} nt")
        if j & 1 and j < 7: a(f"v_lshl_add_u64 {q2(vAD64)}, {q2(vAD64)}, 0, s[{sE}:{sE+1}]")
    mksrd(rT, pWD, 1376 * 1024)
    a(f"v_lshl_add_u32 v30, v{vG2}, 3, v{vSH}"); a("v_lshlrev_b32 v30, 10, v30"); a(f"v_lshl_add_u32 v30, v{vJ}, 4, v30")
    a(f"s_lshl_b32 s{sT0}, s{sROLE}, 15"); a(f"s_lshl_b32 s{sT1}, s{sW}, 7"); a(f"s_add_u32 s{sT0}, s{sT0}, s{sT1}")
    DW = QREG + 32
    for j in range(4):
        a(f"buffer_load_dwordx4 {q4(DW+4*j)}, v30, {srd(rT)}, s{sT0} offen offset:{(j&1)*2048} nt")
        if j == 1: a(f"s_add_u32 s{sT0}, s{sT0}, 4096")
    a(f"v_lshl_add_u32 v30, v{vG2}, 3, v{vJ}")
    a(f"v_lshlrev_b32 v31, 2, v30")
    XP = 41
    a(f"buffer_load_dword v{XP}, v31, {srd(rX)}, s{sT1} offen")
    a(f"v_lshlrev_b32 v30, 3, v30"); a(f"v_lshl_add_u32 v30, v{vSH}, 13, v30")
    a(f"s_lshl_b32 s{sT0}, s{sW}, 8"); a(f"s_add_u32 s{sT0}, s{sT0}, {MB2}"); a(f"s_add_u32 s{sT1}, s{sT0}, 4096")
    p16_write()
    vGU = 43
    a(f"v_bfe_u32 v{vGU}, v0, 2, 2"); a(f"v_lshlrev_b32 v{vGU}, 10, v{vGU}"); a(f"v_lshl_add_u32 v{vGU}, v{vG2}, 5, v{vGU}")
    a(f"v_and_b32 v31, 3, v0"); a(f"v_lshl_add_u32 v{vGU}, v31, 3, v{vGU}")
    vY2 = 46
    a(f"v_and_b32 v{vY2}, 1, v{vG2}"); a(f"v_lshlrev_b32 v{vY2}, 4, v{vY2}"); a(f"v_lshl_add_u32 v{vY2}, v{vJ}, 5, v{vY2}")
    a(f"v_lshrrev_b32 v31, 1, v{vG2}"); a(f"v_lshl_add_u32 v{vY2}, v31, 3, v{vY2}")
    a(f"v_lshlrev_b32 v{vJ}, 3, v{vJ}")
    a(f"s_lshl_b32 s{sT2}, s{sW}, 3"); a(f"v_mov_b32 v{vSH}, s{sT2}")
    a(f"s_lshl_b32 s{sT2}, s{sROLE}, 11"); a(f"s_add_u32 s{sT2}, s{sT2}, s{sT0}"); a(f"s_add_u32 s{sT2}, s{sT2}, {MB3-MB2}")
    HG = 32
    stamp(7)
    poll([f"buffer_load_dwordx2 {q2(HG+2*t)}, v30, {srd(rWS)}, s{sT1 if t >= 2 else sT0} offen offset:{(t&1)*2048} sc1" for t in range(4)],
         range(HG, HG + 8), 40)
    stamp(8)
    sum4pairs(HG)
    a(f"v_cvt_pk_bf16_f32 v{HG}, v{HG}, v{HG+1}")
    a(f"v_lshlrev_b32 v{HG+2}, 16, v{XP}"); a(f"v_and_b32 v{HG+3}, 0xffff0000, v{XP}")
    a(f"v_and_b32 v{HG+1}, 0xffff0000, v{HG}"); a(f"v_lshlrev_b32 v{HG}, 16, v{HG}")
    a(f"v_add_f32 v{HG}, v{HG}, v{HG+2}"); a(f"v_add_f32 v{HG+1}, v{HG+1}, v{HG+3}")
    a(f"v_cvt_pk_bf16_f32 v{HG}, v{HG}, v{HG+1}")
    a(f"v_and_b32 v{HG+1}, 0xffff0000, v{HG}"); a(f"v_lshlrev_b32 v{HG}, 16, v{HG}")
    a(f"v_readfirstlane_b32 s{sT3}, v{HG}")
    a(f"v_subrev_f32 v{HG+2}, s{sT3}, v{HG}"); a(f"v_subrev_f32 v{HG+3}, s{sT3}, v{HG+1}")
    a(f"v_add_f32 v{HG+4}, v{HG+2}, v{HG+3}")
    a(f"v_mul_f32 v{HG+5}, v{HG+2}, v{HG+2}"); a(f"v_fmac_f32 v{HG+5}, v{HG+3}, v{HG+3}")
    for m in ("quad_perm:[1,0,3,2] " + DPPF, "quad_perm:[2,3,0,1] " + DPPF, "row_half_mirror " + DPPF,
              "row_bcast:15 row_mask:0xa bank_mask:0xf", "row_bcast:31 row_mask:0xc bank_mask:0xf"):
        for i in (4, 5): a(f"v_add_f32_dpp v{HG+i}, v{HG+i}, v{HG+i} {m}")
    a(f"v_mul_f32 v{HG+2}, 0x3c800000, v{HG+4}")
    a(f"v_fma_f32 v{HG+5}, -v{HG+2}, v{HG+4}, v{HG+5}")
    a(f"v_add_f32 v{HG+4}, s{sT3}, v{HG+2}")
    a("s_mov_b32 exec_lo, 0"); a("s_mov_b32 exec_hi, 0x80000000")
    a(f"ds_write_b64 v{vSH}, {q2(HG+4)} offset:{L_LN}")
    a("s_mov_b64 exec, -1")
    a("s_waitcnt lgkmcnt(0)"); a("s_barrier")
    a(f"ds_read_b64 {q2(HG+4)}, v{vJ} offset:{L_LN}")
    a("s_waitcnt lgkmcnt(0)")
    a(f"v_mov_b32 v{HG+2}, v{HG+4}"); red8("v_add_f32", HG + 2)
    a(f"v_mul_f32 v{HG+2}, 0x3e000000, v{HG+2}")
    a(f"v_sub_f32 v{HG+4}, v{HG+4}, v{HG+2}"); a(f"v_mul_f32 v{HG+3}, 0x42800000, v{HG+4}")
    a(f"v_fmac_f32 v{HG+5}, v{HG+3}, v{HG+4}")
    red8("v_add_f32", HG + 5)
    a(f"v_mul_f32 v{HG+5}, 0x3b000000, v{HG+5}")
    ln_finish(HG + 2, HG + 5, HG + 3)
    a(f"v_sub_f32 v{HG}, v{HG}, v{HG+2}"); a(f"v_sub_f32 v{HG+1}, v{HG+1}, v{HG+2}")
    a(f"v_cvt_pk_bf16_f32 v{HG}, v{HG}, v{HG+1}")
    a(f"v_and_b32 v{HG+1}, 0xffff0000, v{HG}"); a(f"v_lshlrev_b32 v{HG}, 16, v{HG}")
    a(f"v_mul_f32 v{HG}, v{HG}, v{HG+3}"); a(f"v_mul_f32 v{HG+1}, v{HG+1}, v{HG+3}")
    a(f"v_cvt_pk_bf16_f32 v{vPK}, v{HG}, v{HG+1}")
    for j in range(8):
        build_a(j); mfma(j, QREG + 4 * j, j == 0)
    p16_store()
    GU = KREG
    for t in range(4):
        a(f"ds_read_b64 {q2(GU+4*t)}, v{vGU} offset:{L_P16 + 256*t}")
        a(f"ds_read_b64 {q2(GU+4*t+2)}, v{vGU} offset:{L_P16 + 256*t + 128}")
    a("s_waitcnt lgkmcnt(0)")
    for i in range(4):
        a(f"v_add_f32 v{GU+i}, v{GU+i}, v{GU+4+i}"); a(f"v_add_f32 v{GU+8+i}, v{GU+8+i}, v{GU+12+i}")
    for i in range(4): a(f"v_add_f32 v{GU+i}, v{GU+i}, v{GU+8+i}")
    for m in ("row_ror:4", "row_ror:8"):
        for i in range(4): a(f"v_add_f32_dpp v{GU+i}, v{GU+i}, v{GU+i} {m} {DPPF}")
    a(f"v_cvt_pk_bf16_f32 v{GU}, v{GU}, v{GU+1}"); a(f"v_cvt_pk_bf16_f32 v{GU+2}, v{GU+2}, v{GU+3}")
    a(f"v_and_b32 v{GU+1}, 0xffff0000, v{GU}"); a(f"v_lshlrev_b32 v{GU}, 16, v{GU}")
    a(f"v_and_b32 v{GU+3}, 0xffff0000, v{GU+2}"); a(f"v_lshlrev_b32 v{GU+2}, 16, v{GU+2}")
    for i in range(2): a(f"v_mul_f32 v{GU+4+i}, {LOG2E ^ 0x80000000:#x}, v{GU+i}")
    for i in range(2): a(f"v_exp_f32 v{GU+4+i}, v{GU+4+i}")
    for i in range(2): a(f"v_add_f32 v{GU+4+i}, 1.0, v{GU+4+i}")
    for i in range(2): a(f"v_rcp_f32 v{GU+4+i}, v{GU+4+i}")
    for i in range(2): a(f"v_mul_f32 v{GU+i}, v{GU+i}, v{GU+4+i}")
    a(f"v_cvt_pk_bf16_f32 v{GU}, v{GU}, v{GU+1}")
    a(f"v_and_b32 v{GU+1}, 0xffff0000, v{GU}"); a(f"v_lshlrev_b32 v{GU}, 16, v{GU}")
    for i in range(2): a(f"v_mul_f32 v{GU+i}, v{GU+i}, v{GU+2+i}")
    a(f"v_cvt_pk_bf16_f32 v{vPK}, v{GU}, v{GU+1}")
    for j in range(4):
        build_a(j); mfma(j, DW + 4 * j, j == 0)
    for r in range(4): a(f"v_mov_b32_dpp v{vD+r}, v{vD+r} row_ror:8 row_mask:0xc bank_mask:0xf")
    a(f"v_permlane32_swap_b32 v{vD}, v{vD+2}"); a(f"v_permlane32_swap_b32 v{vD+1}, v{vD+3}")
    a(f"v_add_f32 v{vD}, v{vD}, v{vD+2}"); a(f"v_add_f32 v{vD+1}, v{vD+1}, v{vD+3}")
    a("s_mov_b32 exec_lo, 0x00ff00ff"); a("s_mov_b32 exec_hi, 0x00ff00ff")
    a(f"buffer_store_dwordx2 {q2(vD)}, v{vY2}, {srd(rWS)}, s{sT2} offen sc1")
    a("s_mov_b64 exec, -1")
    a("s_branch L_exit")

    a("L_F:")
    a(f"s_sub_u32 s{sROLE}, s{sROLE}, {NT2+NT1}")
    a(f"s_lshl_b32 s{sT0}, s{sROLE}, 3"); a(f"s_add_u32 s{sT0}, s{sT0}, s{sW}")
    mksrd(rT, pOUT, 1024)
    a(f"s_lshl_b32 s{sT3}, s{sT0}, 5")
    a(f"v_and_b32 v28, 3, v0"); a(f"v_lshl_add_u32 v29, v28, 2, v{vG2}"); a("v_lshlrev_b32 v29, 1, v29")
    a(f"buffer_load_ushort v41, v29, {srd(rX)}, s{sT3} offen")
    a(f"v_lshrrev_b32 v30, 2, v{vL}"); a("v_lshlrev_b32 v30, 11, v30"); a("v_lshl_add_u32 v30, v28, 4, v30")
    a(f"s_lshl_b32 s{sT0}, s{sT0}, 6"); a(f"s_add_u32 s{sT0}, s{sT0}, {MB2}")
    for i in range(12): a(f"v_mov_b32 v{KREG+i}, 0")
    for i in range(4): a(f"v_mov_b32 v{32+i}, 0")
    a("s_mov_b32 exec_hi, 0")
    poll([f"buffer_load_dwordx4 {q4(32)}, v30, {srd(rWS)}, s{sT0} offen sc1"], range(32, 36), 40)
    a("s_mov_b64 exec, -1")
    tred4(32)
    for m in ("row_ror:4", "row_ror:8"): a(f"v_add_f32_dpp v32, v32, v32 {m} {DPPF}")
    bf16r(32, 32); a("v_lshlrev_b32 v41, 16, v41"); a("v_add_f32 v32, v32, v41"); bf16r(32, 32)
    a(f"s_add_u32 s{sT0}, s{sT0}, {MB3-MB2}"); a(f"s_add_u32 s{sT1}, s{sT0}, {16*2048}"); a(f"s_add_u32 s{sT2}, s{sT0}, {32*2048}")
    stamp(7)
    poll([f"buffer_load_dwordx4 {q4(KREG)}, v30, {srd(rWS)}, s{sT0} offen sc1",
          f"buffer_load_dwordx4 {q4(KREG+4)}, v30, {srd(rWS)}, s{sT1} offen sc1",
          "s_mov_b32 exec_hi, 0xfff",
          f"buffer_load_dwordx4 {q4(KREG+8)}, v30, {srd(rWS)}, s{sT2} offen sc1",
          "s_mov_b32 exec_hi, -1"], range(KREG, KREG + 12), 40)
    stamp(8)
    for i in range(4): a(f"v_add_f32 v{KREG+i}, v{KREG+i}, v{KREG+4+i}")
    for i in range(4): a(f"v_add_f32 v{KREG+i}, v{KREG+i}, v{KREG+8+i}")
    tred4(KREG)
    for m in ("row_ror:4", "row_ror:8"): a(f"v_add_f32_dpp v{KREG}, v{KREG}, v{KREG} {m} {DPPF}")
    bf16r(KREG, KREG); a(f"v_add_f32 v32, v32, v{KREG}")
    a("v_cvt_pk_bf16_f32 v32, v32, v32")
    a("s_mov_b32 exec_lo, 0x000f000f"); a("s_mov_b32 exec_hi, 0x000f000f")
    a(f"buffer_store_short v32, v29, {srd(rT)}, s{sT3} offen")

    a("L_exit:")
    if stamps:
        a("s_mov_b64 exec, -1")
        a(f"s_memrealtime s[{sE}:{sE+1}]")
        a(f"s_getreg_b32 s{sT0}, hwreg(HW_REG_XCC_ID)")
        a("s_waitcnt lgkmcnt(0)")
        for i in range(9): a(f"v_mov_b32 v{KREG+i}, s{sSTAMP+2*i}")
        a(f"v_mov_b32 v{KREG+9}, s{sE}"); a(f"v_mov_b32 v{KREG+10}, v{vTK}"); a(f"v_mov_b32 v{KREG+11}, s{sT0}")
        a(f"s_lshl_b32 s{sT0}, s2, 3"); a(f"s_add_u32 s{sT0}, s{sT0}, s{sW}"); a(f"s_lshl_b32 s{sT0}, s{sT0}, 6"); a(f"s_add_u32 s{sT0}, s{sT0}, {STAMP}")
        a("s_mov_b64 exec, 1")
        for i in range(3): a(f"buffer_store_dwordx4 {q4(KREG+4*i)}, off, {srd(rWS)}, s{sT0} offset:{16*i}")
    a("L_end:")
    a("s_endpgm")

    out = HEADER + f"; @launch grid=(256,1,1) block=(512,1,1) lds={L_END}\n"
    out += f'.amdgcn_target "amdgcn-amd-amdhsa--gfx950"\n.text\n.globl {KNAME}\n.p2align 8\n.type {KNAME},@function\n'
    out += a.render()
    out += f'''.section .rodata,"a"
.p2align 6
.amdhsa_kernel {KNAME}
  .amdhsa_next_free_vgpr {NV}
  .amdhsa_next_free_sgpr 102
  .amdhsa_accum_offset {NV}
  .amdhsa_group_segment_fixed_size 0
  .amdhsa_kernarg_size 96
  .amdhsa_user_sgpr_count 2
  .amdhsa_user_sgpr_kernarg_segment_ptr 1
  .amdhsa_system_sgpr_workgroup_id_x 1
  .amdhsa_float_denorm_mode_32 3
.end_amdhsa_kernel
'''
    return out


if __name__ == "__main__":
    kw = {}
    for arg in sys.argv[2:]:
        k, v = arg.split("=")
        kw[k] = eval(v)
    open(sys.argv[1], "w").write(gen(**kw))
```

```python
import sys
from asmlib import Asm

KNAME = "sequential_preLN__sliding_block_cached__swiglu_ffn__decode_kernel"
HEADER = open("sequential_preLN__sliding_block_cached__swiglu_ffn__decode.s.ref").read().split("; Override launch")[0]

LOG2E = 0x3FB8AA3B
SCALE = 0x3DB504F3
EPS = 0x3727C5AC

SLOT = 640
MB1 = 0
MB2 = 256 * SLOT
MB3 = MB2 + 8 * 2048
CLR_END = MB2 + 256 * 512
STAMP = 1 << 20
WS_SIZE = 2 << 20
L_QP, L_QB, L_ST, L_ROLE, L_OP, L_P16, L_LN, L_END = 0, 4096, 6144, 6208, 6272, 14464, 18560, 18688

NT2, NT1, NF = 43, 64, 4
DPPF = "row_mask:0xf bank_mask:0xf"

sH, sSP, sW, sROT, sBUD = 3, 4, 5, 6, 7
pX, pK, pV, pWQ, pWO, pWG, pWU, pWD, pOUT, pDBG, pWS = 8, 10, 12, 14, 16, 20, 22, 24, 26, 28, 30
rK, rV, rQ, rX, rWS, rDBG, rT = 32, 36, 40, 44, 48, 52, 56
sOFF = 60
sT0, sT1, sT2, sT3 = 76, 77, 78, 79
sROLE, sSLOT = 80, 81
sE = 82
sSTAMP = 84
vL, vKV, vQO = 1, 2, 3
vSEL, vA, vD, vPK, vB = 4, 8, 16, 20, 21
vT = 22
KREG, VREG, QREG = 48, 112, 176
NV = 240


def q4(r): return f"v[{r}:{r+3}]"
def q2(r): return f"v[{r}:{r+1}]"
def srd(r): return f"s[{r}:{r+3}]"


def gen(W=8, stamps=False, budget=1 << 20, static_roles=False, ticket_at=13, qpol="nt", rotq=True, kvpol="nt", probe=0, amp=None):
    a = Asm()
    nstamp = [0]

    def stamp(i):
        if stamps or (amp and i in (0, amp[0])):
            a(f"{'s_memtime' if amp and amp[2] else 's_memrealtime'} s[{sSTAMP+2*i}:{sSTAMP+2*i+1}]")

    def mksrd(r, p, size, add=None):
        if add is None:
            a(f"s_mov_b32 s{r}, s{p}"); a(f"s_mov_b32 s{r+1}, s{p+1}")
        else:
            a(f"s_add_u32 s{r}, s{p}, s{add}"); a(f"s_addc_u32 s{r+1}, s{p+1}, 0")
        a(f"s_mov_b32 s{r+2}, {size}"); a(f"s_mov_b32 s{r+3}, 0x20000")

    def bf16r(d, s):
        a(f"v_cvt_pk_bf16_f32 v{d}, v{s}, v{s}"); a(f"v_and_b32 v{d}, 0xffff0000, v{d}")

    def wave_red(op, v, s):
        for m in ("quad_perm:[1,0,3,2]", "quad_perm:[2,3,0,1]", "row_half_mirror", "row_mirror"):
            a(f"{op}_dpp v{v}, v{v}, v{v} {m} {DPPF}")
        a(f"{op}_dpp v{v}, v{v}, v{v} row_bcast:15 row_mask:0xa bank_mask:0xf")
        a(f"{op}_dpp v{v}, v{v}, v{v} row_bcast:31 row_mask:0xc bank_mask:0xf")
        a(f"v_readlane_b32 s{s}, v{v}, 63")

    def red8(op, v):
        for m in ("quad_perm:[1,0,3,2]", "quad_perm:[2,3,0,1]", "row_half_mirror"):
            a(f"{op}_dpp v{v}, v{v}, v{v} {m} {DPPF}")

    def build_a(j):
        A = vA + 4 * (j & 1)
        a(f"v_mov_b32_dpp v{vB}, v{vPK} row_newbcast:{j} {DPPF}")
        for r in range(4):
            a(f"v_perm_b32 v{A+r}, v{vB}, v{vB}, v{vSEL+r}")

    def mfma(j, b, first):
        A = vA + 4 * (j & 1)
        a(f"v_mfma_f32_16x16x32_bf16 {q4(vD)}, {q4(A)}, {q4(b)}, {'0' if first else q4(vD)}")

    def tred4(v):
        a(f"v_permlane32_swap_b32 v{v}, v{v+2}"); a(f"v_permlane32_swap_b32 v{v+1}, v{v+3}")
        a(f"v_add_f32 v{v}, v{v}, v{v+2}"); a(f"v_add_f32 v{v+1}, v{v+1}, v{v+3}")
        a(f"v_permlane16_swap_b32 v{v}, v{v+1}")
        a(f"v_add_f32 v{v}, v{v}, v{v+1}")

    def red16(vaddr, base, ps, v):
        for t in range(4):
            a(f"ds_read_b128 {q4(v+4*t)}, v{vaddr} offset:{base + t*ps}")
        a("s_waitcnt lgkmcnt(0)")
        for i in range(4):
            a(f"v_add_f32 v{v+i}, v{v+i}, v{v+4+i}"); a(f"v_add_f32 v{v+8+i}, v{v+8+i}, v{v+12+i}")
        for i in range(4):
            a(f"v_add_f32 v{v+i}, v{v+i}, v{v+8+i}")
        tred4(v)

    npoll = [0]

    def poll(loads, regs_, tmp):
        n = npoll[0]; npoll[0] += 1
        a(f"L_poll{n}:")
        for ld in loads: a(ld)
        a(f"s_sub_u32 s{sBUD}, s{sBUD}, 1"); a("s_cbranch_scc1 L_exit")
        a("s_waitcnt vmcnt(0)")
        rs = list(regs_)
        a(f"v_max3_u32 v{tmp}, v{rs[0]}, v{rs[1]}, v{rs[2]}" if len(rs) > 2 else f"v_max_u32 v{tmp}, v{rs[0]}, v{rs[1]}")
        rs = rs[3:]
        while rs:
            if len(rs) >= 2:
                a(f"v_max3_u32 v{tmp}, v{tmp}, v{rs[0]}, v{rs[1]}"); rs = rs[2:]
            else:
                a(f"v_max_u32 v{tmp}, v{tmp}, v{rs[0]}"); rs = rs[1:]
        a(f"v_cmp_eq_u32 vcc, -1, v{tmp}")
        a(f"s_cbranch_vccnz L_poll{n}")

    def ln_finish(vmean, vvar, vr):
        bf16r(vmean, vmean); bf16r(vvar, vvar)
        a(f"v_add_f32 v{vvar}, {EPS:#x}, v{vvar}"); bf16r(vvar, vvar)
        a(f"v_sqrt_f32 v{vvar}, v{vvar}"); bf16r(vvar, vvar)
        a(f"v_rcp_f32 v{vr}, v{vvar}")

    a(f"{KNAME}:")
    if stamps:
        for i in range(2, 18): a(f"s_mov_b32 s{sSTAMP+i}, 0")
    stamp(0)
    a("s_cmp_ge_u32 s2, 256"); a("s_cbranch_scc1 L_end")
    a(f"s_load_dwordx16 s[8:23], s[0:1], 0"); a(f"s_load_dwordx8 s[24:31], s[0:1], 64")
    a(f"s_and_b32 s{sH}, s2, 31"); a(f"s_lshr_b32 s{sSP}, s2, 5")
    a(f"v_lshrrev_b32 v{vT}, 6, v0"); a(f"v_and_b32 v{vL}, 63, v0")
    a(f"v_readfirstlane_b32 s{sW}, v{vT}")
    a(f"v_lshlrev_b32 v{vKV}, 4, v0")
    a(f"s_lshl_b32 s{sROT}, s{sSP}, 1"); a(f"s_add_u32 s{sROT}, s{sROT}, s{sH}")
    for j in range(16):
        a(f"s_add_u32 s{sT0}, s{sROT}, {j}"); a(f"s_and_b32 s{sT0}, s{sT0}, 15"); a(f"s_lshl_b32 s{sOFF+j}, s{sT0}, 13")
    a(f"s_lshl_b32 s{sT0}, s{sH}, 23"); a(f"s_lshl_b32 s{sT1}, s{sSP}, 17"); a(f"s_add_u32 s{sT0}, s{sT0}, s{sT1}")
    a(f"s_add_u32 s{sT0}, s{sT0}, {(32768-4096)*256}")
    a(f"s_mov_b32 s{sBUD}, {budget}")
    a(f"s_lshl_b32 s{sSLOT}, s{sH}, 3"); a(f"s_add_u32 s{sSLOT}, s{sSLOT}, s{sSP}"); a(f"s_mul_i32 s{sSLOT}, s{sSLOT}, {SLOT}")
    vG, vC = vT, vT + 1
    a(f"v_lshrrev_b32 v{vG}, 4, v0")
    a(f"v_and_b32 v{vC}, 15, v0")
    a(f"v_lshlrev_b32 v{vQO}, 13, v{vG}"); a(f"v_lshl_add_u32 v{vQO}, v{vC}, 4, v{vQO}")
    a(f"s_lshl_b32 s{sT1}, s{sH}, 8"); a(f"v_add_u32 v{vQO}, s{sT1}, v{vQO}")
    vXO = vT + 2
    if rotq:
        a(f"v_add_u32 v{vXO}, s{sROT}, v{vC}"); a(f"v_and_b32 v{vXO}, 15, v{vXO}")
    else:
        a(f"v_add_u32 v{vXO}, s{sH}, v{vC}"); a(f"v_and_b32 v{vXO}, 15, v{vXO}")
    a(f"v_lshl_add_u32 v{vXO}, v{vXO}, 5, v{vG}"); a(f"v_lshlrev_b32 v{vXO}, 1, v{vXO}")
    vXA = vT + 3
    a(f"v_lshlrev_b32 v{vXA}, 4, v{vL}")
    a("s_waitcnt lgkmcnt(0)")
    stamp(1)
    mksrd(rK, pK, 0x20000, sT0)

    seq = [("k", 0), ("xa", 0), ("xo", 0), ("q", 0)]
    for j in range(1, 16): seq += [("k", j), ("q", j)]
    seq += [("v", j) for j in range(16)]
    pos = {op: i for i, op in enumerate(seq)}
    issued = [0]
    XA, XO = 28, 27

    def issue_to(n):
        while issued[0] < min(n, len(seq)):
            kind, j = seq[issued[0]]
            if kind == "k": a.vmem(f"buffer_load_dwordx4 {q4(KREG+4*j)}, v{vKV}, {srd(rK)}, s{sOFF+j} offen {kvpol}", (kind, j))
            elif kind == "v":
                if j == ticket_at: ticket()
                a.vmem(f"buffer_load_dwordx4 {q4(VREG+4*j)}, v{vKV}, {srd(rV)}, s{sOFF+j} offen {kvpol}", (kind, j))
            elif kind == "q":
                if rotq:
                    a(f"s_lshl_b32 s{sT3}, s{sOFF+j}, 5")
                else:
                    a(f"s_add_u32 s{sT3}, s{sH}, {j}"); a(f"s_and_b32 s{sT3}, s{sT3}, 15"); a(f"s_lshl_b32 s{sT3}, s{sT3}, 18")
                a.vmem(f"buffer_load_dwordx4 {q4(QREG+4*j)}, v{vQO}, {srd(rQ)}, s{sT3} offen {qpol}", (kind, j))
            elif kind == "xa": a.vmem(f"buffer_load_dwordx4 {q4(XA)}, v{vXA}, {srd(rX)}, 0 offen", (kind, j))
            elif kind == "xo": a.vmem(f"buffer_load_ushort v{XO}, v{vXO}, {srd(rX)}, 0 offen", (kind, j))
            issued[0] += 1

    vTK = 47

    def ticket():
        a(f"s_cmp_lg_u32 s{sW}, 0"); a("s_cbranch_scc1 L_noticket")
        a(f"v_mov_b32 v{vTK}, 0x10000"); a("s_mov_b64 exec, 1")
        a(f"buffer_atomic_add v{vTK}, off, {srd(rDBG)}, 0 sc0")
        a("s_mov_b64 exec, -1")
        a("L_noticket:")

    issue_to(1)
    mksrd(rX, pX, 1024); mksrd(rQ, pWQ, 0x400000)
    issue_to(4)
    mksrd(rV, pV, 0x20000, sT0); mksrd(rWS, pWS, WS_SIZE); mksrd(rDBG, pDBG, 256)
    a(f"s_cmp_lg_u32 s{sW}, 7"); a("s_cbranch_scc1 L_noclear")
    c0 = 40
    for i in range(4): a(f"v_mov_b32 v{c0+i}, -1")
    a(f"s_lshl_b32 s{sT1}, s2, 9"); a(f"s_add_u32 s{sT1}, s{sT1}, {MB2}")
    a("s_mov_b32 exec_hi, 0")
    a(f"buffer_store_dwordx4 {q4(c0)}, v{vXA}, {srd(rWS)}, s{sT1} offen sc1")
    a(f"s_mov_b32 exec_hi, 0xff")
    a(f"buffer_store_dwordx4 {q4(c0)}, v{vXA}, {srd(rWS)}, s{sSLOT} offen sc1")
    a("s_mov_b64 exec, -1")
    a("L_noclear:")
    issue_to(W)
    t0, t1, t2 = 32, 33, 34
    a(f"v_and_b32 v{t0}, 8, v0"); a(f"v_mov_b32 v{t1}, 0x0100"); a(f"v_mov_b32 v{t2}, 0x0302")
    a(f"v_cmp_ne_u32 vcc, 0, v{t0}"); a(f"v_cndmask_b32 v{t1}, v{t1}, v{t2}, vcc")
    a(f"v_or_b32 v{t2}, 0x0c0c0000, v{t1}")
    a(f"v_lshlrev_b32 v{t1}, 16, v{t1}"); a(f"v_or_b32 v{t1}, 0x0c0c, v{t1}")
    a(f"v_and_b32 v{t0}, 1, v0"); a(f"v_cmp_ne_u32 vcc, 0, v{t0}"); a(f"v_cndmask_b32 v{t1}, v{t2}, v{t1}, vcc")
    a(f"v_bfe_u32 v{t0}, v0, 1, 2"); a(f"v_mov_b32 v{t2}, 0x0c0c0c0c")
    for r in range(4):
        a(f"v_cmp_eq_u32 vcc, {r}, v{t0}"); a(f"v_cndmask_b32 v{vSEL+r}, v{t2}, v{t1}, vcc")

    a.wait_vm(("xo", 0))
    stamp(2)
    U = 32
    for i in range(4):
        a(f"v_lshlrev_b32 v{U+2*i}, 16, v{XA+i}"); a(f"v_and_b32 v{U+2*i+1}, 0xffff0000, v{XA+i}")
    S, M_, R_ = 40, 41, 42
    a(f"v_add_f32 v{S}, v{U}, v{U+1}")
    for i in range(2, 8): a(f"v_add_f32 v{S}, v{S}, v{U+i}")
    wave_red("v_add_f32", S, sT1)
    a(f"v_mov_b32 v{M_}, 0x3b000000"); a(f"v_mul_f32 v{M_}, s{sT1}, v{M_}")
    for i in range(8): a(f"v_sub_f32 v{U+i}, v{U+i}, v{M_}")
    a(f"v_mul_f32 v{S}, v{U}, v{U}")
    for i in range(1, 8): a(f"v_fmac_f32 v{S}, v{U+i}, v{U+i}")
    wave_red("v_add_f32", S, sT1)
    a(f"v_mov_b32 v{S}, 0x3b000000"); a(f"v_mul_f32 v{S}, s{sT1}, v{S}")
    ln_finish(M_, S, R_)
    a(f"v_lshlrev_b32 v{XO}, 16, v{XO}"); a(f"v_sub_f32 v{XO}, v{XO}, v{M_}"); bf16r(XO, XO)
    a(f"v_mul_f32 v{XO}, v{XO}, v{R_}")
    a(f"v_cvt_pk_bf16_f32 v{vPK}, v{XO}, 0")

    for j in range(16):
        issue_to(pos[("q", j)] + W)
        build_a(j)
        a.wait_vm(("q", j))
        mfma(j, QREG + 4 * j, j == 0)
        if j == 3:
            a(f"s_cmp_lg_u32 s{sW}, 7"); a("s_cbranch_scc1 L_nocount")
            a(f"v_mov_b32 v{vTK}, 1"); a("s_mov_b64 exec, 1")
            a(f"buffer_atomic_add v{vTK}, off, {srd(rDBG)}, 0")
            a("s_mov_b64 exec, -1")
            a("L_nocount:")
    vAD = vT
    a(f"v_and_b32 v{vAD}, 15, v0"); a(f"v_bfe_u32 v{vAD+1}, v0, 4, 1")
    a(f"v_lshlrev_b32 v{vAD}, 5, v{vAD}"); a(f"v_lshl_add_u32 v{vAD}, v{vAD+1}, 4, v{vAD}")
    a(f"s_lshl_b32 s{sT1}, s{sW}, 9"); a(f"v_add_u32 v{vAD+1}, s{sT1}, v{vAD}")
    a("s_mov_b32 exec_hi, 0")
    a(f"ds_write_b128 v{vAD+1}, {q4(vD)} offset:{L_QP}")
    a("s_mov_b64 exec, -1")
    a("s_waitcnt lgkmcnt(0)"); a("s_barrier")
    stamp(3)
    a(f"v_lshlrev_b32 v{vAD+1}, 3, v{vL}")
    P = 24
    for w in range(8): a(f"ds_read_b64 {q2(P+2*w)}, v{vAD+1} offset:{L_QP + 512*w}")
    issue_to(issued[0] + 1)
    a(f"s_lshl_b32 s{sT1}, s{sW}, 8")
    a(f"v_lshl_add_u32 v{vAD+1}, v{vL}, 2, s{sT1}")
    a("s_waitcnt lgkmcnt(0)")
    for st in (8, 4, 2):
        for i in range(st): a(f"v_add_f32 v{P+i}, v{P+i}, v{P+i+st}")
    a(f"v_cvt_pk_bf16_f32 v{P}, v{P}, v{P+1}")
    a(f"ds_write_b32 v{vAD+1}, v{P} offset:{L_QB}")
    a(f"v_and_b32 v{vAD+1}, 15, v0"); a(f"v_lshl_add_u32 v{vAD+1}, v{vAD+1}, 4, s{sT1}")
    QP = 40
    a(f"ds_read_b128 {q4(QP)}, v{vAD+1} offset:{L_QB}")
    a.wait_vm(("k", 15))
    a("s_waitcnt lgkmcnt(0)")

    SJ = 24
    for i in range(4):
        for j in range(16):
            a(f"v_dot2_f32_bf16 v{SJ+j}, v{KREG+4*j+i}, v{QP+i}, {'0' if i == 0 else 'v%d' % (SJ+j)}")
        if i == 1: issue_to(issued[0] + 1)
    for j in range(8):
        a(f"v_add_f32_dpp v{SJ+j}, v{SJ+j}, v{SJ+j} row_ror:8 row_mask:0xf bank_mask:0x3")
    for j in range(8):
        a(f"v_add_f32_dpp v{SJ+j}, v{SJ+j+8}, v{SJ+j+8} row_ror:8 row_mask:0xf bank_mask:0xc")
    for j in range(4):
        a(f"v_add_f32_dpp v{SJ+j}, v{SJ+j}, v{SJ+j} row_half_mirror row_mask:0xf bank_mask:0x5")
    for j in range(4):
        a(f"v_add_f32_dpp v{SJ+j}, v{SJ+j+4}, v{SJ+j+4} row_half_mirror row_mask:0xf bank_mask:0xa")
    for j in range(4):
        a(f"v_add_f32_dpp v{SJ+j}, v{SJ+j}, v{SJ+j} quad_perm:[1,0,3,2] {DPPF}")
    a("s_mov_b32 vcc_lo, 0xaaaaaaaa"); a("s_mov_b32 vcc_hi, 0xaaaaaaaa")
    a(f"v_cndmask_b32 v{SJ}, v{SJ}, v{SJ+1}, vcc"); a(f"v_cndmask_b32 v{SJ+2}, v{SJ+2}, v{SJ+3}, vcc")
    a(f"v_add_f32_dpp v{SJ}, v{SJ}, v{SJ} quad_perm:[2,3,0,1] {DPPF}")
    a(f"v_add_f32_dpp v{SJ+2}, v{SJ+2}, v{SJ+2} quad_perm:[2,3,0,1] {DPPF}")
    a("s_mov_b32 vcc_lo, 0xcccccccc"); a("s_mov_b32 vcc_hi, 0xcccccccc")
    SC = SJ
    a(f"v_cndmask_b32 v{SC}, v{SJ}, v{SJ+2}, vcc")
    issue_to(issued[0] + 1)
    if probe != 1: bf16r(SC, SC)
    a(f"v_mul_f32 v{SC}, {SCALE:#x}, v{SC}")
    if probe not in (1, 2): bf16r(SC, SC)
    T = 26
    a(f"v_mov_b32 v{T}, v{SC}"); wave_red("v_max_f32", T, sT1)
    a(f"v_subrev_f32 v{T}, s{sT1}, v{SC}"); a(f"v_mul_f32 v{T}, {LOG2E:#x}, v{T}"); a(f"v_exp_f32 v{T}, v{T}")
    wave_red("v_add_f32", T, sT2)
    a(f"v_mov_b32 v{T}, s{sT1}"); a(f"v_mov_b32 v{T+1}, s{sT2}")
    a(f"s_lshl_b32 s{sT1}, s{sW}, 3"); a(f"v_mov_b32 v{T+2}, s{sT1}")
    a("s_mov_b64 exec, 1"); a(f"ds_write_b64 v{T+2}, {q2(T)} offset:{L_ST}"); a("s_mov_b64 exec, -1")
    a(f"v_and_b32 v{T+2}, 7, v0"); a(f"v_lshlrev_b32 v{T+2}, 3, v{T+2}")
    a("s_waitcnt lgkmcnt(0)"); a("s_barrier")
    a(f"ds_read_b64 {q2(T)}, v{T+2} offset:{L_ST}")
    issue_to(issued[0] + 1)
    a("s_waitcnt lgkmcnt(0)")
    MM = 30
    a(f"v_mov_b32 v{MM}, v{T}"); red8("v_max_f32", MM)
    a(f"v_sub_f32 v{T}, v{T}, v{MM}"); a(f"v_sub_f32 v{SC}, v{SC}, v{MM}")
    a(f"v_mul_f32 v{T}, {LOG2E:#x}, v{T}"); a(f"v_mul_f32 v{SC}, {LOG2E:#x}, v{SC}")
    a(f"v_exp_f32 v{T}, v{T}"); a(f"v_exp_f32 v{SC}, v{SC}")
    a(f"v_mul_f32 v{MM+1}, v{T}, v{T+1}"); red8("v_add_f32", MM + 1)
    a(f"s_cmp_lg_u32 s{sW}, 7"); a("s_cbranch_scc1 L_noml")
    a("s_mov_b64 exec, 1")
    a(f"buffer_store_dwordx2 {q2(MM)}, off, {srd(rWS)}, s{sSLOT} offset:512 sc1")
    a("s_mov_b64 exec, -1")
    a("L_noml:")
    bf16r(T, SC); a(f"v_sub_f32 v{T}, v{SC}, v{T}")
    a(f"v_cvt_pk_bf16_f32 v{vPK}, v{SC}, v{T}")
    stamp(4)

    for j in range(16):
        issue_to(pos[("v", j)] + W)
        build_a(j)
        a.wait_vm(("v", j))
        mfma(j, VREG + 4 * j, j == 0)
        if j == max(ticket_at, 12):
            a(f"s_cmp_lg_u32 s{sW}, 0"); a("s_cbranch_scc1 L_norole")
            a(f"v_readfirstlane_b32 s{sROLE}, v{vTK}")
            a(f"s_and_b32 s{sT1}, s{sROLE}, 0xffff"); a(f"s_lshr_b32 s{sROLE}, s{sROLE}, 16")
            a(f"s_cmp_eq_u32 s{sT1}, 256"); a("s_cbranch_scc1 L_cleared")
            a("L_waitclear:")
            a(f"buffer_load_dword v{vTK}, off, {srd(rDBG)}, 0 sc1")
            a(f"s_sub_u32 s{sBUD}, s{sBUD}, 1"); a("s_cbranch_scc1 L_exit")
            a("s_waitcnt vmcnt(0)")
            a(f"v_readfirstlane_b32 s{sT1}, v{vTK}"); a(f"s_and_b32 s{sT1}, s{sT1}, 0xffff")
            a(f"s_cmp_eq_u32 s{sT1}, 256"); a("s_cbranch_scc0 L_waitclear")
            a("L_cleared:")
            if static_roles: a(f"s_mov_b32 s{sROLE}, s2")
            a(f"v_mov_b32 v{vTK}, s{sROLE}"); a(f"v_mov_b32 v{vTK-1}, 0")
            a(f"ds_write_b32 v{vTK-1}, v{vTK} offset:{L_ROLE}")
            a("L_norole:")
    a(f"v_lshrrev_b32 v{vAD+1}, 5, v0"); a(f"v_lshl_add_u32 v{vAD+1}, v{vAD+1}, 9, v{vAD}")
    vRA, vCO = 44, 45
    a(f"v_and_b32 v{vCO}, 15, v0"); a(f"v_bfe_u32 v{vRA}, v0, 4, 2")
    a(f"v_lshlrev_b32 v{vCO}, 4, v{vCO}")
    a(f"v_lshl_add_u32 v{43}, v{vRA}, 11, v{vCO}")
    a(f"s_lshl_b32 s{sT1}, s{sW}, 8"); a(f"v_add_u32 v{43}, s{sT1}, v{43}")
    a(f"ds_write_b128 v{vAD+1}, {q4(vD)} offset:{L_OP}")
    a(f"v_lshl_add_u32 v{42}, v{vRA}, 10, v{vCO}")
    a(f"v_lshl_add_u32 v{vCO}, v{vRA}, 2, v{vCO}")
    a(f"v_mov_b32 v{vRA}, 0")
    a("s_waitcnt lgkmcnt(0)"); a("s_barrier")
    stamp(5)
    a(f"ds_read_b32 v{vTK}, v{vRA} offset:{L_ROLE}")
    a(f"s_cmp_ge_u32 s{sW}, 2"); a("s_cbranch_scc1 L_nopub")
    red16(43, L_OP, 512, 24)
    a(f"s_add_u32 s{sT1}, s{sT1}, s{sSLOT}")
    a(f"buffer_store_dword v24, v{vCO}, {srd(rWS)}, s{sT1} offen sc1")
    a("L_nopub:")
    a("s_waitcnt lgkmcnt(0)")
    a(f"v_readfirstlane_b32 s{sROLE}, v{vTK}")
    stamp(6)
    vRA16 = 42
    vG2, vJ, vSH, vC3, vPR = 24, 25, 26, 27, 46
    a(f"v_bfe_u32 v{vG2}, v0, 4, 2"); a(f"v_and_b32 v{vJ}, 7, v0"); a(f"v_bfe_u32 v{vSH}, v0, 3, 1")
    a(f"s_cmp_lt_u32 s{sROLE}, {NT2}"); a("s_cbranch_scc1 L_T2")
    a(f"s_cmp_lt_u32 s{sROLE}, {NT2+NT1}"); a("s_cbranch_scc1 L_T1")
    a(f"s_cmp_lt_u32 s{sROLE}, {NT2+NT1+NF}"); a("s_cbranch_scc1 L_F")
    a("s_branch L_exit")

    def p16_write():
        a(f"v_lshrrev_b32 v{vT}, 5, v0"); a(f"v_and_b32 v{vT+1}, 7, v0"); a(f"v_lshlrev_b32 v{vT}, 8, v{vT}")
        a(f"v_lshl_add_u32 v{vT}, v{vT+1}, 5, v{vT}"); a(f"v_bfe_u32 v{vT+1}, v0, 4, 1"); a(f"v_lshl_add_u32 v{vT}, v{vT+1}, 4, v{vT}")

    def p16_store():
        a("s_mov_b32 exec_lo, 0x00ff00ff"); a("s_mov_b32 exec_hi, 0xff00ff00")
        a(f"ds_write_b128 v{vT}, {q4(vD)} offset:{L_P16}")
        a("s_mov_b64 exec, -1")
        a("s_waitcnt lgkmcnt(0)"); a("s_barrier")

    def sum4pairs(v, c=None):
        if c is None:
            for i in range(2):
                a(f"v_add_f32 v{v+i}, v{v+i}, v{v+2+i}"); a(f"v_add_f32 v{v+4+i}, v{v+4+i}, v{v+6+i}")
            for i in range(2): a(f"v_add_f32 v{v+i}, v{v+i}, v{v+4+i}")
        else:
            for i in range(2): a(f"v_mul_f32 v{v+i}, v{v+i}, v{c}")
            for t in range(1, 4):
                for i in range(2): a(f"v_fmac_f32 v{v+i}, v{v+2*t+i}, v{c+2*t}")
        for i in range(2): a(f"v_add_f32_dpp v{v+i}, v{v+i}, v{v+i} row_ror:8 {DPPF}")

    a("L_T1:")
    a(f"s_sub_u32 s{sROLE}, s{sROLE}, {NT2}")
    sA, sB = sT2, sT3
    a(f"s_lshr_b32 s{sA}, s{sROLE}, 3"); a(f"s_and_b32 s{sB}, s{sROLE}, 7")
    mksrd(rT, pWO, 0x400000)
    vO = 28
    a(f"v_lshl_add_u32 v{vO}, v{vG2}, 4, v{vSH}"); a(f"v_lshlrev_b32 v{vO}, 10, v{vO}"); a(f"v_lshl_add_u32 v{vO}, v{vJ}, 4, v{vO}")
    a(f"s_lshl_b32 s{sT0}, s{sA}, 19"); a(f"s_lshl_b32 s{sT1}, s{sW}, 16"); a(f"s_add_u32 s{sT0}, s{sT0}, s{sT1}")
    a(f"s_lshl_b32 s{sT1}, s{sB}, 7"); a(f"s_add_u32 s{sT0}, s{sT0}, s{sT1}")
    for j in range(8):
        a(f"buffer_load_dwordx4 {q4(QREG+4*j)}, v{vO}, {srd(rT)}, s{sT0} offen offset:{(j&1)*2048} nt")
        if j & 1: a(f"s_add_u32 s{sT0}, s{sT0}, 4096")
    a(f"s_lshl_b32 s{sT0}, s{sA}, 2"); a(f"s_lshr_b32 s{sT1}, s{sW}, 1"); a(f"s_add_u32 s{sT0}, s{sT0}, s{sT1}")
    a(f"s_mul_i32 s{sT0}, s{sT0}, {8*SLOT}")
    a(f"v_mul_u32_u24 v{vO}, {4*SLOT}, v{vSH}")
    a(f"v_lshl_add_u32 v{vO+1}, v{vG2}, 3, v{vJ}"); a(f"v_lshl_add_u32 v{vO+1}, v{vO+1}, 3, v{vO}")
    a(f"s_and_b32 s{sT1}, s{sW}, 1"); a(f"s_lshl_b32 s{sT1}, s{sT1}, 8"); a(f"s_add_u32 s{sT1}, s{sT1}, s{sT0}")
    p16_write()
    ML = 32
    poll([f"buffer_load_dwordx2 {q2(ML+2*t)}, v{vO}, {srd(rWS)}, s{sT0} offen offset:{512 + t*SLOT} sc1" for t in range(4)],
         range(ML, ML + 8), 40)
    a(f"v_max3_f32 v40, v{ML}, v{ML+2}, v{ML+4}"); a(f"v_max_f32 v40, v40, v{ML+6}")
    a(f"v_max_f32_dpp v40, v40, v40 row_ror:8 {DPPF}")
    for t in range(4): a(f"v_sub_f32 v{ML+2*t}, v{ML+2*t}, v40")
    for t in range(4): a(f"v_mul_f32 v{ML+2*t}, {LOG2E:#x}, v{ML+2*t}")
    for t in range(4): a(f"v_exp_f32 v{ML+2*t}, v{ML+2*t}")
    a(f"v_mul_f32 v40, v{ML}, v{ML+1}")
    for t in range(1, 4): a(f"v_fmac_f32 v40, v{ML+2*t}, v{ML+2*t+1}")
    a(f"v_add_f32_dpp v40, v40, v40 row_ror:8 {DPPF}")
    a("v_rcp_f32 v40, v40")
    for t in range(4): a(f"v_mul_f32 v{ML+2*t}, v{ML+2*t}, v40")
    OG = KREG
    stamp(7)
    poll([f"buffer_load_dwordx2 {q2(OG+2*t)}, v{vO+1}, {srd(rWS)}, s{sT1} offen offset:{t*SLOT} sc1" for t in range(4)],
         range(OG, OG + 8), 40)
    stamp(8)
    sum4pairs(OG, ML)
    a(f"v_cvt_pk_bf16_f32 v{vPK}, v{OG}, v{OG+1}")
    for j in range(8):
        build_a(j); mfma(j, QREG + 4 * j, j == 0)
    p16_store()
    a(f"s_cmp_lg_u32 s{sW}, 0"); a("s_cbranch_scc1 L_exit")
    red16(vRA16, L_P16, 256, 24)
    a(f"s_lshl_b32 s{sT0}, s{sA}, 11"); a(f"s_lshl_b32 s{sT1}, s{sB}, 8"); a(f"s_add_u32 s{sT0}, s{sT0}, s{sT1}"); a(f"s_add_u32 s{sT0}, s{sT0}, {MB2}")
    a(f"buffer_store_dword v24, v{vCO}, {srd(rWS)}, s{sT0} offen sc1")
    a("s_branch L_exit")

    a("L_T2:")
    vAD64 = 28
    a(f"v_lshl_add_u32 v30, v{vG2}, 4, v{vSH}"); a(f"s_lshl_b32 s{sT0}, s{sW}, 6"); a(f"v_add_u32 v30, s{sT0}, v30")
    a(f"v_mul_u32_u24 v30, 2752, v30")
    a(f"v_and_b32 v31, 3, v0"); a(f"v_lshl_add_u32 v30, v31, 4, v30")
    a(f"s_lshl_b32 s{sT0}, s{sROLE}, 6"); a(f"s_add_u32 s{sT0}, s{sT0}, 2752"); a(f"v_add_u32 v30, s{sT0}, v30")
    a(f"v_mov_b32 v{vAD64}, s{pWG}"); a(f"v_mov_b32 v{vAD64+1}, s{pWG+1}")
    a(f"v_mov_b32 v32, s{pWU}"); a(f"v_mov_b32 v33, s{pWU+1}")
    a("s_mov_b32 vcc_lo, 0xf0f0f0f0"); a("s_mov_b32 vcc_hi, 0xf0f0f0f0")
    a(f"v_cndmask_b32 v{vAD64}, v{vAD64}, v32, vcc"); a(f"v_cndmask_b32 v{vAD64+1}, v{vAD64+1}, v33, vcc")
    a("v_mov_b32 v31, 0")
    a(f"v_lshl_add_u64 {q2(vAD64)}, {q2(30)}, 0, {q2(vAD64)}")
    a(f"s_mov_b32 s{sE}, {4*2752}"); a(f"s_mov_b32 s{sE+1}, 0")
    for j in range(8):
        a(f"global_load_dwordx4 {q4(QREG+4*j)}, {q2(vAD64)}, off offset:{2752 if j & 1 else -2752} nt")
        if j & 1 and j < 7: a(f"v_lshl_add_u64 {q2(vAD64)}, {q2(vAD64)}, 0, s[{sE}:{sE+1}]")
    mksrd(rT, pWD, 1376 * 1024)
    a(f"v_lshl_add_u32 v30, v{vG2}, 3, v{vSH}"); a("v_lshlrev_b32 v30, 10, v30"); a(f"v_lshl_add_u32 v30, v{vJ}, 4, v30")
    a(f"s_lshl_b32 s{sT0}, s{sROLE}, 15"); a(f"s_lshl_b32 s{sT1}, s{sW}, 7"); a(f"s_add_u32 s{sT0}, s{sT0}, s{sT1}")
    DW = QREG + 32
    for j in range(4):
        a(f"buffer_load_dwordx4 {q4(DW+4*j)}, v30, {srd(rT)}, s{sT0} offen offset:{(j&1)*2048} nt")
        if j == 1: a(f"s_add_u32 s{sT0}, s{sT0}, 4096")
    a(f"v_lshl_add_u32 v30, v{vG2}, 3, v{vJ}")
    a(f"v_lshlrev_b32 v31, 2, v30")
    XP = 41
    a(f"buffer_load_dword v{XP}, v31, {srd(rX)}, s{sT1} offen")
    a(f"v_lshlrev_b32 v30, 3, v30"); a(f"v_lshl_add_u32 v30, v{vSH}, 13, v30")
    a(f"s_lshl_b32 s{sT0}, s{sW}, 8"); a(f"s_add_u32 s{sT0}, s{sT0}, {MB2}"); a(f"s_add_u32 s{sT1}, s{sT0}, 4096")
    p16_write()
    vGU = 43
    a(f"v_bfe_u32 v{vGU}, v0, 2, 2"); a(f"v_lshlrev_b32 v{vGU}, 10, v{vGU}"); a(f"v_lshl_add_u32 v{vGU}, v{vG2}, 5, v{vGU}")
    a(f"v_and_b32 v31, 3, v0"); a(f"v_lshl_add_u32 v{vGU}, v31, 3, v{vGU}")
    vY2 = 46
    a(f"v_and_b32 v{vY2}, 1, v{vG2}"); a(f"v_lshlrev_b32 v{vY2}, 4, v{vY2}"); a(f"v_lshl_add_u32 v{vY2}, v{vJ}, 5, v{vY2}")
    a(f"v_lshrrev_b32 v31, 1, v{vG2}"); a(f"v_lshl_add_u32 v{vY2}, v31, 3, v{vY2}")
    a(f"v_lshlrev_b32 v{vJ}, 3, v{vJ}")
    a(f"s_lshl_b32 s{sT2}, s{sW}, 3"); a(f"v_mov_b32 v{vSH}, s{sT2}")
    a(f"s_lshl_b32 s{sT2}, s{sROLE}, 11"); a(f"s_add_u32 s{sT2}, s{sT2}, s{sT0}"); a(f"s_add_u32 s{sT2}, s{sT2}, {MB3-MB2}")
    HG = 32
    stamp(7)
    poll([f"buffer_load_dwordx2 {q2(HG+2*t)}, v30, {srd(rWS)}, s{sT1 if t >= 2 else sT0} offen offset:{(t&1)*2048} sc1" for t in range(4)],
         range(HG, HG + 8), 40)
    stamp(8)
    sum4pairs(HG)
    a(f"v_cvt_pk_bf16_f32 v{HG}, v{HG}, v{HG+1}")
    a(f"v_lshlrev_b32 v{HG+2}, 16, v{XP}"); a(f"v_and_b32 v{HG+3}, 0xffff0000, v{XP}")
    a(f"v_and_b32 v{HG+1}, 0xffff0000, v{HG}"); a(f"v_lshlrev_b32 v{HG}, 16, v{HG}")
    a(f"v_add_f32 v{HG}, v{HG}, v{HG+2}"); a(f"v_add_f32 v{HG+1}, v{HG+1}, v{HG+3}")
    a(f"v_cvt_pk_bf16_f32 v{HG}, v{HG}, v{HG+1}")
    a(f"v_and_b32 v{HG+1}, 0xffff0000, v{HG}"); a(f"v_lshlrev_b32 v{HG}, 16, v{HG}")
    a(f"v_readfirstlane_b32 s{sT3}, v{HG}")
    a(f"v_subrev_f32 v{HG+2}, s{sT3}, v{HG}"); a(f"v_subrev_f32 v{HG+3}, s{sT3}, v{HG+1}")
    a(f"v_add_f32 v{HG+4}, v{HG+2}, v{HG+3}")
    a(f"v_mul_f32 v{HG+5}, v{HG+2}, v{HG+2}"); a(f"v_fmac_f32 v{HG+5}, v{HG+3}, v{HG+3}")
    for m in ("quad_perm:[1,0,3,2] " + DPPF, "quad_perm:[2,3,0,1] " + DPPF, "row_half_mirror " + DPPF,
              "row_bcast:15 row_mask:0xa bank_mask:0xf", "row_bcast:31 row_mask:0xc bank_mask:0xf"):
        for i in (4, 5): a(f"v_add_f32_dpp v{HG+i}, v{HG+i}, v{HG+i} {m}")
    a(f"v_mul_f32 v{HG+2}, 0x3c800000, v{HG+4}")
    a(f"v_fma_f32 v{HG+5}, -v{HG+2}, v{HG+4}, v{HG+5}")
    a(f"v_add_f32 v{HG+4}, s{sT3}, v{HG+2}")
    a("s_mov_b32 exec_lo, 0"); a("s_mov_b32 exec_hi, 0x80000000")
    a(f"ds_write_b64 v{vSH}, {q2(HG+4)} offset:{L_LN}")
    a("s_mov_b64 exec, -1")
    a("s_waitcnt lgkmcnt(0)"); a("s_barrier")
    a(f"ds_read_b64 {q2(HG+4)}, v{vJ} offset:{L_LN}")
    a("s_waitcnt lgkmcnt(0)")
    a(f"v_mov_b32 v{HG+2}, v{HG+4}"); red8("v_add_f32", HG + 2)
    a(f"v_mul_f32 v{HG+2}, 0x3e000000, v{HG+2}")
    a(f"v_sub_f32 v{HG+4}, v{HG+4}, v{HG+2}"); a(f"v_mul_f32 v{HG+3}, 0x42800000, v{HG+4}")
    a(f"v_fmac_f32 v{HG+5}, v{HG+3}, v{HG+4}")
    red8("v_add_f32", HG + 5)
    a(f"v_mul_f32 v{HG+5}, 0x3b000000, v{HG+5}")
    ln_finish(HG + 2, HG + 5, HG + 3)
    a(f"v_sub_f32 v{HG}, v{HG}, v{HG+2}"); a(f"v_sub_f32 v{HG+1}, v{HG+1}, v{HG+2}")
    a(f"v_cvt_pk_bf16_f32 v{HG}, v{HG}, v{HG+1}")
    a(f"v_and_b32 v{HG+1}, 0xffff0000, v{HG}"); a(f"v_lshlrev_b32 v{HG}, 16, v{HG}")
    a(f"v_mul_f32 v{HG}, v{HG}, v{HG+3}"); a(f"v_mul_f32 v{HG+1}, v{HG+1}, v{HG+3}")
    a(f"v_cvt_pk_bf16_f32 v{vPK}, v{HG}, v{HG+1}")
    for j in range(8):
        build_a(j); mfma(j, QREG + 4 * j, j == 0)
    p16_store()
    GU = KREG
    for t in range(4):
        a(f"ds_read_b64 {q2(GU+4*t)}, v{vGU} offset:{L_P16 + 256*t}")
        a(f"ds_read_b64 {q2(GU+4*t+2)}, v{vGU} offset:{L_P16 + 256*t + 128}")
    a("s_waitcnt lgkmcnt(0)")
    for i in range(4):
        a(f"v_add_f32 v{GU+i}, v{GU+i}, v{GU+4+i}"); a(f"v_add_f32 v{GU+8+i}, v{GU+8+i}, v{GU+12+i}")
    for i in range(4): a(f"v_add_f32 v{GU+i}, v{GU+i}, v{GU+8+i}")
    for m in ("row_ror:4", "row_ror:8"):
        for i in range(4): a(f"v_add_f32_dpp v{GU+i}, v{GU+i}, v{GU+i} {m} {DPPF}")
    a(f"v_cvt_pk_bf16_f32 v{GU}, v{GU}, v{GU+1}"); a(f"v_cvt_pk_bf16_f32 v{GU+2}, v{GU+2}, v{GU+3}")
    a(f"v_and_b32 v{GU+1}, 0xffff0000, v{GU}"); a(f"v_lshlrev_b32 v{GU}, 16, v{GU}")
    a(f"v_and_b32 v{GU+3}, 0xffff0000, v{GU+2}"); a(f"v_lshlrev_b32 v{GU+2}, 16, v{GU+2}")
    for i in range(2): a(f"v_mul_f32 v{GU+4+i}, {LOG2E ^ 0x80000000:#x}, v{GU+i}")
    for i in range(2): a(f"v_exp_f32 v{GU+4+i}, v{GU+4+i}")
    for i in range(2): a(f"v_add_f32 v{GU+4+i}, 1.0, v{GU+4+i}")
    for i in range(2): a(f"v_rcp_f32 v{GU+4+i}, v{GU+4+i}")
    for i in range(2): a(f"v_mul_f32 v{GU+i}, v{GU+i}, v{GU+4+i}")
    a(f"v_cvt_pk_bf16_f32 v{GU}, v{GU}, v{GU+1}")
    a(f"v_and_b32 v{GU+1}, 0xffff0000, v{GU}"); a(f"v_lshlrev_b32 v{GU}, 16, v{GU}")
    for i in range(2): a(f"v_mul_f32 v{GU+i}, v{GU+i}, v{GU+2+i}")
    a(f"v_cvt_pk_bf16_f32 v{vPK}, v{GU}, v{GU+1}")
    for j in range(4):
        build_a(j); mfma(j, DW + 4 * j, j == 0)
    for r in range(4): a(f"v_mov_b32_dpp v{vD+r}, v{vD+r} row_ror:8 row_mask:0xc bank_mask:0xf")
    a(f"v_permlane32_swap_b32 v{vD}, v{vD+2}"); a(f"v_permlane32_swap_b32 v{vD+1}, v{vD+3}")
    a(f"v_add_f32 v{vD}, v{vD}, v{vD+2}"); a(f"v_add_f32 v{vD+1}, v{vD+1}, v{vD+3}")
    a("s_mov_b32 exec_lo, 0x00ff00ff"); a("s_mov_b32 exec_hi, 0x00ff00ff")
    a(f"buffer_store_dwordx2 {q2(vD)}, v{vY2}, {srd(rWS)}, s{sT2} offen sc1")
    a("s_mov_b64 exec, -1")
    a("s_branch L_exit")

    a("L_F:")
    a(f"s_sub_u32 s{sROLE}, s{sROLE}, {NT2+NT1}")
    a(f"s_lshl_b32 s{sT0}, s{sROLE}, 3"); a(f"s_add_u32 s{sT0}, s{sT0}, s{sW}")
    mksrd(rT, pOUT, 1024)
    a(f"s_lshl_b32 s{sT3}, s{sT0}, 5")
    a(f"v_and_b32 v28, 3, v0"); a(f"v_lshl_add_u32 v29, v28, 2, v{vG2}"); a("v_lshlrev_b32 v29, 1, v29")
    a(f"buffer_load_ushort v41, v29, {srd(rX)}, s{sT3} offen")
    a(f"v_lshrrev_b32 v30, 2, v{vL}"); a("v_lshlrev_b32 v30, 11, v30"); a("v_lshl_add_u32 v30, v28, 4, v30")
    a(f"s_lshl_b32 s{sT0}, s{sT0}, 6"); a(f"s_add_u32 s{sT0}, s{sT0}, {MB2}")
    for i in range(12): a(f"v_mov_b32 v{KREG+i}, 0")
    for i in range(4): a(f"v_mov_b32 v{32+i}, 0")
    a("s_mov_b32 exec_hi, 0")
    poll([f"buffer_load_dwordx4 {q4(32)}, v30, {srd(rWS)}, s{sT0} offen sc1"], range(32, 36), 40)
    a("s_mov_b64 exec, -1")
    tred4(32)
    for m in ("row_ror:4", "row_ror:8"): a(f"v_add_f32_dpp v32, v32, v32 {m} {DPPF}")
    bf16r(32, 32); a("v_lshlrev_b32 v41, 16, v41"); a("v_add_f32 v32, v32, v41"); bf16r(32, 32)
    a(f"s_add_u32 s{sT0}, s{sT0}, {MB3-MB2}"); a(f"s_add_u32 s{sT1}, s{sT0}, {16*2048}"); a(f"s_add_u32 s{sT2}, s{sT0}, {32*2048}")
    stamp(7)
    poll([f"buffer_load_dwordx4 {q4(KREG)}, v30, {srd(rWS)}, s{sT0} offen sc1",
          f"buffer_load_dwordx4 {q4(KREG+4)}, v30, {srd(rWS)}, s{sT1} offen sc1",
          "s_mov_b32 exec_hi, 0xfff",
          f"buffer_load_dwordx4 {q4(KREG+8)}, v30, {srd(rWS)}, s{sT2} offen sc1",
          "s_mov_b32 exec_hi, -1"], range(KREG, KREG + 12), 40)
    stamp(8)
    for i in range(4): a(f"v_add_f32 v{KREG+i}, v{KREG+i}, v{KREG+4+i}")
    for i in range(4): a(f"v_add_f32 v{KREG+i}, v{KREG+i}, v{KREG+8+i}")
    tred4(KREG)
    for m in ("row_ror:4", "row_ror:8"): a(f"v_add_f32_dpp v{KREG}, v{KREG}, v{KREG} {m} {DPPF}")
    bf16r(KREG, KREG); a(f"v_add_f32 v32, v32, v{KREG}")
    a("v_cvt_pk_bf16_f32 v32, v32, v32")
    a("s_mov_b32 exec_lo, 0x000f000f"); a("s_mov_b32 exec_hi, 0x000f000f")
    a(f"buffer_store_short v32, v29, {srd(rT)}, s{sT3} offen")
    if amp:
        a(f"s_memrealtime s[{sE}:{sE+1}]"); a("s_waitcnt lgkmcnt(0)")
        a(f"s_sub_u32 s{sT0}, s{sSTAMP+2*amp[0]}, s{sSTAMP}"); a(f"s_mul_i32 s{sT0}, s{sT0}, {amp[1]}")
        if amp[2]: a(f"s_lshr_b32 s{sT0}, s{sT0}, 4")
        a(f"s_min_u32 s{sT0}, s{sT0}, 200000"); a(f"s_mov_b32 s{sT1}, s{sE}")
        a("L_amp:"); a(f"s_memrealtime s[{sE}:{sE+1}]"); a("s_waitcnt lgkmcnt(0)")
        a(f"s_sub_u32 s{sT2}, s{sE}, s{sT1}"); a(f"s_cmp_lt_u32 s{sT2}, s{sT0}"); a("s_cbranch_scc1 L_amp")

    a("L_exit:")
    if stamps:
        a("s_mov_b64 exec, -1")
        a(f"s_memrealtime s[{sE}:{sE+1}]")
        a(f"s_getreg_b32 s{sT0}, hwreg(HW_REG_XCC_ID)")
        a("s_waitcnt lgkmcnt(0)")
        for i in range(9): a(f"v_mov_b32 v{KREG+i}, s{sSTAMP+2*i}")
        a(f"v_mov_b32 v{KREG+9}, s{sE}"); a(f"v_mov_b32 v{KREG+10}, v{vTK}"); a(f"v_mov_b32 v{KREG+11}, s{sT0}")
        a(f"s_lshl_b32 s{sT0}, s2, 3"); a(f"s_add_u32 s{sT0}, s{sT0}, s{sW}"); a(f"s_lshl_b32 s{sT0}, s{sT0}, 6"); a(f"s_add_u32 s{sT0}, s{sT0}, {STAMP}")
        a("s_mov_b64 exec, 1")
        for i in range(3): a(f"buffer_store_dwordx4 {q4(KREG+4*i)}, off, {srd(rWS)}, s{sT0} offset:{16*i}")
    a("L_end:")
    a("s_endpgm")

    out = HEADER + f"; @launch grid=(256,1,1) block=(512,1,1) lds={L_END}\n"
    out += f'.amdgcn_target "amdgcn-amd-amdhsa--gfx950"\n.text\n.globl {KNAME}\n.p2align 8\n.type {KNAME},@function\n'
    out += a.render()
    out += f'''.section .rodata,"a"
.p2align 6
.amdhsa_kernel {KNAME}
  .amdhsa_next_free_vgpr {NV}
  .amdhsa_next_free_sgpr 102
  .amdhsa_accum_offset {NV}
  .amdhsa_group_segment_fixed_size 0
  .amdhsa_kernarg_size 96
  .amdhsa_user_sgpr_count 2
  .amdhsa_user_sgpr_kernarg_segment_ptr 1
  .amdhsa_system_sgpr_workgroup_id_x 1
  .amdhsa_float_denorm_mode_32 3
.end_amdhsa_kernel
'''
    return out


if __name__ == "__main__":
    kw = {}
    for arg in sys.argv[2:]:
        k, v = arg.split("=")
        kw[k] = eval(v)
    open(sys.argv[1], "w").write(gen(**kw))
```

```python
import sys
from asmlib import Asm

KNAME = "sequential_preLN__sliding_block_cached__swiglu_ffn__decode_kernel"
HEADER = open("sequential_preLN__sliding_block_cached__swiglu_ffn__decode.s.ref").read().split("; Override launch")[0]

LOG2E = 0x3FB8AA3B
SCALE = 0x3DB504F3
EPS = 0x3727C5AC

SLOT = 640
MB1 = 0
MB2 = 256 * SLOT
MB3 = MB2 + 8 * 2048
MBQ = MB2 + 256 * 512
EPOCH = MBQ + 256 * 1024
STAMP = 1 << 20
WS_SIZE = 2 << 20
L_QP, L_QB, L_ST, L_ROLE, L_OP, L_P16, L_LN, L_H, L_END = 0, 4096, 4352, 4416, 4480, 12672, 16768, 16896, 18304

NT2 = 43
DPPF = "row_mask:0xf bank_mask:0xf"
STAMPS = ["start", "args", "x", "qgot", "p", "cbar", "obar", "ready", "got", "pub", "fgot", "exit"]

sH, sSP, sW, sTAG, sBUD = 3, 4, 5, 6, 7
pX, pK, pV, pWQ, pWO, pWG, pWU, pWD, pOUT, pDBG, pWS = 8, 10, 12, 14, 16, 20, 22, 24, 26, 28, 30
sMW, sPASS = 18, 19
rK, rV, rQ, rX, rWS, rDBG, rT = 32, 36, 40, 44, 48, 52, 56
sOFF = 60
sT0, sT1, sT2, sT3 = 76, 77, 78, 79
sROLE, sSLOT = 80, 81
sE = 82
sXCC, sU = 84, 85
sST = 86
vL, vKV, vQO = 1, 2, 3
vSEL, vA, vD, vPK, vB = 4, 8, 16, 20, 21
vT = 22
KREG, VREG, TREG = 48, 112, 176
vSTAMP = 224
NV = 232


def q4(r): return f"v[{r}:{r+3}]"
def q2(r): return f"v[{r}:{r+1}]"
def srd(r): return f"s[{r}:{r+3}]"


def gen(W=4, stamps=False, budget=1 << 18, gpos=10, R0=4, local=True, dry=True, masked=True, psleep=0, W0=4, amp=None, only=None, abl=(), kvpol="nt"):
    assert W <= 7
    a = Asm()
    far = []

    def stamp(name):
        i = STAMPS.index(name)
        if stamps:
            if only and name not in only and name not in ("start", "exit"): return
            a(f"s_memrealtime s[{sST}:{sST+1}]"); a("s_waitcnt lgkmcnt(0)"); a(f"v_writelane_b32 v{vSTAMP}, s{sST}, {i}")
        elif amp and name == "start": a(f"s_memrealtime s[{sST}:{sST+1}]")
        elif amp and name == amp[0]: a(f"s_memrealtime s[{sST+2}:{sST+3}]\ns_waitcnt lgkmcnt(0)")

    def mksrd(r, p, size, add=None):
        if add is None:
            a(f"s_mov_b32 s{r}, s{p}"); a(f"s_mov_b32 s{r+1}, s{p+1}")
        else:
            a(f"s_add_u32 s{r}, s{p}, s{add}"); a(f"s_addc_u32 s{r+1}, s{p+1}, 0")
        a(f"s_mov_b32 s{r+2}, {size}"); a(f"s_mov_b32 s{r+3}, 0x20000")

    def bf16r(d, s):
        a(f"v_cvt_pk_bf16_f32 v{d}, v{s}, v{s}"); a(f"v_and_b32 v{d}, 0xffff0000, v{d}")

    def unpack(lo, hi, s):
        a(f"v_and_b32 v{hi}, 0xffff0000, v{s}"); a(f"v_lshlrev_b32 v{lo}, 16, v{s}")

    def wave_red(op, v, s):
        for m in ("quad_perm:[1,0,3,2]", "quad_perm:[2,3,0,1]", "row_half_mirror", "row_mirror"):
            a(f"{op}_dpp v{v}, v{v}, v{v} {m} {DPPF}")
        a(f"{op}_dpp v{v}, v{v}, v{v} row_bcast:15 row_mask:0xa bank_mask:0xf")
        a(f"{op}_dpp v{v}, v{v}, v{v} row_bcast:31 row_mask:0xc bank_mask:0xf")
        a(f"v_readlane_b32 s{s}, v{v}, 63")

    def red8(op, *vs):
        for m in ("quad_perm:[1,0,3,2]", "quad_perm:[2,3,0,1]", "row_half_mirror"):
            for v in vs: a(f"{op}_dpp v{v}, v{v}, v{v} {m} {DPPF}")

    def build_a(j):
        A = vA + 4 * (j & 1)
        a(f"v_mov_b32_dpp v{vB}, v{vPK} row_newbcast:{j} {DPPF}")
        for r in range(4):
            a(f"v_perm_b32 v{A+r}, v{vB}, v{vB}, v{vSEL+r}")

    def mfma(j, b, first):
        A = vA + 4 * (j & 1)
        a(f"v_mfma_f32_16x16x32_bf16 {q4(vD)}, {q4(A)}, {q4(b)}, {'0' if first else q4(vD)}")

    def gemv(n, breg):
        build_a(0)
        for j in range(n):
            if j + 1 < n: build_a(j + 1)
            mfma(j, breg + 4 * j, j == 0)

    def tred4(v):
        a(f"v_permlane32_swap_b32 v{v}, v{v+2}"); a(f"v_permlane32_swap_b32 v{v+1}, v{v+3}")
        a(f"v_add_f32 v{v}, v{v}, v{v+2}"); a(f"v_add_f32 v{v+1}, v{v+1}, v{v+3}")
        a(f"v_permlane16_swap_b32 v{v}, v{v+1}")
        a(f"v_add_f32 v{v}, v{v}, v{v+1}")

    def red16(vaddr, base, ps, v):
        for t in range(4):
            a(f"ds_read_b128 {q4(v+4*t)}, v{vaddr} offset:{base + t*ps}")
        a("s_waitcnt lgkmcnt(2)")
        for i in range(4): a(f"v_add_f32 v{v+i}, v{v+i}, v{v+4+i}")
        a("s_waitcnt lgkmcnt(0)")
        for i in range(4): a(f"v_add_f32 v{v+8+i}, v{v+8+i}, v{v+12+i}")
        for i in range(4): a(f"v_add_f32 v{v+i}, v{v+i}, v{v+8+i}")
        tred4(v)

    def umax(tmp, rs):
        rs = list(rs)
        if len(rs) == 2:
            a(f"v_max_u32 v{tmp}, v{rs[0]}, v{rs[1]}"); return
        a(f"v_max3_u32 v{tmp}, v{rs[0]}, v{rs[1]}, v{rs[2]}"); rs = rs[3:]
        while rs:
            if len(rs) >= 2:
                a(f"v_max3_u32 v{tmp}, v{tmp}, v{rs[0]}, v{rs[1]}"); rs = rs[2:]
            else:
                a(f"v_max_u32 v{tmp}, v{tmp}, v{rs[0]}"); rs = rs[1:]

    npoll = [0]

    def poll(loads, tmp, skip_dry=True):
        n = npoll[0]; npoll[0] += 1
        if dry and skip_dry:
            a(f"s_cmp_eq_u32 s{sPASS}, 0"); a(f"s_cbranch_scc1 L_pdone{n}")
        if masked:
            for t, (_, _, hi) in enumerate(loads):
                a(f"s_mov_b32 s{sOFF+2*t}, -1"); a(f"s_mov_b32 s{sOFF+2*t+1}, {hi}")
        a(f"L_poll{n}:")
        for t, (ld, _, hi) in enumerate(loads):
            if masked: a(f"s_mov_b64 exec, s[{sOFF+2*t}:{sOFF+2*t+1}]")
            elif hi != -1: a(f"s_mov_b32 exec_hi, {hi}")
            a(ld)
        a("s_mov_b64 exec, -1")
        a(f"s_sub_u32 s{sBUD}, s{sBUD}, 1"); a("s_cbranch_scc1 L_exit")
        a("s_waitcnt vmcnt(0)")
        umax(tmp, [r for _, rs, _ in loads for r in rs])
        a(f"v_cmp_eq_u32 vcc, -1, v{tmp}")
        if masked or psleep:
            a(f"s_cbranch_vccnz L_pagain{n}")
            far.append(("again", n, loads, tmp))
        else:
            a(f"s_cbranch_vccnz L_poll{n}")
        a(f"L_pdone{n}:")

    nst = [0]

    def handoff_store(text):
        if not local:
            a(text + " sc1"); return
        n = nst[0]; nst[0] += 1
        a(f"s_bitcmp1_b32 s{sROLE}, 8"); a(f"s_cbranch_scc0 L_stfar{n}")
        a(text)
        a(f"L_stdone{n}:")
        far.append(("store", n, text))

    def emit_far():
        for item in far:
            if item[0] == "store":
                _, n, text = item
                a(f"L_stfar{n}:"); a(text + " sc1"); a(f"s_branch L_stdone{n}")
            elif item[0] == "again":
                _, n, loads, tmp = item
                a(f"L_pagain{n}:")
                if masked:
                    for t, (_, rs, _) in enumerate(loads):
                        umax(tmp, rs); a(f"v_cmp_eq_u32 s[{sOFF+2*t}:{sOFF+2*t+1}], -1, v{tmp}")
                if psleep: a(f"s_sleep {psleep}")
                a(f"s_branch L_poll{n}")
            else:
                item[1]()
        far.clear()

    def ln_finish(vmean, vvar, vr):
        bf16r(vmean, vmean); bf16r(vvar, vvar)
        a(f"v_add_f32 v{vvar}, {EPS:#x}, v{vvar}"); bf16r(vvar, vvar)
        a(f"v_sqrt_f32 v{vvar}, v{vvar}"); bf16r(vvar, vvar)
        a(f"v_rcp_f32 v{vr}, v{vvar}")

    def only_wave(w, label):
        if label[4:] in abl: w = 99
        a(f"s_cmp_lg_u32 s{sW}, {w}"); a(f"s_cbranch_scc1 {label}")

    a(f"{KNAME}:")
    a("s_cmp_ge_u32 s2, 256"); a("s_cbranch_scc1 L_end")
    if stamps: a(f"v_mov_b32 v{vSTAMP}, 0")
    stamp("start")
    a(f"s_load_dwordx16 s[8:23], s[0:1], 0"); a(f"s_load_dwordx8 s[24:31], s[0:1], 64")
    a(f"s_and_b32 s{sH}, s2, 31"); a(f"s_lshr_b32 s{sSP}, s2, 5")
    a(f"v_lshrrev_b32 v{vT}, 6, v0"); a(f"v_and_b32 v{vL}, 63, v0")
    a(f"v_readfirstlane_b32 s{sW}, v{vT}")
    a(f"v_lshlrev_b32 v{vKV}, 4, v0")
    a(f"s_lshl_b32 s{sT1}, s{sSP}, 1"); a(f"s_add_u32 s{sT1}, s{sT1}, s{sH}"); a(f"s_lshl_b32 s{sT1}, s{sT1}, 13")
    for j in range(16):
        a(f"s_and_b32 s{sOFF+j}, s{sT1}, 0x1e000")
        if j < 15: a(f"s_add_u32 s{sT1}, s{sT1}, 0x2000")
    a(f"s_lshl_b32 s{sT0}, s{sH}, 23"); a(f"s_lshl_b32 s{sT1}, s{sSP}, 17"); a(f"s_add_u32 s{sT0}, s{sT0}, s{sT1}")
    a(f"s_add_u32 s{sT0}, s{sT0}, {(32768-4096)*256}")
    a(f"s_mov_b32 s{sBUD}, {budget}")
    a(f"s_lshl_b32 s{sT2}, s{sH}, 3"); a(f"s_add_u32 s{sT2}, s{sT2}, s{sSP}"); a(f"s_mul_i32 s{sSLOT}, s{sT2}, {SLOT}")
    a(f"s_getreg_b32 s{sXCC}, hwreg(HW_REG_XCC_ID, 0, 3)")
    vG, vC, vXO, vXA = vT, vT + 1, vT + 2, vT + 3
    a(f"v_bfe_u32 v{vG}, v0, 4, 2"); a(f"v_and_b32 v{vC}, 15, v0")
    a(f"s_lshl_b32 s{sT1}, s{sSP}, 3"); a(f"s_add_u32 s{sT1}, s{sT1}, s{sW}"); a(f"s_lshl_b32 s{sT1}, s{sT1}, 3")
    a(f"v_add_u32 v{vG}, s{sT1}, v{vG}")
    a(f"v_lshlrev_b32 v{vQO}, 13, v{vG}"); a(f"v_lshl_add_u32 v{vQO}, v{vC}, 4, v{vQO}")
    a(f"s_lshl_b32 s{sT2}, s{sH}, 8"); a(f"s_add_u32 s{sT3}, s{sT2}, 0x8000")
    a(f"v_and_b32 v{vXO}, 1, v0"); a(f"v_lshl_add_u32 v{vXO}, v{vXO}, 2, v{vG}"); a(f"v_lshlrev_b32 v{vXO}, 1, v{vXO}")
    a(f"v_lshlrev_b32 v{vXA}, 4, v{vL}")
    a("s_waitcnt lgkmcnt(0)")
    stamp("args")
    mksrd(rQ, pWQ, 0x400000)

    XA, XO, GQ = 28, 27, 44
    vTK = 46
    vPL = 43
    seq = [("q", 0), ("q", 1), ("xa", 0), ("xo", 0)]
    for j in range(16):
        seq.append(("k", j))
        if j == gpos: seq.append(("g", 0))
    seq += [("v", j) for j in range(16)]
    pos = {op: i for i, op in enumerate(seq)}
    issued, done = [0], [0]
    gload = f"buffer_load_dwordx4 {q4(GQ)}, v{vQO}, {srd(rWS)}, s{sU} offen sc1"
    if "g" in abl: gload = f"buffer_load_dwordx4 {q4(GQ)}, v{vXA}, {srd(rX)}, 0 offen"

    def ticket():
        only_wave(0, "L_noticket")
        a(f"s_and_b32 s{sT1}, s{sH}, 7"); a(f"s_lshl_b32 s{sT1}, s{sT1}, 3"); a(f"s_lshl_b64 s[{sE}:{sE+1}], 1, s{sT1}")
        a(f"v_mov_b32 v{vTK}, s{sE}"); a(f"v_mov_b32 v{vTK+1}, s{sE+1}"); a(f"v_lshlrev_b32 v{vPL-1}, 2, v{vL}")
        a("s_mov_b64 exec, 1")
        a(f"buffer_atomic_add_x2 {q2(vTK)}, off, {srd(rDBG)}, 0 sc0 sc1")
        a("s_mov_b64 exec, -1")
        a(f"buffer_load_dword v{vPL}, v{vPL-1}, {srd(rDBG)}, 0 offen offset:128 sc1")
        a("L_noticket:")

    def issue_to(n):
        while issued[0] < min(n, len(seq)):
            kind, j = seq[issued[0]]
            if kind == "k": a.vmem(f"buffer_load_dwordx4 {q4(KREG+4*j)}, v{vKV}, {srd(rK)}, s{sOFF+j} offen {kvpol}", (kind, j))
            elif kind == "v":
                if j == 15 - W: ticket()
                a.vmem(f"buffer_load_dwordx4 {q4(VREG+4*j)}, v{vKV}, {srd(rV)}, s{sOFF+j} offen {kvpol}", (kind, j))
            elif kind == "q": a.vmem(f"buffer_load_dwordx4 {q4(TREG+4*j)}, v{vQO}, {srd(rQ)}, s{sT3 if j else sT2} offen nt", (kind, j))
            elif kind == "xa": a.vmem(f"buffer_load_dwordx4 {q4(XA)}, v{vXA}, {srd(rX)}, 0 offen", (kind, j))
            elif kind == "xo": a.vmem(f"buffer_load_ushort v{XO}, v{vXO}, {srd(rX)}, 0 offen", (kind, j))
            elif kind == "g": a.vmem(gload, (kind, j))
            issued[0] += 1

    def advance(upto):
        while done[0] <= pos[upto]:
            a.wait_vm(seq[done[0]]); done[0] += 1
            issue_to(done[0] + W)

    issue_to(2)
    mksrd(rX, pX, 1024)
    issue_to(4)
    mksrd(rK, pK, 0x20000, sT0)
    issue_to(4 + W0)
    a(f"s_load_dword s{sTAG}, s[{pWS}:{pWS+1}], {EPOCH}")
    mksrd(rV, pV, 0x20000, sT0); mksrd(rWS, pWS, WS_SIZE); mksrd(rDBG, pDBG, 256)
    only_wave(7, "L_noclear")
    c0 = 40
    for i in range(4): a(f"v_mov_b32 v{c0+i}, -1")
    a(f"s_lshl_b32 s{sT1}, s2, 9"); a(f"s_add_u32 s{sT1}, s{sT1}, {MB2}")
    a("s_mov_b32 exec_hi, 0")
    a(f"buffer_store_dwordx4 {q4(c0)}, v{vXA}, {srd(rWS)}, s{sT1} offen sc1")
    a(f"s_mov_b32 exec_hi, 0xff")
    a(f"buffer_store_dwordx4 {q4(c0)}, v{vXA}, {srd(rWS)}, s{sSLOT} offen sc1")
    a("s_mov_b64 exec, -1")
    a("L_noclear:")
    clear_before = issued[0]
    a(f"v_and_b32 v{vQO}, 7, v0"); a(f"v_lshrrev_b32 v32, 3, v0"); a(f"v_lshlrev_b32 v{vQO}, 10, v{vQO}"); a(f"v_lshl_add_u32 v{vQO}, v32, 4, v{vQO}")
    a(f"s_lshl_b32 s{sU}, s{sH}, 13"); a(f"s_add_u32 s{sU}, s{sU}, {MBQ}")
    t0, t1, t2 = 32, 33, 34
    a(f"v_and_b32 v{t0}, 8, v0"); a(f"v_mov_b32 v{t1}, 0x0100"); a(f"v_mov_b32 v{t2}, 0x0302")
    a(f"v_cmp_ne_u32 vcc, 0, v{t0}"); a(f"v_cndmask_b32 v{t1}, v{t1}, v{t2}, vcc")
    a(f"v_or_b32 v{t2}, 0x0c0c0000, v{t1}")
    a(f"v_lshlrev_b32 v{t1}, 16, v{t1}"); a(f"v_or_b32 v{t1}, 0x0c0c, v{t1}")
    a(f"v_and_b32 v{t0}, 1, v0"); a(f"v_cmp_ne_u32 vcc, 0, v{t0}"); a(f"v_cndmask_b32 v{t1}, v{t2}, v{t1}, vcc")
    a(f"v_bfe_u32 v{t0}, v0, 1, 2"); a(f"v_mov_b32 v{t2}, 0x0c0c0c0c")
    for r in range(4):
        a(f"v_cmp_eq_u32 vcc, {r}, v{t0}"); a(f"v_cndmask_b32 v{vSEL+r}, v{t2}, v{t1}, vcc")
    vAD = vT
    a(f"v_bfe_u32 v{vAD}, v0, 4, 1"); a(f"v_lshlrev_b32 v{vAD}, 4, v{vAD}"); a(f"v_lshl_add_u32 v{vAD}, v{vC}, 5, v{vAD}")

    a.wait_vm(("xo", 0)); done[0] = pos[("xo", 0)] + 1
    stamp("x")
    U = 32
    for i in range(4): unpack(U + 2 * i, U + 2 * i + 1, XA + i)
    S, M_, R_ = 40, 41, 42
    a(f"v_add_f32 v{S}, v{U}, v{U+1}")
    for i in range(2, 8): a(f"v_add_f32 v{S}, v{S}, v{U+i}")
    wave_red("v_add_f32", S, sT1)
    issue_to(issued[0] + 1)
    a(f"v_mov_b32 v{M_}, 0x3b000000"); a(f"v_mul_f32 v{M_}, s{sT1}, v{M_}")
    for i in range(8): a(f"v_sub_f32 v{U+i}, v{U+i}, v{M_}")
    a(f"v_mul_f32 v{S}, v{U}, v{U}")
    for i in range(1, 8): a(f"v_fmac_f32 v{S}, v{U+i}, v{U+i}")
    wave_red("v_add_f32", S, sT1)
    a(f"v_mov_b32 v{S}, 0x3b000000"); a(f"v_mul_f32 v{S}, s{sT1}, v{S}")
    ln_finish(M_, S, R_)
    a(f"v_lshlrev_b32 v{XO}, 16, v{XO}"); a(f"v_sub_f32 v{XO}, v{XO}, v{M_}"); bf16r(XO, XO)
    a(f"v_mul_f32 v{XO}, v{XO}, v{R_}")
    a(f"v_cvt_pk_bf16_f32 v{vPK}, v{XO}, 0")

    gemv(2, TREG)
    issue_to(issued[0] + 1)
    a(f"s_lshl_b32 s{sT1}, s{sW}, 9"); a(f"v_add_u32 v{vAD+1}, s{sT1}, v{vAD}")
    a("s_mov_b32 exec_hi, 0")
    a(f"ds_write_b128 v{vAD+1}, {q4(vD)} offset:{L_QP}")
    a("s_mov_b32 exec_hi, -1")
    a("s_waitcnt lgkmcnt(0)"); a("s_barrier" if "barA" not in abl else "s_nop 0")
    a(f"s_mul_i32 s{sTAG}, s{sTAG}, 0x9e3779b1"); a(f"s_add_u32 s{sTAG}, s{sTAG}, 0x7f4a7c15")
    only_wave(1, "L_noqpub")
    P = 28
    a(f"v_lshlrev_b32 v{vAD+1}, 3, v{vL}")
    for w in range(8): a(f"ds_read_b64 {q2(P+2*w)}, v{vAD+1} offset:{L_QP + 512*w}")
    a(f"s_lshl_b32 s{sT1}, s{sSP}, 10"); a(f"s_add_u32 s{sT1}, s{sT1}, s{sU}")
    a("s_waitcnt lgkmcnt(0)")
    for st in (8, 4):
        for i in range(st): a(f"v_add_f32 v{P+i}, v{P+i}, v{P+i+st}")
    a(f"v_add_f32 v{P}, v{P}, v{P+2}"); a(f"v_add_f32 v{P+2}, v{P+1}, v{P+3}")
    a(f"v_mov_b32 v{P+1}, s{sTAG}"); a(f"v_mov_b32 v{P+3}, s{sTAG}")
    a(f"buffer_store_dwordx4 {q4(P)}, v{vXA}, {srd(rWS)}, s{sT1} offen sc1")
    a("L_noqpub:")
    advance(seq[clear_before])
    only_wave(7, "L_nocount")
    a(f"s_lshl_b32 s{sT1}, s{sXCC}, 3"); a(f"s_lshl_b64 s[{sE}:{sE+1}], 1, s{sT1}")
    a(f"s_and_b32 s{sT1}, s{sH}, 7"); a(f"s_lshl_b32 s{sT1}, s{sT1}, 3")
    a(f"v_mov_b32 v40, s{sE}"); a(f"v_mov_b32 v41, s{sE+1}"); a("s_mov_b64 exec, 1")
    a(f"buffer_atomic_add_x2 v[40:41], off, {srd(rDBG)}, s{sT1} offset:128 sc1")
    a("s_mov_b64 exec, -1")
    a("L_nocount:")

    advance(("g", 0))
    a("L_qcheck:")
    a(f"v_cmp_ne_u32 vcc, s{sTAG}, v{GQ+1}"); a(f"v_cmp_ne_u32 s[{sE}:{sE+1}], s{sTAG}, v{GQ+3}")
    a(f"s_or_b64 vcc, vcc, s[{sE}:{sE+1}]"); a("s_cbranch_scc1 L_qretry" if "qpub" not in abl else "s_nop 0")

    def qretry():
        a("L_qretry:"); a(gload)
        a(f"s_sub_u32 s{sBUD}, s{sBUD}, 1"); a("s_cbranch_scc1 L_exit")
        a("s_waitcnt vmcnt(0)"); a("s_branch L_qcheck")
    far.append(("fn", qretry))
    stamp("qgot")
    red8("v_add_f32", GQ, GQ + 2)
    a(f"v_lshrrev_b32 v{vAD+1}, 3, v0"); a(f"v_lshlrev_b32 v{vAD+1}, 2, v{vAD+1}")
    a(f"v_cvt_pk_bf16_f32 v{GQ}, v{GQ}, v{GQ+2}")
    a("s_mov_b32 exec_lo, 0x01010101"); a("s_mov_b32 exec_hi, 0x01010101")
    a(f"ds_write_b32 v{vAD+1}, v{GQ} offset:{L_QB}")
    a("s_mov_b64 exec, -1")
    a(f"v_and_b32 v{vAD+1}, 15, v0"); a(f"v_lshlrev_b32 v{vAD+1}, 4, v{vAD+1}")
    a("s_waitcnt lgkmcnt(0)"); a("s_barrier" if "barB" not in abl else "s_nop 0")
    QP = 40
    a(f"ds_read_b128 {q4(QP)}, v{vAD+1} offset:{L_QB}")
    a("s_waitcnt lgkmcnt(0)")

    SJ = 24

    def dots(js):
        for i in range(4):
            for j in js:
                a(f"v_dot2_f32_bf16 v{SJ+j}, v{KREG+4*j+i}, v{QP+i}, {'0' if i == 0 else 'v%d' % (SJ+j)}")
    dots(range(gpos + 1))
    for j in range(gpos + 1, 16):
        advance(("k", j)); dots([j])
    for j in range(8):
        a(f"v_add_f32_dpp v{SJ+j}, v{SJ+j}, v{SJ+j} row_ror:8 row_mask:0xf bank_mask:0x3")
    for j in range(8):
        a(f"v_add_f32_dpp v{SJ+j}, v{SJ+j+8}, v{SJ+j+8} row_ror:8 row_mask:0xf bank_mask:0xc")
    for j in range(4):
        a(f"v_add_f32_dpp v{SJ+j}, v{SJ+j}, v{SJ+j} row_half_mirror row_mask:0xf bank_mask:0x5")
    for j in range(4):
        a(f"v_add_f32_dpp v{SJ+j}, v{SJ+j+4}, v{SJ+j+4} row_half_mirror row_mask:0xf bank_mask:0xa")
    for j in range(4):
        a(f"v_add_f32_dpp v{SJ+j}, v{SJ+j}, v{SJ+j} quad_perm:[1,0,3,2] {DPPF}")
    a("s_mov_b32 vcc_lo, 0xaaaaaaaa"); a("s_mov_b32 vcc_hi, 0xaaaaaaaa")
    a(f"v_cndmask_b32 v{SJ}, v{SJ}, v{SJ+1}, vcc"); a(f"v_cndmask_b32 v{SJ+2}, v{SJ+2}, v{SJ+3}, vcc")
    a(f"v_add_f32_dpp v{SJ}, v{SJ}, v{SJ} quad_perm:[2,3,0,1] {DPPF}")
    a(f"v_add_f32_dpp v{SJ+2}, v{SJ+2}, v{SJ+2} quad_perm:[2,3,0,1] {DPPF}")
    a("s_mov_b32 vcc_lo, 0xcccccccc"); a("s_mov_b32 vcc_hi, 0xcccccccc")
    SC = SJ
    a(f"v_cndmask_b32 v{SC}, v{SJ}, v{SJ+2}, vcc")
    advance(("v", 0))
    bf16r(SC, SC); a(f"v_mul_f32 v{SC}, {SCALE:#x}, v{SC}"); bf16r(SC, SC)
    T = 26
    a(f"v_mov_b32 v{T}, v{SC}"); wave_red("v_max_f32", T, sMW)
    a(f"v_subrev_f32 v{SC}, s{sMW}, v{SC}"); a(f"v_mul_f32 v{SC}, {LOG2E:#x}, v{SC}"); a(f"v_exp_f32 v{SC}, v{SC}")

    def split_p():
        bf16r(T, SC); a(f"v_sub_f32 v{T}, v{SC}, v{T}")
        a(f"v_cvt_pk_bf16_f32 v{vPK}, v{SC}, v{T}")
    split_p()
    a(f"v_mov_b32 v{T}, v{SC}"); wave_red("v_add_f32", T, sT2)
    a(f"v_mov_b32 v{T}, s{sMW}"); a(f"v_mov_b32 v{T+1}, s{sT2}")
    a(f"s_lshl_b32 s{sT1}, s{sW}, 3"); a(f"v_mov_b32 v{T+2}, s{sT1}")
    a("s_mov_b64 exec, 1"); a(f"ds_write_b64 v{T+2}, {q2(T)} offset:{L_ST}"); a("s_mov_b64 exec, -1")
    stamp("p")

    for j in range(16 - W):
        build_a(j)
        advance(("v", j))
        mfma(j, VREG + 4 * j, j == 0)
    assert issued[0] == len(seq)
    only_wave(0, "L_norole")
    a("L_rolecheck:")
    a(f"v_sad_u8 v32, v{vPL}, 0, 0")
    a(f"s_and_b32 s{sT1}, s{sH}, 7"); a(f"s_lshl_b32 s{sT2}, s{sT1}, 1"); a(f"s_lshr_b32 s{sT3}, s{sXCC}, 2"); a(f"s_add_u32 s{sT2}, s{sT2}, s{sT3}")
    red8("v_add_u32", 32); a(f"v_add_u32_dpp v32, v32, v32 row_mirror {DPPF}")
    a(f"v_readlane_b32 s{sT2}, v{vPL}, s{sT2}")
    a(f"v_readfirstlane_b32 s{sT3}, v32")
    a(f"s_cmp_eq_u32 s{sT3}, 256"); a("s_cbranch_scc0 L_roleretry")

    def roleretry():
        a("L_roleretry:")
        a(f"buffer_load_dword v{vPL}, v{vPL-1}, {srd(rDBG)}, 0 offen offset:128 sc1")
        a(f"s_sub_u32 s{sBUD}, s{sBUD}, 1"); a("s_cbranch_scc1 L_exit")
        a("s_waitcnt vmcnt(0)"); a("s_branch L_rolecheck")
    far.append(("fn", roleretry))
    a(f"s_and_b32 s{sT3}, s{sXCC}, 3"); a(f"s_lshl_b32 s{sT3}, s{sT3}, 3"); a(f"s_lshr_b32 s{sT2}, s{sT2}, s{sT3}"); a(f"s_and_b32 s{sT2}, s{sT2}, 0xff")
    a(f"s_cmp_eq_u32 s{sT2}, 32"); a(f"s_cselect_b32 s{sROLE}, 0x100, 0")
    a(f"v_readfirstlane_b32 s{sE}, v{vTK}"); a(f"v_readfirstlane_b32 s{sE+1}, v{vTK+1}")
    a("v_and_b32 v32, 7, v0"); a("v_lshlrev_b32 v32, 3, v32")
    a(f"v_lshrrev_b64 v[32:33], v32, s[{sE}:{sE+1}]"); a("v_and_b32 v32, 0xff, v32")
    a(f"v_subrev_u32 v33, {R0}, v32"); a("v_med3_i32 v34, v33, 0, 8"); a("v_sub_u32 v32, v32, v34")
    red8("v_add_u32", 32)
    a(f"v_readlane_b32 s{sT2}, v33, s{sT1}")
    a(f"v_readfirstlane_b32 s{sT3}, v32")
    a(f"s_min_u32 s{sT3}, s{sT3}, 63")
    a(f"s_cmp_lt_u32 s{sT2}, 8"); a(f"s_cselect_b32 s{sT1}, 64, 0"); a(f"s_cselect_b32 s{sT2}, s{sT2}, s{sT3}")
    a(f"s_or_b32 s{sROLE}, s{sROLE}, s{sT1}"); a(f"s_or_b32 s{sROLE}, s{sROLE}, s{sT2}")
    a(f"v_mov_b32 v32, s{sROLE}"); a("v_mov_b32 v33, 0")
    a(f"ds_write_b32 v33, v32 offset:{L_ROLE}")
    a("L_norole:")
    vG2, vJ, vSH = 40, 41, 42
    a(f"v_bfe_u32 v{vG2}, v0, 4, 2"); a(f"v_and_b32 v{vJ}, 7, v0"); a(f"v_bfe_u32 v{vSH}, v0, 3, 1")
    a(f"v_lshlrev_b32 v{T+2}, 3, v{vJ}"); a("v_mov_b32 v33, 0")
    a("s_waitcnt lgkmcnt(0)"); a("s_barrier" if "barC" not in abl else "s_nop 0")
    stamp("cbar")
    a(f"ds_read_b64 {q2(T)}, v{T+2} offset:{L_ST}"); a(f"ds_read_b32 v32, v33 offset:{L_ROLE}")
    vOW, vR5, vR4, vCO = 43, 44, 45, 46
    a(f"v_lshrrev_b32 v{vOW}, 5, v0"); a(f"v_lshl_add_u32 v{vOW}, v{vOW}, 9, v{vAD}")
    a(f"v_and_b32 v{vCO}, 15, v0"); a(f"v_lshlrev_b32 v{vCO}, 4, v{vCO}")
    a(f"v_lshl_add_u32 v{vR5}, v{vG2}, 11, v{vCO}"); a(f"s_lshl_b32 s{sT1}, s{sW}, 8"); a(f"v_add_u32 v{vR5}, s{sT1}, v{vR5}")
    a(f"v_lshl_add_u32 v{vR4}, v{vG2}, 10, v{vCO}")
    a(f"v_lshl_add_u32 v{vCO}, v{vG2}, 2, v{vCO}")
    a(f"s_add_u32 s{sU}, s{sT1}, s{sSLOT}")
    a("s_waitcnt lgkmcnt(0)")
    a(f"v_readfirstlane_b32 s{sROLE}, v32")
    if "role" in abl: a(f"s_mov_b32 s{sROLE}, 0x13f")
    MM = 30
    a(f"v_mov_b32 v{MM}, v{T}"); red8("v_max_f32", MM)
    a(f"v_sub_f32 v{T}, v{T}, v{MM}"); a(f"v_sub_f32 v32, s{sMW}, v{MM}")
    a(f"v_mul_f32 v{T}, {LOG2E:#x}, v{T}"); a(f"v_mul_f32 v32, {LOG2E:#x}, v32")
    a(f"v_exp_f32 v{T}, v{T}"); a("v_exp_f32 v32, v32")
    a(f"v_mul_f32 v{MM+1}, v{T}, v{T+1}")
    a(f"v_mul_f32 v{SC}, v{SC}, v32")
    for r in range(4): a(f"v_mul_f32 v{vD+r}, v{vD+r}, v32")
    split_p()
    only_wave(7, "L_noml")
    red8("v_add_f32", MM + 1)
    a("s_mov_b64 exec, 1")
    handoff_store(f"buffer_store_dwordx2 {q2(MM)}, off, {srd(rWS)}, s{sSLOT} offset:512")
    a("s_mov_b64 exec, -1")
    a("L_noml:")
    a(f"s_and_b32 s{sT0}, s{sROLE}, 0x7f"); a(f"s_sub_u32 s{sT1}, s{sT0}, {NT2}"); a(f"s_cmp_lt_u32 s{sT1}, {64-NT2}")
    a("s_cbranch_scc0 L_pvrole")
    for j in range(16 - W, 16):
        build_a(j)
        a(f"s_waitcnt vmcnt({15-j})")
        mfma(j, VREG + 4 * j, False)
    a("L_pvdone:")
    a(f"ds_write_b128 v{vOW}, {q4(vD)} offset:{L_OP}")
    a("s_waitcnt lgkmcnt(0)"); a("s_barrier")
    stamp("obar")
    a(f"s_cmp_ge_u32 s{sW}, 2"); a("s_cbranch_scc1 L_nopub")
    red16(vR5, L_OP, 512, 24)
    handoff_store(f"buffer_store_dword v24, v{vCO}, {srd(rWS)}, s{sU} offen")
    a("L_nopub:")
    a(f"s_and_b32 s{sU}, s{sROLE}, 0x7f"); a(f"s_sub_u32 s{sT1}, s{sU}, {NT2}"); a(f"s_cmp_lt_u32 s{sT1}, {64-NT2}")
    a("s_cbranch_scc1 L_exit")
    a("s_branch L_tail")
    emit_far()

    vAD64 = 2

    def tload(j):
        a(f"global_load_dwordx4 {q4(TREG+4*j)}, {q2(vAD64)}, off nt")
        if j < 7: a(f"v_lshl_add_u64 {q2(vAD64)}, {q2(vAD64)}, 0, s[{sE}:{sE+1}]")
    a("L_pvrole:")
    a(f"v_lshl_add_u32 v32, v{vG2}, 4, v{vSH}")
    a(f"s_mov_b32 s{sE+1}, 0"); a("v_mov_b32 v33, 0")
    a(f"s_cmp_lt_u32 s{sT0}, 64"); a("s_cbranch_scc1 L_adT2")
    a(f"s_and_b32 s{sT1}, s{sH}, 7"); a(f"s_lshl_b32 s{sT1}, s{sT1}, 17")
    a(f"s_lshr_b32 s{sT2}, s{sW}, 1"); a(f"s_lshl_b32 s{sT2}, s{sT2}, 20"); a(f"s_add_u32 s{sT1}, s{sT1}, s{sT2}")
    a(f"s_and_b32 s{sT2}, s{sW}, 1"); a(f"s_lshl_b32 s{sT2}, s{sT2}, 16"); a(f"s_add_u32 s{sT1}, s{sT1}, s{sT2}")
    a(f"s_and_b32 s{sT2}, s{sT0}, 7"); a(f"s_lshl_b32 s{sT2}, s{sT2}, 7"); a(f"s_add_u32 s{sT1}, s{sT1}, s{sT2}")
    a("v_lshlrev_b32 v32, 10, v32"); a(f"v_lshl_add_u32 v32, v{vJ}, 4, v32"); a(f"v_add_u32 v32, s{sT1}, v32")
    a(f"v_lshl_add_u64 {q2(vAD64)}, v[32:33], 0, s[{pWO}:{pWO+1}]")
    a(f"s_mov_b32 s{sE}, 2048")
    a("s_branch L_addone")
    a("L_adT2:")
    a(f"s_lshl_b32 s{sT1}, s{sW}, 6"); a(f"v_add_u32 v32, s{sT1}, v32"); a("v_mul_u32_u24 v32, 2752, v32")
    a("v_and_b32 v34, 3, v0"); a("v_lshl_add_u32 v32, v34, 4, v32")
    a(f"s_lshl_b32 s{sT1}, s{sT0}, 6"); a(f"v_add_u32 v32, s{sT1}, v32")
    a(f"v_lshl_add_u64 {q2(vAD64)}, v[32:33], 0, s[{pWG}:{pWG+1}]")
    a("s_mov_b32 exec_lo, 0xf0f0f0f0"); a("s_mov_b32 exec_hi, 0xf0f0f0f0")
    a(f"v_lshl_add_u64 {q2(vAD64)}, v[32:33], 0, s[{pWU}:{pWU+1}]")
    a("s_mov_b64 exec, -1")
    a(f"s_mov_b32 s{sE}, {2*2752}")
    a("L_addone:")
    for j in range(16 - W, 16):
        build_a(j)
        a(f"s_waitcnt vmcnt({W-1})")
        tload(j - (16 - W))
        mfma(j, VREG + 4 * j, False)
    a("s_branch L_pvdone")

    a("L_tail:")
    a("s_barrier")
    for j in range(W, 8): tload(j)
    a(f"s_mov_b32 s{sPASS}, {0 if dry else 1}")
    vPW = vT
    a(f"v_lshrrev_b32 v{vPW}, 5, v0"); a(f"v_lshlrev_b32 v{vPW}, 8, v{vPW}"); a(f"v_lshl_add_u32 v{vPW}, v{vJ}, 5, v{vPW}")
    a(f"v_and_b32 v{vPW+1}, 1, v{vG2}"); a(f"v_lshl_add_u32 v{vPW}, v{vPW+1}, 4, v{vPW}")
    vPJ = vT + 1
    a(f"v_lshl_add_u32 v{vPJ}, v{vG2}, 3, v{vJ}")
    a(f"s_cmp_lt_u32 s{sU}, 64"); a("s_cbranch_scc1 L_T2")

    def p16_store():
        a("s_mov_b32 exec_lo, 0x00ff00ff"); a("s_mov_b32 exec_hi, 0xff00ff00")
        a(f"ds_write_b128 v{vPW}, {q4(vD)} offset:{L_P16}")
        a("s_mov_b64 exec, -1")
        a("s_waitcnt lgkmcnt(0)"); a("s_barrier")

    def sum4pairs(v, c=None):
        if c is None:
            for i in range(2):
                a(f"v_add_f32 v{v+i}, v{v+i}, v{v+2+i}"); a(f"v_add_f32 v{v+4+i}, v{v+4+i}, v{v+6+i}")
            for i in range(2): a(f"v_add_f32 v{v+i}, v{v+i}, v{v+4+i}")
        else:
            for i in range(2): a(f"v_mul_f32 v{v+i}, v{v+i}, v{c}")
            for t in range(1, 4):
                for i in range(2): a(f"v_fmac_f32 v{v+i}, v{v+2*t+i}, v{c+2*t}")
        for i in range(2): a(f"v_add_f32_dpp v{v+i}, v{v+i}, v{v+i} row_ror:8 {DPPF}")

    def end_dry(label):
        a(f"s_mov_b32 s{sPASS}, 1"); a("s_barrier"); stamp("ready"); a(f"s_branch {label}")

    vO = KREG + 16
    a(f"s_and_b32 s{sT2}, s{sH}, 7"); a(f"s_lshr_b32 s{sT1}, s{sW}, 1"); a(f"s_lshl_b32 s{sT1}, s{sT1}, 3"); a(f"s_add_u32 s{sT0}, s{sT2}, s{sT1}")
    a(f"s_mul_i32 s{sT0}, s{sT0}, {8*SLOT}")
    a(f"v_mul_u32_u24 v{vO}, {4*SLOT}, v{vSH}")
    a(f"v_lshl_add_u32 v{vO+1}, v{vPJ}, 3, v{vO}")
    a(f"s_and_b32 s{sT1}, s{sW}, 1"); a(f"s_lshl_b32 s{sT1}, s{sT1}, 8"); a(f"s_add_u32 s{sT1}, s{sT1}, s{sT0}")
    a(f"s_lshl_b32 s{sT2}, s{sT2}, 11"); a(f"s_and_b32 s{sT3}, s{sU}, 7"); a(f"s_lshl_b32 s{sT3}, s{sT3}, 8")
    a(f"s_add_u32 s{sT2}, s{sT2}, s{sT3}"); a(f"s_add_u32 s{sT2}, s{sT2}, {MB2}")
    a("L_T1a:")
    ML, OG, TMP = KREG + 8, KREG, 47
    poll([(f"buffer_load_dwordx2 {q2(ML+2*t)}, v{vO}, {srd(rWS)}, s{sT0} offen offset:{512 + t*SLOT} sc1", [ML+2*t, ML+2*t+1], -1) for t in range(4)], TMP)
    a(f"v_max3_f32 v{TMP}, v{ML}, v{ML+2}, v{ML+4}"); a(f"v_max_f32 v{TMP}, v{TMP}, v{ML+6}")
    a(f"v_max_f32_dpp v{TMP}, v{TMP}, v{TMP} row_ror:8 {DPPF}")
    for t in range(4): a(f"v_sub_f32 v{ML+2*t}, v{ML+2*t}, v{TMP}")
    for t in range(4): a(f"v_mul_f32 v{ML+2*t}, {LOG2E:#x}, v{ML+2*t}")
    for t in range(4): a(f"v_exp_f32 v{ML+2*t}, v{ML+2*t}")
    a(f"v_mul_f32 v{TMP}, v{ML}, v{ML+1}")
    for t in range(1, 4): a(f"v_fmac_f32 v{TMP}, v{ML+2*t}, v{ML+2*t+1}")
    a(f"v_add_f32_dpp v{TMP}, v{TMP}, v{TMP} row_ror:8 {DPPF}")
    a(f"v_rcp_f32 v{TMP}, v{TMP}")
    for t in range(4): a(f"v_mul_f32 v{ML+2*t}, v{ML+2*t}, v{TMP}")
    poll([(f"buffer_load_dwordx2 {q2(OG+2*t)}, v{vO+1}, {srd(rWS)}, s{sT1} offen offset:{t*SLOT} sc1", [OG+2*t, OG+2*t+1], -1) for t in range(4)], TMP)
    stamp("got")
    sum4pairs(OG, ML)
    a(f"v_cvt_pk_bf16_f32 v{vPK}, v{OG}, v{OG+1}")
    gemv(8, TREG)
    p16_store()
    only_wave(0, "L_T1z")
    red16(vR4, L_P16, 256, 24)
    a(f"s_cmp_eq_u32 s{sPASS}, 0"); a("s_cbranch_scc1 L_T1z")
    a(f"buffer_store_dword v24, v{vCO}, {srd(rWS)}, s{sT2} offen sc1")
    stamp("pub")
    a("L_T1z:")
    a(f"s_cmp_eq_u32 s{sPASS}, 0"); a("s_cbranch_scc0 L_exit")
    end_dry("L_T1a")
    emit_far()

    a("L_T2:")
    mksrd(rT, pWD, 1376 * 1024)
    a(f"v_lshl_add_u32 v30, v{vG2}, 3, v{vSH}"); a("v_lshlrev_b32 v30, 10, v30"); a(f"v_lshl_add_u32 v30, v{vJ}, 4, v30")
    a(f"s_lshl_b32 s{sT0}, s{sU}, 15"); a(f"s_lshl_b32 s{sT1}, s{sW}, 7"); a(f"s_add_u32 s{sT0}, s{sT0}, s{sT1}")
    DW = TREG + 32
    for j in range(4):
        a(f"buffer_load_dwordx4 {q4(DW+4*j)}, v30, {srd(rT)}, s{sT0} offen offset:{(j&1)*2048} nt")
        if j == 1: a(f"s_add_u32 s{sT0}, s{sT0}, 4096")
    B = VREG
    XP, vHA, vGU, vY2, vLR, vLW, vHW, vFA, vFO, vFH = range(B, B + 10)
    a(f"v_lshlrev_b32 v{vHW}, 2, v{vPJ}")
    a(f"buffer_load_dword v{XP}, v{vHW}, {srd(rX)}, s{sT1} offen")
    a(f"v_add_u32 v{vHW}, s{sT1}, v{vHW}")
    a(f"v_lshlrev_b32 v{vHA}, 3, v{vPJ}"); a(f"v_lshl_add_u32 v{vHA}, v{vSH}, 13, v{vHA}")
    a(f"s_lshl_b32 s{sT0}, s{sW}, 8"); a(f"s_add_u32 s{sT0}, s{sT0}, {MB2}"); a(f"s_add_u32 s{sT1}, s{sT0}, 4096")
    a(f"v_bfe_u32 v{vGU}, v0, 2, 2"); a(f"v_lshlrev_b32 v{vGU}, 10, v{vGU}"); a(f"v_lshl_add_u32 v{vGU}, v{vG2}, 5, v{vGU}")
    a(f"v_and_b32 v31, 3, v0"); a(f"v_lshl_add_u32 v{vGU}, v31, 3, v{vGU}")
    a(f"v_and_b32 v{vY2}, 1, v{vG2}"); a(f"v_lshlrev_b32 v{vY2}, 4, v{vY2}"); a(f"v_lshl_add_u32 v{vY2}, v{vJ}, 5, v{vY2}")
    a(f"v_lshrrev_b32 v30, 1, v{vG2}"); a(f"v_lshl_add_u32 v{vY2}, v30, 3, v{vY2}")
    a(f"v_lshlrev_b32 v{vLR}, 3, v{vJ}")
    a(f"s_lshl_b32 s{sT2}, s{sW}, 3"); a(f"v_mov_b32 v{vLW}, s{sT2}")
    a(f"s_lshl_b32 s{sT2}, s{sU}, 11"); a(f"s_add_u32 s{sT2}, s{sT2}, s{sT0}"); a(f"s_add_u32 s{sT2}, s{sT2}, {MB3-MB2}")
    a(f"v_lshrrev_b32 v{vFA}, 2, v{vL}"); a(f"v_lshlrev_b32 v{vFA}, 11, v{vFA}"); a(f"v_lshl_add_u32 v{vFA}, v31, 4, v{vFA}")
    a(f"v_lshl_add_u32 v{vFO}, v31, 2, v{vG2}"); a(f"s_lshl_b32 s{sT3}, s{sU}, 4"); a(f"v_add_lshl_u32 v{vFO}, s{sT3}, v{vFO}, 1")
    sF0, sF1, sF2 = 70, 71, 72
    a(f"s_lshl_b32 s{sF0}, s{sU}, 6"); a(f"s_add_u32 s{sF0}, s{sF0}, {MB3}"); a(f"s_add_u32 s{sF1}, s{sF0}, {16*2048}"); a(f"s_add_u32 s{sF2}, s{sF0}, {32*2048}")
    mksrd(rQ, pOUT, 1024)
    FR = KREG + 32
    for i in range(8, 12): a(f"v_mov_b32 v{FR+i}, 0")
    a("L_T2a:")
    HG = 32
    poll([(f"buffer_load_dwordx2 {q2(HG+2*t)}, v{vHA}, {srd(rWS)}, s{sT1 if t >= 2 else sT0} offen offset:{(t&1)*2048} sc1", [HG+2*t, HG+2*t+1], -1) for t in range(4)], TMP)
    stamp("got")
    sum4pairs(HG)
    a(f"v_cvt_pk_bf16_f32 v{HG}, v{HG}, v{HG+1}")
    unpack(HG + 2, HG + 3, XP)
    unpack(HG, HG + 1, HG)
    a(f"v_add_f32 v{HG}, v{HG}, v{HG+2}"); a(f"v_add_f32 v{HG+1}, v{HG+1}, v{HG+3}")
    a(f"v_cvt_pk_bf16_f32 v{HG+6}, v{HG}, v{HG+1}")
    unpack(HG, HG + 1, HG + 6)
    a(f"v_readfirstlane_b32 s{sT3}, v{HG}")
    a(f"ds_write_b32 v{vHW}, v{HG+6} offset:{L_H}")
    a(f"v_subrev_f32 v{HG+2}, s{sT3}, v{HG}"); a(f"v_subrev_f32 v{HG+3}, s{sT3}, v{HG+1}")
    a(f"v_add_f32 v{HG+4}, v{HG+2}, v{HG+3}")
    a(f"v_mul_f32 v{HG+5}, v{HG+2}, v{HG+2}"); a(f"v_fmac_f32 v{HG+5}, v{HG+3}, v{HG+3}")
    for m in ("quad_perm:[1,0,3,2] " + DPPF, "quad_perm:[2,3,0,1] " + DPPF, "row_half_mirror " + DPPF,
              "row_bcast:15 row_mask:0xa bank_mask:0xf", "row_bcast:31 row_mask:0xc bank_mask:0xf"):
        for i in (4, 5): a(f"v_add_f32_dpp v{HG+i}, v{HG+i}, v{HG+i} {m}")
    a(f"v_mul_f32 v{HG+2}, 0x3c800000, v{HG+4}")
    a(f"v_fma_f32 v{HG+5}, -v{HG+2}, v{HG+4}, v{HG+5}")
    a(f"v_add_f32 v{HG+4}, s{sT3}, v{HG+2}")
    a("s_mov_b32 exec_lo, 0"); a("s_mov_b32 exec_hi, 0x80000000")
    a(f"ds_write_b64 v{vLW}, {q2(HG+4)} offset:{L_LN}")
    a("s_mov_b64 exec, -1")
    a("s_waitcnt lgkmcnt(0)"); a("s_barrier")
    a(f"ds_read_b64 {q2(HG+4)}, v{vLR} offset:{L_LN}")
    a(f"ds_read_u16 v{vFH}, v{vFO} offset:{L_H}")
    a("s_waitcnt lgkmcnt(1)")
    a(f"v_mov_b32 v{HG+2}, v{HG+4}"); red8("v_add_f32", HG + 2)
    a(f"v_mul_f32 v{HG+2}, 0x3e000000, v{HG+2}")
    a(f"v_sub_f32 v{HG+4}, v{HG+4}, v{HG+2}"); a(f"v_mul_f32 v{HG+3}, 0x42800000, v{HG+4}")
    a(f"v_fmac_f32 v{HG+5}, v{HG+3}, v{HG+4}")
    red8("v_add_f32", HG + 5)
    a(f"v_mul_f32 v{HG+5}, 0x3b000000, v{HG+5}")
    ln_finish(HG + 2, HG + 5, HG + 3)
    a(f"v_sub_f32 v{HG}, v{HG}, v{HG+2}"); a(f"v_sub_f32 v{HG+1}, v{HG+1}, v{HG+2}")
    a(f"v_cvt_pk_bf16_f32 v{HG}, v{HG}, v{HG+1}")
    unpack(HG, HG + 1, HG)
    a(f"v_mul_f32 v{HG}, v{HG}, v{HG+3}"); a(f"v_mul_f32 v{HG+1}, v{HG+1}, v{HG+3}")
    a(f"v_cvt_pk_bf16_f32 v{vPK}, v{HG}, v{HG+1}")
    gemv(8, TREG)
    p16_store()
    GU = KREG
    for t in range(4):
        a(f"ds_read_b64 {q2(GU+4*t)}, v{vGU} offset:{L_P16 + 256*t}")
        a(f"ds_read_b64 {q2(GU+4*t+2)}, v{vGU} offset:{L_P16 + 256*t + 128}")
    a("s_waitcnt lgkmcnt(4)")
    for i in range(4): a(f"v_add_f32 v{GU+i}, v{GU+i}, v{GU+4+i}")
    a("s_waitcnt lgkmcnt(0)")
    for i in range(4): a(f"v_add_f32 v{GU+8+i}, v{GU+8+i}, v{GU+12+i}")
    for i in range(4): a(f"v_add_f32 v{GU+i}, v{GU+i}, v{GU+8+i}")
    for m in ("row_ror:4", "row_ror:8"):
        for i in range(4): a(f"v_add_f32_dpp v{GU+i}, v{GU+i}, v{GU+i} {m} {DPPF}")
    a(f"v_cvt_pk_bf16_f32 v{GU}, v{GU}, v{GU+1}"); a(f"v_cvt_pk_bf16_f32 v{GU+2}, v{GU+2}, v{GU+3}")
    unpack(GU, GU + 1, GU); unpack(GU + 2, GU + 3, GU + 2)
    for i in range(2): a(f"v_mul_f32 v{GU+4+i}, {LOG2E ^ 0x80000000:#x}, v{GU+i}")
    for i in range(2): a(f"v_exp_f32 v{GU+4+i}, v{GU+4+i}")
    for i in range(2): a(f"v_add_f32 v{GU+4+i}, 1.0, v{GU+4+i}")
    for i in range(2): a(f"v_rcp_f32 v{GU+4+i}, v{GU+4+i}")
    for i in range(2): a(f"v_mul_f32 v{GU+i}, v{GU+i}, v{GU+4+i}")
    a(f"v_cvt_pk_bf16_f32 v{GU}, v{GU}, v{GU+1}")
    unpack(GU, GU + 1, GU)
    for i in range(2): a(f"v_mul_f32 v{GU+i}, v{GU+i}, v{GU+2+i}")
    a(f"v_cvt_pk_bf16_f32 v{vPK}, v{GU}, v{GU+1}")
    gemv(4, DW)
    for r in range(4): a(f"v_mov_b32_dpp v{vD+r}, v{vD+r} row_ror:8 row_mask:0xc bank_mask:0xf")
    a(f"v_permlane32_swap_b32 v{vD}, v{vD+2}"); a(f"v_permlane32_swap_b32 v{vD+1}, v{vD+3}")
    a(f"v_add_f32 v{vD}, v{vD}, v{vD+2}"); a(f"v_add_f32 v{vD+1}, v{vD+1}, v{vD+3}")
    a(f"s_cmp_eq_u32 s{sPASS}, 0"); a("s_cbranch_scc1 L_T2f")
    a("s_mov_b32 exec_lo, 0x00ff00ff"); a("s_mov_b32 exec_hi, 0x00ff00ff")
    a(f"buffer_store_dwordx2 {q2(vD)}, v{vY2}, {srd(rWS)}, s{sT2} offen sc1")
    a("s_mov_b64 exec, -1")
    stamp("pub")
    a(f"s_lshr_b32 s{sT3}, s{sU}, 2"); a(f"s_cmp_lg_u32 s{sT3}, s{sW}"); a("s_cbranch_scc1 L_exit")
    a("s_waitcnt vmcnt(0)")
    poll([(f"buffer_load_dwordx4 {q4(FR+4*t)}, v{vFA}, {srd(rWS)}, s{sF0+t} offen sc1", range(FR+4*t, FR+4*t+4), 0xfff if t == 2 else -1) for t in range(3)], TMP, skip_dry=False)
    stamp("fgot")
    a("L_T2f:")
    for i in range(4): a(f"v_add_f32 v{FR+i}, v{FR+i}, v{FR+4+i}")
    for i in range(4): a(f"v_add_f32 v{FR+i}, v{FR+i}, v{FR+8+i}")
    tred4(FR)
    a(f"v_lshlrev_b32 v{FR+1}, 16, v{vFH}")
    for m in ("row_ror:4", "row_ror:8"): a(f"v_add_f32_dpp v{FR}, v{FR}, v{FR} {m} {DPPF}")
    bf16r(FR, FR); a(f"v_add_f32 v{FR}, v{FR}, v{FR+1}")
    a(f"v_cvt_pk_bf16_f32 v{FR}, v{FR}, v{FR}")
    a(f"s_cmp_eq_u32 s{sPASS}, 0"); a("s_cbranch_scc1 L_T2z")
    a("s_mov_b32 exec_lo, 0x000f000f"); a("s_mov_b32 exec_hi, 0x000f000f")
    a(f"buffer_store_short v{FR}, v{vFO}, {srd(rQ)}, 0 offen")
    a(f"s_cmp_lg_u32 s{sU}, 0"); a("s_cbranch_scc1 L_noepoch")
    a(f"s_mov_b32 s{sT0}, {EPOCH}"); a(f"v_mov_b32 v{FR+1}, s{sTAG}"); a("s_mov_b64 exec, 1")
    a(f"buffer_store_dword v{FR+1}, off, {srd(rWS)}, s{sT0} sc1")
    a("L_noepoch:")
    if amp:
        a(f"s_memrealtime s[{sE}:{sE+1}]"); a("s_waitcnt lgkmcnt(0)")
        a(f"s_sub_u32 s{sT0}, s{sST+2}, s{sST}"); a(f"s_mul_i32 s{sT0}, s{sT0}, {amp[1]}")
        a(f"s_min_u32 s{sT0}, s{sT0}, 200000"); a(f"s_mov_b32 s{sT1}, s{sE}")
        a("L_amp:"); a(f"s_memrealtime s[{sE}:{sE+1}]"); a("s_waitcnt lgkmcnt(0)")
        a(f"s_sub_u32 s{sT2}, s{sE}, s{sT1}"); a(f"s_cmp_lt_u32 s{sT2}, s{sT0}"); a("s_cbranch_scc1 L_amp")
    a("L_exit:")
    if stamps:
        a("s_mov_b64 exec, -1")
        stamp("exit")
        a(f"v_writelane_b32 v{vSTAMP}, s{sROLE}, 14"); a(f"v_writelane_b32 v{vSTAMP}, s{sXCC}, 15")
        a(f"s_lshl_b32 s{sT0}, s2, 3"); a(f"s_add_u32 s{sT0}, s{sT0}, s{sW}"); a(f"s_lshl_b32 s{sT0}, s{sT0}, 6"); a(f"s_add_u32 s{sT0}, s{sT0}, {STAMP}")
        a(f"v_lshlrev_b32 v{vSTAMP+1}, 2, v{vL}")
        a("s_mov_b64 exec, 0xffff")
        a(f"buffer_store_dword v{vSTAMP}, v{vSTAMP+1}, {srd(rWS)}, s{sT0} offen")
    a("L_end:")
    a("s_endpgm")
    a("L_T2z:")
    end_dry("L_T2a")
    emit_far()

    out = HEADER + f"; @launch grid=(256,1,1) block=(512,1,1) lds={L_END}\n"
    out += f'.amdgcn_target "amdgcn-amd-amdhsa--gfx950"\n.text\n.globl {KNAME}\n.p2align 8\n.type {KNAME},@function\n'
    out += a.render()
    out += f'''.section .rodata,"a"
.p2align 6
.amdhsa_kernel {KNAME}
  .amdhsa_next_free_vgpr {NV}
  .amdhsa_next_free_sgpr 102
  .amdhsa_accum_offset {NV}
  .amdhsa_group_segment_fixed_size 0
  .amdhsa_kernarg_size 96
  .amdhsa_user_sgpr_count 2
  .amdhsa_user_sgpr_kernarg_segment_ptr 1
  .amdhsa_system_sgpr_workgroup_id_x 1
  .amdhsa_float_denorm_mode_32 3
.end_amdhsa_kernel
'''
    return out


if __name__ == "__main__":
    kw = {}
    for arg in sys.argv[2:]:
        k, v = arg.split("=")
        kw[k] = eval(v)
    open(sys.argv[1], "w").write(gen(**kw))
```

```python
import sys
from asmlib import Asm

KNAME = "sequential_preLN__sliding_block_cached__swiglu_ffn__decode_kernel"
HEADER = open("sequential_preLN__sliding_block_cached__swiglu_ffn__decode.s.ref").read().split("; Override launch")[0]

LOG2E = 0x3FB8AA3B
SCALE = 0x3DB504F3
EPS = 0x3727C5AC

SLOT = 512
MB1 = 0
MB2 = 256 * SLOT
MB3 = MB2 + 8 * 2048
MBQ = MB2 + 256 * 512
MBM = MBQ + 256 * 1024
EPOCH = MBM + 256 * 128
STAMP = 1 << 20
WS_SIZE = 2 << 20
L_MODE = 576
L_QB, L_ST, L_C, L_OP, L_P16, L_LN, L_H, L_END = 0, 256, 320, 640, 8832, 12928, 13056, 14464

NT2 = 43
NWAVE = 9
DPPF = "row_mask:0xf bank_mask:0xf"
STAMPS = ["start", "args", "x", "qpub", "qgot", "p", "cbar", "obar", "ready", "got", "pub", "fgot", "exit"]

sH, sSP, sW, sTAG, sBUD = 3, 4, 5, 6, 7
pX, pK, pV, pWQ, pWO, pWG, pWU, pWD, pOUT, pDBG, pWS = 8, 10, 12, 14, 16, 20, 22, 24, 26, 28, 30
sMW, sPASS = 18, 19
rK, rV, rQ, rX, rWS, rO, rT = 32, 36, 40, 44, 48, 52, 56
sOFF = 60
sT0, sT1, sT2, sT3 = 76, 77, 78, 79
sROLE, sIDX = 80, 81
sE = 82
sXCC, sU = 84, 85
sST = 86
sUA, sMEM = 90, 91
sTG8, sMODE = 100, 101
rG, rUP = 92, 96
vL, vKV = 1, 2
vSEL, vA, vD, vPK, vB = 4, 8, 16, 20, 21
vT = 22
KREG, VREG, XREG = 48, 112, 144
TREG = KREG
vFF, vZERO = 164, 165
vSTAMP = 166
NV = 168


def q4(r): return f"v[{r}:{r+3}]"
def q2(r): return f"v[{r}:{r+1}]"
def srd(r): return f"s[{r}:{r+3}]"


def gen(W=4, stamps=False, budget=1 << 18, gpos=15, cpos=1, local=True, dry=True, masked=True, psleep=0, amp=None, only=None,
        abl=(), e1=4, e2=0, hprio=1, bar0=True, pfwo=True, pfffn=True, pfcode=True, dryfirst=True, pfearly=False, pre=None, prewait=False, qpolicy=""):
    assert W <= 7
    a = Asm()
    far = []

    def stamp(name):
        i = STAMPS.index(name)
        if stamps:
            if only and name not in only and name not in ("start", "exit"): return
            a(f"s_memrealtime s[{sST}:{sST+1}]"); a("s_waitcnt lgkmcnt(0)"); a(f"v_writelane_b32 v{vSTAMP}, s{sST}, {i}")
        elif amp and name == "start": a(f"s_memrealtime s[{sST}:{sST+1}]")
        elif amp and name == amp[0]: a(f"s_memrealtime s[{sST+2}:{sST+3}]\ns_waitcnt lgkmcnt(0)")

    def mksrd(r, p, size, add=None):
        if add is None:
            a(f"s_mov_b32 s{r}, s{p}"); a(f"s_mov_b32 s{r+1}, s{p+1}")
        else:
            a(f"s_add_u32 s{r}, s{p}, s{add}"); a(f"s_addc_u32 s{r+1}, s{p+1}, 0")
        a(f"s_mov_b32 s{r+2}, {size}"); a(f"s_mov_b32 s{r+3}, 0x20000")

    def bf16r(d, s):
        a(f"v_cvt_pk_bf16_f32 v{d}, v{s}, v{s}"); a(f"v_and_b32 v{d}, 0xffff0000, v{d}")

    def unpack(lo, hi, s):
        a(f"v_and_b32 v{hi}, 0xffff0000, v{s}"); a(f"v_lshlrev_b32 v{lo}, 16, v{s}")

    def wave_red(op, v, s):
        for m in ("quad_perm:[1,0,3,2]", "quad_perm:[2,3,0,1]", "row_half_mirror", "row_mirror"):
            a(f"{op}_dpp v{v}, v{v}, v{v} {m} {DPPF}")
        a(f"{op}_dpp v{v}, v{v}, v{v} row_bcast:15 row_mask:0xa bank_mask:0xf")
        a(f"{op}_dpp v{v}, v{v}, v{v} row_bcast:31 row_mask:0xc bank_mask:0xf")
        a(f"v_readlane_b32 s{s}, v{v}, 63")

    def red8(op, *vs):
        for m in ("quad_perm:[1,0,3,2]", "quad_perm:[2,3,0,1]", "row_half_mirror"):
            for v in vs: a(f"{op}_dpp v{v}, v{v}, v{v} {m} {DPPF}")

    def build_a(j):
        A = vA + 4 * (j & 1)
        a(f"v_mov_b32_dpp v{vB}, v{vPK} row_newbcast:{j} {DPPF}")
        for r in range(4):
            a(f"v_perm_b32 v{A+r}, v{vB}, v{vB}, v{vSEL+r}")

    def mfma(j, b, first):
        A = vA + 4 * (j & 1)
        a(f"v_mfma_f32_16x16x32_bf16 {q4(vD)}, {q4(A)}, {q4(b)}, {'0' if first else q4(vD)}")

    def gemv(n, breg):
        build_a(0)
        for j in range(n):
            if j + 1 < n: build_a(j + 1)
            mfma(j, breg + 4 * j, j == 0)

    def tred4(v):
        a(f"v_permlane32_swap_b32 v{v}, v{v+2}"); a(f"v_permlane32_swap_b32 v{v+1}, v{v+3}")
        a(f"v_add_f32 v{v}, v{v}, v{v+2}"); a(f"v_add_f32 v{v+1}, v{v+1}, v{v+3}")
        a(f"v_permlane16_swap_b32 v{v}, v{v+1}")
        a(f"v_add_f32 v{v}, v{v}, v{v+1}")

    def red16(vaddr, base, ps, v, mid=None):
        for t in range(4):
            a(f"ds_read_b128 {q4(v+4*t)}, v{vaddr} offset:{base + t*ps}")
        a("s_waitcnt lgkmcnt(2)")
        for i in range(4): a(f"v_add_f32 v{v+i}, v{v+i}, v{v+4+i}")
        if mid: mid()
        a("s_waitcnt lgkmcnt(0)")
        for i in range(4): a(f"v_add_f32 v{v+8+i}, v{v+8+i}, v{v+12+i}")
        for i in range(4): a(f"v_add_f32 v{v+i}, v{v+i}, v{v+8+i}")
        tred4(v)

    def umax(tmp, rs):
        rs = list(rs)
        if len(rs) == 2:
            a(f"v_max_u32 v{tmp}, v{rs[0]}, v{rs[1]}"); return
        a(f"v_max3_u32 v{tmp}, v{rs[0]}, v{rs[1]}, v{rs[2]}"); rs = rs[3:]
        while rs:
            if len(rs) >= 2:
                a(f"v_max3_u32 v{tmp}, v{tmp}, v{rs[0]}, v{rs[1]}"); rs = rs[2:]
            else:
                a(f"v_max_u32 v{tmp}, v{tmp}, v{rs[0]}"); rs = rs[1:]

    npoll = [0]

    def poll_head(loads, skip_dry):
        n = npoll[0]; npoll[0] += 1
        if dry and skip_dry:
            a(f"s_cmp_eq_u32 s{sPASS}, 0"); a(f"s_cbranch_scc1 L_pdone{n}")
        for t, ld in enumerate(loads):
            a(f"s_mov_b32 s{sOFF+2*t}, -1"); a(f"s_mov_b32 s{sOFF+2*t+1}, {ld[2]}")
        a(f"L_poll{n}:")
        for t, ld in enumerate(loads):
            a(f"s_mov_b64 exec, s[{sOFF+2*t}:{sOFF+2*t+1}]"); a(ld[0])
        a("s_mov_b64 exec, -1")
        a(f"s_sub_u32 s{sBUD}, s{sBUD}, 1"); a("s_cbranch_scc1 L_exit")
        a("s_waitcnt vmcnt(0)")
        return n

    def vor(tmp, rs):
        rs = list(rs)
        if len(rs) == 2:
            a(f"v_or_b32 v{tmp}, v{rs[0]}, v{rs[1]}"); return
        a(f"v_or3_b32 v{tmp}, v{rs[0]}, v{rs[1]}, v{rs[2]}"); rs = rs[3:]
        while rs:
            if len(rs) >= 2:
                a(f"v_or3_b32 v{tmp}, v{tmp}, v{rs[0]}, v{rs[1]}"); rs = rs[2:]
            else:
                a(f"v_or_b32 v{tmp}, v{tmp}, v{rs[0]}"); rs = rs[1:]

    def low_byte_nonzero(tmp):
        a(f"v_cmp_ne_u32_sdwa vcc, v{tmp}, v{vZERO} src0_sel:BYTE_0 src1_sel:DWORD")

    def poll(loads, clean, tmp, skip_dry=True):
        n = poll_head(loads, skip_dry)
        raw = [r for _, rs, _ in loads for r in rs]
        cl = {r: clean + k for k, r in enumerate(raw)}
        for r in raw: a(f"v_xor_b32 v{cl[r]}, s{sTG8}, v{r}")
        vor(tmp, cl.values()); low_byte_nonzero(tmp)
        a(f"s_cbranch_vccnz L_pagain{n}")
        a(f"L_pdone{n}:")

        def again():
            a(f"L_pagain{n}:")
            if masked:
                for t, (_, rs, hi) in enumerate(loads):
                    vor(tmp, [cl[r] for r in rs]); low_byte_nonzero(tmp)
                    a("s_cmp_lg_u64 vcc, 0"); a(f"s_cselect_b64 s[{sOFF+2*t}:{sOFF+2*t+1}], s[{sOFF+2*t}:{sOFF+2*t+1}], 0")
            if psleep: a(f"s_sleep {psleep}")
            a(f"s_branch L_poll{n}")
        far.append(again)

    def put_tag(v):
        a(f"v_bfi_b32 v{v}, v{vFF}, s{sTG8}, v{v}")

    nst = [0]

    def mode_store(text):
        if not local:
            a(text + " sc1"); return
        n = nst[0]; nst[0] += 1
        a(f"s_cmp_lg_u32 s{sMODE}, 0"); a(f"s_cbranch_scc1 L_stfar{n}")
        a(text)
        a(f"L_stdone{n}:")

        def other():
            a(f"L_stfar{n}:"); a(text + " sc1"); a(f"s_branch L_stdone{n}")
        far.append(other)

    def poll_tag(loads, tmp, skip_dry=True, slack=0, retry=None):
        n = poll_head(loads, skip_dry)
        a(f"s_mov_b64 s[{sE}:{sE+1}], 0")
        for t, (_, rs, _) in enumerate(loads):
            m = f"s[{sOFF+2*t}:{sOFF+2*t+1}]"
            rs = list(rs)
            a(f"v_xor_b32 v{tmp}, s{sTAG}, v{rs[0]}")
            if len(rs) > 1:
                a(f"v_xor_b32 v{tmp+1}, s{sTAG}, v{rs[1]}"); a(f"v_or_b32 v{tmp}, v{tmp}, v{tmp+1}")
            a(f"v_cmp_lt_u32 {m}, {(1 << slack) - 1}, v{tmp}")
            a(f"s_or_b64 s[{sE}:{sE+1}], s[{sE}:{sE+1}], {m}")
        if retry is None:
            a(f"s_cbranch_scc1 L_poll{n}")
        else:
            a(f"s_cbranch_scc1 L_pagain{n}")

            def again():
                a(f"L_pagain{n}:"); retry(); a(f"s_branch L_poll{n}")
            far.append(again)
        a(f"L_pdone{n}:")

    def emit_far():
        for f in far: f()
        far.clear()

    def ln_finish(vmean, vvar, vr):
        bf16r(vmean, vmean); bf16r(vvar, vvar)
        a(f"v_add_f32 v{vvar}, {EPS:#x}, v{vvar}"); bf16r(vvar, vvar)
        a(f"v_sqrt_f32 v{vvar}, v{vvar}"); bf16r(vvar, vvar)
        a(f"v_rcp_f32 v{vr}, v{vvar}")

    def only_wave(w, label):
        a(f"s_cmp_lg_u32 s{sW}, {w}"); a(f"s_cbranch_scc1 {label}")

    def selectors():
        t0, t1, t2 = 32, 33, 34
        a(f"v_and_b32 v{t0}, 8, v0"); a(f"v_mov_b32 v{t1}, 0x0100"); a(f"v_mov_b32 v{t2}, 0x0302")
        a(f"v_cmp_ne_u32 vcc, 0, v{t0}"); a(f"v_cndmask_b32 v{t1}, v{t1}, v{t2}, vcc")
        a(f"v_or_b32 v{t2}, 0x0c0c0000, v{t1}")
        a(f"v_lshlrev_b32 v{t1}, 16, v{t1}"); a(f"v_or_b32 v{t1}, 0x0c0c, v{t1}")
        a(f"v_and_b32 v{t0}, 1, v0"); a(f"v_cmp_ne_u32 vcc, 0, v{t0}"); a(f"v_cndmask_b32 v{t1}, v{t2}, v{t1}, vcc")
        a(f"v_bfe_u32 v{t0}, v0, 1, 2"); a(f"v_mov_b32 v{t2}, 0x0c0c0c0c")
        for r in range(4):
            a(f"v_cmp_eq_u32 vcc, {r}, v{t0}"); a(f"v_cndmask_b32 v{vSEL+r}, v{t2}, v{t1}, vcc")

    def tag_from_epoch():
        a(f"s_add_u32 s{sTG8}, s{sTAG}, 1"); a(f"s_and_b32 s{sTG8}, s{sTG8}, 0xff")
        a(f"s_lshr_b32 s{sTAG}, s{sTAG}, 8"); a(f"s_mul_i32 s{sTAG}, s{sTAG}, 0x9e3779b1")
        a(f"s_add_u32 s{sTAG}, s{sTAG}, 0x7f4a7c15"); a(f"s_lshl_b32 s{sTAG}, s{sTAG}, 8")

    def role():
        a(f"s_and_b32 s{sT1}, s{sH}, 7"); a(f"s_min_u32 s{sT2}, s{sT1}, 3"); a(f"s_mul_i32 s{sUA}, s{sT1}, 5"); a(f"s_add_u32 s{sUA}, s{sUA}, s{sT2}")
        a(f"s_cmp_lt_u32 s{sT1}, 3"); a(f"s_cselect_b32 s{sT2}, 6, 5")
        a(f"s_lshr_b32 s{sMEM}, s2, 3")
        a(f"s_sub_u32 s{sT1}, s{sMEM}, 8"); a(f"s_add_u32 s{sT3}, s{sT1}, s{sUA}")
        a(f"s_cmp_lt_u32 s{sT1}, s{sT2}"); a(f"s_cselect_b32 s{sROLE}, s{sT3}, 63")
        a(f"s_add_u32 s{sT3}, s{sMEM}, 64")
        a(f"s_cmp_lt_u32 s{sMEM}, 8"); a(f"s_cselect_b32 s{sROLE}, s{sT3}, s{sROLE}")
        if "role" in abl: a(f"s_mov_b32 s{sROLE}, 63")

    T, MM = 26, 30

    def wg_stats():
        a(f"v_and_b32 v{T+2}, 7, v0"); a(f"v_lshlrev_b32 v{T+2}, 3, v{T+2}")
        a("s_waitcnt lgkmcnt(0)"); a("s_barrier")
        a(f"ds_read_b64 {q2(T)}, v{T+2} offset:{L_ST}")
        a("s_waitcnt lgkmcnt(0)")
        a(f"v_mov_b32 v{MM}, v{T}"); red8("v_max_f32", MM)

    a(f"{KNAME}:")
    a("s_cmp_ge_u32 s2, 256"); a("s_cbranch_scc1 L_end")
    if stamps: a(f"v_mov_b32 v{vSTAMP}, 0")
    stamp("start")
    a(f"s_load_dwordx16 s[8:23], s[0:1], 0"); a(f"s_load_dwordx8 s[24:31], s[0:1], 64")
    a(f"s_and_b32 s{sH}, s2, 31"); a(f"s_lshr_b32 s{sSP}, s2, 5")
    a(f"v_lshrrev_b32 v{vT}, 6, v0"); a(f"v_and_b32 v{vL}, 63, v0")
    a(f"v_readfirstlane_b32 s{sW}, v{vT}")
    a(f"s_mov_b32 s{sBUD}, {budget}")
    a(f"s_lshl_b32 s{sIDX}, s{sH}, 3"); a(f"s_add_u32 s{sIDX}, s{sIDX}, s{sSP}")
    a(f"s_sub_u32 s{sW}, s{sW}, 1"); a("s_cbranch_scc0 L_stream")
    if hprio: a(f"s_setprio {hprio}")
    vXA, vXO, vQO = 22, 23, 3
    XA, XO = 28, 27
    a(f"v_lshlrev_b32 v{vXA}, 4, v0")
    a("v_lshrrev_b32 v24, 4, v0"); a("v_and_b32 v25, 15, v0")
    a(f"s_lshl_b32 s{sT1}, s{sSP}, 6"); a(f"v_add_u32 v24, s{sT1}, v24")
    a(f"v_lshl_add_u32 v{vXO}, v25, 2, v24"); a(f"v_lshlrev_b32 v{vXO}, 1, v{vXO}")
    a(f"v_lshlrev_b32 v{vQO}, 13, v24"); a(f"v_lshl_add_u32 v{vQO}, v25, 4, v{vQO}")
    a(f"s_lshl_b32 s{sT0}, s{sH}, 8"); a(f"s_mov_b32 s{sT1}, 0x8000")
    a("s_waitcnt lgkmcnt(0)")
    stamp("args")
    mksrd(rX, pX, 1024)
    a(f"buffer_load_dwordx4 {q4(XA)}, v{vXA}, {srd(rX)}, 0 offen")
    a(f"buffer_load_ushort v{XO}, v{vXO}, {srd(rX)}, 0 offen")
    mksrd(rQ, pWQ, 0x400000)
    for j in range(16):
        a(f"buffer_load_dwordx4 {q4(KREG+4*j)}, v{vQO}, {srd(rQ)}, s{sT0} offen nt")
        if j < 15: a(f"s_add_u32 s{sT0}, s{sT0}, s{sT1}")
        if bar0 and j == (15 if bar0 is True else bar0): a("s_barrier")
    a("s_branch L_helper")

    a("L_stream:")
    if pfcode:
        a(f"s_cmp_lt_u32 s{sW}, 6"); a("s_cbranch_scc1 L_nocode")
        a(f"s_getpc_b64 s[{sE}:{sE+1}]")
        a("L_pc:")
        a(f"v_subrev_u32 v24, {7*64}, v0"); a("v_lshlrev_b32 v24, 7, v24"); a("v_min_u32 v24, L_last-L_pc, v24")
        a(f"global_load_dword v3, v24, s[{sE}:{sE+1}]")
        a("L_nocode:")
    a("v_subrev_u32 v0, 64, v0")
    a(f"v_lshlrev_b32 v{vKV}, 4, v0")
    a(f"s_lshl_b32 s{sT1}, s{sSP}, 1"); a(f"s_add_u32 s{sT1}, s{sT1}, s{sH}"); a(f"s_lshl_b32 s{sT1}, s{sT1}, 13")
    a(f"s_mov_b32 s{sT2}, 0x1e000"); a(f"s_movk_i32 s{sT3}, 0x2000")
    for j in range(16):
        a(f"s_and_b32 s{sOFF+j}, s{sT1}, s{sT2}")
        if j < 15: a(f"s_add_u32 s{sT1}, s{sT1}, s{sT3}")
    a(f"s_lshl_b32 s{sT0}, s{sH}, 23"); a(f"s_lshl_b32 s{sT1}, s{sSP}, 17"); a(f"s_add_u32 s{sT0}, s{sT0}, s{sT1}")
    a(f"s_add_u32 s{sT0}, s{sT0}, {(32768-4096)*256}")
    a("s_waitcnt lgkmcnt(0)")
    stamp("args")
    mksrd(rK, pK, 0x20000, sT0)
    if bar0: a("s_barrier")

    seq = [("k", j) for j in range(16)] + [("v", j) for j in range(16)]
    pos = {op: i for i, op in enumerate(seq)}
    issued, done = [0], [0]
    def vreg(j): return VREG + 4 * (j & 7)

    def issue_to(n):
        while issued[0] < min(n, len(seq)):
            kind, j = seq[issued[0]]
            if kind == "k": a.vmem(f"buffer_load_dwordx4 {q4(KREG+4*j)}, v{vKV}, {srd(rK)}, s{sOFF+j} offen nt", (kind, j))
            else: a.vmem(f"buffer_load_dwordx4 {q4(vreg(j))}, v{vKV}, {srd(rV)}, s{sOFF+j} offen nt", (kind, j))
            issued[0] += 1

    def advance(upto):
        while done[0] <= pos[upto]:
            a.wait_vm(seq[done[0]]); done[0] += 1
            issue_to(done[0] + W)

    issue_to(W)
    a(f"s_load_dword s{sTAG}, s[{pWS}:{pWS+1}], {EPOCH}")
    mksrd(rV, pV, 0x20000, sT0); mksrd(rWS, pWS, WS_SIZE); mksrd(rX, pX, 1024); mksrd(rT, pWO, 0x400000)
    selectors()
    role()
    vG2, vJ, vSH, vOW, vR5, vR4, vCO, vPF = range(XREG, XREG + 8)
    a(f"v_bfe_u32 v{vG2}, v0, 4, 2"); a(f"v_and_b32 v{vJ}, 7, v0"); a(f"v_bfe_u32 v{vSH}, v0, 3, 1")
    a(f"v_and_b32 v{vCO}, 15, v0"); a(f"v_lshlrev_b32 v{vCO}, 4, v{vCO}")
    a(f"v_mov_b32 v{vT}, v{vCO}")
    a(f"v_lshrrev_b32 v{vOW}, 5, v0"); a(f"v_lshlrev_b32 v{vOW}, 9, v{vOW}"); a(f"v_lshl_add_u32 v{vOW}, v{vCO}, 1, v{vOW}")
    a(f"v_and_b32 v{vR4}, 1, v{vG2}"); a(f"v_lshl_add_u32 v{vOW}, v{vR4}, 4, v{vOW}")
    a(f"v_lshl_add_u32 v{vR5}, v{vG2}, 11, v{vCO}"); a(f"s_lshl_b32 s{sT1}, s{sW}, 8"); a(f"v_add_u32 v{vR5}, s{sT1}, v{vR5}")
    a(f"v_lshl_add_u32 v{vR4}, v{vG2}, 10, v{vCO}")
    a(f"v_lshl_add_u32 v{vCO}, v{vG2}, 2, v{vCO}")
    a(f"s_lshl_b32 s{sU}, s{sIDX}, 9"); a(f"s_add_u32 s{sU}, s{sU}, s{sT1}")
    a(f"v_lshlrev_b32 v{vPF}, 5, v0"); a(f"v_mov_b32 v{vFF}, 0xff"); a(f"v_mov_b32 v{vZERO}, 0")
    vAD64 = XREG + 18
    a(f"v_lshl_add_u32 v32, v{vG2}, 4, v{vSH}")
    a(f"s_mov_b32 s{sE+1}, 0"); a("v_mov_b32 v33, 0")
    a(f"s_cmp_lt_u32 s{sROLE}, {NT2}"); a(f"s_cbranch_scc1 L_adT2")
    a(f"s_and_b32 s{sT1}, s{sH}, 7"); a(f"s_lshl_b32 s{sT1}, s{sT1}, 17")
    a(f"s_lshr_b32 s{sT2}, s{sW}, 1"); a(f"s_lshl_b32 s{sT2}, s{sT2}, 20"); a(f"s_add_u32 s{sT1}, s{sT1}, s{sT2}")
    a(f"s_and_b32 s{sT2}, s{sW}, 1"); a(f"s_lshl_b32 s{sT2}, s{sT2}, 16"); a(f"s_add_u32 s{sT1}, s{sT1}, s{sT2}")
    a(f"s_and_b32 s{sT2}, s{sROLE}, 7"); a(f"s_lshl_b32 s{sT2}, s{sT2}, 7"); a(f"s_add_u32 s{sT1}, s{sT1}, s{sT2}")
    a("v_lshlrev_b32 v32, 10, v32"); a(f"v_lshl_add_u32 v32, v{vJ}, 4, v32"); a(f"v_add_u32 v32, s{sT1}, v32")
    a(f"v_lshl_add_u64 {q2(vAD64)}, v[32:33], 0, s[{pWO}:{pWO+1}]")
    a(f"s_mov_b32 s{sE}, 2048")
    a("s_branch L_addone")
    a("L_adT2:")
    a(f"s_lshl_b32 s{sT1}, s{sW}, 6"); a(f"v_add_u32 v32, s{sT1}, v32"); a("v_mul_u32_u24 v32, 2752, v32")
    a("v_and_b32 v34, 3, v0"); a("v_lshl_add_u32 v32, v34, 4, v32")
    a(f"s_lshl_b32 s{sT1}, s{sROLE}, 6"); a(f"v_add_u32 v32, s{sT1}, v32")
    a(f"v_lshl_add_u64 {q2(vAD64)}, v[32:33], 0, s[{pWG}:{pWG+1}]")
    a("s_mov_b32 exec_lo, 0xf0f0f0f0"); a("s_mov_b32 exec_hi, 0xf0f0f0f0")
    a(f"v_lshl_add_u64 {q2(vAD64)}, v[32:33], 0, s[{pWU}:{pWU+1}]")
    a("s_mov_b64 exec, -1")
    a(f"s_mov_b32 s{sE}, {2*2752}")
    a("L_addone:")
    a("s_waitcnt lgkmcnt(0)")
    tag_from_epoch()

    advance(("k", gpos))
    a("s_barrier")
    stamp("qgot")
    QP = 40
    a(f"ds_read_b128 {q4(QP)}, v{vT} offset:{L_QB}")
    a("s_waitcnt lgkmcnt(0)")
    SJ = 24

    def dots(js):
        for i in range(4):
            for j in js:
                a(f"v_dot2_f32_bf16 v{SJ+j}, v{KREG+4*j+i}, v{QP+i}, {'0' if i == 0 else 'v%d' % (SJ+j)}")
    dots(range(gpos + 1))
    for j in range(gpos + 1, 16):
        advance(("k", j)); dots([j])
    for j in range(8):
        a(f"v_add_f32_dpp v{SJ+j}, v{SJ+j}, v{SJ+j} row_ror:8 row_mask:0xf bank_mask:0x3")
    for j in range(8):
        a(f"v_add_f32_dpp v{SJ+j}, v{SJ+j+8}, v{SJ+j+8} row_ror:8 row_mask:0xf bank_mask:0xc")
    for j in range(4):
        a(f"v_add_f32_dpp v{SJ+j}, v{SJ+j}, v{SJ+j} row_half_mirror row_mask:0xf bank_mask:0x5")
    for j in range(4):
        a(f"v_add_f32_dpp v{SJ+j}, v{SJ+j+4}, v{SJ+j+4} row_half_mirror row_mask:0xf bank_mask:0xa")
    for j in range(4):
        a(f"v_add_f32_dpp v{SJ+j}, v{SJ+j}, v{SJ+j} quad_perm:[1,0,3,2] {DPPF}")
    a("s_mov_b32 vcc_lo, 0xaaaaaaaa"); a("s_mov_b32 vcc_hi, 0xaaaaaaaa")
    a(f"v_cndmask_b32 v{SJ}, v{SJ}, v{SJ+1}, vcc"); a(f"v_cndmask_b32 v{SJ+2}, v{SJ+2}, v{SJ+3}, vcc")
    a(f"v_add_f32_dpp v{SJ}, v{SJ}, v{SJ} quad_perm:[2,3,0,1] {DPPF}")
    a(f"v_add_f32_dpp v{SJ+2}, v{SJ+2}, v{SJ+2} quad_perm:[2,3,0,1] {DPPF}")
    a("s_mov_b32 vcc_lo, 0xcccccccc"); a("s_mov_b32 vcc_hi, 0xcccccccc")
    SC = SJ
    a(f"v_cndmask_b32 v{SC}, v{SJ}, v{SJ+2}, vcc")
    advance(("v", 0))
    bf16r(SC, SC); a(f"v_mul_f32 v{SC}, {SCALE:#x}, v{SC}"); bf16r(SC, SC)
    a(f"v_mov_b32 v{T}, v{SC}"); wave_red("v_max_f32", T, sMW)
    a(f"v_subrev_f32 v{SC}, s{sMW}, v{SC}"); a(f"v_mul_f32 v{SC}, {LOG2E:#x}, v{SC}"); a(f"v_exp_f32 v{SC}, v{SC}")

    def split_p():
        bf16r(T, SC); a(f"v_sub_f32 v{T}, v{SC}, v{T}")
        a(f"v_cvt_pk_bf16_f32 v{vPK}, v{SC}, v{T}")
    split_p()
    a(f"v_mov_b32 v{T}, v{SC}"); wave_red("v_add_f32", T, sT2)
    a(f"v_mov_b32 v{T}, s{sMW}"); a(f"v_mov_b32 v{T+1}, s{sT2}")
    a(f"s_lshl_b32 s{sT1}, s{sW}, 3"); a(f"v_mov_b32 v{T+2}, s{sT1}")
    a("s_mov_b64 exec, 1"); a(f"ds_write_b64 v{T+2}, {q2(T)} offset:{L_ST}"); a("s_mov_b64 exec, -1")
    stamp("p")

    for j in range(16 - W):
        build_a(j)
        advance(("v", j))
        mfma(j, vreg(j), j == 0)
        if j == cpos:
            wg_stats()
            a(f"v_sub_f32 v32, s{sMW}, v{MM}"); a(f"v_mul_f32 v32, {LOG2E:#x}, v32"); a("v_exp_f32 v32, v32")
            a(f"v_mul_f32 v{SC}, v{SC}, v32")
            for r in range(4): a(f"v_mul_f32 v{vD+r}, v{vD+r}, v32")
            split_p()
    assert issued[0] == len(seq) and cpos < 16 - W
    npf = 0
    if pfwo:
        a(f"s_lshl_b32 s{sT1}, s{sIDX}, 14")
        a(f"buffer_load_dword v3, v{vPF}, {srd(rT)}, s{sT1} offen"); npf = 1
    stamp("cbar")
    a("L_pfe:")

    def tload(j):
        a(f"global_load_dwordx4 {q4(TREG+4*j)}, {q2(vAD64)}, off")
        if j < 7: a(f"v_lshl_add_u64 {q2(vAD64)}, {q2(vAD64)}, 0, s[{sE}:{sE+1}]")

    def pv_tail(e):
        k = 0
        for j in range(16 - W, 16):
            build_a(j)
            a(f"s_waitcnt vmcnt({15 - j + npf + k})")
            while k < e - (15 - j) * ((e + W - 1) // W):
                tload(k); k += 1
            mfma(j, vreg(j), False)
        assert k == e
    if e1 and e1 == e2:
        a(f"s_cmp_lg_u32 s{sROLE}, 63"); a("s_cbranch_scc1 L_pv1")
    else:
        if e1: a(f"s_cmp_ge_u32 s{sROLE}, 64"); a("s_cbranch_scc1 L_pv1")
        if e2: a(f"s_cmp_lt_u32 s{sROLE}, {NT2}"); a("s_cbranch_scc1 L_pv2")
    pv_tail(0)
    a("L_pvdone:")
    a(f"ds_write_b128 v{vOW}, {q4(vD)} offset:{L_OP}")
    a("s_waitcnt lgkmcnt(0)"); a("s_barrier")
    stamp("obar")
    a(f"s_cmp_ge_u32 s{sW}, 2"); a("s_cbranch_scc1 L_nopub")
    if local: a(f"ds_read_b32 v40, v{vZERO} offset:{L_MODE}")
    red16(vR5, L_OP, 512, 24, mid=(lambda: a(f"v_readfirstlane_b32 s{sMODE}, v40")) if local else None)
    put_tag(24)
    mode_store(f"buffer_store_dword v24, v{vCO}, {srd(rWS)}, s{sU} offen")
    a("L_nopub:")
    a(f"s_cmp_ge_u32 s{sROLE}, 64"); a("s_cbranch_scc1 L_T1")
    a("s_barrier")

    def ffn_prefetch(tag):
        a(f"s_sub_u32 s{sT0}, s{sW}, 2"); a(f"s_cmp_ge_u32 s{sT0}, 3"); a(f"s_cbranch_scc1 L_pfdone{tag}")
        a(f"s_and_b32 s{sT1}, s{sH}, 7"); a(f"s_cmp_lt_u32 s{sT1}, 3"); a(f"s_cselect_b32 s{sT1}, 6, 5")
        a(f"s_cmp_eq_u32 s{sT0}, 2"); a(f"s_cbranch_scc1 L_pfdown{tag}")
        mksrd(rG, pWG, 512 * 2752); mksrd(rUP, pWU, 512 * 2752)
        a(f"s_lshl_b32 s{sT1}, s{sT1}, 6"); a(f"s_sub_u32 s{sT1}, s{sT1}, 4")
        a("v_and_b32 v32, 3, v0"); a("v_lshlrev_b32 v32, 7, v32"); a(f"v_min_u32 v32, s{sT1}, v32")
        a(f"v_lshrrev_b32 v33, 2, v{vL}"); a("v_mul_u32_u24 v33, 2752, v33"); a("v_add_u32 v32, v32, v33")
        a(f"s_mul_i32 s{sT1}, s{sMEM}, {16*2752}"); a(f"s_lshl_b32 s{sT2}, s{sUA}, 6"); a(f"s_add_u32 s{sT1}, s{sT1}, s{sT2}")
        a(f"s_cmp_eq_u32 s{sT0}, 1"); a(f"s_cbranch_scc1 L_pfup{tag}")
        a(f"buffer_load_dword v3, v32, {srd(rG)}, s{sT1} offen"); a(f"s_branch L_pfdone{tag}")
        a(f"L_pfup{tag}:")
        a(f"buffer_load_dword v3, v32, {srd(rUP)}, s{sT1} offen"); a(f"s_branch L_pfdone{tag}")
        a(f"L_pfdown{tag}:")
        mksrd(rG, pWD, 1376 * 1024)
        a(f"s_lshl_b32 s{sT1}, s{sT1}, 3"); a(f"s_sub_u32 s{sT2}, s{sT1}, 1"); a(f"v_min_u32 v32, s{sT2}, v{vL}"); a("v_lshlrev_b32 v32, 7, v32")
        a(f"s_mul_i32 s{sT1}, s{sT1}, s{sMEM}"); a(f"s_lshl_b32 s{sT2}, s{sUA}, 8"); a(f"s_add_u32 s{sT1}, s{sT1}, s{sT2}"); a(f"s_lshl_b32 s{sT1}, s{sT1}, 7")
        a(f"buffer_load_dword v3, v32, {srd(rG)}, s{sT1} offen")
        a(f"L_pfdone{tag}:")
    a("L_pf:")
    if pfffn: ffn_prefetch("")
    a(f"s_cmp_lt_u32 s{sROLE}, {NT2}"); a("s_cbranch_scc1 L_T2")
    a("s_branch L_exit")
    emit_far()
    if e1:
        a("L_pv1:"); pv_tail(e1); a("s_branch L_pvdone")
    if e2 and e2 != e1:
        a("L_pv2:"); pv_tail(e2); a("s_branch L_pvdone")

    a("L_helper:")
    a(f"s_load_dword s{sTAG}, s[{pWS}:{pWS+1}], {EPOCH}")
    a(f"s_getreg_b32 s{sXCC}, hwreg(HW_REG_XCC_ID, 0, 3)")
    mksrd(rWS, pWS, WS_SIZE)
    npre = 0
    if pre is not None:
        a(f"s_lshl_b32 s{sT2}, s{sIDX}, 10"); a(f"s_add_u32 s{sT2}, s{sT2}, {MBQ}")
        a(f"buffer_load_dwordx4 v[44:47], v{vXA}, {srd(rWS)}, s{sT2} offen {pre}"); npre = 1
    selectors()
    role()
    a(f"s_waitcnt vmcnt({16+npre})")
    stamp("x")
    U = 32
    for i in range(4): unpack(U + 2 * i, U + 2 * i + 1, XA + i)
    S, M_, R_ = 40, 41, 42
    a(f"v_add_f32 v{S}, v{U}, v{U+1}")
    for i in range(2, 8): a(f"v_add_f32 v{S}, v{S}, v{U+i}")
    wave_red("v_add_f32", S, sT1)
    a(f"v_mov_b32 v{M_}, 0x3b000000"); a(f"v_mul_f32 v{M_}, s{sT1}, v{M_}")
    for i in range(8): a(f"v_sub_f32 v{U+i}, v{U+i}, v{M_}")
    a(f"v_mul_f32 v{S}, v{U}, v{U}")
    for i in range(1, 8): a(f"v_fmac_f32 v{S}, v{U+i}, v{U+i}")
    wave_red("v_add_f32", S, sT1)
    a(f"v_mov_b32 v{S}, 0x3b000000"); a(f"v_mul_f32 v{S}, s{sT1}, v{S}")
    ln_finish(M_, S, R_)
    a(f"v_lshlrev_b32 v{XO}, 16, v{XO}"); a(f"v_sub_f32 v{XO}, v{XO}, v{M_}"); bf16r(XO, XO)
    a(f"v_mul_f32 v{XO}, v{XO}, v{R_}")
    a(f"v_cvt_pk_bf16_f32 v{vPK}, v{XO}, 0")
    a(f"s_waitcnt lgkmcnt(0)")
    tag_from_epoch()
    for j in range(16):
        build_a(j)
        if j % 4 == 0: a(f"s_waitcnt vmcnt({12 - j + npre})")
        mfma(j, KREG + 4 * j, j == 0)
    a("v_and_b32 v24, 15, v0"); a("v_bfe_u32 v25, v0, 4, 1"); a("v_lshrrev_b32 v26, 5, v0")
    a("v_lshlrev_b32 v24, 6, v24"); a("v_lshl_add_u32 v24, v25, 5, v24"); a("v_lshl_add_u32 v24, v26, 4, v24")
    a(f"s_lshl_b32 s{sT2}, s{sIDX}, 10"); a(f"s_add_u32 s{sT2}, s{sT2}, {MBQ}")
    a(f"s_xor_b32 s{sT3}, s{sTAG}, s{sXCC}")
    a(f"v_permlane32_swap_b32 v{vD}, v{vD+2}"); a(f"v_permlane32_swap_b32 v{vD+1}, v{vD+3}")
    a(f"v_mov_b32 v{vD+2}, v{vD+1}"); a(f"v_mov_b32 v{vD+1}, s{sTAG}"); a(f"v_mov_b32 v{vD+3}, s{sT3}")
    qstore = f"buffer_store_dwordx4 {q4(vD)}, v24, {srd(rWS)}, s{sT2} offen"
    if prewait: a("s_waitcnt vmcnt(0)")
    if "half" in abl: a("s_mov_b32 exec_lo, 0x00ff00ff"); a("s_mov_b32 exec_hi, 0x00ff00ff")
    if "quarter" in abl: a("s_mov_b32 exec_lo, 0x000f000f"); a("s_mov_b32 exec_hi, 0x000f000f")
    if "qpub" not in abl or "qst" in abl: a(qstore + (qpolicy if local else " sc1"))
    if "half" in abl or "quarter" in abl: a("s_mov_b64 exec, -1")
    if "qld" in abl:
        a(f"s_lshl_b32 s{sT0}, s{sH}, 13"); a(f"s_add_u32 s{sT0}, s{sT0}, {MBQ}"); a(f"s_add_u32 s{sU}, s{sT0}, 4096")
        for t in range(8): a(f"buffer_load_dwordx4 {q4(KREG+4*t)}, v{vXA}, {srd(rWS)}, s{sU if t >= 4 else sT0} offen offset:{(t&3)*1024} sc1")
    stamp("qpub")
    a(f"s_lshl_b32 s{sT0}, s{sH}, 13"); a(f"s_add_u32 s{sT0}, s{sT0}, {MBQ}"); a(f"s_add_u32 s{sU}, s{sT0}, 4096")
    a(f"s_mov_b32 s{sMODE}, 0")
    a("s_waitcnt vmcnt(0)")
    GQ = KREG

    def write_through_once(tag):
        a(f"s_cmp_lg_u32 s{sMODE}, 0"); a(f"s_cbranch_scc1 L_wt{tag}")
        a(qstore + " sc1"); a(f"s_mov_b32 s{sMODE}, 1")
        a(f"L_wt{tag}:")
    if "qpub" not in abl:
        poll_tag([(f"buffer_load_dwordx4 {q4(GQ+4*t)}, v{vXA}, {srd(rWS)}, s{sU if t >= 4 else sT0} offen offset:{(t&3)*1024} sc1", [GQ+4*t+1, GQ+4*t+3], -1) for t in range(8)],
                 26, skip_dry=False, slack=3, retry=(lambda: write_through_once("a")) if local else None)
    if local and "qpub" not in abl:
        for t in range(8): a(f"v_xor_b32 v{GQ+4*t+3}, s{sT3}, v{GQ+4*t+3}")
        vor(26, [GQ + 4 * t + 3 for t in range(8)])
        a("v_cmp_ne_u32 vcc, 0, v26"); a("s_cbranch_vccz L_samedie")
        write_through_once("b")
        a("L_samedie:")
    for st in (16, 8, 4):
        for i in range(0, st, 2): a(f"v_add_f32 v{GQ+i}, v{GQ+i}, v{GQ+i+st}")
    a(f"v_cvt_pk_bf16_f32 v{GQ}, v{GQ}, v{GQ+2}"); a("v_lshlrev_b32 v25, 2, v0")
    a(f"ds_write_b32 v25, v{GQ} offset:{L_QB}")
    stamp("qgot")
    a("v_and_b32 v25, 3, v0"); a("v_bfe_u32 v26, v0, 2, 1"); a("v_lshlrev_b32 v25, 16, v25"); a("v_lshl_add_u32 v25, v26, 10, v25")
    a(f"s_and_b32 s{sT0}, s{sH}, 7"); a(f"s_lshl_b32 s{sT1}, s{sT0}, 13"); a(f"s_add_u32 s{sT1}, s{sT1}, {MBQ}")
    a("s_waitcnt lgkmcnt(0)"); a("s_barrier")
    if local and "die" not in abl: a(f"buffer_load_dword v40, v25, {srd(rWS)}, s{sT1} offen offset:12 sc1")
    wg_stats()
    a(f"v_sub_f32 v{T}, v{T}, v{MM}"); a(f"v_mul_f32 v{T}, {LOG2E:#x}, v{T}"); a(f"v_exp_f32 v{T}, v{T}")
    a(f"v_mov_b32 v36, v{MM}"); a(f"v_mov_b32 v37, s{sTAG}"); a(f"v_mul_f32 v38, v{T}, v{T+1}"); a(f"v_mov_b32 v39, s{sTAG}")
    red8("v_add_f32", 38)
    a(f"s_lshl_b32 s{sT1}, s{sIDX}, 7"); a(f"s_add_u32 s{sT1}, s{sT1}, {MBM}")
    if local:
        a("s_waitcnt vmcnt(0)")
        a(f"v_cmp_ne_u32 vcc, s{sT3}, v40"); a("s_cmp_lg_u64 vcc, 0"); a(f"s_cselect_b32 s{sMODE}, 1, 0")
        if "qpub" in abl or "die" in abl: a(f"s_mov_b32 s{sMODE}, 0")
        a(f"v_mov_b32 v40, s{sMODE}"); a("v_mov_b32 v41, 0")
    a("s_mov_b64 exec, 1")
    if local: a(f"ds_write_b32 v41, v40 offset:{L_MODE}")
    if "ml" not in abl: mode_store(f"buffer_store_dwordx4 v[36:39], off, {srd(rWS)}, s{sT1}")
    a("s_mov_b64 exec, -1")
    a("s_waitcnt lgkmcnt(0)")
    stamp("p")
    a(f"s_cmp_lt_u32 s{sROLE}, 64"); a(f"s_mov_b32 s{sROLE}, 63"); a("s_cbranch_scc1 L_exit")
    a("v_bfe_u32 v24, v0, 3, 2"); a("v_and_b32 v25, 7, v0"); a("v_lshlrev_b32 v24, 13, v24"); a("v_lshl_add_u32 v24, v25, 7, v24")
    a(f"s_lshl_b32 s{sT0}, s{sT0}, 10"); a(f"s_add_u32 s{sT0}, s{sT0}, {MBM}")
    a("s_waitcnt vmcnt(0)")
    poll_tag([(f"buffer_load_dwordx4 v[32:35], v24, {srd(rWS)}, s{sT0} offen sc1", [33, 35], -1)], 26, skip_dry=False)
    a("v_mov_b32 v36, v32"); red8("v_max_f32", 36)
    a("v_sub_f32 v32, v32, v36"); a(f"v_mul_f32 v32, {LOG2E:#x}, v32"); a("v_exp_f32 v32, v32")
    a("v_mul_f32 v34, v32, v34"); red8("v_add_f32", 34)
    a("v_rcp_f32 v34, v34"); a("v_and_b32 v24, 31, v0"); a("v_lshlrev_b32 v24, 2, v24")
    a("v_mul_f32 v32, v32, v34")
    a(f"ds_write_b32 v24, v32 offset:{L_C}")
    a("s_waitcnt lgkmcnt(0)")
    stamp("cbar")
    a("s_branch L_exit")
    emit_far()

    vPW = vT
    vPJ = vT + 1

    def tail_common():
        a(f"v_lshrrev_b32 v{vPW}, 5, v0"); a(f"v_lshlrev_b32 v{vPW}, 8, v{vPW}"); a(f"v_lshl_add_u32 v{vPW}, v{vJ}, 5, v{vPW}")
        a(f"v_and_b32 v{vPW+1}, 1, v{vG2}"); a(f"v_lshl_add_u32 v{vPW}, v{vPW+1}, 4, v{vPW}")
        a(f"v_lshl_add_u32 v{vPJ}, v{vG2}, 3, v{vJ}")

    def p16_store():
        a("s_mov_b32 exec_lo, 0x00ff00ff"); a("s_mov_b32 exec_hi, 0xff00ff00")
        a(f"ds_write_b128 v{vPW}, {q4(vD)} offset:{L_P16}")
        a("s_mov_b64 exec, -1")
        a("s_waitcnt lgkmcnt(0)"); a("s_barrier")

    def sum4pairs(v, c=None, cs=2):
        if c is None:
            for i in range(2):
                a(f"v_add_f32 v{v+i}, v{v+i}, v{v+2+i}"); a(f"v_add_f32 v{v+4+i}, v{v+4+i}, v{v+6+i}")
            for i in range(2): a(f"v_add_f32 v{v+i}, v{v+i}, v{v+4+i}")
        else:
            for i in range(2): a(f"v_mul_f32 v{v+i}, v{v+i}, v{c}")
            for t in range(1, 4):
                for i in range(2): a(f"v_fmac_f32 v{v+i}, v{v+2*t+i}, v{c+cs*t}")
        for i in range(2): a(f"v_add_f32_dpp v{v+i}, v{v+i}, v{v+i} row_ror:8 {DPPF}")

    def end_dry(label):
        a(f"s_mov_b32 s{sPASS}, 1"); a("s_barrier"); stamp("ready"); a(f"s_branch {label}")

    a("L_T1:")
    ML, OG, vO, TMP = VREG, VREG + 16, VREG + 24, 46
    a(f"s_lshr_b32 s{sT1}, s{sW}, 1"); a(f"s_lshl_b32 s{sT0}, s{sT1}, 5"); a(f"v_lshl_add_u32 v{vO}, v{vSH}, 4, s{sT0}")
    a(f"ds_read_b128 {q4(ML)}, v{vO} offset:{L_C}")
    if e1 < 8: a("s_barrier")
    for j in range(e1, 8): tload(j)
    tail_common()
    a(f"s_and_b32 s{sT2}, s{sH}, 7"); a(f"s_lshl_b32 s{sT1}, s{sT1}, 3"); a(f"s_add_u32 s{sT3}, s{sT2}, s{sT1}")
    a(f"s_lshl_b32 s{sT3}, s{sT3}, 12"); a(f"s_and_b32 s{sT1}, s{sW}, 1"); a(f"s_lshl_b32 s{sT1}, s{sT1}, 8"); a(f"s_add_u32 s{sT1}, s{sT1}, s{sT3}")
    a(f"v_lshlrev_b32 v{vO}, 11, v{vSH}"); a(f"v_lshl_add_u32 v{vO}, v{vPJ}, 3, v{vO}")
    a(f"s_lshl_b32 s{sT2}, s{sT2}, 11"); a(f"s_and_b32 s{sT3}, s{sROLE}, 7"); a(f"s_lshl_b32 s{sT3}, s{sT3}, 8")
    a(f"s_add_u32 s{sT2}, s{sT2}, s{sT3}"); a(f"s_add_u32 s{sT2}, s{sT2}, {MB2}")
    a("s_waitcnt lgkmcnt(0)")
    stamp("ready")
    RAW = 24
    poll([(f"buffer_load_dwordx2 {q2(RAW+2*t)}, v{vO}, {srd(rWS)}, s{sT1} offen offset:{t*SLOT} sc1", [RAW+2*t, RAW+2*t+1], -1) for t in range(4)], OG, TMP, skip_dry=False)
    stamp("got")
    sum4pairs(OG, ML, 1)
    a(f"v_cvt_pk_bf16_f32 v{vPK}, v{OG}, v{OG+1}")
    gemv(8, TREG)
    p16_store()
    only_wave(0, "L_pf" if pfffn else "L_exit")
    red16(vR4, L_P16, 256, 24)
    put_tag(24)
    a(f"buffer_store_dword v24, v{vCO}, {srd(rWS)}, s{sT2} offen sc1")
    stamp("pub")
    a("s_branch L_exit")
    emit_far()

    a("L_T2:")
    DW = TREG + 32

    def t2_loads():
        for j in range(e2, 8): tload(j)
        mksrd(rT, pWD, 1376 * 1024)
        a(f"v_lshl_add_u32 v30, v{vG2}, 3, v{vSH}"); a("v_lshlrev_b32 v30, 10, v30"); a(f"v_lshl_add_u32 v30, v{vJ}, 4, v30")
        a(f"s_lshl_b32 s{sT3}, s{sROLE}, 15"); a(f"s_lshl_b32 s{sU}, s{sW}, 7"); a(f"s_add_u32 s{sT3}, s{sT3}, s{sU}")
        for j in range(4):
            a(f"buffer_load_dwordx4 {q4(DW+4*j)}, v30, {srd(rT)}, s{sT3} offen offset:{(j&1)*2048}")
            if j == 1: a(f"s_add_u32 s{sT3}, s{sT3}, 4096")
    if not (dry and dryfirst): t2_loads()
    a(f"s_mov_b32 s{sPASS}, {0 if dry else 1}")
    tail_common()
    a(f"s_lshl_b32 s{sT1}, s{sW}, 7")
    XP, vHA, vGU, vY2, vLR, vLW, vHW, vFA, vFO, vFH = range(XREG + 8, XREG + 18)
    a(f"v_lshlrev_b32 v{vHW}, 2, v{vPJ}")
    a(f"buffer_load_dword v{XP}, v{vHW}, {srd(rX)}, s{sT1} offen")
    a(f"v_add_u32 v{vHW}, s{sT1}, v{vHW}")
    a(f"v_lshlrev_b32 v{vHA}, 3, v{vPJ}"); a(f"v_lshl_add_u32 v{vHA}, v{vSH}, 13, v{vHA}")
    a(f"s_lshl_b32 s{sT0}, s{sW}, 8"); a(f"s_add_u32 s{sT0}, s{sT0}, {MB2}"); a(f"s_add_u32 s{sT1}, s{sT0}, 4096")
    a(f"v_bfe_u32 v{vGU}, v0, 2, 2"); a(f"v_lshlrev_b32 v{vGU}, 10, v{vGU}"); a(f"v_lshl_add_u32 v{vGU}, v{vG2}, 5, v{vGU}")
    a(f"v_and_b32 v31, 3, v0"); a(f"v_lshl_add_u32 v{vGU}, v31, 3, v{vGU}")
    a(f"v_and_b32 v{vY2}, 1, v{vG2}"); a(f"v_lshlrev_b32 v{vY2}, 4, v{vY2}"); a(f"v_lshl_add_u32 v{vY2}, v{vJ}, 5, v{vY2}")
    a(f"v_lshrrev_b32 v30, 1, v{vG2}"); a(f"v_lshl_add_u32 v{vY2}, v30, 3, v{vY2}")
    a(f"v_lshlrev_b32 v{vLR}, 3, v{vJ}")
    a(f"s_lshl_b32 s{sT2}, s{sW}, 3"); a(f"v_mov_b32 v{vLW}, s{sT2}")
    a(f"s_lshl_b32 s{sT2}, s{sROLE}, 11"); a(f"s_add_u32 s{sT2}, s{sT2}, s{sT0}"); a(f"s_add_u32 s{sT2}, s{sT2}, {MB3-MB2}")
    a(f"v_lshrrev_b32 v{vFA}, 2, v{vL}"); a(f"v_lshlrev_b32 v{vFA}, 11, v{vFA}"); a(f"v_lshl_add_u32 v{vFA}, v31, 4, v{vFA}")
    a(f"v_lshl_add_u32 v{vFO}, v31, 2, v{vG2}"); a(f"s_lshl_b32 s{sT3}, s{sROLE}, 4"); a(f"v_add_lshl_u32 v{vFO}, s{sT3}, v{vFO}, 1")
    sF0 = 70
    a(f"s_lshl_b32 s{sF0}, s{sROLE}, 6"); a(f"s_add_u32 s{sF0}, s{sF0}, {MB3}"); a(f"s_add_u32 s{sF0+1}, s{sF0}, {16*2048}"); a(f"s_add_u32 s{sF0+2}, s{sF0}, {32*2048}")
    mksrd(rO, pOUT, 1024)
    GU, FR = VREG, VREG + 16
    FRAW = KREG + 48
    for i in range(8, 12): a(f"v_mov_b32 v{FRAW+i}, s{sTG8}")
    a("L_T2a:")
    HG = 32
    poll([(f"buffer_load_dwordx2 {q2(RAW+2*t)}, v{vHA}, {srd(rWS)}, s{sT1 if t >= 2 else sT0} offen offset:{(t&1)*2048} sc1", [RAW+2*t, RAW+2*t+1], -1) for t in range(4)], HG, TMP)
    stamp("got")
    sum4pairs(HG)
    a(f"v_cvt_pk_bf16_f32 v{HG}, v{HG}, v{HG+1}")
    unpack(HG + 2, HG + 3, XP)
    unpack(HG, HG + 1, HG)
    a(f"v_add_f32 v{HG}, v{HG}, v{HG+2}"); a(f"v_add_f32 v{HG+1}, v{HG+1}, v{HG+3}")
    a(f"v_cvt_pk_bf16_f32 v{HG+6}, v{HG}, v{HG+1}")
    unpack(HG, HG + 1, HG + 6)
    a(f"v_readfirstlane_b32 s{sMW}, v{HG}")
    a(f"ds_write_b32 v{vHW}, v{HG+6} offset:{L_H}")
    a(f"v_subrev_f32 v{HG+2}, s{sMW}, v{HG}"); a(f"v_subrev_f32 v{HG+3}, s{sMW}, v{HG+1}")
    a(f"v_add_f32 v{HG+4}, v{HG+2}, v{HG+3}")
    a(f"v_mul_f32 v{HG+5}, v{HG+2}, v{HG+2}"); a(f"v_fmac_f32 v{HG+5}, v{HG+3}, v{HG+3}")
    for m in ("quad_perm:[1,0,3,2] " + DPPF, "quad_perm:[2,3,0,1] " + DPPF, "row_half_mirror " + DPPF,
              "row_bcast:15 row_mask:0xa bank_mask:0xf", "row_bcast:31 row_mask:0xc bank_mask:0xf"):
        for i in (4, 5): a(f"v_add_f32_dpp v{HG+i}, v{HG+i}, v{HG+i} {m}")
    a(f"v_mul_f32 v{HG+2}, 0x3c800000, v{HG+4}")
    a(f"v_fma_f32 v{HG+5}, -v{HG+2}, v{HG+4}, v{HG+5}")
    a(f"v_add_f32 v{HG+4}, s{sMW}, v{HG+2}")
    a("s_mov_b32 exec_lo, 0"); a("s_mov_b32 exec_hi, 0x80000000")
    a(f"ds_write_b64 v{vLW}, {q2(HG+4)} offset:{L_LN}")
    a("s_mov_b64 exec, -1")
    a("s_waitcnt lgkmcnt(0)"); a("s_barrier")
    a(f"ds_read_b64 {q2(HG+4)}, v{vLR} offset:{L_LN}")
    a(f"ds_read_u16 v{vFH}, v{vFO} offset:{L_H}")
    a("s_waitcnt lgkmcnt(1)")
    a(f"v_mov_b32 v{HG+2}, v{HG+4}"); red8("v_add_f32", HG + 2)
    a(f"v_mul_f32 v{HG+2}, 0x3e000000, v{HG+2}")
    a(f"v_sub_f32 v{HG+4}, v{HG+4}, v{HG+2}"); a(f"v_mul_f32 v{HG+3}, 0x42800000, v{HG+4}")
    a(f"v_fmac_f32 v{HG+5}, v{HG+3}, v{HG+4}")
    red8("v_add_f32", HG + 5)
    a(f"v_mul_f32 v{HG+5}, 0x3b000000, v{HG+5}")
    ln_finish(HG + 2, HG + 5, HG + 3)
    a(f"v_sub_f32 v{HG}, v{HG}, v{HG+2}"); a(f"v_sub_f32 v{HG+1}, v{HG+1}, v{HG+2}")
    a(f"v_cvt_pk_bf16_f32 v{HG}, v{HG}, v{HG+1}")
    unpack(HG, HG + 1, HG)
    a(f"v_mul_f32 v{HG}, v{HG}, v{HG+3}"); a(f"v_mul_f32 v{HG+1}, v{HG+1}, v{HG+3}")
    a(f"v_cvt_pk_bf16_f32 v{vPK}, v{HG}, v{HG+1}")
    gemv(8, TREG)
    p16_store()
    for t in range(4):
        a(f"ds_read_b64 {q2(GU+4*t)}, v{vGU} offset:{L_P16 + 256*t}")
        a(f"ds_read_b64 {q2(GU+4*t+2)}, v{vGU} offset:{L_P16 + 256*t + 128}")
    a("s_waitcnt lgkmcnt(4)")
    for i in range(4): a(f"v_add_f32 v{GU+i}, v{GU+i}, v{GU+4+i}")
    a("s_waitcnt lgkmcnt(0)")
    for i in range(4): a(f"v_add_f32 v{GU+8+i}, v{GU+8+i}, v{GU+12+i}")
    for i in range(4): a(f"v_add_f32 v{GU+i}, v{GU+i}, v{GU+8+i}")
    for m in ("row_ror:4", "row_ror:8"):
        for i in range(4): a(f"v_add_f32_dpp v{GU+i}, v{GU+i}, v{GU+i} {m} {DPPF}")
    a(f"v_cvt_pk_bf16_f32 v{GU}, v{GU}, v{GU+1}"); a(f"v_cvt_pk_bf16_f32 v{GU+2}, v{GU+2}, v{GU+3}")
    unpack(GU, GU + 1, GU); unpack(GU + 2, GU + 3, GU + 2)
    for i in range(2): a(f"v_mul_f32 v{GU+4+i}, {LOG2E ^ 0x80000000:#x}, v{GU+i}")
    for i in range(2): a(f"v_exp_f32 v{GU+4+i}, v{GU+4+i}")
    for i in range(2): a(f"v_add_f32 v{GU+4+i}, 1.0, v{GU+4+i}")
    for i in range(2): a(f"v_rcp_f32 v{GU+4+i}, v{GU+4+i}")
    for i in range(2): a(f"v_mul_f32 v{GU+i}, v{GU+i}, v{GU+4+i}")
    a(f"v_cvt_pk_bf16_f32 v{GU}, v{GU}, v{GU+1}")
    unpack(GU, GU + 1, GU)
    for i in range(2): a(f"v_mul_f32 v{GU+i}, v{GU+i}, v{GU+2+i}")
    a(f"v_cvt_pk_bf16_f32 v{vPK}, v{GU}, v{GU+1}")
    gemv(4, DW)
    for r in range(4): a(f"v_mov_b32_dpp v{vD+r}, v{vD+r} row_ror:8 row_mask:0xc bank_mask:0xf")
    a(f"v_permlane32_swap_b32 v{vD}, v{vD+2}"); a(f"v_permlane32_swap_b32 v{vD+1}, v{vD+3}")
    a(f"v_add_f32 v{vD}, v{vD}, v{vD+2}"); a(f"v_add_f32 v{vD+1}, v{vD+1}, v{vD+3}")
    put_tag(vD); put_tag(vD + 1)
    a(f"s_cmp_eq_u32 s{sPASS}, 0"); a("s_cbranch_scc1 L_T2f")
    a("s_mov_b32 exec_lo, 0x00ff00ff"); a("s_mov_b32 exec_hi, 0x00ff00ff")
    a(f"buffer_store_dwordx2 {q2(vD)}, v{vY2}, {srd(rWS)}, s{sT2} offen sc1")
    a("s_mov_b64 exec, -1")
    stamp("pub")
    a(f"s_lshr_b32 s{sT3}, s{sROLE}, 2"); a(f"s_cmp_lg_u32 s{sT3}, s{sW}"); a("s_cbranch_scc1 L_exit")
    a("s_waitcnt vmcnt(0)")
    poll([(f"buffer_load_dwordx4 {q4(FRAW+4*t)}, v{vFA}, {srd(rWS)}, s{sF0+t} offen sc1", range(FRAW+4*t, FRAW+4*t+4), 0xfff if t == 2 else -1) for t in range(3)], FR, TMP, skip_dry=False)
    stamp("fgot")
    a("L_T2f:")
    for i in range(4): a(f"v_add_f32 v{FR+i}, v{FR+i}, v{FR+4+i}")
    for i in range(4): a(f"v_add_f32 v{FR+i}, v{FR+i}, v{FR+8+i}")
    tred4(FR)
    a(f"v_lshlrev_b32 v{FR+1}, 16, v{vFH}")
    for m in ("row_ror:4", "row_ror:8"): a(f"v_add_f32_dpp v{FR}, v{FR}, v{FR} {m} {DPPF}")
    bf16r(FR, FR); a(f"v_add_f32 v{FR}, v{FR}, v{FR+1}")
    a(f"v_cvt_pk_bf16_f32 v{FR}, v{FR}, v{FR}")
    a(f"s_cmp_eq_u32 s{sPASS}, 0"); a("s_cbranch_scc1 L_T2z")
    a("s_mov_b32 exec_lo, 0x000f000f"); a("s_mov_b32 exec_hi, 0x000f000f")
    a(f"buffer_store_short v{FR}, v{vFO}, {srd(rO)}, 0 offen")
    a(f"s_cmp_lg_u32 s{sROLE}, 0"); a("s_cbranch_scc1 L_noepoch")
    a(f"s_mov_b32 s{sT0}, {EPOCH}"); a(f"s_or_b32 s{sT1}, s{sTAG}, s{sTG8}"); a(f"v_mov_b32 v{FR+1}, s{sT1}"); a("s_mov_b64 exec, 1")
    a(f"buffer_store_dword v{FR+1}, off, {srd(rWS)}, s{sT0} sc1")
    a("L_noepoch:")
    if amp:
        a(f"s_memrealtime s[{sE}:{sE+1}]"); a("s_waitcnt lgkmcnt(0)")
        a(f"s_sub_u32 s{sT0}, s{sST+2}, s{sST}")
        if len(amp) > 2 and amp[2] == "inv": a(f"s_sub_u32 s{sT0}, 2500, s{sT0}")
        if len(amp) > 2 and amp[2] == "mode":
            a(f"s_cmp_lt_u32 s{sW}, 2"); a(f"s_cselect_b32 s{sT0}, s{sMODE}, 0"); a(f"s_mul_i32 s{sT0}, s{sT0}, 1000")
        a(f"s_mul_i32 s{sT0}, s{sT0}, {amp[1]}")
        a(f"s_min_u32 s{sT0}, s{sT0}, 200000"); a(f"s_mov_b32 s{sT1}, s{sE}")
        a("L_amp:"); a(f"s_memrealtime s[{sE}:{sE+1}]"); a("s_waitcnt lgkmcnt(0)")
        a(f"s_sub_u32 s{sT2}, s{sE}, s{sT1}"); a(f"s_cmp_lt_u32 s{sT2}, s{sT0}"); a("s_cbranch_scc1 L_amp")
    a("L_exit:")
    if stamps:
        a("s_mov_b64 exec, -1")
        stamp("exit")
        a(f"v_writelane_b32 v{vSTAMP}, s{sROLE}, 14")
        a(f"s_mul_i32 s{sT0}, s2, {NWAVE}"); a(f"s_add_u32 s{sT0}, s{sT0}, s{sW}"); a(f"s_add_u32 s{sT0}, s{sT0}, 1")
        a(f"s_lshl_b32 s{sT0}, s{sT0}, 6"); a(f"s_add_u32 s{sT0}, s{sT0}, {STAMP}")
        a(f"v_lshlrev_b32 v{vSTAMP+1}, 2, v{vL}")
        a("s_mov_b64 exec, 0xffff")
        a(f"buffer_store_dword v{vSTAMP}, v{vSTAMP+1}, {srd(rWS)}, s{sT0} offen")
    a("L_end:")
    a("s_endpgm")
    a("L_T2z:")
    if dryfirst: t2_loads()
    end_dry("L_T2a")
    emit_far()
    a("L_last:")
    a("s_endpgm")

    out = HEADER + f"; @launch grid=(256,1,1) block=({64*NWAVE},1,1) lds={L_END}\n"
    out += f'.amdgcn_target "amdgcn-amd-amdhsa--gfx950"\n.text\n.globl {KNAME}\n.p2align 8\n.type {KNAME},@function\n'
    out += a.render()
    out += f'''.section .rodata,"a"
.p2align 6
.amdhsa_kernel {KNAME}
  .amdhsa_next_free_vgpr {NV}
  .amdhsa_next_free_sgpr 102
  .amdhsa_accum_offset {NV}
  .amdhsa_group_segment_fixed_size 0
  .amdhsa_kernarg_size 96
  .amdhsa_user_sgpr_count 2
  .amdhsa_user_sgpr_kernarg_segment_ptr 1
  .amdhsa_system_sgpr_workgroup_id_x 1
  .amdhsa_float_denorm_mode_32 3
.end_amdhsa_kernel
'''
    return out


if __name__ == "__main__":
    kw = {}
    for arg in sys.argv[2:]:
        k, v = arg.split("=")
        kw[k] = eval(v)
    open(sys.argv[1], "w").write(gen(**kw))
```

```python
import sys
from asmlib import Asm

KNAME = "sequential_preLN__sliding_block_cached__swiglu_ffn__decode_kernel"
HEADER = open("sequential_preLN__sliding_block_cached__swiglu_ffn__decode.s.ref").read().split("; Override launch")[0]

LOG2E = 0x3FB8AA3B
SCALE = 0x3DB504F3
EPS = 0x3727C5AC

SLOT = 512
MB1 = 0
MB2 = 256 * SLOT
MB3 = MB2 + 2 * 8 * 2048
MBQ = MB2 + 256 * 512
MBM = MBQ + 256 * 1024
EPOCH = MBM + 256 * 128
STAMP = 1 << 20
WS_SIZE = 2 << 20
PROW = 608
L_QB, L_ST, L_F, L_MODE, L_C, L_H, L_OP, L_P16 = 0, 256, 320, 352, 384, 512, 2048, 2048 + 8192
L_END = L_P16 + 16 * PROW

NT2 = 43
NWAVE = 9
DPPF = "row_mask:0xf bank_mask:0xf"
STAMPS = ["start", "args", "x", "qpub", "qgot", "p", "cbar", "obar", "ready", "got", "pub", "fgot", "exit"]

sH, sSP, sW, sTAG, sBUD = 3, 4, 5, 6, 7
pX, pK, pV, pWQ, pWO, pWG, pWU, pWD, pOUT, pDBG, pWS = 8, 10, 12, 14, 16, 20, 22, 24, 26, 28, 30
sMW, sXT = 18, 19
rK, rV, rQ, rX, rWS, rO, rT = 32, 36, 40, 44, 48, 52, 56
sOFF = 60
sT0, sT1, sT2, sT3 = 76, 77, 78, 79
sROLE, sIDX = 80, 81
sE = 82
sXCC, sU = 84, 85
sST = 86
sUA, sMEM = 90, 91
sPFM, sPFM2 = 92, 96
sTG8, sMODE = 94, 95
vL, vKV = 1, 2
vSEL, vA, vD, vPK, vB = 4, 8, 16, 20, 21
vT = 22
KREG, VREG, XREG = 48, 112, 144
TREG = KREG
vFF, vZERO = 164, 165
vSTAMP = 166
NV = 168


def q4(r): return f"v[{r}:{r+3}]"
def q2(r): return f"v[{r}:{r+1}]"
def srd(r): return f"s[{r}:{r+3}]"


def gen(W=4, stamps=False, budget=1 << 18, gpos=12, cpos=8, local=True, psleep=0, amp=None, only=None,
        abl=(), hprio=1, bar0=True, pfffn=True, pfcode=True, copies=True, fwait=True, trace=False, nwo=2, pfdown=True, split_args=True,
        early_poll=True, hsleep=2, sync=()):
    assert 4 <= W <= 7 and bar0
    a = Asm()
    far = []

    def stamp(name):
        i = STAMPS.index(name)
        if stamps:
            if only and name not in only and name not in ("start", "exit"): return
            a(f"s_memrealtime s[{sST}:{sST+1}]"); a("s_waitcnt lgkmcnt(0)"); a(f"v_writelane_b32 v{vSTAMP}, s{sST}, {i}")
        elif amp and name == "start": a(f"s_memrealtime s[{sST}:{sST+1}]")
        elif amp and name == amp[0]: a(f"s_memrealtime s[{sST+2}:{sST+3}]\ns_waitcnt lgkmcnt(0)")

    def tr(i):
        if trace:
            a(f"s_memrealtime s[{sST}:{sST+1}]"); a("s_waitcnt lgkmcnt(0)"); a(f"v_writelane_b32 v{vSTAMP}, s{sST}, {16+i}")

    def mksrd(r, p, size, add=None):
        if add is None:
            a(f"s_mov_b32 s{r}, s{p}"); a(f"s_mov_b32 s{r+1}, s{p+1}")
        else:
            a(f"s_add_u32 s{r}, s{p}, s{add}"); a(f"s_addc_u32 s{r+1}, s{p+1}, 0")
        a(f"s_mov_b32 s{r+2}, {size}"); a(f"s_mov_b32 s{r+3}, 0x20000")

    def bf16r(d, s):
        a(f"v_cvt_pk_bf16_f32 v{d}, v{s}, v{s}"); a(f"v_lshlrev_b32 v{d}, 16, v{d}")

    def unpack(lo, hi, s):
        a(f"v_and_b32 v{hi}, 0xffff0000, v{s}"); a(f"v_lshlrev_b32 v{lo}, 16, v{s}")

    def pkadd(d, x, y): a(f"v_pk_add_f32 {q2(d)}, {q2(x)}, {q2(y)}")

    def wave_red(op, v, s):
        for m in ("quad_perm:[1,0,3,2]", "quad_perm:[2,3,0,1]", "row_half_mirror", "row_mirror"):
            a(f"{op}_dpp v{v}, v{v}, v{v} {m} {DPPF}")
        a(f"{op}_dpp v{v}, v{v}, v{v} row_bcast:15 row_mask:0xa bank_mask:0xf")
        a(f"{op}_dpp v{v}, v{v}, v{v} row_bcast:31 row_mask:0xc bank_mask:0xf")
        a(f"v_readlane_b32 s{s}, v{v}, 63")

    def red8(op, *vs):
        for m in ("quad_perm:[1,0,3,2]", "quad_perm:[2,3,0,1]", "row_half_mirror"):
            for v in vs: a(f"{op}_dpp v{v}, v{v}, v{v} {m} {DPPF}")

    def build_a(j):
        A = vA + 4 * (j & 1)
        a(f"v_mov_b32_dpp v{vB}, v{vPK} row_newbcast:{j} {DPPF}")
        for r in range(4):
            a(f"v_perm_b32 v{A+r}, v{vB}, v{vB}, v{vSEL+r}")

    def mm(d, x, y, first):
        a(f"v_mfma_f32_16x16x32_bf16 {q4(d)}, {q4(x)}, {q4(y)}, {'0' if first else q4(d)}")

    def mfma(j, b, first): mm(vD, vA + 4 * (j & 1), b, first)

    def gemv(n, breg):
        build_a(0)
        for j in range(n):
            if j + 1 < n: build_a(j + 1)
            mfma(j, breg + 4 * j, j == 0)

    def red16(vaddr, v, mid=None):
        for t in range(4):
            a(f"ds_read2st64_b64 {q4(v+4*t)}, v{vaddr} offset0:{2*t} offset1:{2*t+1}")
        a("s_waitcnt lgkmcnt(2)")
        pkadd(v, v, v + 2); pkadd(v + 4, v + 4, v + 6); pkadd(v, v, v + 4)
        if mid: mid()
        a("s_waitcnt lgkmcnt(0)")
        pkadd(v + 8, v + 8, v + 10); pkadd(v + 12, v + 12, v + 14); pkadd(v + 8, v + 8, v + 12)
        pkadd(v + 2, v, v + 8); pkadd(v, v, v + 8)
        a(f"v_permlane32_swap_b32 v{v}, v{v+2}"); a(f"v_permlane32_swap_b32 v{v+1}, v{v+3}")
        pkadd(v, v, v + 2)

    def vor(tmp, rs):
        rs = list(rs)
        if len(rs) == 2:
            a(f"v_or_b32 v{tmp}, v{rs[0]}, v{rs[1]}"); return
        a(f"v_or3_b32 v{tmp}, v{rs[0]}, v{rs[1]}, v{rs[2]}"); rs = rs[3:]
        while rs:
            if len(rs) >= 2:
                a(f"v_or3_b32 v{tmp}, v{tmp}, v{rs[0]}, v{rs[1]}"); rs = rs[2:]
            else:
                a(f"v_or_b32 v{tmp}, v{tmp}, v{rs[0]}"); rs = rs[1:]

    npoll = [0]

    def spend():
        a(f"s_sub_u32 s{sBUD}, s{sBUD}, 1"); a("s_cbranch_scc1 L_exit")

    def poll(loads, tagged, tmp, entry=None):
        n = npoll[0]; npoll[0] += 1
        a(f"L_poll{n}:")
        if psleep: a(f"s_sleep {psleep}")
        for ld in loads: a(ld)
        spend()
        if entry: a(entry + ":")
        a("s_waitcnt vmcnt(0)")
        for r in tagged: a(f"v_xor_b32 v{r}, s{sTG8}, v{r}")
        vor(tmp, tagged)
        a(f"v_cmp_ne_u32_sdwa vcc, v{tmp}, v{vZERO} src0_sel:BYTE_0 src1_sel:DWORD")
        a(f"s_cbranch_vccnz L_poll{n}")

    def poll_tag(loads, tmp, slack=0, retry=None):
        n = npoll[0]; npoll[0] += 1
        for t in range(len(loads)): a(f"s_mov_b64 s[{sOFF+2*t}:{sOFF+2*t+1}], -1")
        a(f"L_poll{n}:")
        for t, ld in enumerate(loads):
            a(f"s_mov_b64 exec, s[{sOFF+2*t}:{sOFF+2*t+1}]"); a(ld[0])
        a("s_mov_b64 exec, -1")
        spend()
        a("s_waitcnt vmcnt(0)")
        a(f"s_mov_b64 s[{sE}:{sE+1}], 0")
        for t, (_, rs) in enumerate(loads):
            m = f"s[{sOFF+2*t}:{sOFF+2*t+1}]"
            a(f"v_xor_b32 v{tmp}, s{sTAG}, v{rs[0]}"); a(f"v_xor_b32 v{tmp+1}, s{sTAG}, v{rs[1]}"); a(f"v_or_b32 v{tmp}, v{tmp}, v{tmp+1}")
            a(f"v_cmp_lt_u32 {m}, {(1 << slack) - 1}, v{tmp}")
            a(f"s_or_b64 s[{sE}:{sE+1}], s[{sE}:{sE+1}], {m}")
        if retry is None:
            a(f"s_cbranch_scc1 L_poll{n}")
        else:
            a(f"s_cbranch_scc1 L_pagain{n}")

            def again():
                a(f"L_pagain{n}:"); retry(); a(f"s_branch L_poll{n}")
            far.append(again)

    def put_tag(d, s):
        a(f"v_bfi_b32 v{d}, v{vFF}, s{sTG8}, v{s}")

    nst = [0]

    def mode_store(text):
        if not local:
            a(text + " sc1"); return
        n = nst[0]; nst[0] += 1
        a(f"s_cbranch_scc1 L_stfar{n}")
        a(text)
        a(f"L_stdone{n}:")

        def other():
            a(f"L_stfar{n}:"); a(text + " sc1"); a(f"s_branch L_stdone{n}")
        far.append(other)

    def emit_far():
        for f in list(far): f()
        far.clear()

    def only_wave(w, label):
        a(f"s_cmp_lg_u32 s{sW}, {w}"); a(f"s_cbranch_scc1 {label}")

    def selectors():
        t0, t1, t2 = 32, 33, 34
        a(f"v_and_b32 v{t0}, 8, v0"); a(f"v_mov_b32 v{t1}, 0x0100"); a(f"v_mov_b32 v{t2}, 0x0302")
        a(f"v_cmp_ne_u32 vcc, 0, v{t0}"); a(f"v_cndmask_b32 v{t1}, v{t1}, v{t2}, vcc")
        a(f"v_or_b32 v{t2}, 0x0c0c0000, v{t1}")
        a(f"v_lshlrev_b32 v{t1}, 16, v{t1}"); a(f"v_or_b32 v{t1}, 0x0c0c, v{t1}")
        a(f"v_and_b32 v{t0}, 1, v0"); a(f"v_cmp_ne_u32 vcc, 0, v{t0}"); a(f"v_cndmask_b32 v{t1}, v{t2}, v{t1}, vcc")
        a(f"v_bfe_u32 v{t0}, v0, 1, 2"); a(f"v_mov_b32 v{t2}, 0x0c0c0c0c")
        for r in range(4):
            a(f"v_cmp_eq_u32 vcc, {r}, v{t0}"); a(f"v_cndmask_b32 v{vSEL+r}, v{t2}, v{t1}, vcc")

    def tag_from_epoch():
        a(f"s_add_u32 s{sTG8}, s{sTAG}, 1"); a(f"s_and_b32 s{sTG8}, s{sTG8}, 0xff")
        a(f"s_lshr_b32 s{sTAG}, s{sTAG}, 8"); a(f"s_mul_i32 s{sTAG}, s{sTAG}, 0x9e3779b1")
        a(f"s_add_u32 s{sTAG}, s{sTAG}, 0x7f4a7c15"); a(f"s_lshl_b32 s{sTAG}, s{sTAG}, 8")

    def role():
        a(f"s_and_b32 s{sT1}, s{sH}, 7"); a(f"s_min_u32 s{sT2}, s{sT1}, 3"); a(f"s_mul_i32 s{sUA}, s{sT1}, 5"); a(f"s_add_u32 s{sUA}, s{sUA}, s{sT2}")
        a(f"s_cmp_lt_u32 s{sT1}, 3"); a(f"s_cselect_b32 s{sT2}, 6, 5")
        a(f"s_lshr_b32 s{sMEM}, s2, 3")
        a(f"s_sub_u32 s{sT1}, s{sMEM}, 8"); a(f"s_add_u32 s{sT3}, s{sT1}, s{sUA}")
        a(f"s_cmp_lt_u32 s{sT1}, s{sT2}"); a(f"s_cselect_b32 s{sROLE}, s{sT3}, 63")
        a(f"s_add_u32 s{sT3}, s{sMEM}, 64")
        a(f"s_cmp_lt_u32 s{sMEM}, 8"); a(f"s_cselect_b32 s{sROLE}, s{sT3}, s{sROLE}")
        if "role" in abl: a(f"s_mov_b32 s{sROLE}, 63")

    T, MM = 26, 30

    nlds = [0]

    def lds_wait(read, regs_, sleep=0):
        n = nlds[0]; nlds[0] += 1
        a(f"L_lds{n}:")
        a(read)
        a("s_waitcnt lgkmcnt(0)")
        rs = list(regs_)
        if len(rs) == 1: a(f"v_cmp_eq_u32 vcc, -1, v{rs[0]}")
        else:
            if len(rs) == 2: a(f"v_max_u32 v{vB}, v{rs[0]}, v{rs[1]}")
            else: a(f"v_max3_u32 v{vB}, v{rs[0]}, v{rs[1]}, v{rs[2]}"); a(f"v_max_u32 v{vB}, v{vB}, v{rs[3]}")
            a(f"v_cmp_eq_u32 vcc, -1, v{vB}")
        a(f"s_cbranch_vccnz L_ldsagain{n}")

        def again():
            a(f"L_ldsagain{n}:")
            if sleep: a(f"s_sleep {sleep}")
            spend(); a(f"s_branch L_lds{n}")
        far.append(again)

    a(f"{KNAME}:")
    a("s_cmp_ge_u32 s2, 256"); a("s_cbranch_scc1 L_end")
    if stamps: a(f"v_mov_b32 v{vSTAMP}, 0")
    stamp("start")
    a(f"s_load_dwordx16 s[8:23], s[0:1], 0")
    args2 = "s_load_dwordx8 s[24:31], s[0:1], 64"
    if not split_args: a(args2)
    a(f"s_and_b32 s{sH}, s2, 31"); a(f"s_lshr_b32 s{sSP}, s2, 5")
    a(f"v_lshrrev_b32 v{vT}, 6, v0"); a(f"v_and_b32 v{vL}, 63, v0")
    a(f"v_readfirstlane_b32 s{sW}, v{vT}")
    a(f"s_mov_b32 s{sBUD}, {budget}")
    a(f"s_lshl_b32 s{sIDX}, s{sH}, 3"); a(f"s_add_u32 s{sIDX}, s{sIDX}, s{sSP}")
    a(f"s_getreg_b32 s{sXCC}, hwreg(HW_REG_XCC_ID, 0, 3)")
    a(f"s_sub_u32 s{sW}, s{sW}, 1"); a("s_cbranch_scc0 L_stream")
    if hprio: a(f"s_setprio {hprio}")
    vXA, vXO, vQO = 22, 23, 3
    XA, XO = 28, 27
    a(f"v_lshlrev_b32 v{vXA}, 4, v0")
    a("v_lshrrev_b32 v24, 4, v0"); a("v_and_b32 v25, 15, v0")
    a(f"s_lshl_b32 s{sT1}, s{sSP}, 6"); a(f"v_add_u32 v24, s{sT1}, v24")
    a(f"v_lshl_add_u32 v{vXO}, v25, 2, v24"); a(f"v_lshlrev_b32 v{vXO}, 1, v{vXO}")
    a(f"v_lshlrev_b32 v{vQO}, 13, v24"); a(f"v_lshl_add_u32 v{vQO}, v25, 4, v{vQO}")
    a(f"s_lshl_b32 s{sT0}, s{sH}, 8"); a(f"s_mov_b32 s{sT1}, 0x8000")
    a("v_lshlrev_b32 v24, 3, v0"); a("v_mov_b32 v30, -1"); a("v_mov_b32 v31, -1")
    a("ds_write_b64 v24, v[30:31]")
    a("s_waitcnt lgkmcnt(0)")
    if bar0 == -1: a("s_barrier")
    stamp("args")
    mksrd(rX, pX, 1024)
    a(f"buffer_load_dwordx4 {q4(XA)}, v{vXA}, {srd(rX)}, 0 offen")
    a(f"buffer_load_ushort v{XO}, v{vXO}, {srd(rX)}, 0 offen")
    mksrd(rQ, pWQ, 0x400000)
    for j in range(16):
        a(f"buffer_load_dwordx4 {q4(KREG+4*j)}, v{vQO}, {srd(rQ)}, s{sT0} offen nt")
        if j < 15: a(f"s_add_u32 s{sT0}, s{sT0}, s{sT1}")
        if bar0 and j == (15 if bar0 is True else bar0): a("s_barrier")
    a("s_branch L_helper")

    a("L_stream:")
    if pfcode:
        a(f"s_cmp_lt_u32 s{sW}, 6"); a("s_cbranch_scc1 L_nocode")
        a(f"s_getpc_b64 s[{sE}:{sE+1}]")
        a("L_pc:")
        a(f"v_subrev_u32 v24, {7*64}, v0"); a("v_lshlrev_b32 v24, 7, v24"); a("v_min_u32 v24, L_last-L_pc, v24")
        a(f"global_load_dword v3, v24, s[{sE}:{sE+1}]")
        a("L_nocode:")
    a("v_subrev_u32 v0, 64, v0")
    a(f"v_lshlrev_b32 v{vKV}, 4, v0")
    a(f"s_lshl_b32 s{sT1}, s{sSP}, 1"); a(f"s_add_u32 s{sT1}, s{sT1}, s{sH}"); a(f"s_lshl_b32 s{sT1}, s{sT1}, 13")
    a(f"s_mov_b32 s{sT2}, 0x1e000"); a(f"s_movk_i32 s{sT3}, 0x2000")
    for j in range(16):
        a(f"s_and_b32 s{sOFF+j}, s{sT1}, s{sT2}")
        if j < 15: a(f"s_add_u32 s{sT1}, s{sT1}, s{sT3}")
    a(f"s_lshl_b32 s{sT0}, s{sH}, 23"); a(f"s_lshl_b32 s{sT1}, s{sSP}, 17"); a(f"s_add_u32 s{sT0}, s{sT0}, s{sT1}")
    a(f"s_add_u32 s{sT0}, s{sT0}, {(32768-4096)*256}")
    a("s_waitcnt lgkmcnt(0)")
    stamp("args")
    mksrd(rK, pK, 0x20000, sT0)
    if bar0: a("s_barrier")

    seq = [("k", j) for j in range(16)] + [("v", j) for j in range(16)]
    pos = {op: i for i, op in enumerate(seq)}
    issued, done = [0], [0]
    def vreg(j): return VREG + 4 * (j & 7)

    def issue_to(n):
        while issued[0] < min(n, len(seq)):
            kind, j = seq[issued[0]]
            if kind == "k": a.vmem(f"buffer_load_dwordx4 {q4(KREG+4*j)}, v{vKV}, {srd(rK)}, s{sOFF+j} offen nt", (kind, j))
            else: a.vmem(f"buffer_load_dwordx4 {q4(vreg(j))}, v{vKV}, {srd(rV)}, s{sOFF+j} offen nt", (kind, j))
            issued[0] += 1

    def advance(upto):
        while done[0] <= pos[upto]:
            a.wait_vm(seq[done[0]]); done[0] += 1
            issue_to(done[0] + W)
            tr(done[0] - 1)

    issue_to(W)
    if split_args: a(args2)
    mksrd(rV, pV, 0x20000, sT0); mksrd(rX, pX, 1024)
    selectors()
    role()
    vG2, vJ, vSH, vOW, vRO, vP8, vPF, vPJ = range(XREG, XREG + 8)
    a(f"v_bfe_u32 v{vG2}, v0, 4, 2"); a(f"v_and_b32 v{vJ}, 7, v0"); a(f"v_bfe_u32 v{vSH}, v0, 3, 1")
    a(f"v_and_b32 v{vT}, 15, v0"); a(f"v_lshlrev_b32 v{vT}, 4, v{vT}")
    a(f"v_lshrrev_b32 v{vOW}, 5, v0"); a(f"v_lshlrev_b32 v{vOW}, 9, v{vOW}"); a(f"v_lshl_add_u32 v{vOW}, v{vT}, 1, v{vOW}")
    a(f"v_and_b32 v32, 1, v{vG2}"); a(f"v_lshl_add_u32 v{vOW}, v32, 4, v{vOW}")
    a(f"v_and_b32 v{vP8}, 31, v0"); a(f"v_lshlrev_b32 v{vP8}, 3, v{vP8}")
    a("v_bfe_u32 v32, v0, 5, 1"); a(f"v_lshl_add_u32 v{vRO}, v32, 12, v{vP8}")
    a(f"s_lshl_b32 s{sT1}, s{sW}, 8"); a(f"s_add_u32 s{sT2}, s{sT1}, {L_OP}"); a(f"v_add_u32 v{vRO}, s{sT2}, v{vRO}")
    a(f"s_lshl_b32 s{sU}, s{sIDX}, 9"); a(f"s_add_u32 s{sU}, s{sU}, s{sT1}")
    a(f"v_mov_b32 v{vFF}, 0xff"); a(f"v_mov_b32 v{vZERO}, 0")
    a(f"v_lshl_add_u32 v{vPJ}, v{vG2}, 3, v{vJ}")
    advance(("k", 3))
    if split_args: a("s_waitcnt lgkmcnt(0)")
    a(f"s_load_dword s{sTAG}, s[{pWS}:{pWS+1}], {EPOCH}")
    mksrd(rWS, pWS, WS_SIZE)
    vAD64, vPA = XREG + 18, 44
    a(f"s_mov_b32 s{sE+1}, 0"); a("v_mov_b32 v33, 0"); a(f"s_mov_b64 s[{sPFM}:{sPFM+1}], -1"); a(f"s_mov_b64 s[{sPFM2}:{sPFM2+1}], -1")
    a(f"s_cmp_lt_u32 s{sROLE}, {NT2}"); a(f"s_cbranch_scc1 L_adT2")
    a(f"s_cmp_lt_u32 s{sROLE}, 64"); a(f"s_cbranch_scc1 L_adPF")
    a(f"v_lshl_add_u32 v32, v{vG2}, 4, v{vSH}")
    a(f"s_and_b32 s{sT1}, s{sH}, 7"); a(f"s_lshl_b32 s{sT1}, s{sT1}, 17")
    a(f"s_lshr_b32 s{sT2}, s{sW}, 1"); a(f"s_lshl_b32 s{sT2}, s{sT2}, 20"); a(f"s_add_u32 s{sT1}, s{sT1}, s{sT2}")
    a(f"s_and_b32 s{sT2}, s{sW}, 1"); a(f"s_lshl_b32 s{sT2}, s{sT2}, 16"); a(f"s_add_u32 s{sT1}, s{sT1}, s{sT2}")
    a(f"s_and_b32 s{sT2}, s{sROLE}, 7"); a(f"s_lshl_b32 s{sT2}, s{sT2}, 7"); a(f"s_add_u32 s{sT1}, s{sT1}, s{sT2}")
    a("v_lshlrev_b32 v32, 10, v32"); a(f"v_lshl_add_u32 v32, v{vJ}, 4, v32"); a(f"v_add_u32 v32, s{sT1}, v32")
    a(f"v_lshl_add_u64 {q2(vAD64)}, v[32:33], 0, s[{pWO}:{pWO+1}]")
    a(f"v_mov_b64 {q2(vPA)}, {q2(vAD64)}")
    a(f"s_mov_b32 s{sE}, 2048")
    a("s_branch L_addone")
    a("L_adT2:")
    a(f"s_lshl_b32 s{sT1}, s{sROLE}, 15"); a(f"v_add_u32 v32, s{sT1}, v{vKV}")
    a(f"v_lshl_add_u64 {q2(vAD64)}, v[32:33], 0, s[{pWD}:{pWD+1}]")
    a(f"s_mov_b32 s{sE}, 8192")
    if not pfdown: a(f"s_mov_b64 s[{sPFM}:{sPFM+1}], 1"); a(f"s_mov_b64 s[{sPFM2}:{sPFM2+1}], 1")
    a("v_and_b32 v32, 0x1f8, v0"); a("v_mul_u32_u24 v32, 2752, v32")
    a("v_and_b32 v34, 3, v0"); a("v_lshl_add_u32 v32, v34, 4, v32")
    a(f"s_lshl_b32 s{sT1}, s{sROLE}, 6"); a(f"v_add_u32 v32, s{sT1}, v32")
    a(f"v_lshl_add_u64 {q2(vPA)}, v[32:33], 0, s[{pWG}:{pWG+1}]")
    a("s_mov_b32 exec_lo, 0xf0f0f0f0"); a("s_mov_b32 exec_hi, 0xf0f0f0f0")
    a(f"v_lshl_add_u64 {q2(vPA)}, v[32:33], 0, s[{pWU}:{pWU+1}]")
    a("s_mov_b64 exec, -1")
    a("s_branch L_addone")
    a("L_adPF:")
    a(f"s_lshl_b32 s{sT1}, s{sH}, 17"); a(f"s_and_b32 s{sT2}, s{sSP}, 3"); a(f"s_lshl_b32 s{sT2}, s{sT2}, 15"); a(f"s_add_u32 s{sT1}, s{sT1}, s{sT2}")
    if nwo == 2: a(f"s_add_u32 s{sT1}, s{sT1}, 8192")
    a(f"v_add_u32 v32, s{sT1}, v{vKV}")
    a(f"v_lshl_add_u64 {q2(vAD64)}, v[32:33], 0, s[{pWO}:{pWO+1}]")
    a(f"s_cmp_ge_u32 s{sSP}, {4 if nwo else 8}"); a(f"s_cselect_b64 s[{sPFM}:{sPFM+1}], -1, 1")
    if nwo == 4:
        a(f"s_cselect_b64 s[{sPFM2}:{sPFM2+1}], -1, 1"); a(f"s_mov_b32 s{sE}, 8192")
    else:
        a(f"s_mov_b64 s[{sPFM2}:{sPFM2+1}], 1"); a(f"s_mov_b32 s{sE}, {16384 if nwo else 0}")
    a(f"s_and_b32 s{sT1}, s{sH}, 7"); a(f"s_cmp_lt_u32 s{sT1}, 3"); a(f"s_cselect_b32 s{sT0}, 6, 5")
    a(f"s_lshl_b32 s{sT1}, s{sT0}, 6"); a(f"s_sub_u32 s{sT1}, s{sT1}, 4")
    a("v_and_b32 v32, 3, v0"); a("v_lshlrev_b32 v32, 7, v32"); a(f"v_min_u32 v32, s{sT1}, v32")
    a("v_bfe_u32 v34, v0, 3, 2"); a(f"v_mul_u32_u24 v34, 2752, v34"); a("v_add_u32 v32, v32, v34")
    a(f"s_and_b32 s{sT2}, s{sMEM}, 15"); a(f"s_lshl_b32 s{sT2}, s{sT2}, 3"); a(f"s_add_u32 s{sT2}, s{sT2}, s{sW}")
    a(f"s_mul_i32 s{sT1}, s{sT2}, {4*2752}"); a(f"s_lshl_b32 s{sT3}, s{sUA}, 6"); a(f"s_add_u32 s{sT1}, s{sT1}, s{sT3}")
    a(f"v_add_u32 v32, s{sT1}, v32")
    a(f"v_lshl_add_u64 {q2(vPA)}, v[32:33], 0, s[{pWG}:{pWG+1}]")
    a("s_mov_b32 exec_lo, 0xf0f0f0f0"); a("s_mov_b32 exec_hi, 0")
    a(f"v_lshl_add_u64 {q2(vPA)}, v[32:33], 0, s[{pWU}:{pWU+1}]")
    if not pfdown:
        a("s_mov_b32 exec_lo, 0"); a("s_mov_b32 exec_hi, -1")
        a(f"s_lshl_b32 s{sT0}, s{sT0}, 1")
        a(f"s_mul_i32 s{sT2}, s{sT2}, s{sT0}"); a(f"s_lshl_b32 s{sT3}, s{sUA}, 8"); a(f"s_add_u32 s{sT2}, s{sT2}, s{sT3}")
        a(f"s_sub_u32 s{sT0}, s{sT0}, 1"); a("v_and_b32 v32, 15, v0"); a(f"v_min_u32 v32, s{sT0}, v32"); a(f"v_add_lshl_u32 v32, s{sT2}, v32, 7")
        a(f"v_lshl_add_u64 {q2(vPA)}, v[32:33], 0, s[{pWD}:{pWD+1}]")
    a("s_mov_b64 exec, -1")
    a("L_addone:")
    advance(("k", 8))
    a("s_waitcnt lgkmcnt(0)")
    tag_from_epoch()

    advance(("k", gpos))
    QP = 40
    lds_wait(f"ds_read_b128 {q4(QP)}, v{vT} offset:{L_QB}", range(QP, QP + 4))
    stamp("qgot")
    SJ = 24

    def dots(js):
        for i in range(4):
            for j in js:
                a(f"v_dot2_f32_bf16 v{SJ+j}, v{KREG+4*j+i}, v{QP+i}, {'0' if i == 0 else 'v%d' % (SJ+j)}")
    rest = list(range(gpos + 1, 16))
    per = -(-16 // (len(rest) + 1))
    nd = 0
    for step in [None] + rest:
        if step is not None: advance(("k", step))
        avail = (gpos if step is None else step) + 1
        upto = 16 if step == 15 or not rest else min(avail, nd + per)
        dots(range(nd, upto)); nd = upto
    for j in range(8):
        a(f"v_add_f32_dpp v{SJ+j}, v{SJ+j}, v{SJ+j} row_ror:8 row_mask:0xf bank_mask:0x3")
    for j in range(8):
        a(f"v_add_f32_dpp v{SJ+j}, v{SJ+j+8}, v{SJ+j+8} row_ror:8 row_mask:0xf bank_mask:0xc")
    advance(("v", 0))
    for j in range(4):
        a(f"v_add_f32_dpp v{SJ+j}, v{SJ+j}, v{SJ+j} row_half_mirror row_mask:0xf bank_mask:0x5")
    for j in range(4):
        a(f"v_add_f32_dpp v{SJ+j}, v{SJ+j+4}, v{SJ+j+4} row_half_mirror row_mask:0xf bank_mask:0xa")
    for j in range(4):
        a(f"v_add_f32_dpp v{SJ+j}, v{SJ+j}, v{SJ+j} quad_perm:[1,0,3,2] {DPPF}")
    a("s_mov_b32 vcc_lo, 0xaaaaaaaa"); a("s_mov_b32 vcc_hi, 0xaaaaaaaa")
    a(f"v_cndmask_b32 v{SJ}, v{SJ}, v{SJ+1}, vcc"); a(f"v_cndmask_b32 v{SJ+2}, v{SJ+2}, v{SJ+3}, vcc")
    a(f"v_add_f32_dpp v{SJ}, v{SJ}, v{SJ} quad_perm:[2,3,0,1] {DPPF}")
    a(f"v_add_f32_dpp v{SJ+2}, v{SJ+2}, v{SJ+2} quad_perm:[2,3,0,1] {DPPF}")
    a("s_mov_b32 vcc_lo, 0xcccccccc"); a("s_mov_b32 vcc_hi, 0xcccccccc")
    SC = SJ
    a(f"v_cndmask_b32 v{SC}, v{SJ}, v{SJ+2}, vcc")
    bf16r(SC, SC); a(f"v_mul_f32 v{SC}, {SCALE:#x}, v{SC}"); bf16r(SC, SC)
    a(f"v_mov_b32 v{T}, v{SC}"); wave_red("v_max_f32", T, sMW)
    if W <= 6: advance(("v", 1))
    a(f"v_subrev_f32 v{SC}, s{sMW}, v{SC}"); a(f"v_mul_f32 v{SC}, {LOG2E:#x}, v{SC}"); a(f"v_exp_f32 v{SC}, v{SC}")

    def split_p():
        bf16r(T, SC); a(f"v_sub_f32 v{T}, v{SC}, v{T}")
        a(f"v_cvt_pk_bf16_f32 v{vPK}, v{SC}, v{T}")
    split_p()
    a(f"v_mov_b32 v{T}, v{SC}"); wave_red("v_add_f32", T, sT2)
    a(f"v_mov_b32 v{T}, s{sMW}"); a(f"v_mov_b32 v{T+1}, s{sT2}")
    a(f"s_lshl_b32 s{sT1}, s{sW}, 3"); a(f"v_mov_b32 v{T+2}, s{sT1}")
    a("s_mov_b64 exec, 1"); a(f"ds_write_b64 v{T+2}, {q2(T)} offset:{L_ST}"); a("s_mov_b64 exec, -1")
    stamp("p")

    for j in range(16 - W):
        build_a(j)
        advance(("v", j))
        mfma(j, vreg(j), j == 0)
        if j == cpos:
            a(f"v_lshrrev_b32 v{T+2}, 1, v{T+2}")
            lds_wait(f"ds_read_b32 v32, v{T+2} offset:{L_F}", [32])
            a(f"v_mul_f32 v{SC}, v{SC}, v32")
            for r in range(4): a(f"v_mul_f32 v{vD+r}, v{vD+r}, v32")
            split_p()
    assert issued[0] == len(seq) and cpos < 16 - W
    stamp("cbar")

    def tload(j, ad=vAD64, last=7):
        a(f"global_load_dwordx4 {q4(TREG+4*j)}, {q2(ad)}, off")
        if j < last: a(f"v_lshl_add_u64 {q2(ad)}, {q2(ad)}, 0, s[{sE}:{sE+1}]")
    k = 0
    for j in range(16 - W, 16):
        build_a(j)
        a(f"s_waitcnt vmcnt({15 - j + k})")
        mfma(j, vreg(j), False)
        tr(16 + j)
        if j >= 12 and "pace" not in abl:
            if k == 2 and nwo == 2:
                a(f"s_cmp_eq_u32 s{sROLE}, 63"); a(f"s_cselect_b32 s{sT1}, 0xffffc000, 0"); a(f"s_cselect_b32 s{sT2}, -1, 0"); a(f"s_cselect_b32 s{sE}, 0, s{sE}")
                a(f"s_mov_b32 s{sT0}, s{sT1}"); a(f"s_mov_b32 s{sT1}, s{sT2}")
                a(f"v_lshl_add_u64 {q2(vAD64)}, {q2(vAD64)}, 0, s[{sT0}:{sT0+1}]")
            m = sPFM if k < 2 else sPFM2
            a(f"s_mov_b64 exec, s[{m}:{m+1}]")
            a(f"global_load_dwordx4 {q4(TREG+4*k)}, {q2(vAD64)}, off")
            a("s_mov_b64 exec, -1")
            if k < 3: a(f"v_lshl_add_u64 {q2(vAD64)}, {q2(vAD64)}, 0, s[{sE}:{sE+1}]")
            k += 1
    a("L_pvdone:")
    a(f"s_cmp_ge_u32 s{sW}, 2")
    a(f"ds_write_b128 v{vOW}, {q4(vD)} offset:{L_OP}")
    a("s_waitcnt lgkmcnt(0)"); a("s_barrier")
    stamp("obar")
    a("s_cbranch_scc1 L_nopub")
    if local: a(f"ds_read_b32 v40, v{vZERO} offset:{L_MODE}")

    def getmode():
        a(f"v_readfirstlane_b32 s{sMODE}, v40"); a(f"s_cmp_lg_u32 s{sMODE}, 0")
    red16(vRO, 24, mid=getmode if local else None)
    a("s_mov_b32 exec_hi, 0")
    put_tag(25, 25)
    mode_store(f"buffer_store_dwordx2 v[24:25], v{vP8}, {srd(rWS)}, s{sU} offen")
    a("s_mov_b32 exec_hi, -1")
    a("L_nopub:")
    a(f"s_cmp_ge_u32 s{sROLE}, 64"); a("s_cbranch_scc1 L_T1")
    a("s_barrier")
    a(f"s_cmp_lt_u32 s{sROLE}, {NT2}"); a("s_cbranch_scc1 L_T2")
    if pfffn:
        a(f"s_cmp_lt_u32 s{sMEM}, 16"); a("s_cbranch_scc1 L_exit")
        a(f"s_mov_b32 exec_hi, {0 if pfdown else 0xfff}")
        a(f"global_load_dword v3, {q2(vPA)}, off")
    a("s_branch L_exit")
    emit_far()

    a("L_helper:")
    if split_args: a(args2)
    selectors()
    role()
    if split_args: a("s_waitcnt lgkmcnt(0)")
    a(f"s_load_dword s{sTAG}, s[{pWS}:{pWS+1}], {EPOCH}")
    mksrd(rWS, pWS, WS_SIZE)
    a(f"v_mov_b32 v{vZERO}, 0")
    a(f"s_waitcnt vmcnt(16)")
    stamp("x")
    U = 32
    for i in range(4): unpack(U + 2 * i, U + 2 * i + 1, XA + i)
    S, M_, R_ = 40, 41, 42
    a(f"v_add_f32 v{S}, v{U}, v{U+1}")
    for i in range(2, 8): a(f"v_add_f32 v{S}, v{S}, v{U+i}")
    wave_red("v_add_f32", S, sT1)
    a(f"v_mov_b32 v{M_}, 0x3b000000"); a(f"v_mul_f32 v{M_}, s{sT1}, v{M_}")
    for i in range(8): a(f"v_sub_f32 v{U+i}, v{U+i}, v{M_}")
    a(f"v_mul_f32 v{S}, v{U}, v{U}")
    for i in range(1, 8): a(f"v_fmac_f32 v{S}, v{U+i}, v{U+i}")
    wave_red("v_add_f32", S, sT1)
    a(f"v_mov_b32 v{S}, 0x3b000000"); a(f"v_mul_f32 v{S}, s{sT1}, v{S}")
    bf16r(M_, M_); bf16r(S, S)
    a(f"v_add_f32 v{S}, {EPS:#x}, v{S}"); bf16r(S, S)
    a(f"v_sqrt_f32 v{S}, v{S}"); bf16r(S, S)
    a(f"v_rcp_f32 v{R_}, v{S}")
    a(f"v_lshlrev_b32 v{XO}, 16, v{XO}"); a(f"v_sub_f32 v{XO}, v{XO}, v{M_}"); bf16r(XO, XO)
    a(f"v_mul_f32 v{XO}, v{XO}, v{R_}")
    a(f"v_cvt_pk_bf16_f32 v{vPK}, v{XO}, 0")
    a(f"s_waitcnt lgkmcnt(0)")
    tag_from_epoch()
    for j in range(16):
        build_a(j)
        if j % 4 == 0: a(f"s_waitcnt vmcnt({12 - j})")
        mfma(j, KREG + 4 * j, j == 0)
    a("v_and_b32 v24, 15, v0"); a("v_bfe_u32 v25, v0, 4, 1"); a("v_lshrrev_b32 v26, 5, v0")
    a("v_lshlrev_b32 v24, 6, v24"); a("v_lshl_add_u32 v24, v25, 5, v24"); a("v_lshl_add_u32 v24, v26, 4, v24")
    a(f"s_lshl_b32 s{sT2}, s{sIDX}, 10"); a(f"s_add_u32 s{sT2}, s{sT2}, {MBQ}")
    a(f"s_xor_b32 s{sT3}, s{sTAG}, s{sXCC}")
    a(f"v_permlane32_swap_b32 v{vD}, v{vD+2}"); a(f"v_permlane32_swap_b32 v{vD+1}, v{vD+3}")
    a(f"v_mov_b32 v{vD+2}, v{vD+1}"); a(f"v_mov_b32 v{vD+1}, s{sTAG}"); a(f"v_mov_b32 v{vD+3}, s{sT3}")
    qstore = f"buffer_store_dwordx4 {q4(vD)}, v24, {srd(rWS)}, s{sT2} offen"
    a(qstore + ("" if local else " sc1"))
    stamp("qpub")
    a(f"s_lshl_b32 s{sT0}, s{sH}, 13"); a(f"s_add_u32 s{sT0}, s{sT0}, {MBQ}"); a(f"s_add_u32 s{sU}, s{sT0}, 4096")
    a(f"s_mov_b32 s{sMODE}, 0")
    a("s_waitcnt vmcnt(0)")
    GQ = KREG

    def write_through_once(tag):
        a(f"s_cmp_lg_u32 s{sMODE}, 0"); a(f"s_cbranch_scc1 L_wt{tag}")
        a(qstore + " sc1"); a(f"s_mov_b32 s{sMODE}, 1")
        a(f"L_wt{tag}:")
    poll_tag([(f"buffer_load_dwordx4 {q4(GQ+4*t)}, v{vXA}, {srd(rWS)}, s{sU if t >= 4 else sT0} offen offset:{(t&3)*1024} sc1", [GQ+4*t+1, GQ+4*t+3]) for t in range(8)],
             26, slack=3, retry=(lambda: write_through_once("a")) if local else None)
    if local:
        for t in range(8): a(f"v_xor_b32 v{GQ+4*t+3}, s{sT3}, v{GQ+4*t+3}")
        vor(26, [GQ + 4 * t + 3 for t in range(8)])
        a("v_cmp_ne_u32 vcc, 0, v26"); a("s_cbranch_vccz L_samedie")
        write_through_once("b")
        a("L_samedie:")
    for st in (16, 8, 4):
        for i in range(0, st, 2): a(f"v_add_f32 v{GQ+i}, v{GQ+i}, v{GQ+i+st}")
    a(f"v_cvt_pk_bf16_f32 v{GQ}, v{GQ}, v{GQ+2}"); a("v_lshlrev_b32 v25, 2, v0")
    a(f"v_min_u32 v{GQ}, -2, v{GQ}")
    a(f"ds_write_b32 v25, v{GQ} offset:{L_QB}")
    stamp("qgot")
    a("v_and_b32 v25, 3, v0"); a("v_bfe_u32 v26, v0, 2, 1"); a("v_lshlrev_b32 v25, 16, v25"); a("v_lshl_add_u32 v25, v26, 10, v25")
    a(f"s_and_b32 s{sT0}, s{sH}, 7"); a(f"s_lshl_b32 s{sT1}, s{sT0}, 13"); a(f"s_add_u32 s{sT1}, s{sT1}, {MBQ}")
    a(f"v_and_b32 v{T+2}, 7, v0"); a(f"v_lshlrev_b32 v{T+3}, 2, v{T+2}"); a(f"v_lshlrev_b32 v{T+2}, 3, v{T+2}")
    lds_wait(f"ds_read_b32 v{T}, v{vZERO} offset:{L_ST}", [T], sleep=hsleep)
    if local: a(f"buffer_load_dword v40, v25, {srd(rWS)}, s{sT1} offen offset:12 sc1")
    lds_wait(f"ds_read_b64 {q2(T)}, v{T+2} offset:{L_ST}", [T, T + 1], sleep=hsleep)
    a(f"v_mov_b32 v{MM}, v{T}"); red8("v_max_f32", MM)
    a(f"v_sub_f32 v{T}, v{T}, v{MM}"); a(f"v_mul_f32 v{T}, {LOG2E:#x}, v{T}"); a(f"v_exp_f32 v{T}, v{T}")
    a(f"ds_write_b32 v{T+3}, v{T} offset:{L_F}")
    a(f"v_mov_b32 v36, v{MM}"); a(f"v_mov_b32 v37, s{sTAG}"); a(f"v_mul_f32 v38, v{T}, v{T+1}"); a(f"v_mov_b32 v39, s{sTAG}")
    red8("v_add_f32", 38)
    a(f"s_lshl_b32 s{sT1}, s{sIDX}, 7"); a(f"s_add_u32 s{sT1}, s{sT1}, {MBM}")
    if local:
        a("s_waitcnt vmcnt(0)")
        a(f"v_cmp_ne_u32 vcc, s{sT3}, v40"); a("s_cmp_lg_u64 vcc, 0"); a(f"s_cselect_b32 s{sMODE}, 1, 0")
        a(f"v_mov_b32 v40, s{sMODE}"); a("v_mov_b32 v41, 0")
    a("s_mov_b64 exec, 1")
    if local: a(f"ds_write_b32 v41, v40 offset:{L_MODE}")
    mode_store(f"buffer_store_dwordx4 v[36:39], off, {srd(rWS)}, s{sT1}")
    a("s_mov_b64 exec, -1")
    a("s_waitcnt lgkmcnt(0)")
    stamp("p")
    a(f"s_cmp_lt_u32 s{sROLE}, 64"); a(f"s_mov_b32 s{sROLE}, 63"); a("s_cbranch_scc1 L_exit")
    a("v_bfe_u32 v24, v0, 3, 2"); a("v_and_b32 v25, 7, v0"); a("v_lshlrev_b32 v24, 13, v24"); a("v_lshl_add_u32 v24, v25, 7, v24")
    a(f"s_lshl_b32 s{sT0}, s{sT0}, 10"); a(f"s_add_u32 s{sT0}, s{sT0}, {MBM}")
    a("s_waitcnt vmcnt(0)")
    poll_tag([(f"buffer_load_dwordx4 v[32:35], v24, {srd(rWS)}, s{sT0} offen sc1", [33, 35])], 26)
    a("v_mov_b32 v36, v32"); red8("v_max_f32", 36)
    a("v_sub_f32 v32, v32, v36"); a(f"v_mul_f32 v32, {LOG2E:#x}, v32"); a("v_exp_f32 v32, v32")
    a("v_mul_f32 v34, v32, v34"); red8("v_add_f32", 34)
    a("v_rcp_f32 v34, v34"); a("v_and_b32 v24, 31, v0"); a("v_lshlrev_b32 v24, 2, v24")
    a("v_mul_f32 v32, v32, v34")
    a(f"ds_write_b32 v24, v32 offset:{L_C}")
    a("s_waitcnt lgkmcnt(0)")
    stamp("cbar")
    a("s_branch L_exit")
    emit_far()

    RAW, TMP = 40, 3

    def ror8_pair(v):
        for i in range(2): a(f"v_add_f32_dpp v{v+i}, v{v+i}, v{v+i} row_ror:8 {DPPF}")

    a("L_T1:")
    CW, vO, vPW, vYS = VREG, VREG + 4, VREG + 5, VREG + 6
    a(f"s_lshr_b32 s{sT1}, s{sW}, 1"); a(f"s_lshl_b32 s{sT0}, s{sT1}, 5"); a(f"v_lshl_add_u32 v{vO}, v{vSH}, 4, s{sT0}")
    a(f"ds_read_b128 {q4(CW)}, v{vO} offset:{L_C}")
    a(f"v_lshl_add_u64 {q2(vAD64)}, {q2(vAD64)}, 0, s[{sE}:{sE+1}]")
    a("s_barrier")
    for j in range(4, 8): tload(j)
    a(f"s_and_b32 s{sT2}, s{sH}, 7"); a(f"s_lshl_b32 s{sT1}, s{sT1}, 3"); a(f"s_add_u32 s{sT3}, s{sT2}, s{sT1}")
    a(f"s_lshl_b32 s{sT3}, s{sT3}, 12"); a(f"s_and_b32 s{sT1}, s{sW}, 1"); a(f"s_lshl_b32 s{sT1}, s{sT1}, 8"); a(f"s_add_u32 s{sT1}, s{sT1}, s{sT3}")
    a(f"v_lshlrev_b32 v{vO}, 11, v{vSH}"); a(f"v_lshl_add_u32 v{vO}, v{vPJ}, 3, v{vO}")
    a(f"v_and_b32 v{vPW}, 0xfffffeff, v{vOW}")
    a(f"v_add_u32 v{vRO}, {L_P16 - L_OP}, v{vRO}")
    a(f"v_bfe_u32 v{vYS}, v0, 5, 1"); a(f"v_lshl_add_u32 v{vYS}, v{vYS}, 14, v{vP8}")
    a(f"s_lshl_b32 s{sT2}, s{sT2}, 11"); a(f"s_and_b32 s{sT3}, s{sROLE}, 7"); a(f"s_lshl_b32 s{sT3}, s{sT3}, 8")
    a(f"s_add_u32 s{sT2}, s{sT2}, s{sT3}"); a(f"s_add_u32 s{sT2}, s{sT2}, {MB2}")
    a(f"s_mov_b32 s{sE}, 0x00ff00ff"); a(f"s_mov_b32 s{sE+1}, 0xff00ff00")
    a("s_waitcnt lgkmcnt(0)")
    stamp("ready")
    poll([f"buffer_load_dwordx2 {q2(RAW+2*t)}, v{vO}, {srd(rWS)}, s{sT1} offen offset:{t*SLOT} sc1" for t in range(4)], [RAW + 2 * t + 1 for t in range(4)], TMP)
    stamp("got")
    a(f"v_pk_mul_f32 {q2(RAW)}, {q2(RAW)}, {q2(CW)} op_sel_hi:[1,0]")
    a(f"v_pk_fma_f32 {q2(RAW)}, {q2(RAW+2)}, {q2(CW)}, {q2(RAW)} op_sel:[0,1,0]")
    a(f"v_pk_fma_f32 {q2(RAW)}, {q2(RAW+4)}, {q2(CW+2)}, {q2(RAW)} op_sel_hi:[1,0,1]")
    a(f"v_pk_fma_f32 {q2(RAW)}, {q2(RAW+6)}, {q2(CW+2)}, {q2(RAW)} op_sel:[0,1,0]")
    ror8_pair(RAW)
    a(f"v_cvt_pk_bf16_f32 v{vPK}, v{RAW}, v{RAW+1}")
    gemv(8, TREG)
    a(f"s_mov_b64 exec, s[{sE}:{sE+1}]")
    a(f"s_cmp_lg_u32 s{sW}, 0")
    a(f"ds_write_b128 v{vPW}, {q4(vD)} offset:{L_P16}")
    a("s_mov_b64 exec, -1")
    a("s_waitcnt lgkmcnt(0)"); a("s_barrier")
    a("s_cbranch_scc1 L_exit")
    red16(vRO, 24)
    if not copies: a("s_mov_b32 exec_hi, 0")
    put_tag(25, 25)
    a(f"buffer_store_dwordx2 v[24:25], v{vYS}, {srd(rWS)}, s{sT2} offen sc1")
    stamp("pub")
    a("s_branch L_exit")

    a("L_T2:")
    RD, BG, BD, ACC, AG = KREG + 32, VREG, KREG, KREG + 32, 24
    a(f"s_mov_b32 s{sE}, 2752")
    for j in range(8): tload(j, vPA)
    XP, vHA, vGU, vY2, vSR, vHW, vFA, vFO, vFH, vPW2 = range(XREG + 8, XREG + 18)
    XF = 12
    a(f"s_lshl_b32 s{sT1}, s{sW}, 7")
    a(f"v_lshlrev_b32 v{vHW}, 2, v{vPJ}")
    a(f"buffer_load_dword v{XP}, v{vHW}, {srd(rX)}, s{sT1} offen")
    a(f"v_add_u32 v{vHW}, s{sT1}, v{vHW}")
    a(f"s_cmp_ge_u32 s{sW}, 4"); a("s_cbranch_scc1 L_nodown")
    mksrd(rT, pWD, 1376 * 1024)
    a(f"v_lshl_add_u32 v30, v{vG2}, 11, v{vT}")
    a(f"s_lshl_b32 s{sT3}, s{sROLE}, 15"); a(f"s_lshl_b32 s{sU}, s{sW}, 8"); a(f"s_add_u32 s{sT3}, s{sT3}, s{sU}")
    for jj in range(4):
        for hi in range(2):
            a(f"buffer_load_dwordx4 {q4(RD+4*(jj+4*hi))}, v30, {srd(rT)}, s{sT3} offen offset:{hi*1024}")
        if jj < 3: a(f"s_add_u32 s{sT3}, s{sT3}, 8192")
    a("L_nodown:")
    a(f"v_lshlrev_b32 v{vHA}, 3, v{vPJ}"); a(f"v_lshl_add_u32 v{vHA}, v{vSH}, 13, v{vHA}")
    a(f"s_lshl_b32 s{sT0}, s{sW}, 8"); a(f"s_add_u32 s{sT0}, s{sT0}, {MB2}")
    if copies:
        a(f"s_lshr_b32 s{sT1}, s{sXCC}, 2"); a(f"s_lshl_b32 s{sT1}, s{sT1}, 14"); a(f"s_add_u32 s{sT0}, s{sT0}, s{sT1}")
    a(f"s_add_u32 s{sT1}, s{sT0}, 4096")
    a(f"s_mul_i32 s{sT2}, s{sW}, {2*PROW}"); a(f"s_add_u32 s{sT2}, s{sT2}, {L_P16}")
    a(f"v_mul_u32_u24 v{vPW2}, {PROW}, v{vSH}"); a(f"v_add_u32 v{vPW2}, s{sT2}, v{vPW2}")
    a("v_bfe_u32 v30, v0, 1, 1"); a(f"v_lshl_add_u32 v{vPW2}, v30, 4, v{vPW2}")
    a("v_bfe_u32 v30, v0, 2, 1"); a(f"v_lshl_add_u32 v{vPW2}, v30, 3, v{vPW2}")
    a("v_and_b32 v30, 1, v0"); a(f"v_lshl_add_u32 v{vPW2}, v30, 2, v{vPW2}")
    a(f"v_and_b32 v30, 1, v{vG2}"); a("v_mul_u32_u24 v30, 320, v30"); a(f"v_add_u32 v{vPW2}, v30, v{vPW2}")
    a("v_bfe_u32 v30, v0, 2, 2"); a(f"v_mul_u32_u24 v{vGU}, {4*PROW}, v30"); a(f"v_lshl_add_u32 v{vGU}, v{vG2}, 6, v{vGU}")
    a(f"v_and_b32 v31, 3, v0"); a(f"v_lshl_add_u32 v{vGU}, v31, 4, v{vGU}")
    a(f"v_mul_u32_u24 v{vSR}, {PROW // 16}, v{vT}"); a(f"v_add_u32 v{vSR}, {L_P16}, v{vSR}")
    a(f"v_lshlrev_b32 v{vY2}, 1, v{vT}"); a(f"v_lshl_add_u32 v{vY2}, v{vG2}, 3, v{vY2}")
    a(f"s_lshl_b32 s{sT2}, s{sROLE}, 11"); a(f"s_lshl_b32 s{sT3}, s{sW}, 9"); a(f"s_add_u32 s{sT2}, s{sT2}, s{sT3}"); a(f"s_add_u32 s{sT2}, s{sT2}, {MB3}")
    a(f"v_lshrrev_b32 v{vFA}, 2, v{vL}"); a(f"v_lshlrev_b32 v{vFA}, 11, v{vFA}"); a(f"v_lshl_add_u32 v{vFA}, v31, 4, v{vFA}")
    a(f"v_lshl_add_u32 v{vFO}, v31, 2, v{vG2}"); a(f"s_lshl_b32 s{sT3}, s{sROLE}, 4"); a(f"v_add_lshl_u32 v{vFO}, s{sT3}, v{vFO}, 1")
    sF0, sLO, sHI, sNL = 60, 64, 65, 66
    a(f"s_lshl_b32 s{sF0}, s{sROLE}, 6"); a(f"s_add_u32 s{sF0}, s{sF0}, {MB3}"); a(f"s_add_u32 s{sF0+1}, s{sF0}, {16*2048}"); a(f"s_add_u32 s{sF0+2}, s{sF0}, {32*2048}")
    mksrd(rO, pOUT, 1024)
    a(f"s_mov_b32 s{sLO}, 0x05040100"); a(f"s_mov_b32 s{sHI}, 0x07060302")
    a(f"s_mov_b32 s{sNL}, {LOG2E ^ 0x80000000:#x}"); a(f"s_mov_b32 s{sNL+1}, {LOG2E ^ 0x80000000:#x}")
    a(f"s_mov_b32 s{sE}, 0xffff00ff"); a(f"s_mov_b32 s{sE+1}, 0x0000ff00")
    for r in range(4): a(f"v_mov_b32 v{vA+r}, 0x3f803f80")
    for r in range(16): a(f"v_mov_b32 v{AG+r}, 0")

    def transpose(dst, src):
        for q in range(4):
            for r in range(4):
                a(f"v_perm_b32 v{dst+8*q+r}, v{src+4*(2*r+1)+q}, v{src+4*(2*r)+q}, s{sLO}")
                a(f"v_perm_b32 v{dst+8*q+4+r}, v{src+4*(2*r+1)+q}, v{src+4*(2*r)+q}, s{sHI}")
    hloads = [f"buffer_load_dwordx2 {q2(RAW+2*t)}, v{vHA}, {srd(rWS)}, s{sT1 if t >= 2 else sT0} offen offset:{(t&1)*2048} sc1" for t in range(4)]
    a(f"s_cmp_ge_u32 s{sW}, 4"); a("s_cbranch_scc1 L_tr4")
    a("s_waitcnt vmcnt(8)")
    transpose(BG, TREG)
    a("s_waitcnt vmcnt(0)")
    if early_poll:
        for ld in hloads: a(ld)
    transpose(BD, RD)
    a("s_branch L_trdone")
    a("L_tr4:")
    a("s_waitcnt vmcnt(0)")
    if early_poll:
        for ld in hloads: a(ld)
    transpose(BG, TREG)
    a("L_trdone:")
    unpack(XF, XF + 1, XP)
    stamp("ready")
    if early_poll: a("s_branch L_hwait")
    poll(hloads, [RAW + 2 * t + 1 for t in range(4)], TMP, entry="L_hwait" if early_poll else None)
    stamp("got")
    pkadd(RAW, RAW, RAW + 2); pkadd(RAW + 4, RAW + 4, RAW + 6); pkadd(RAW, RAW, RAW + 4)
    a(f"s_cmp_ge_u32 s{sW}, 4")
    ror8_pair(RAW)
    a(f"v_cvt_pk_bf16_f32 v{RAW}, v{RAW}, v{RAW+1}")
    unpack(RAW, RAW + 1, RAW)
    pkadd(RAW, RAW, XF)
    a(f"v_cvt_pk_bf16_f32 v{vPK}, v{RAW}, v{RAW+1}")
    a(f"ds_write_b32 v{vHW}, v{vPK} offset:{L_H}")
    for r in range(4): a(f"v_mov_b32_dpp v{vA+r}, v{vPK} row_newbcast:{r} row_mask:0xf bank_mask:0x1")
    for r in range(4): a(f"v_mov_b32_dpp v{vA+r}, v{vPK} row_newbcast:{4+r} row_mask:0xf bank_mask:0x4")
    mm(vD, vA, vA, True)
    for i in range(8): mm(ACC + 4 * i, vA, BG + 4 * i, True)
    a(f"s_mov_b64 exec, s[{sE}:{sE+1}]")
    a(f"ds_write_b32 v{vPW2}, v{vD} offset:256")
    for k in range(4): a(f"ds_write2_b32 v{vPW2}, v{ACC+8*k}, v{ACC+8*k+4} offset0:{16*k} offset1:{16*k+8}")
    a("s_mov_b64 exec, -1")
    a("s_waitcnt lgkmcnt(0)"); a("s_barrier")
    a("s_cbranch_scc1 L_epoch")
    GU, CS, ST = VREG, VREG + 16, 40
    a(f"ds_read2_b32 {q2(ST)}, v{vSR} offset0:64 offset1:66")
    for t in range(4): a(f"ds_read_b128 {q4(CS+4*t)}, v{vGU} offset:{L_P16 + PROW*t + 320}")
    for t in range(4): a(f"ds_read_b128 {q4(GU+4*t)}, v{vGU} offset:{L_P16 + PROW*t}")
    a(f"ds_read_u16 v{vFH}, v{vFO} offset:{L_H}")
    a("s_waitcnt lgkmcnt(9)")
    steps = ("quad_perm:[1,0,3,2]", "quad_perm:[2,3,0,1]", "row_half_mirror", "row_mirror")

    def st_step(k):
        for i in range(2): a(f"v_add_f32_dpp v{ST+i}, v{ST+i}, v{ST+i} {steps[k]} {DPPF}")
    st_step(0); a("s_waitcnt lgkmcnt(7)"); pkadd(CS, CS, CS + 4)
    st_step(1); pkadd(CS + 2, CS + 2, CS + 6); a("s_waitcnt lgkmcnt(5)")
    st_step(2); pkadd(CS + 8, CS + 8, CS + 12)
    st_step(3); pkadd(CS + 10, CS + 10, CS + 14)
    MU, VAR = ST + 2, ST
    a(f"v_mul_f32 v{MU}, 0x3b000000, v{ST+1}"); a(f"v_mul_f32 v{VAR}, 0x3b000000, v{ST}")
    pkadd(CS, CS, CS + 8); pkadd(CS + 2, CS + 2, CS + 10)
    a(f"v_fma_f32 v{VAR}, -v{MU}, v{MU}, v{VAR}"); a(f"v_max_f32 v{VAR}, 0, v{VAR}")
    a(f"v_cvt_pk_bf16_f32 v{VAR}, v{VAR}, v{MU}")
    a("s_waitcnt lgkmcnt(3)")
    pkadd(GU, GU, GU + 4); pkadd(GU + 2, GU + 2, GU + 6)
    unpack(VAR, MU, VAR)
    a(f"v_add_f32 v{VAR}, {EPS:#x}, v{VAR}"); bf16r(VAR, VAR)
    a(f"v_sqrt_f32 v{VAR}, v{VAR}")
    a("s_waitcnt lgkmcnt(1)")
    pkadd(GU + 8, GU + 8, GU + 12); pkadd(GU + 10, GU + 10, GU + 14)
    for i in (0, 2): a(f"v_pk_fma_f32 {q2(GU+i)}, {q2(CS+i)}, {q2(MU)}, {q2(GU+i)} op_sel_hi:[1,0,1] neg_lo:[0,1,0] neg_hi:[0,1,0]")
    pkadd(GU, GU, GU + 8); pkadd(GU + 2, GU + 2, GU + 10)
    bf16r(VAR, VAR)
    for i in range(4): a(f"v_add_f32_dpp v{GU+i}, v{GU+i}, v{GU+i} row_ror:4 {DPPF}")
    a(f"v_rcp_f32 v{VAR}, v{VAR}")
    for i in range(4): a(f"v_add_f32_dpp v{GU+i}, v{GU+i}, v{GU+i} row_ror:8 {DPPF}")
    for i in (0, 2): a(f"v_pk_mul_f32 {q2(GU+i)}, {q2(GU+i)}, {q2(VAR)} op_sel_hi:[1,0]")
    a(f"v_cvt_pk_bf16_f32 v{GU}, v{GU}, v{GU+1}")
    unpack(GU, GU + 1, GU)
    a(f"v_pk_mul_f32 {q2(GU+4)}, {q2(GU)}, s[{sNL}:{sNL+1}]")
    for i in range(2): a(f"v_exp_f32 v{GU+4+i}, v{GU+4+i}")
    a(f"v_cvt_pk_bf16_f32 v{GU+2}, v{GU+2}, v{GU+3}")
    a(f"v_pk_add_f32 {q2(GU+4)}, {q2(GU+4)}, 1.0 op_sel_hi:[1,0]")
    for i in range(2): a(f"v_rcp_f32 v{GU+4+i}, v{GU+4+i}")
    unpack(GU + 2, GU + 3, GU + 2)
    a(f"v_pk_mul_f32 {q2(GU)}, {q2(GU)}, {q2(GU+4)}")
    a(f"v_cvt_pk_bf16_f32 v{GU}, v{GU}, v{GU+1}")
    unpack(GU, GU + 1, GU)
    a(f"v_pk_mul_f32 {q2(GU)}, {q2(GU)}, {q2(GU+2)}")
    a(f"v_cvt_pk_bf16_f32 v{vPK}, v{GU}, v{GU+1}")
    DE, DO = vD, vA + 4

    def ag(G, rs=range(4)):
        for r in rs: a(f"v_mov_b32_dpp v{AG+4*G+r}, v{vPK} row_newbcast:{r} row_mask:0xf bank_mask:{1 << G:#x}")
    ag(0); ag(1, (0, 1))
    for G in range(4):
        mm(DE, AG + 4 * G, BD + 8 * G, G == 0)
        if G < 3: ag(G + 1, (2, 3))
        mm(DO, AG + 4 * G, BD + 8 * G + 4, G == 0)
        if G < 2: ag(G + 2, (0, 1))
    FR = ACC
    a(f"s_lshl_b32 s{sT3}, s{sW}, 5"); a(f"s_add_u32 s{sT3}, s{sT3}, s{sROLE}"); a(f"s_cmp_ge_u32 s{sT3}, 32")
    put_tag(DE + 1, DO)
    a(f"buffer_store_dwordx2 {q2(DE)}, v{vY2}, {srd(rWS)}, s{sT2} offen sc1")
    stamp("pub")
    a("s_cbranch_scc1 L_exit")
    a(f"v_mov_b32 v{FR+8}, 0"); a(f"v_mov_b32 v{FR+10}, 0")
    a("s_waitcnt lgkmcnt(0)")
    a(f"v_lshlrev_b32 v{vFH}, 16, v{vFH}")
    if fwait: a("s_waitcnt vmcnt(0)")
    poll([f"buffer_load_dwordx4 {q4(FR)}, v{vFA}, {srd(rWS)}, s{sF0} offen sc1",
          f"buffer_load_dwordx4 {q4(FR+4)}, v{vFA}, {srd(rWS)}, s{sF0+1} offen sc1",
          f"v_mov_b32 v{FR+9}, s{sTG8}", f"v_mov_b32 v{FR+11}, s{sTG8}",
          "s_mov_b32 exec_hi, 0xfff",
          f"buffer_load_dwordx4 {q4(FR+8)}, v{vFA}, {srd(rWS)}, s{sF0+2} offen sc1",
          "s_mov_b32 exec_hi, -1"], [FR + 2 * t + 1 for t in range(6)], TMP)
    stamp("fgot")
    for i in (0, 2): pkadd(FR + i, FR + i, FR + 4 + i)
    for i in (0, 2): pkadd(FR + i, FR + i, FR + 8 + i)
    a(f"v_permlane32_swap_b32 v{FR}, v{FR+2}"); a(f"v_permlane32_swap_b32 v{FR+1}, v{FR+3}")
    pkadd(FR, FR, FR + 2)
    a(f"v_permlane16_swap_b32 v{FR}, v{FR+1}")
    a(f"v_add_f32 v{FR}, v{FR}, v{FR+1}")
    for m in ("row_ror:4", "row_ror:8"): a(f"v_add_f32_dpp v{FR}, v{FR}, v{FR} {m} {DPPF}")
    a("s_mov_b32 exec_lo, 0x000f000f"); a("s_mov_b32 exec_hi, 0x000f000f")
    bf16r(FR, FR); a(f"v_add_f32 v{FR}, v{FR}, v{vFH}")
    a(f"v_cvt_pk_bf16_f32 v{FR}, v{FR}, v{FR}")
    a(f"buffer_store_short v{FR}, v{vFO}, {srd(rO)}, 0 offen")
    if amp:
        a(f"s_memrealtime s[{sE}:{sE+1}]"); a("s_waitcnt lgkmcnt(0)")
        a(f"s_sub_u32 s{sT0}, s{sST+2}, s{sST}")
        if len(amp) > 2 and amp[2] == "inv": a(f"s_sub_u32 s{sT0}, 2500, s{sT0}")
        a(f"s_mul_i32 s{sT0}, s{sT0}, {amp[1]}")
        a(f"s_min_u32 s{sT0}, s{sT0}, 200000"); a(f"s_mov_b32 s{sT1}, s{sE}")
        a("L_amp:"); a(f"s_memrealtime s[{sE}:{sE+1}]"); a("s_waitcnt lgkmcnt(0)")
        a(f"s_sub_u32 s{sT2}, s{sE}, s{sT1}"); a(f"s_cmp_lt_u32 s{sT2}, s{sT0}"); a("s_cbranch_scc1 L_amp")
    a("L_exit:")
    if stamps:
        a("s_mov_b64 exec, -1")
        stamp("exit")
        a(f"v_writelane_b32 v{vSTAMP}, s{sROLE}, 14")
        a(f"s_mul_i32 s{sT0}, s2, {NWAVE}"); a(f"s_add_u32 s{sT0}, s{sT0}, s{sW}"); a(f"s_add_u32 s{sT0}, s{sT0}, 1")
        a(f"s_lshl_b32 s{sT0}, s{sT0}, {8 if trace else 6}"); a(f"s_add_u32 s{sT0}, s{sT0}, {STAMP}")
        a(f"v_lshlrev_b32 v{vSTAMP+1}, 2, v{vL}")
        if not trace: a("s_mov_b64 exec, 0xffff")
        a(f"buffer_store_dword v{vSTAMP}, v{vSTAMP+1}, {srd(rWS)}, s{sT0} offen")
    a("L_end:")
    a("s_endpgm")
    a("L_epoch:")
    a(f"s_lshl_b32 s{sT0}, s{sROLE}, 3"); a(f"s_add_u32 s{sT0}, s{sT0}, s{sW}"); a(f"s_cmp_lg_u32 s{sT0}, 4"); a("s_cbranch_scc1 L_exit")
    a(f"s_mov_b32 s{sT0}, {EPOCH}"); a(f"s_or_b32 s{sT1}, s{sTAG}, s{sTG8}"); a(f"v_mov_b32 v3, s{sT1}"); a("s_mov_b64 exec, 1")
    a(f"buffer_store_dword v3, off, {srd(rWS)}, s{sT0} sc1")
    a("L_last:")
    a("s_branch L_exit")
    assert not far

    out = HEADER + f"; @launch grid=(256,1,1) block=({64*NWAVE},1,1) lds={L_END}\n"
    out += f'.amdgcn_target "amdgcn-amd-amdhsa--gfx950"\n.text\n.globl {KNAME}\n.p2align 8\n.type {KNAME},@function\n'
    out += a.render()
    out += f'''.section .rodata,"a"
.p2align 6
.amdhsa_kernel {KNAME}
  .amdhsa_next_free_vgpr {NV}
  .amdhsa_next_free_sgpr 98
  .amdhsa_accum_offset {NV}
  .amdhsa_group_segment_fixed_size 0
  .amdhsa_kernarg_size 96
  .amdhsa_user_sgpr_count 2
  .amdhsa_user_sgpr_kernarg_segment_ptr 1
  .amdhsa_system_sgpr_workgroup_id_x 1
  .amdhsa_float_denorm_mode_32 3
.end_amdhsa_kernel
'''
    return out


if __name__ == "__main__":
    kw = {}
    for arg in sys.argv[2:]:
        k, v = arg.split("=")
        kw[k] = eval(v)
    open(sys.argv[1], "w").write(gen(**kw))
```

```python
import sys
from asmlib import Asm

KNAME = "sequential_preLN__sliding_block_cached__swiglu_ffn__decode_kernel"
HEADER = open("sequential_preLN__sliding_block_cached__swiglu_ffn__decode.s.ref").read().split("; Override launch")[0]

LOG2E = 0x3FB8AA3B
SCALE = 0x3DB504F3
EPS = 0x3727C5AC

SLOT = 512
MB1 = 0
MB2 = 256 * SLOT
MB3 = MB2 + 2 * 8 * 2048
MBQ = MB2 + 256 * 512
MBM = MBQ + 256 * 1024
EPOCH = MBM + 256 * 128
STAMP = 1 << 20
WS_SIZE = 2 << 20
PROW = 608
L_QB, L_ST, L_F, L_MODE, L_C, L_H, L_OP, L_P16 = 0, 256, 320, 352, 384, 512, 2048, 2048 + 8192
L_END = L_P16 + 16 * PROW

NT2 = 43
NWAVE = 9
DPPF = "row_mask:0xf bank_mask:0xf"
STAMPS = ["start", "args", "x", "qpub", "qgot", "p", "cbar", "obar", "ready", "got", "pub", "fgot", "exit"]

sH, sSP, sW, sTAG, sBUD = 3, 4, 5, 6, 7
pX, pK, pV, pWQ, pWO, pWG, pWU, pWD, pOUT, pDBG, pWS = 8, 10, 12, 14, 16, 20, 22, 24, 26, 28, 30
sMW, sXT = 18, 19
rK, rV, rQ, rX, rWS, rO, rT = 32, 36, 40, 44, 48, 52, 56
sOFF = 60
sT0, sT1, sT2, sT3 = 76, 77, 78, 79
sROLE, sIDX = 80, 81
sE = 82
sXCC, sU = 84, 85
sST = 86
sUA, sMEM = 90, 91
sPFM, sPFM2 = 92, 96
sTG8, sMODE = 94, 95
vL, vKV = 1, 2
vSEL, vA, vD, vPK, vB = 4, 8, 16, 20, 21
vT = 22
KREG, VREG, XREG = 48, 112, 144
TREG = KREG
vFF, vZERO = 164, 165
vSTAMP = 166
NV = 168


def q4(r): return f"v[{r}:{r+3}]"
def q2(r): return f"v[{r}:{r+1}]"
def srd(r): return f"s[{r}:{r+3}]"


def gen(W=4, stamps=False, budget=1 << 18, gpos=12, cpos=8, local=True, psleep=0, amp=None, only=None,
        abl=(), hprio=1, bar0=True, pfffn=True, pfcode=True, copies=True, fwait=True, trace=False, nwo=2, pfdown=True, split_args=True,
        early_poll=True, hsleep=2, sync=()):
    assert 4 <= W <= 7 and bar0
    a = Asm()
    far = []

    def stamp(name):
        i = STAMPS.index(name)
        if stamps:
            if only and name not in only and name not in ("start", "exit"): return
            a(f"s_memrealtime s[{sST}:{sST+1}]"); a("s_waitcnt lgkmcnt(0)"); a(f"v_writelane_b32 v{vSTAMP}, s{sST}, {i}")
        elif amp and name == "start": a(f"s_memrealtime s[{sST}:{sST+1}]")
        elif amp and name == amp[0]: a(f"s_memrealtime s[{sST+2}:{sST+3}]\ns_waitcnt lgkmcnt(0)")

    def diag_store():
        only_wave(2, "L_nodiag")
        a(f"s_lshl_b32 s{sT1}, s2, 2"); a(f"s_add_u32 s{sT1}, s{sT1}, {STAMP}"); a(f"v_mov_b32 v46, s{sST + (0 if amp[0] == 'start' else 2)}"); a("s_mov_b64 exec, 1")
        a(f"buffer_store_dword v46, off, {srd(rWS)}, s{sT1} sc1"); a("s_mov_b64 exec, -1")
        a("L_nodiag:")

    def diag_stat():
        a(f"s_mov_b32 s{sT0}, 0"); a(f"s_cmp_lg_u32 s{sROLE}, 0"); a("s_cbranch_scc1 L_dodelay")
        a("s_mov_b64 exec, -1"); a(f"s_mov_b32 s{sT1}, {STAMP}"); a(f"v_lshlrev_b32 v24, 2, v{vL}")
        for t in range(4): a(f"buffer_load_dword v{28+t}, v24, {srd(rWS)}, s{sT1} offen offset:{256*t} sc1")
        a("s_waitcnt vmcnt(0)")
        for t in range(4): a(f"v_subrev_u32 v{28+t}, s{sST}, v{28+t}"); a(f"v_add_u32 v{28+t}, 0x10000, v{28+t}")
        a("v_min3_u32 v32, v28, v29, v30"); a("v_min_u32 v32, v32, v31"); wave_red("v_min_u32", 32, sT2)
        for t in range(4): a(f"v_subrev_u32 v{28+t}, s{sT2}, v{28+t}")
        kind, par = amp[2], amp[3]
        if kind == "range":
            a("v_max3_u32 v32, v28, v29, v30"); a("v_max_u32 v32, v32, v31"); wave_red("v_max_u32", 32, sT0)
        elif kind == "mean":
            a("v_add3_u32 v32, v28, v29, v30"); a("v_add_u32 v32, v32, v31"); wave_red("v_add_u32", 32, sT0); a(f"s_lshr_b32 s{sT0}, s{sT0}, 8")
        elif kind == "count":
            for t in range(4):
                a(f"v_cmp_lt_u32 vcc, {par}, v{28+t}"); a(f"s_bcnt1_i32_b64 s{sT1}, vcc"); a(f"s_add_u32 s{sT0}, s{sT0}, s{sT1}")
        elif kind == "groups":
            a("v_max3_u32 v32, v28, v29, v30"); a("v_max_u32 v32, v32, v31"); a(f"v_cmp_lt_u32 vcc, {par}, v32")
            a(f"s_or_b32 s{sT1}, vcc_lo, vcc_hi"); a(f"s_lshr_b32 s{sT2}, s{sT1}, 16"); a(f"s_or_b32 s{sT1}, s{sT1}, s{sT2}")
            a(f"s_lshr_b32 s{sT2}, s{sT1}, 8"); a(f"s_or_b32 s{sT1}, s{sT1}, s{sT2}"); a(f"s_and_b32 s{sT1}, s{sT1}, 0xff"); a(f"s_bcnt1_i32_b32 s{sT0}, s{sT1}")
        elif kind == "quarter":
            wave_red("v_add_u32", 28 + par, sT0); a(f"s_lshr_b32 s{sT0}, s{sT0}, 6")
        a("L_dodelay:")

    def tr(i):
        if trace:
            a(f"s_memrealtime s[{sST}:{sST+1}]"); a("s_waitcnt lgkmcnt(0)"); a(f"v_writelane_b32 v{vSTAMP}, s{sST}, {16+i}")

    def mksrd(r, p, size, add=None):
        if add is None:
            a(f"s_mov_b32 s{r}, s{p}"); a(f"s_mov_b32 s{r+1}, s{p+1}")
        else:
            a(f"s_add_u32 s{r}, s{p}, s{add}"); a(f"s_addc_u32 s{r+1}, s{p+1}, 0")
        a(f"s_mov_b32 s{r+2}, {size}"); a(f"s_mov_b32 s{r+3}, 0x20000")

    def bf16r(d, s):
        a(f"v_cvt_pk_bf16_f32 v{d}, v{s}, v{s}"); a(f"v_lshlrev_b32 v{d}, 16, v{d}")

    def unpack(lo, hi, s):
        a(f"v_and_b32 v{hi}, 0xffff0000, v{s}"); a(f"v_lshlrev_b32 v{lo}, 16, v{s}")

    def pkadd(d, x, y): a(f"v_pk_add_f32 {q2(d)}, {q2(x)}, {q2(y)}")

    def wave_red(op, v, s):
        for m in ("quad_perm:[1,0,3,2]", "quad_perm:[2,3,0,1]", "row_half_mirror", "row_mirror"):
            a(f"{op}_dpp v{v}, v{v}, v{v} {m} {DPPF}")
        a(f"{op}_dpp v{v}, v{v}, v{v} row_bcast:15 row_mask:0xa bank_mask:0xf")
        a(f"{op}_dpp v{v}, v{v}, v{v} row_bcast:31 row_mask:0xc bank_mask:0xf")
        a(f"v_readlane_b32 s{s}, v{v}, 63")

    def red8(op, *vs):
        for m in ("quad_perm:[1,0,3,2]", "quad_perm:[2,3,0,1]", "row_half_mirror"):
            for v in vs: a(f"{op}_dpp v{v}, v{v}, v{v} {m} {DPPF}")

    def build_a(j):
        A = vA + 4 * (j & 1)
        a(f"v_mov_b32_dpp v{vB}, v{vPK} row_newbcast:{j} {DPPF}")
        for r in range(4):
            a(f"v_perm_b32 v{A+r}, v{vB}, v{vB}, v{vSEL+r}")

    def mm(d, x, y, first):
        a(f"v_mfma_f32_16x16x32_bf16 {q4(d)}, {q4(x)}, {q4(y)}, {'0' if first else q4(d)}")

    def mfma(j, b, first): mm(vD, vA + 4 * (j & 1), b, first)

    def gemv(n, breg):
        build_a(0)
        for j in range(n):
            if j + 1 < n: build_a(j + 1)
            mfma(j, breg + 4 * j, j == 0)

    def red16(vaddr, v, mid=None):
        for t in range(4):
            a(f"ds_read2st64_b64 {q4(v+4*t)}, v{vaddr} offset0:{2*t} offset1:{2*t+1}")
        a("s_waitcnt lgkmcnt(2)")
        pkadd(v, v, v + 2); pkadd(v + 4, v + 4, v + 6); pkadd(v, v, v + 4)
        if mid: mid()
        a("s_waitcnt lgkmcnt(0)")
        pkadd(v + 8, v + 8, v + 10); pkadd(v + 12, v + 12, v + 14); pkadd(v + 8, v + 8, v + 12)
        pkadd(v + 2, v, v + 8); pkadd(v, v, v + 8)
        a(f"v_permlane32_swap_b32 v{v}, v{v+2}"); a(f"v_permlane32_swap_b32 v{v+1}, v{v+3}")
        pkadd(v, v, v + 2)

    def vor(tmp, rs):
        rs = list(rs)
        if len(rs) == 2:
            a(f"v_or_b32 v{tmp}, v{rs[0]}, v{rs[1]}"); return
        a(f"v_or3_b32 v{tmp}, v{rs[0]}, v{rs[1]}, v{rs[2]}"); rs = rs[3:]
        while rs:
            if len(rs) >= 2:
                a(f"v_or3_b32 v{tmp}, v{tmp}, v{rs[0]}, v{rs[1]}"); rs = rs[2:]
            else:
                a(f"v_or_b32 v{tmp}, v{tmp}, v{rs[0]}"); rs = rs[1:]

    npoll = [0]

    def spend():
        a(f"s_sub_u32 s{sBUD}, s{sBUD}, 1"); a("s_cbranch_scc1 L_exit")

    def poll(loads, tagged, tmp, entry=None):
        n = npoll[0]; npoll[0] += 1
        a(f"L_poll{n}:")
        if psleep: a(f"s_sleep {psleep}")
        for ld in loads: a(ld)
        spend()
        if entry: a(entry + ":")
        a("s_waitcnt vmcnt(0)")
        for r in tagged: a(f"v_xor_b32 v{r}, s{sTG8}, v{r}")
        vor(tmp, tagged)
        a(f"v_cmp_ne_u32_sdwa vcc, v{tmp}, v{vZERO} src0_sel:BYTE_0 src1_sel:DWORD")
        a(f"s_cbranch_vccnz L_poll{n}")

    def poll_tag(loads, tmp, slack=0, retry=None):
        n = npoll[0]; npoll[0] += 1
        for t in range(len(loads)): a(f"s_mov_b64 s[{sOFF+2*t}:{sOFF+2*t+1}], -1")
        a(f"L_poll{n}:")
        for t, ld in enumerate(loads):
            a(f"s_mov_b64 exec, s[{sOFF+2*t}:{sOFF+2*t+1}]"); a(ld[0])
        a("s_mov_b64 exec, -1")
        spend()
        a("s_waitcnt vmcnt(0)")
        a(f"s_mov_b64 s[{sE}:{sE+1}], 0")
        for t, (_, rs) in enumerate(loads):
            m = f"s[{sOFF+2*t}:{sOFF+2*t+1}]"
            a(f"v_xor_b32 v{tmp}, s{sTAG}, v{rs[0]}"); a(f"v_xor_b32 v{tmp+1}, s{sTAG}, v{rs[1]}"); a(f"v_or_b32 v{tmp}, v{tmp}, v{tmp+1}")
            a(f"v_cmp_lt_u32 {m}, {(1 << slack) - 1}, v{tmp}")
            a(f"s_or_b64 s[{sE}:{sE+1}], s[{sE}:{sE+1}], {m}")
        if retry is None:
            a(f"s_cbranch_scc1 L_poll{n}")
        else:
            a(f"s_cbranch_scc1 L_pagain{n}")

            def again():
                a(f"L_pagain{n}:"); retry(); a(f"s_branch L_poll{n}")
            far.append(again)

    def put_tag(d, s):
        a(f"v_bfi_b32 v{d}, v{vFF}, s{sTG8}, v{s}")

    nst = [0]

    def mode_store(text):
        if not local:
            a(text + " sc1"); return
        n = nst[0]; nst[0] += 1
        a(f"s_cbranch_scc1 L_stfar{n}")
        a(text)
        a(f"L_stdone{n}:")

        def other():
            a(f"L_stfar{n}:"); a(text + " sc1"); a(f"s_branch L_stdone{n}")
        far.append(other)

    def emit_far():
        for f in list(far): f()
        far.clear()

    def only_wave(w, label):
        a(f"s_cmp_lg_u32 s{sW}, {w}"); a(f"s_cbranch_scc1 {label}")

    def selectors():
        t0, t1, t2 = 32, 33, 34
        a(f"v_and_b32 v{t0}, 8, v0"); a(f"v_mov_b32 v{t1}, 0x0100"); a(f"v_mov_b32 v{t2}, 0x0302")
        a(f"v_cmp_ne_u32 vcc, 0, v{t0}"); a(f"v_cndmask_b32 v{t1}, v{t1}, v{t2}, vcc")
        a(f"v_or_b32 v{t2}, 0x0c0c0000, v{t1}")
        a(f"v_lshlrev_b32 v{t1}, 16, v{t1}"); a(f"v_or_b32 v{t1}, 0x0c0c, v{t1}")
        a(f"v_and_b32 v{t0}, 1, v0"); a(f"v_cmp_ne_u32 vcc, 0, v{t0}"); a(f"v_cndmask_b32 v{t1}, v{t2}, v{t1}, vcc")
        a(f"v_bfe_u32 v{t0}, v0, 1, 2"); a(f"v_mov_b32 v{t2}, 0x0c0c0c0c")
        for r in range(4):
            a(f"v_cmp_eq_u32 vcc, {r}, v{t0}"); a(f"v_cndmask_b32 v{vSEL+r}, v{t2}, v{t1}, vcc")

    def tag_from_epoch():
        a(f"s_add_u32 s{sTG8}, s{sTAG}, 1"); a(f"s_and_b32 s{sTG8}, s{sTG8}, 0xff")
        a(f"s_lshr_b32 s{sTAG}, s{sTAG}, 8"); a(f"s_mul_i32 s{sTAG}, s{sTAG}, 0x9e3779b1")
        a(f"s_add_u32 s{sTAG}, s{sTAG}, 0x7f4a7c15"); a(f"s_lshl_b32 s{sTAG}, s{sTAG}, 8")

    def role():
        a(f"s_and_b32 s{sT1}, s{sH}, 7"); a(f"s_min_u32 s{sT2}, s{sT1}, 3"); a(f"s_mul_i32 s{sUA}, s{sT1}, 5"); a(f"s_add_u32 s{sUA}, s{sUA}, s{sT2}")
        a(f"s_cmp_lt_u32 s{sT1}, 3"); a(f"s_cselect_b32 s{sT2}, 6, 5")
        a(f"s_lshr_b32 s{sMEM}, s2, 3")
        a(f"s_sub_u32 s{sT1}, s{sMEM}, 8"); a(f"s_add_u32 s{sT3}, s{sT1}, s{sUA}")
        a(f"s_cmp_lt_u32 s{sT1}, s{sT2}"); a(f"s_cselect_b32 s{sROLE}, s{sT3}, 63")
        a(f"s_add_u32 s{sT3}, s{sMEM}, 64")
        a(f"s_cmp_lt_u32 s{sMEM}, 8"); a(f"s_cselect_b32 s{sROLE}, s{sT3}, s{sROLE}")
        if "role" in abl: a(f"s_mov_b32 s{sROLE}, 63")

    T, MM = 26, 30

    nlds = [0]

    def lds_wait(read, regs_, sleep=0):
        n = nlds[0]; nlds[0] += 1
        a(f"L_lds{n}:")
        a(read)
        a("s_waitcnt lgkmcnt(0)")
        rs = list(regs_)
        if len(rs) == 1: a(f"v_cmp_eq_u32 vcc, -1, v{rs[0]}")
        else:
            if len(rs) == 2: a(f"v_max_u32 v{vB}, v{rs[0]}, v{rs[1]}")
            else: a(f"v_max3_u32 v{vB}, v{rs[0]}, v{rs[1]}, v{rs[2]}"); a(f"v_max_u32 v{vB}, v{vB}, v{rs[3]}")
            a(f"v_cmp_eq_u32 vcc, -1, v{vB}")
        a(f"s_cbranch_vccnz L_ldsagain{n}")

        def again():
            a(f"L_ldsagain{n}:")
            if sleep: a(f"s_sleep {sleep}")
            spend(); a(f"s_branch L_lds{n}")
        far.append(again)

    a(f"{KNAME}:")
    a("s_cmp_ge_u32 s2, 256"); a("s_cbranch_scc1 L_end")
    if stamps: a(f"v_mov_b32 v{vSTAMP}, 0")
    stamp("start")
    a(f"s_load_dwordx16 s[8:23], s[0:1], 0")
    args2 = "s_load_dwordx8 s[24:31], s[0:1], 64"
    if not split_args: a(args2)
    a(f"s_and_b32 s{sH}, s2, 31"); a(f"s_lshr_b32 s{sSP}, s2, 5")
    a(f"v_lshrrev_b32 v{vT}, 6, v0"); a(f"v_and_b32 v{vL}, 63, v0")
    a(f"v_readfirstlane_b32 s{sW}, v{vT}")
    a(f"s_mov_b32 s{sBUD}, {budget}")
    a(f"s_lshl_b32 s{sIDX}, s{sH}, 3"); a(f"s_add_u32 s{sIDX}, s{sIDX}, s{sSP}")
    a(f"s_getreg_b32 s{sXCC}, hwreg(HW_REG_XCC_ID, 0, 3)")
    a(f"s_sub_u32 s{sW}, s{sW}, 1"); a("s_cbranch_scc0 L_stream")
    if hprio: a(f"s_setprio {hprio}")
    vXA, vXO, vQO = 22, 23, 3
    XA, XO = 28, 27
    a(f"v_lshlrev_b32 v{vXA}, 4, v0")
    a("v_lshrrev_b32 v24, 4, v0"); a("v_and_b32 v25, 15, v0")
    a(f"s_lshl_b32 s{sT1}, s{sSP}, 6"); a(f"v_add_u32 v24, s{sT1}, v24")
    a(f"v_lshl_add_u32 v{vXO}, v25, 2, v24"); a(f"v_lshlrev_b32 v{vXO}, 1, v{vXO}")
    a(f"v_lshlrev_b32 v{vQO}, 13, v24"); a(f"v_lshl_add_u32 v{vQO}, v25, 4, v{vQO}")
    a(f"s_lshl_b32 s{sT0}, s{sH}, 8"); a(f"s_mov_b32 s{sT1}, 0x8000")
    a("v_lshlrev_b32 v24, 3, v0"); a("v_mov_b32 v30, -1"); a("v_mov_b32 v31, -1")
    a("ds_write_b64 v24, v[30:31]")
    a("s_waitcnt lgkmcnt(0)")
    if bar0 == -1: a("s_barrier")
    stamp("args")
    mksrd(rX, pX, 1024)
    a(f"buffer_load_dwordx4 {q4(XA)}, v{vXA}, {srd(rX)}, 0 offen")
    a(f"buffer_load_ushort v{XO}, v{vXO}, {srd(rX)}, 0 offen")
    mksrd(rQ, pWQ, 0x400000)
    for j in range(16):
        a(f"buffer_load_dwordx4 {q4(KREG+4*j)}, v{vQO}, {srd(rQ)}, s{sT0} offen nt")
        if j < 15: a(f"s_add_u32 s{sT0}, s{sT0}, s{sT1}")
        if bar0 and j == (15 if bar0 is True else bar0): a("s_barrier")
    a("s_branch L_helper")

    a("L_stream:")
    if pfcode:
        a(f"s_cmp_lt_u32 s{sW}, 6"); a("s_cbranch_scc1 L_nocode")
        a(f"s_getpc_b64 s[{sE}:{sE+1}]")
        a("L_pc:")
        a(f"v_subrev_u32 v24, {7*64}, v0"); a("v_lshlrev_b32 v24, 7, v24"); a("v_min_u32 v24, L_last-L_pc, v24")
        a(f"global_load_dword v3, v24, s[{sE}:{sE+1}]")
        a("L_nocode:")
    a("v_subrev_u32 v0, 64, v0")
    a(f"v_lshlrev_b32 v{vKV}, 4, v0")
    a(f"s_lshl_b32 s{sT1}, s{sSP}, 1"); a(f"s_add_u32 s{sT1}, s{sT1}, s{sH}"); a(f"s_lshl_b32 s{sT1}, s{sT1}, 13")
    a(f"s_mov_b32 s{sT2}, 0x1e000"); a(f"s_movk_i32 s{sT3}, 0x2000")
    for j in range(16):
        a(f"s_and_b32 s{sOFF+j}, s{sT1}, s{sT2}")
        if j < 15: a(f"s_add_u32 s{sT1}, s{sT1}, s{sT3}")
    a(f"s_lshl_b32 s{sT0}, s{sH}, 23"); a(f"s_lshl_b32 s{sT1}, s{sSP}, 17"); a(f"s_add_u32 s{sT0}, s{sT0}, s{sT1}")
    a(f"s_add_u32 s{sT0}, s{sT0}, {(32768-4096)*256}")
    a("s_waitcnt lgkmcnt(0)")
    stamp("args")
    mksrd(rK, pK, 0x20000, sT0)
    if bar0: a("s_barrier")

    seq = [("k", j) for j in range(16)] + [("v", j) for j in range(16)]
    pos = {op: i for i, op in enumerate(seq)}
    issued, done = [0], [0]
    def vreg(j): return VREG + 4 * (j & 7)

    def issue_to(n):
        while issued[0] < min(n, len(seq)):
            kind, j = seq[issued[0]]
            if kind == "k": a.vmem(f"buffer_load_dwordx4 {q4(KREG+4*j)}, v{vKV}, {srd(rK)}, s{sOFF+j} offen nt", (kind, j))
            else: a.vmem(f"buffer_load_dwordx4 {q4(vreg(j))}, v{vKV}, {srd(rV)}, s{sOFF+j} offen nt", (kind, j))
            issued[0] += 1

    def advance(upto):
        while done[0] <= pos[upto]:
            a.wait_vm(seq[done[0]]); done[0] += 1
            issue_to(done[0] + W)
            tr(done[0] - 1)

    issue_to(W)
    if split_args: a(args2)
    mksrd(rV, pV, 0x20000, sT0); mksrd(rX, pX, 1024)
    selectors()
    role()
    vG2, vJ, vSH, vOW, vRO, vP8, vPF, vPJ = range(XREG, XREG + 8)
    a(f"v_bfe_u32 v{vG2}, v0, 4, 2"); a(f"v_and_b32 v{vJ}, 7, v0"); a(f"v_bfe_u32 v{vSH}, v0, 3, 1")
    a(f"v_and_b32 v{vT}, 15, v0"); a(f"v_lshlrev_b32 v{vT}, 4, v{vT}")
    a(f"v_lshrrev_b32 v{vOW}, 5, v0"); a(f"v_lshlrev_b32 v{vOW}, 9, v{vOW}"); a(f"v_lshl_add_u32 v{vOW}, v{vT}, 1, v{vOW}")
    a(f"v_and_b32 v32, 1, v{vG2}"); a(f"v_lshl_add_u32 v{vOW}, v32, 4, v{vOW}")
    a(f"v_and_b32 v{vP8}, 31, v0"); a(f"v_lshlrev_b32 v{vP8}, 3, v{vP8}")
    a("v_bfe_u32 v32, v0, 5, 1"); a(f"v_lshl_add_u32 v{vRO}, v32, 12, v{vP8}")
    a(f"s_lshl_b32 s{sT1}, s{sW}, 8"); a(f"s_add_u32 s{sT2}, s{sT1}, {L_OP}"); a(f"v_add_u32 v{vRO}, s{sT2}, v{vRO}")
    a(f"s_lshl_b32 s{sU}, s{sIDX}, 9"); a(f"s_add_u32 s{sU}, s{sU}, s{sT1}")
    a(f"v_mov_b32 v{vFF}, 0xff"); a(f"v_mov_b32 v{vZERO}, 0")
    a(f"v_lshl_add_u32 v{vPJ}, v{vG2}, 3, v{vJ}")
    advance(("k", 3))
    if split_args: a("s_waitcnt lgkmcnt(0)")
    a(f"s_load_dword s{sTAG}, s[{pWS}:{pWS+1}], {EPOCH}")
    mksrd(rWS, pWS, WS_SIZE)
    vAD64, vPA = XREG + 18, 44
    a(f"s_mov_b32 s{sE+1}, 0"); a("v_mov_b32 v33, 0"); a(f"s_mov_b64 s[{sPFM}:{sPFM+1}], -1"); a(f"s_mov_b64 s[{sPFM2}:{sPFM2+1}], -1")
    a(f"s_cmp_lt_u32 s{sROLE}, {NT2}"); a(f"s_cbranch_scc1 L_adT2")
    a(f"s_cmp_lt_u32 s{sROLE}, 64"); a(f"s_cbranch_scc1 L_adPF")
    a(f"v_lshl_add_u32 v32, v{vG2}, 4, v{vSH}")
    a(f"s_and_b32 s{sT1}, s{sH}, 7"); a(f"s_lshl_b32 s{sT1}, s{sT1}, 17")
    a(f"s_lshr_b32 s{sT2}, s{sW}, 1"); a(f"s_lshl_b32 s{sT2}, s{sT2}, 20"); a(f"s_add_u32 s{sT1}, s{sT1}, s{sT2}")
    a(f"s_and_b32 s{sT2}, s{sW}, 1"); a(f"s_lshl_b32 s{sT2}, s{sT2}, 16"); a(f"s_add_u32 s{sT1}, s{sT1}, s{sT2}")
    a(f"s_and_b32 s{sT2}, s{sROLE}, 7"); a(f"s_lshl_b32 s{sT2}, s{sT2}, 7"); a(f"s_add_u32 s{sT1}, s{sT1}, s{sT2}")
    a("v_lshlrev_b32 v32, 10, v32"); a(f"v_lshl_add_u32 v32, v{vJ}, 4, v32"); a(f"v_add_u32 v32, s{sT1}, v32")
    a(f"v_lshl_add_u64 {q2(vAD64)}, v[32:33], 0, s[{pWO}:{pWO+1}]")
    a(f"v_mov_b64 {q2(vPA)}, {q2(vAD64)}")
    a(f"s_mov_b32 s{sE}, 2048")
    a("s_branch L_addone")
    a("L_adT2:")
    a(f"s_lshl_b32 s{sT1}, s{sROLE}, 15"); a(f"v_add_u32 v32, s{sT1}, v{vKV}")
    a(f"v_lshl_add_u64 {q2(vAD64)}, v[32:33], 0, s[{pWD}:{pWD+1}]")
    a(f"s_mov_b32 s{sE}, 8192")
    if not pfdown: a(f"s_mov_b64 s[{sPFM}:{sPFM+1}], 1"); a(f"s_mov_b64 s[{sPFM2}:{sPFM2+1}], 1")
    a("v_and_b32 v32, 0x1f8, v0"); a("v_mul_u32_u24 v32, 2752, v32")
    a("v_and_b32 v34, 3, v0"); a("v_lshl_add_u32 v32, v34, 4, v32")
    a(f"s_lshl_b32 s{sT1}, s{sROLE}, 6"); a(f"v_add_u32 v32, s{sT1}, v32")
    a(f"v_lshl_add_u64 {q2(vPA)}, v[32:33], 0, s[{pWG}:{pWG+1}]")
    a("s_mov_b32 exec_lo, 0xf0f0f0f0"); a("s_mov_b32 exec_hi, 0xf0f0f0f0")
    a(f"v_lshl_add_u64 {q2(vPA)}, v[32:33], 0, s[{pWU}:{pWU+1}]")
    a("s_mov_b64 exec, -1")
    a("s_branch L_addone")
    a("L_adPF:")
    a(f"s_lshl_b32 s{sT1}, s{sH}, 17"); a(f"s_and_b32 s{sT2}, s{sSP}, 3"); a(f"s_lshl_b32 s{sT2}, s{sT2}, 15"); a(f"s_add_u32 s{sT1}, s{sT1}, s{sT2}")
    if nwo == 2: a(f"s_add_u32 s{sT1}, s{sT1}, 8192")
    a(f"v_add_u32 v32, s{sT1}, v{vKV}")
    a(f"v_lshl_add_u64 {q2(vAD64)}, v[32:33], 0, s[{pWO}:{pWO+1}]")
    a(f"s_cmp_ge_u32 s{sSP}, {4 if nwo else 8}"); a(f"s_cselect_b64 s[{sPFM}:{sPFM+1}], -1, 1")
    if nwo == 4:
        a(f"s_cselect_b64 s[{sPFM2}:{sPFM2+1}], -1, 1"); a(f"s_mov_b32 s{sE}, 8192")
    else:
        a(f"s_mov_b64 s[{sPFM2}:{sPFM2+1}], 1"); a(f"s_mov_b32 s{sE}, {16384 if nwo else 0}")
    a(f"s_and_b32 s{sT1}, s{sH}, 7"); a(f"s_cmp_lt_u32 s{sT1}, 3"); a(f"s_cselect_b32 s{sT0}, 6, 5")
    a(f"s_lshl_b32 s{sT1}, s{sT0}, 6"); a(f"s_sub_u32 s{sT1}, s{sT1}, 4")
    a("v_and_b32 v32, 3, v0"); a("v_lshlrev_b32 v32, 7, v32"); a(f"v_min_u32 v32, s{sT1}, v32")
    a("v_bfe_u32 v34, v0, 3, 2"); a(f"v_mul_u32_u24 v34, 2752, v34"); a("v_add_u32 v32, v32, v34")
    a(f"s_and_b32 s{sT2}, s{sMEM}, 15"); a(f"s_lshl_b32 s{sT2}, s{sT2}, 3"); a(f"s_add_u32 s{sT2}, s{sT2}, s{sW}")
    a(f"s_mul_i32 s{sT1}, s{sT2}, {4*2752}"); a(f"s_lshl_b32 s{sT3}, s{sUA}, 6"); a(f"s_add_u32 s{sT1}, s{sT1}, s{sT3}")
    a(f"v_add_u32 v32, s{sT1}, v32")
    a(f"v_lshl_add_u64 {q2(vPA)}, v[32:33], 0, s[{pWG}:{pWG+1}]")
    a("s_mov_b32 exec_lo, 0xf0f0f0f0"); a("s_mov_b32 exec_hi, 0")
    a(f"v_lshl_add_u64 {q2(vPA)}, v[32:33], 0, s[{pWU}:{pWU+1}]")
    if not pfdown:
        a("s_mov_b32 exec_lo, 0"); a("s_mov_b32 exec_hi, -1")
        a(f"s_lshl_b32 s{sT0}, s{sT0}, 1")
        a(f"s_mul_i32 s{sT2}, s{sT2}, s{sT0}"); a(f"s_lshl_b32 s{sT3}, s{sUA}, 8"); a(f"s_add_u32 s{sT2}, s{sT2}, s{sT3}")
        a(f"s_sub_u32 s{sT0}, s{sT0}, 1"); a("v_and_b32 v32, 15, v0"); a(f"v_min_u32 v32, s{sT0}, v32"); a(f"v_add_lshl_u32 v32, s{sT2}, v32, 7")
        a(f"v_lshl_add_u64 {q2(vPA)}, v[32:33], 0, s[{pWD}:{pWD+1}]")
    a("s_mov_b64 exec, -1")
    a("L_addone:")
    advance(("k", 8))
    a("s_waitcnt lgkmcnt(0)")
    if amp and len(amp) > 3 and amp[0] in ("start", "args"): diag_store()
    tag_from_epoch()

    advance(("k", gpos))
    QP = 40
    lds_wait(f"ds_read_b128 {q4(QP)}, v{vT} offset:{L_QB}", range(QP, QP + 4))
    stamp("qgot")
    SJ = 24

    def dots(js):
        for i in range(4):
            for j in js:
                a(f"v_dot2_f32_bf16 v{SJ+j}, v{KREG+4*j+i}, v{QP+i}, {'0' if i == 0 else 'v%d' % (SJ+j)}")
    rest = list(range(gpos + 1, 16))
    per = -(-16 // (len(rest) + 1))
    nd = 0
    for step in [None] + rest:
        if step is not None: advance(("k", step))
        avail = (gpos if step is None else step) + 1
        upto = 16 if step == 15 or not rest else min(avail, nd + per)
        dots(range(nd, upto)); nd = upto
    for j in range(8):
        a(f"v_add_f32_dpp v{SJ+j}, v{SJ+j}, v{SJ+j} row_ror:8 row_mask:0xf bank_mask:0x3")
    for j in range(8):
        a(f"v_add_f32_dpp v{SJ+j}, v{SJ+j+8}, v{SJ+j+8} row_ror:8 row_mask:0xf bank_mask:0xc")
    advance(("v", 0))
    for j in range(4):
        a(f"v_add_f32_dpp v{SJ+j}, v{SJ+j}, v{SJ+j} row_half_mirror row_mask:0xf bank_mask:0x5")
    for j in range(4):
        a(f"v_add_f32_dpp v{SJ+j}, v{SJ+j+4}, v{SJ+j+4} row_half_mirror row_mask:0xf bank_mask:0xa")
    for j in range(4):
        a(f"v_add_f32_dpp v{SJ+j}, v{SJ+j}, v{SJ+j} quad_perm:[1,0,3,2] {DPPF}")
    a("s_mov_b32 vcc_lo, 0xaaaaaaaa"); a("s_mov_b32 vcc_hi, 0xaaaaaaaa")
    a(f"v_cndmask_b32 v{SJ}, v{SJ}, v{SJ+1}, vcc"); a(f"v_cndmask_b32 v{SJ+2}, v{SJ+2}, v{SJ+3}, vcc")
    a(f"v_add_f32_dpp v{SJ}, v{SJ}, v{SJ} quad_perm:[2,3,0,1] {DPPF}")
    a(f"v_add_f32_dpp v{SJ+2}, v{SJ+2}, v{SJ+2} quad_perm:[2,3,0,1] {DPPF}")
    a("s_mov_b32 vcc_lo, 0xcccccccc"); a("s_mov_b32 vcc_hi, 0xcccccccc")
    SC = SJ
    a(f"v_cndmask_b32 v{SC}, v{SJ}, v{SJ+2}, vcc")
    bf16r(SC, SC); a(f"v_mul_f32 v{SC}, {SCALE:#x}, v{SC}"); bf16r(SC, SC)
    a(f"v_mov_b32 v{T}, v{SC}"); wave_red("v_max_f32", T, sMW)
    if W <= 6: advance(("v", 1))
    a(f"v_subrev_f32 v{SC}, s{sMW}, v{SC}"); a(f"v_mul_f32 v{SC}, {LOG2E:#x}, v{SC}"); a(f"v_exp_f32 v{SC}, v{SC}")

    def split_p():
        bf16r(T, SC); a(f"v_sub_f32 v{T}, v{SC}, v{T}")
        a(f"v_cvt_pk_bf16_f32 v{vPK}, v{SC}, v{T}")
    split_p()
    a(f"v_mov_b32 v{T}, v{SC}"); wave_red("v_add_f32", T, sT2)
    a(f"v_mov_b32 v{T}, s{sMW}"); a(f"v_mov_b32 v{T+1}, s{sT2}")
    a(f"s_lshl_b32 s{sT1}, s{sW}, 3"); a(f"v_mov_b32 v{T+2}, s{sT1}")
    a("s_mov_b64 exec, 1"); a(f"ds_write_b64 v{T+2}, {q2(T)} offset:{L_ST}"); a("s_mov_b64 exec, -1")
    stamp("p")

    for j in range(16 - W):
        build_a(j)
        advance(("v", j))
        mfma(j, vreg(j), j == 0)
        if j == cpos:
            a(f"v_lshrrev_b32 v{T+2}, 1, v{T+2}")
            lds_wait(f"ds_read_b32 v32, v{T+2} offset:{L_F}", [32])
            a(f"v_mul_f32 v{SC}, v{SC}, v32")
            for r in range(4): a(f"v_mul_f32 v{vD+r}, v{vD+r}, v32")
            split_p()
    assert issued[0] == len(seq) and cpos < 16 - W
    stamp("cbar")

    def tload(j, ad=vAD64, last=7):
        a(f"global_load_dwordx4 {q4(TREG+4*j)}, {q2(ad)}, off")
        if j < last: a(f"v_lshl_add_u64 {q2(ad)}, {q2(ad)}, 0, s[{sE}:{sE+1}]")
    k = 0
    for j in range(16 - W, 16):
        build_a(j)
        a(f"s_waitcnt vmcnt({15 - j + k})")
        mfma(j, vreg(j), False)
        tr(16 + j)
        if j >= 12 and "pace" not in abl:
            if k == 2 and nwo == 2:
                a(f"s_cmp_eq_u32 s{sROLE}, 63"); a(f"s_cselect_b32 s{sT1}, 0xffffc000, 0"); a(f"s_cselect_b32 s{sT2}, -1, 0"); a(f"s_cselect_b32 s{sE}, 0, s{sE}")
                a(f"s_mov_b32 s{sT0}, s{sT1}"); a(f"s_mov_b32 s{sT1}, s{sT2}")
                a(f"v_lshl_add_u64 {q2(vAD64)}, {q2(vAD64)}, 0, s[{sT0}:{sT0+1}]")
            m = sPFM if k < 2 else sPFM2
            a(f"s_mov_b64 exec, s[{m}:{m+1}]")
            a(f"global_load_dwordx4 {q4(TREG+4*k)}, {q2(vAD64)}, off")
            a("s_mov_b64 exec, -1")
            if k < 3: a(f"v_lshl_add_u64 {q2(vAD64)}, {q2(vAD64)}, 0, s[{sE}:{sE+1}]")
            k += 1
    a("L_pvdone:")
    a(f"s_cmp_ge_u32 s{sW}, 2")
    a(f"ds_write_b128 v{vOW}, {q4(vD)} offset:{L_OP}")
    a("s_waitcnt lgkmcnt(0)"); a("s_barrier")
    stamp("obar")
    if amp and len(amp) > 3 and amp[0] == "obar":
        diag_store(); a(f"s_cmp_ge_u32 s{sW}, 2")
    a("s_cbranch_scc1 L_nopub")
    if local: a(f"ds_read_b32 v40, v{vZERO} offset:{L_MODE}")

    def getmode():
        a(f"v_readfirstlane_b32 s{sMODE}, v40"); a(f"s_cmp_lg_u32 s{sMODE}, 0")
    red16(vRO, 24, mid=getmode if local else None)
    a("s_mov_b32 exec_hi, 0")
    put_tag(25, 25)
    mode_store(f"buffer_store_dwordx2 v[24:25], v{vP8}, {srd(rWS)}, s{sU} offen")
    a("s_mov_b32 exec_hi, -1")
    a("L_nopub:")
    a(f"s_cmp_ge_u32 s{sROLE}, 64"); a("s_cbranch_scc1 L_T1")
    a("s_barrier")
    a(f"s_cmp_lt_u32 s{sROLE}, {NT2}"); a("s_cbranch_scc1 L_T2")
    if pfffn:
        a(f"s_cmp_lt_u32 s{sMEM}, 16"); a("s_cbranch_scc1 L_exit")
        a(f"s_mov_b32 exec_hi, {0 if pfdown else 0xfff}")
        a(f"global_load_dword v3, {q2(vPA)}, off")
    a("s_branch L_exit")
    emit_far()

    a("L_helper:")
    if split_args: a(args2)
    selectors()
    role()
    if split_args: a("s_waitcnt lgkmcnt(0)")
    a(f"s_load_dword s{sTAG}, s[{pWS}:{pWS+1}], {EPOCH}")
    mksrd(rWS, pWS, WS_SIZE)
    a(f"v_mov_b32 v{vZERO}, 0")
    a(f"s_waitcnt vmcnt(16)")
    stamp("x")
    U = 32
    for i in range(4): unpack(U + 2 * i, U + 2 * i + 1, XA + i)
    S, M_, R_ = 40, 41, 42
    a(f"v_add_f32 v{S}, v{U}, v{U+1}")
    for i in range(2, 8): a(f"v_add_f32 v{S}, v{S}, v{U+i}")
    wave_red("v_add_f32", S, sT1)
    a(f"v_mov_b32 v{M_}, 0x3b000000"); a(f"v_mul_f32 v{M_}, s{sT1}, v{M_}")
    for i in range(8): a(f"v_sub_f32 v{U+i}, v{U+i}, v{M_}")
    a(f"v_mul_f32 v{S}, v{U}, v{U}")
    for i in range(1, 8): a(f"v_fmac_f32 v{S}, v{U+i}, v{U+i}")
    wave_red("v_add_f32", S, sT1)
    a(f"v_mov_b32 v{S}, 0x3b000000"); a(f"v_mul_f32 v{S}, s{sT1}, v{S}")
    bf16r(M_, M_); bf16r(S, S)
    a(f"v_add_f32 v{S}, {EPS:#x}, v{S}"); bf16r(S, S)
    a(f"v_sqrt_f32 v{S}, v{S}"); bf16r(S, S)
    a(f"v_rcp_f32 v{R_}, v{S}")
    a(f"v_lshlrev_b32 v{XO}, 16, v{XO}"); a(f"v_sub_f32 v{XO}, v{XO}, v{M_}"); bf16r(XO, XO)
    a(f"v_mul_f32 v{XO}, v{XO}, v{R_}")
    a(f"v_cvt_pk_bf16_f32 v{vPK}, v{XO}, 0")
    a(f"s_waitcnt lgkmcnt(0)")
    tag_from_epoch()
    for j in range(16):
        build_a(j)
        if j % 4 == 0: a(f"s_waitcnt vmcnt({12 - j})")
        mfma(j, KREG + 4 * j, j == 0)
    a("v_and_b32 v24, 15, v0"); a("v_bfe_u32 v25, v0, 4, 1"); a("v_lshrrev_b32 v26, 5, v0")
    a("v_lshlrev_b32 v24, 6, v24"); a("v_lshl_add_u32 v24, v25, 5, v24"); a("v_lshl_add_u32 v24, v26, 4, v24")
    a(f"s_lshl_b32 s{sT2}, s{sIDX}, 10"); a(f"s_add_u32 s{sT2}, s{sT2}, {MBQ}")
    a(f"s_xor_b32 s{sT3}, s{sTAG}, s{sXCC}")
    a(f"v_permlane32_swap_b32 v{vD}, v{vD+2}"); a(f"v_permlane32_swap_b32 v{vD+1}, v{vD+3}")
    a(f"v_mov_b32 v{vD+2}, v{vD+1}"); a(f"v_mov_b32 v{vD+1}, s{sTAG}"); a(f"v_mov_b32 v{vD+3}, s{sT3}")
    qstore = f"buffer_store_dwordx4 {q4(vD)}, v24, {srd(rWS)}, s{sT2} offen"
    a(qstore + ("" if local else " sc1"))
    stamp("qpub")
    a(f"s_lshl_b32 s{sT0}, s{sH}, 13"); a(f"s_add_u32 s{sT0}, s{sT0}, {MBQ}"); a(f"s_add_u32 s{sU}, s{sT0}, 4096")
    a(f"s_mov_b32 s{sMODE}, 0")
    a("s_waitcnt vmcnt(0)")
    GQ = KREG

    def write_through_once(tag):
        a(f"s_cmp_lg_u32 s{sMODE}, 0"); a(f"s_cbranch_scc1 L_wt{tag}")
        a(qstore + " sc1"); a(f"s_mov_b32 s{sMODE}, 1")
        a(f"L_wt{tag}:")
    poll_tag([(f"buffer_load_dwordx4 {q4(GQ+4*t)}, v{vXA}, {srd(rWS)}, s{sU if t >= 4 else sT0} offen offset:{(t&3)*1024} sc1", [GQ+4*t+1, GQ+4*t+3]) for t in range(8)],
             26, slack=3, retry=(lambda: write_through_once("a")) if local else None)
    if local:
        for t in range(8): a(f"v_xor_b32 v{GQ+4*t+3}, s{sT3}, v{GQ+4*t+3}")
        vor(26, [GQ + 4 * t + 3 for t in range(8)])
        a("v_cmp_ne_u32 vcc, 0, v26"); a("s_cbranch_vccz L_samedie")
        write_through_once("b")
        a("L_samedie:")
    for st in (16, 8, 4):
        for i in range(0, st, 2): a(f"v_add_f32 v{GQ+i}, v{GQ+i}, v{GQ+i+st}")
    a(f"v_cvt_pk_bf16_f32 v{GQ}, v{GQ}, v{GQ+2}"); a("v_lshlrev_b32 v25, 2, v0")
    a(f"v_min_u32 v{GQ}, -2, v{GQ}")
    a(f"ds_write_b32 v25, v{GQ} offset:{L_QB}")
    stamp("qgot")
    a("v_and_b32 v25, 3, v0"); a("v_bfe_u32 v26, v0, 2, 1"); a("v_lshlrev_b32 v25, 16, v25"); a("v_lshl_add_u32 v25, v26, 10, v25")
    a(f"s_and_b32 s{sT0}, s{sH}, 7"); a(f"s_lshl_b32 s{sT1}, s{sT0}, 13"); a(f"s_add_u32 s{sT1}, s{sT1}, {MBQ}")
    a(f"v_and_b32 v{T+2}, 7, v0"); a(f"v_lshlrev_b32 v{T+3}, 2, v{T+2}"); a(f"v_lshlrev_b32 v{T+2}, 3, v{T+2}")
    lds_wait(f"ds_read_b32 v{T}, v{vZERO} offset:{L_ST}", [T], sleep=hsleep)
    if local: a(f"buffer_load_dword v40, v25, {srd(rWS)}, s{sT1} offen offset:12 sc1")
    lds_wait(f"ds_read_b64 {q2(T)}, v{T+2} offset:{L_ST}", [T, T + 1], sleep=hsleep)
    a(f"v_mov_b32 v{MM}, v{T}"); red8("v_max_f32", MM)
    a(f"v_sub_f32 v{T}, v{T}, v{MM}"); a(f"v_mul_f32 v{T}, {LOG2E:#x}, v{T}"); a(f"v_exp_f32 v{T}, v{T}")
    a(f"ds_write_b32 v{T+3}, v{T} offset:{L_F}")
    a(f"v_mov_b32 v36, v{MM}"); a(f"v_mov_b32 v37, s{sTAG}"); a(f"v_mul_f32 v38, v{T}, v{T+1}"); a(f"v_mov_b32 v39, s{sTAG}")
    red8("v_add_f32", 38)
    a(f"s_lshl_b32 s{sT1}, s{sIDX}, 7"); a(f"s_add_u32 s{sT1}, s{sT1}, {MBM}")
    if local:
        a("s_waitcnt vmcnt(0)")
        a(f"v_cmp_ne_u32 vcc, s{sT3}, v40"); a("s_cmp_lg_u64 vcc, 0"); a(f"s_cselect_b32 s{sMODE}, 1, 0")
        a(f"v_mov_b32 v40, s{sMODE}"); a("v_mov_b32 v41, 0")
    a("s_mov_b64 exec, 1")
    if local: a(f"ds_write_b32 v41, v40 offset:{L_MODE}")
    mode_store(f"buffer_store_dwordx4 v[36:39], off, {srd(rWS)}, s{sT1}")
    a("s_mov_b64 exec, -1")
    a("s_waitcnt lgkmcnt(0)")
    stamp("p")
    a(f"s_cmp_lt_u32 s{sROLE}, 64"); a(f"s_mov_b32 s{sROLE}, 63"); a("s_cbranch_scc1 L_exit")
    a("v_bfe_u32 v24, v0, 3, 2"); a("v_and_b32 v25, 7, v0"); a("v_lshlrev_b32 v24, 13, v24"); a("v_lshl_add_u32 v24, v25, 7, v24")
    a(f"s_lshl_b32 s{sT0}, s{sT0}, 10"); a(f"s_add_u32 s{sT0}, s{sT0}, {MBM}")
    a("s_waitcnt vmcnt(0)")
    poll_tag([(f"buffer_load_dwordx4 v[32:35], v24, {srd(rWS)}, s{sT0} offen sc1", [33, 35])], 26)
    a("v_mov_b32 v36, v32"); red8("v_max_f32", 36)
    a("v_sub_f32 v32, v32, v36"); a(f"v_mul_f32 v32, {LOG2E:#x}, v32"); a("v_exp_f32 v32, v32")
    a("v_mul_f32 v34, v32, v34"); red8("v_add_f32", 34)
    a("v_rcp_f32 v34, v34"); a("v_and_b32 v24, 31, v0"); a("v_lshlrev_b32 v24, 2, v24")
    a("v_mul_f32 v32, v32, v34")
    a(f"ds_write_b32 v24, v32 offset:{L_C}")
    a("s_waitcnt lgkmcnt(0)")
    stamp("cbar")
    a("s_branch L_exit")
    emit_far()

    RAW, TMP = 40, 3

    def ror8_pair(v):
        for i in range(2): a(f"v_add_f32_dpp v{v+i}, v{v+i}, v{v+i} row_ror:8 {DPPF}")

    a("L_T1:")
    CW, vO, vPW, vYS = VREG, VREG + 4, VREG + 5, VREG + 6
    a(f"s_lshr_b32 s{sT1}, s{sW}, 1"); a(f"s_lshl_b32 s{sT0}, s{sT1}, 5"); a(f"v_lshl_add_u32 v{vO}, v{vSH}, 4, s{sT0}")
    a(f"ds_read_b128 {q4(CW)}, v{vO} offset:{L_C}")
    a(f"v_lshl_add_u64 {q2(vAD64)}, {q2(vAD64)}, 0, s[{sE}:{sE+1}]")
    a("s_barrier")
    for j in range(4, 8): tload(j)
    a(f"s_and_b32 s{sT2}, s{sH}, 7"); a(f"s_lshl_b32 s{sT1}, s{sT1}, 3"); a(f"s_add_u32 s{sT3}, s{sT2}, s{sT1}")
    a(f"s_lshl_b32 s{sT3}, s{sT3}, 12"); a(f"s_and_b32 s{sT1}, s{sW}, 1"); a(f"s_lshl_b32 s{sT1}, s{sT1}, 8"); a(f"s_add_u32 s{sT1}, s{sT1}, s{sT3}")
    a(f"v_lshlrev_b32 v{vO}, 11, v{vSH}"); a(f"v_lshl_add_u32 v{vO}, v{vPJ}, 3, v{vO}")
    a(f"v_and_b32 v{vPW}, 0xfffffeff, v{vOW}")
    a(f"v_add_u32 v{vRO}, {L_P16 - L_OP}, v{vRO}")
    a(f"v_bfe_u32 v{vYS}, v0, 5, 1"); a(f"v_lshl_add_u32 v{vYS}, v{vYS}, 14, v{vP8}")
    a(f"s_lshl_b32 s{sT2}, s{sT2}, 11"); a(f"s_and_b32 s{sT3}, s{sROLE}, 7"); a(f"s_lshl_b32 s{sT3}, s{sT3}, 8")
    a(f"s_add_u32 s{sT2}, s{sT2}, s{sT3}"); a(f"s_add_u32 s{sT2}, s{sT2}, {MB2}")
    a(f"s_mov_b32 s{sE}, 0x00ff00ff"); a(f"s_mov_b32 s{sE+1}, 0xff00ff00")
    a("s_waitcnt lgkmcnt(0)")
    stamp("ready")
    poll([f"buffer_load_dwordx2 {q2(RAW+2*t)}, v{vO}, {srd(rWS)}, s{sT1} offen offset:{t*SLOT} sc1" for t in range(4)], [RAW + 2 * t + 1 for t in range(4)], TMP)
    stamp("got")
    a(f"v_pk_mul_f32 {q2(RAW)}, {q2(RAW)}, {q2(CW)} op_sel_hi:[1,0]")
    a(f"v_pk_fma_f32 {q2(RAW)}, {q2(RAW+2)}, {q2(CW)}, {q2(RAW)} op_sel:[0,1,0]")
    a(f"v_pk_fma_f32 {q2(RAW)}, {q2(RAW+4)}, {q2(CW+2)}, {q2(RAW)} op_sel_hi:[1,0,1]")
    a(f"v_pk_fma_f32 {q2(RAW)}, {q2(RAW+6)}, {q2(CW+2)}, {q2(RAW)} op_sel:[0,1,0]")
    ror8_pair(RAW)
    a(f"v_cvt_pk_bf16_f32 v{vPK}, v{RAW}, v{RAW+1}")
    gemv(8, TREG)
    a(f"s_mov_b64 exec, s[{sE}:{sE+1}]")
    a(f"s_cmp_lg_u32 s{sW}, 0")
    a(f"ds_write_b128 v{vPW}, {q4(vD)} offset:{L_P16}")
    a("s_mov_b64 exec, -1")
    a("s_waitcnt lgkmcnt(0)"); a("s_barrier")
    a("s_cbranch_scc1 L_exit")
    red16(vRO, 24)
    if not copies: a("s_mov_b32 exec_hi, 0")
    put_tag(25, 25)
    a(f"buffer_store_dwordx2 v[24:25], v{vYS}, {srd(rWS)}, s{sT2} offen sc1")
    stamp("pub")
    a("s_branch L_exit")

    a("L_T2:")
    RD, BG, BD, ACC, AG = KREG + 32, VREG, KREG, KREG + 32, 24
    a(f"s_mov_b32 s{sE}, 2752")
    for j in range(8): tload(j, vPA)
    XP, vHA, vGU, vY2, vSR, vHW, vFA, vFO, vFH, vPW2 = range(XREG + 8, XREG + 18)
    XF = 12
    a(f"s_lshl_b32 s{sT1}, s{sW}, 7")
    a(f"v_lshlrev_b32 v{vHW}, 2, v{vPJ}")
    a(f"buffer_load_dword v{XP}, v{vHW}, {srd(rX)}, s{sT1} offen")
    a(f"v_add_u32 v{vHW}, s{sT1}, v{vHW}")
    a(f"s_cmp_ge_u32 s{sW}, 4"); a("s_cbranch_scc1 L_nodown")
    mksrd(rT, pWD, 1376 * 1024)
    a(f"v_lshl_add_u32 v30, v{vG2}, 11, v{vT}")
    a(f"s_lshl_b32 s{sT3}, s{sROLE}, 15"); a(f"s_lshl_b32 s{sU}, s{sW}, 8"); a(f"s_add_u32 s{sT3}, s{sT3}, s{sU}")
    for jj in range(4):
        for hi in range(2):
            a(f"buffer_load_dwordx4 {q4(RD+4*(jj+4*hi))}, v30, {srd(rT)}, s{sT3} offen offset:{hi*1024}")
        if jj < 3: a(f"s_add_u32 s{sT3}, s{sT3}, 8192")
    a("L_nodown:")
    a(f"v_lshlrev_b32 v{vHA}, 3, v{vPJ}"); a(f"v_lshl_add_u32 v{vHA}, v{vSH}, 13, v{vHA}")
    a(f"s_lshl_b32 s{sT0}, s{sW}, 8"); a(f"s_add_u32 s{sT0}, s{sT0}, {MB2}")
    if copies:
        a(f"s_lshr_b32 s{sT1}, s{sXCC}, 2"); a(f"s_lshl_b32 s{sT1}, s{sT1}, 14"); a(f"s_add_u32 s{sT0}, s{sT0}, s{sT1}")
    a(f"s_add_u32 s{sT1}, s{sT0}, 4096")
    a(f"s_mul_i32 s{sT2}, s{sW}, {2*PROW}"); a(f"s_add_u32 s{sT2}, s{sT2}, {L_P16}")
    a(f"v_mul_u32_u24 v{vPW2}, {PROW}, v{vSH}"); a(f"v_add_u32 v{vPW2}, s{sT2}, v{vPW2}")
    a("v_bfe_u32 v30, v0, 1, 1"); a(f"v_lshl_add_u32 v{vPW2}, v30, 4, v{vPW2}")
    a("v_bfe_u32 v30, v0, 2, 1"); a(f"v_lshl_add_u32 v{vPW2}, v30, 3, v{vPW2}")
    a("v_and_b32 v30, 1, v0"); a(f"v_lshl_add_u32 v{vPW2}, v30, 2, v{vPW2}")
    a(f"v_and_b32 v30, 1, v{vG2}"); a("v_mul_u32_u24 v30, 320, v30"); a(f"v_add_u32 v{vPW2}, v30, v{vPW2}")
    a("v_bfe_u32 v30, v0, 2, 2"); a(f"v_mul_u32_u24 v{vGU}, {4*PROW}, v30"); a(f"v_lshl_add_u32 v{vGU}, v{vG2}, 6, v{vGU}")
    a(f"v_and_b32 v31, 3, v0"); a(f"v_lshl_add_u32 v{vGU}, v31, 4, v{vGU}")
    a(f"v_mul_u32_u24 v{vSR}, {PROW // 16}, v{vT}"); a(f"v_add_u32 v{vSR}, {L_P16}, v{vSR}")
    a(f"v_lshlrev_b32 v{vY2}, 1, v{vT}"); a(f"v_lshl_add_u32 v{vY2}, v{vG2}, 3, v{vY2}")
    a(f"s_lshl_b32 s{sT2}, s{sROLE}, 11"); a(f"s_lshl_b32 s{sT3}, s{sW}, 9"); a(f"s_add_u32 s{sT2}, s{sT2}, s{sT3}"); a(f"s_add_u32 s{sT2}, s{sT2}, {MB3}")
    a(f"v_lshrrev_b32 v{vFA}, 2, v{vL}"); a(f"v_lshlrev_b32 v{vFA}, 11, v{vFA}"); a(f"v_lshl_add_u32 v{vFA}, v31, 4, v{vFA}")
    a(f"v_lshl_add_u32 v{vFO}, v31, 2, v{vG2}"); a(f"s_lshl_b32 s{sT3}, s{sROLE}, 4"); a(f"v_add_lshl_u32 v{vFO}, s{sT3}, v{vFO}, 1")
    sF0, sLO, sHI, sNL = 60, 64, 65, 66
    a(f"s_lshl_b32 s{sF0}, s{sROLE}, 6"); a(f"s_add_u32 s{sF0}, s{sF0}, {MB3}"); a(f"s_add_u32 s{sF0+1}, s{sF0}, {16*2048}"); a(f"s_add_u32 s{sF0+2}, s{sF0}, {32*2048}")
    mksrd(rO, pOUT, 1024)
    a(f"s_mov_b32 s{sLO}, 0x05040100"); a(f"s_mov_b32 s{sHI}, 0x07060302")
    a(f"s_mov_b32 s{sNL}, {LOG2E ^ 0x80000000:#x}"); a(f"s_mov_b32 s{sNL+1}, {LOG2E ^ 0x80000000:#x}")
    a(f"s_mov_b32 s{sE}, 0xffff00ff"); a(f"s_mov_b32 s{sE+1}, 0x0000ff00")
    for r in range(4): a(f"v_mov_b32 v{vA+r}, 0x3f803f80")
    for r in range(16): a(f"v_mov_b32 v{AG+r}, 0")

    def transpose(dst, src):
        for q in range(4):
            for r in range(4):
                a(f"v_perm_b32 v{dst+8*q+r}, v{src+4*(2*r+1)+q}, v{src+4*(2*r)+q}, s{sLO}")
                a(f"v_perm_b32 v{dst+8*q+4+r}, v{src+4*(2*r+1)+q}, v{src+4*(2*r)+q}, s{sHI}")
    hloads = [f"buffer_load_dwordx2 {q2(RAW+2*t)}, v{vHA}, {srd(rWS)}, s{sT1 if t >= 2 else sT0} offen offset:{(t&1)*2048} sc1" for t in range(4)]
    a(f"s_cmp_ge_u32 s{sW}, 4"); a("s_cbranch_scc1 L_tr4")
    a("s_waitcnt vmcnt(8)")
    transpose(BG, TREG)
    a("s_waitcnt vmcnt(0)")
    if early_poll:
        for ld in hloads: a(ld)
    transpose(BD, RD)
    a("s_branch L_trdone")
    a("L_tr4:")
    a("s_waitcnt vmcnt(0)")
    if early_poll:
        for ld in hloads: a(ld)
    transpose(BG, TREG)
    a("L_trdone:")
    unpack(XF, XF + 1, XP)
    stamp("ready")
    if early_poll: a("s_branch L_hwait")
    poll(hloads, [RAW + 2 * t + 1 for t in range(4)], TMP, entry="L_hwait" if early_poll else None)
    stamp("got")
    pkadd(RAW, RAW, RAW + 2); pkadd(RAW + 4, RAW + 4, RAW + 6); pkadd(RAW, RAW, RAW + 4)
    a(f"s_cmp_ge_u32 s{sW}, 4")
    ror8_pair(RAW)
    a(f"v_cvt_pk_bf16_f32 v{RAW}, v{RAW}, v{RAW+1}")
    unpack(RAW, RAW + 1, RAW)
    pkadd(RAW, RAW, XF)
    a(f"v_cvt_pk_bf16_f32 v{vPK}, v{RAW}, v{RAW+1}")
    a(f"ds_write_b32 v{vHW}, v{vPK} offset:{L_H}")
    for r in range(4): a(f"v_mov_b32_dpp v{vA+r}, v{vPK} row_newbcast:{r} row_mask:0xf bank_mask:0x1")
    for r in range(4): a(f"v_mov_b32_dpp v{vA+r}, v{vPK} row_newbcast:{4+r} row_mask:0xf bank_mask:0x4")
    mm(vD, vA, vA, True)
    for i in range(8): mm(ACC + 4 * i, vA, BG + 4 * i, True)
    a(f"s_mov_b64 exec, s[{sE}:{sE+1}]")
    a(f"ds_write_b32 v{vPW2}, v{vD} offset:256")
    for k in range(4): a(f"ds_write2_b32 v{vPW2}, v{ACC+8*k}, v{ACC+8*k+4} offset0:{16*k} offset1:{16*k+8}")
    a("s_mov_b64 exec, -1")
    a("s_waitcnt lgkmcnt(0)"); a("s_barrier")
    a("s_cbranch_scc1 L_epoch")
    GU, CS, ST = VREG, VREG + 16, 40
    a(f"ds_read2_b32 {q2(ST)}, v{vSR} offset0:64 offset1:66")
    for t in range(4): a(f"ds_read_b128 {q4(CS+4*t)}, v{vGU} offset:{L_P16 + PROW*t + 320}")
    for t in range(4): a(f"ds_read_b128 {q4(GU+4*t)}, v{vGU} offset:{L_P16 + PROW*t}")
    a(f"ds_read_u16 v{vFH}, v{vFO} offset:{L_H}")
    a("s_waitcnt lgkmcnt(9)")
    steps = ("quad_perm:[1,0,3,2]", "quad_perm:[2,3,0,1]", "row_half_mirror", "row_mirror")

    def st_step(k):
        for i in range(2): a(f"v_add_f32_dpp v{ST+i}, v{ST+i}, v{ST+i} {steps[k]} {DPPF}")
    st_step(0); a("s_waitcnt lgkmcnt(7)"); pkadd(CS, CS, CS + 4)
    st_step(1); pkadd(CS + 2, CS + 2, CS + 6); a("s_waitcnt lgkmcnt(5)")
    st_step(2); pkadd(CS + 8, CS + 8, CS + 12)
    st_step(3); pkadd(CS + 10, CS + 10, CS + 14)
    MU, VAR = ST + 2, ST
    a(f"v_mul_f32 v{MU}, 0x3b000000, v{ST+1}"); a(f"v_mul_f32 v{VAR}, 0x3b000000, v{ST}")
    pkadd(CS, CS, CS + 8); pkadd(CS + 2, CS + 2, CS + 10)
    a(f"v_fma_f32 v{VAR}, -v{MU}, v{MU}, v{VAR}"); a(f"v_max_f32 v{VAR}, 0, v{VAR}")
    a(f"v_cvt_pk_bf16_f32 v{VAR}, v{VAR}, v{MU}")
    a("s_waitcnt lgkmcnt(3)")
    pkadd(GU, GU, GU + 4); pkadd(GU + 2, GU + 2, GU + 6)
    unpack(VAR, MU, VAR)
    a(f"v_add_f32 v{VAR}, {EPS:#x}, v{VAR}"); bf16r(VAR, VAR)
    a(f"v_sqrt_f32 v{VAR}, v{VAR}")
    a("s_waitcnt lgkmcnt(1)")
    pkadd(GU + 8, GU + 8, GU + 12); pkadd(GU + 10, GU + 10, GU + 14)
    for i in (0, 2): a(f"v_pk_fma_f32 {q2(GU+i)}, {q2(CS+i)}, {q2(MU)}, {q2(GU+i)} op_sel_hi:[1,0,1] neg_lo:[0,1,0] neg_hi:[0,1,0]")
    pkadd(GU, GU, GU + 8); pkadd(GU + 2, GU + 2, GU + 10)
    bf16r(VAR, VAR)
    for i in range(4): a(f"v_add_f32_dpp v{GU+i}, v{GU+i}, v{GU+i} row_ror:4 {DPPF}")
    a(f"v_rcp_f32 v{VAR}, v{VAR}")
    for i in range(4): a(f"v_add_f32_dpp v{GU+i}, v{GU+i}, v{GU+i} row_ror:8 {DPPF}")
    for i in (0, 2): a(f"v_pk_mul_f32 {q2(GU+i)}, {q2(GU+i)}, {q2(VAR)} op_sel_hi:[1,0]")
    a(f"v_cvt_pk_bf16_f32 v{GU}, v{GU}, v{GU+1}")
    unpack(GU, GU + 1, GU)
    a(f"v_pk_mul_f32 {q2(GU+4)}, {q2(GU)}, s[{sNL}:{sNL+1}]")
    for i in range(2): a(f"v_exp_f32 v{GU+4+i}, v{GU+4+i}")
    a(f"v_cvt_pk_bf16_f32 v{GU+2}, v{GU+2}, v{GU+3}")
    a(f"v_pk_add_f32 {q2(GU+4)}, {q2(GU+4)}, 1.0 op_sel_hi:[1,0]")
    for i in range(2): a(f"v_rcp_f32 v{GU+4+i}, v{GU+4+i}")
    unpack(GU + 2, GU + 3, GU + 2)
    a(f"v_pk_mul_f32 {q2(GU)}, {q2(GU)}, {q2(GU+4)}")
    a(f"v_cvt_pk_bf16_f32 v{GU}, v{GU}, v{GU+1}")
    unpack(GU, GU + 1, GU)
    a(f"v_pk_mul_f32 {q2(GU)}, {q2(GU)}, {q2(GU+2)}")
    a(f"v_cvt_pk_bf16_f32 v{vPK}, v{GU}, v{GU+1}")
    DE, DO = vD, vA + 4

    def ag(G, rs=range(4)):
        for r in rs: a(f"v_mov_b32_dpp v{AG+4*G+r}, v{vPK} row_newbcast:{r} row_mask:0xf bank_mask:{1 << G:#x}")
    ag(0); ag(1, (0, 1))
    for G in range(4):
        mm(DE, AG + 4 * G, BD + 8 * G, G == 0)
        if G < 3: ag(G + 1, (2, 3))
        mm(DO, AG + 4 * G, BD + 8 * G + 4, G == 0)
        if G < 2: ag(G + 2, (0, 1))
    FR = ACC
    a(f"s_lshl_b32 s{sT3}, s{sW}, 5"); a(f"s_add_u32 s{sT3}, s{sT3}, s{sROLE}"); a(f"s_cmp_ge_u32 s{sT3}, 32")
    put_tag(DE + 1, DO)
    a(f"buffer_store_dwordx2 {q2(DE)}, v{vY2}, {srd(rWS)}, s{sT2} offen sc1")
    stamp("pub")
    a("s_cbranch_scc1 L_exit")
    a(f"v_mov_b32 v{FR+8}, 0"); a(f"v_mov_b32 v{FR+10}, 0")
    a("s_waitcnt lgkmcnt(0)")
    a(f"v_lshlrev_b32 v{vFH}, 16, v{vFH}")
    if fwait: a("s_waitcnt vmcnt(0)")
    poll([f"buffer_load_dwordx4 {q4(FR)}, v{vFA}, {srd(rWS)}, s{sF0} offen sc1",
          f"buffer_load_dwordx4 {q4(FR+4)}, v{vFA}, {srd(rWS)}, s{sF0+1} offen sc1",
          f"v_mov_b32 v{FR+9}, s{sTG8}", f"v_mov_b32 v{FR+11}, s{sTG8}",
          "s_mov_b32 exec_hi, 0xfff",
          f"buffer_load_dwordx4 {q4(FR+8)}, v{vFA}, {srd(rWS)}, s{sF0+2} offen sc1",
          "s_mov_b32 exec_hi, -1"], [FR + 2 * t + 1 for t in range(6)], TMP)
    stamp("fgot")
    for i in (0, 2): pkadd(FR + i, FR + i, FR + 4 + i)
    for i in (0, 2): pkadd(FR + i, FR + i, FR + 8 + i)
    a(f"v_permlane32_swap_b32 v{FR}, v{FR+2}"); a(f"v_permlane32_swap_b32 v{FR+1}, v{FR+3}")
    pkadd(FR, FR, FR + 2)
    a(f"v_permlane16_swap_b32 v{FR}, v{FR+1}")
    a(f"v_add_f32 v{FR}, v{FR}, v{FR+1}")
    for m in ("row_ror:4", "row_ror:8"): a(f"v_add_f32_dpp v{FR}, v{FR}, v{FR} {m} {DPPF}")
    a("s_mov_b32 exec_lo, 0x000f000f"); a("s_mov_b32 exec_hi, 0x000f000f")
    bf16r(FR, FR); a(f"v_add_f32 v{FR}, v{FR}, v{vFH}")
    a(f"v_cvt_pk_bf16_f32 v{FR}, v{FR}, v{FR}")
    a(f"buffer_store_short v{FR}, v{vFO}, {srd(rO)}, 0 offen")
    if amp:
        a(f"s_memrealtime s[{sE}:{sE+1}]"); a("s_waitcnt lgkmcnt(0)")
        a(f"s_sub_u32 s{sT0}, s{sST+2}, s{sST}")
        if len(amp) > 2 and amp[2] == "inv": a(f"s_sub_u32 s{sT0}, 2500, s{sT0}")
        if len(amp) > 2 and amp[2] == "fix": a(f"s_mov_b32 s{sT0}, 100")
        if len(amp) > 3: diag_stat()
        a(f"s_mul_i32 s{sT0}, s{sT0}, {amp[1]}")
        a(f"s_min_u32 s{sT0}, s{sT0}, 200000"); a(f"s_mov_b32 s{sT1}, s{sE}")
        a("L_amp:"); a(f"s_memrealtime s[{sE}:{sE+1}]"); a("s_waitcnt lgkmcnt(0)")
        a(f"s_sub_u32 s{sT2}, s{sE}, s{sT1}"); a(f"s_cmp_lt_u32 s{sT2}, s{sT0}"); a("s_cbranch_scc1 L_amp")
    a("L_exit:")
    if stamps:
        a("s_mov_b64 exec, -1")
        stamp("exit")
        a(f"v_writelane_b32 v{vSTAMP}, s{sROLE}, 14")
        a(f"s_mul_i32 s{sT0}, s2, {NWAVE}"); a(f"s_add_u32 s{sT0}, s{sT0}, s{sW}"); a(f"s_add_u32 s{sT0}, s{sT0}, 1")
        a(f"s_lshl_b32 s{sT0}, s{sT0}, {8 if trace else 6}"); a(f"s_add_u32 s{sT0}, s{sT0}, {STAMP}")
        a(f"v_lshlrev_b32 v{vSTAMP+1}, 2, v{vL}")
        if not trace: a("s_mov_b64 exec, 0xffff")
        a(f"buffer_store_dword v{vSTAMP}, v{vSTAMP+1}, {srd(rWS)}, s{sT0} offen")
    a("L_end:")
    a("s_endpgm")
    a("L_epoch:")
    a(f"s_lshl_b32 s{sT0}, s{sROLE}, 3"); a(f"s_add_u32 s{sT0}, s{sT0}, s{sW}"); a(f"s_cmp_lg_u32 s{sT0}, 4"); a("s_cbranch_scc1 L_exit")
    a(f"s_mov_b32 s{sT0}, {EPOCH}"); a(f"s_or_b32 s{sT1}, s{sTAG}, s{sTG8}"); a(f"v_mov_b32 v3, s{sT1}"); a("s_mov_b64 exec, 1")
    a(f"buffer_store_dword v3, off, {srd(rWS)}, s{sT0} sc1")
    a("L_last:")
    a("s_branch L_exit")
    assert not far

    out = HEADER + f"; @launch grid=(256,1,1) block=({64*NWAVE},1,1) lds={L_END}\n"
    out += f'.amdgcn_target "amdgcn-amd-amdhsa--gfx950"\n.text\n.globl {KNAME}\n.p2align 8\n.type {KNAME},@function\n'
    out += a.render()
    out += f'''.section .rodata,"a"
.p2align 6
.amdhsa_kernel {KNAME}
  .amdhsa_next_free_vgpr {NV}
  .amdhsa_next_free_sgpr 98
  .amdhsa_accum_offset {NV}
  .amdhsa_group_segment_fixed_size 0
  .amdhsa_kernarg_size 96
  .amdhsa_user_sgpr_count 2
  .amdhsa_user_sgpr_kernarg_segment_ptr 1
  .amdhsa_system_sgpr_workgroup_id_x 1
  .amdhsa_float_denorm_mode_32 3
.end_amdhsa_kernel
'''
    return out


if __name__ == "__main__":
    kw = {}
    for arg in sys.argv[2:]:
        k, v = arg.split("=")
        kw[k] = eval(v)
    open(sys.argv[1], "w").write(gen(**kw))
```

```python
import sys
from asmlib import Asm

KNAME = "sequential_preLN__sliding_block_cached__swiglu_ffn__decode_kernel"
HEADER = open("sequential_preLN__sliding_block_cached__swiglu_ffn__decode.s.ref").read().split("; Override launch")[0]

LOG2E = 0x3FB8AA3B
SCALE = 0x3DB504F3
EPS = 0x3727C5AC

SLOT = 512
MB1 = 0
MB2 = 256 * SLOT
MB3 = MB2 + 2 * 8 * 2048
MBQ = MB2 + 256 * 512
MBM = MBQ + 256 * 1024
EPOCH = MBM + 256 * 128
STAMP = 1 << 20
WS_SIZE = 2 << 20
PROW = 608
L_QB, L_ST, L_F, L_MODE, L_C, L_H, L_OP, L_P16 = 0, 256, 320, 352, 384, 512, 2048, 2048 + 8192
L_END = L_P16 + 16 * PROW

NT2 = 43
NWAVE = 9
DPPF = "row_mask:0xf bank_mask:0xf"
STAMPS = ["start", "args", "x", "qpub", "qgot", "p", "cbar", "obar", "ready", "got", "pub", "fgot", "exit"]

sH, sSP, sW, sTAG, sBUD = 3, 4, 5, 6, 7
pX, pK, pV, pWQ, pWO, pWG, pWU, pWD, pOUT, pDBG, pWS = 8, 10, 12, 14, 16, 20, 22, 24, 26, 28, 30
sMW, sXT = 18, 19
rK, rV, rQ, rX, rWS, rO, rT = 32, 36, 40, 44, 48, 52, 56
sOFF = 60
sT0, sT1, sT2, sT3 = 76, 77, 78, 79
sROLE, sIDX = 80, 81
sE = 82
sXCC, sU = 84, 85
sST = 86
sUA, sMEM = 90, 91
sPFM, sPFM2 = 92, 96
sTG8, sMODE = 94, 95
vL, vKV = 1, 2
vSEL, vA, vD, vPK, vB = 4, 8, 16, 20, 21
vT = 22
KREG, VREG, XREG = 48, 112, 144
TREG = KREG
vFF, vZERO = 164, 165
vSTAMP = 166
NV = 168


def q4(r): return f"v[{r}:{r+3}]"
def q2(r): return f"v[{r}:{r+1}]"
def srd(r): return f"s[{r}:{r+3}]"


def gen(W=4, stamps=False, budget=1 << 18, gpos=15, cpos=10, local=True, psleep=0, amp=None, only=None,
        abl=(), hprio=1, bar0=-1, pfffn=True, pfcode=True, copies=True, fwait=True, trace=False, pfs=4, pfat=(12, 13, 14, 15), e1=(12, 13, 14, 15), bare=True, k0=4, pat="jjjsssj", qwait="ack", mlwait="ack", wtafter=1, ffat=(), outpol="", fpol="sc1", fpriv=True, wb=False,
        early_poll=True, hsleep=2, sync=()):
    assert 4 <= W <= 7 and bar0
    nwo = len(pfat)
    a = Asm()
    far = []

    def stamp(name):
        i = STAMPS.index(name)
        if stamps:
            if only and name not in only and name not in ("start", "exit"): return
            a(f"s_memrealtime s[{sST}:{sST+1}]"); a("s_waitcnt lgkmcnt(0)"); a(f"v_writelane_b32 v{vSTAMP}, s{sST}, {i}")
        elif amp and name == "start": a(f"s_memrealtime s[{sST}:{sST+1}]")
        elif amp and name == amp[0]: a(f"s_memrealtime s[{sST+2}:{sST+3}]\ns_waitcnt lgkmcnt(0)")

    def diag_store():
        only_wave(2, "L_nodiag")
        a(f"s_lshl_b32 s{sT1}, s2, 2"); a(f"s_add_u32 s{sT1}, s{sT1}, {STAMP}"); a(f"v_mov_b32 v46, s{sST + (0 if amp[0] == 'start' else 2)}"); a("s_mov_b64 exec, 1")
        a(f"buffer_store_dword v46, off, {srd(rWS)}, s{sT1} sc1"); a("s_mov_b64 exec, -1")
        a("L_nodiag:")

    def diag_stat():
        a(f"s_mov_b32 s{sT0}, 0"); a(f"s_cmp_lg_u32 s{sROLE}, 0"); a("s_cbranch_scc1 L_dodelay")
        a("s_mov_b64 exec, -1"); a(f"s_mov_b32 s{sT1}, {STAMP}"); a(f"v_lshlrev_b32 v24, 2, v{vL}")
        for t in range(4): a(f"buffer_load_dword v{28+t}, v24, {srd(rWS)}, s{sT1} offen offset:{256*t} sc1")
        a("s_waitcnt vmcnt(0)")
        for t in range(4): a(f"v_subrev_u32 v{28+t}, s{sST}, v{28+t}"); a(f"v_add_u32 v{28+t}, 0x10000, v{28+t}")
        a("v_min3_u32 v32, v28, v29, v30"); a("v_min_u32 v32, v32, v31"); wave_red("v_min_u32", 32, sT2)
        for t in range(4): a(f"v_subrev_u32 v{28+t}, s{sT2}, v{28+t}")
        kind, par = amp[2], amp[3]
        if kind == "range":
            a("v_max3_u32 v32, v28, v29, v30"); a("v_max_u32 v32, v32, v31"); wave_red("v_max_u32", 32, sT0)
        elif kind == "mean":
            a("v_add3_u32 v32, v28, v29, v30"); a("v_add_u32 v32, v32, v31"); wave_red("v_add_u32", 32, sT0); a(f"s_lshr_b32 s{sT0}, s{sT0}, 8")
        elif kind == "count":
            for t in range(4):
                a(f"v_cmp_lt_u32 vcc, {par}, v{28+t}"); a(f"s_bcnt1_i32_b64 s{sT1}, vcc"); a(f"s_add_u32 s{sT0}, s{sT0}, s{sT1}")
        elif kind == "groups":
            a("v_max3_u32 v32, v28, v29, v30"); a("v_max_u32 v32, v32, v31"); a(f"v_cmp_lt_u32 vcc, {par}, v32")
            a(f"s_or_b32 s{sT1}, vcc_lo, vcc_hi"); a(f"s_lshr_b32 s{sT2}, s{sT1}, 16"); a(f"s_or_b32 s{sT1}, s{sT1}, s{sT2}")
            a(f"s_lshr_b32 s{sT2}, s{sT1}, 8"); a(f"s_or_b32 s{sT1}, s{sT1}, s{sT2}"); a(f"s_and_b32 s{sT1}, s{sT1}, 0xff"); a(f"s_bcnt1_i32_b32 s{sT0}, s{sT1}")
        elif kind == "quarter":
            wave_red("v_add_u32", 28 + par, sT0); a(f"s_lshr_b32 s{sT0}, s{sT0}, 6")
        a("L_dodelay:")

    def tr(i):
        if trace:
            a(f"s_memrealtime s[{sST}:{sST+1}]"); a("s_waitcnt lgkmcnt(0)"); a(f"v_writelane_b32 v{vSTAMP}, s{sST}, {16+i}")

    def mksrd(r, p, size, add=None):
        if add is None:
            a(f"s_mov_b32 s{r}, s{p}"); a(f"s_mov_b32 s{r+1}, s{p+1}")
        else:
            a(f"s_add_u32 s{r}, s{p}, s{add}"); a(f"s_addc_u32 s{r+1}, s{p+1}, 0")
        a(f"s_mov_b32 s{r+2}, {size}"); a(f"s_mov_b32 s{r+3}, 0x20000")

    def bf16r(d, s):
        a(f"v_cvt_pk_bf16_f32 v{d}, v{s}, v{s}"); a(f"v_lshlrev_b32 v{d}, 16, v{d}")

    def unpack(lo, hi, s):
        a(f"v_and_b32 v{hi}, 0xffff0000, v{s}"); a(f"v_lshlrev_b32 v{lo}, 16, v{s}")

    def pkadd(d, x, y): a(f"v_pk_add_f32 {q2(d)}, {q2(x)}, {q2(y)}")

    def wave_red(op, v, s):
        for m in ("quad_perm:[1,0,3,2]", "quad_perm:[2,3,0,1]", "row_half_mirror", "row_mirror"):
            a(f"{op}_dpp v{v}, v{v}, v{v} {m} {DPPF}")
        a(f"{op}_dpp v{v}, v{v}, v{v} row_bcast:15 row_mask:0xa bank_mask:0xf")
        a(f"{op}_dpp v{v}, v{v}, v{v} row_bcast:31 row_mask:0xc bank_mask:0xf")
        a(f"v_readlane_b32 s{s}, v{v}, 63")

    def red8(op, *vs):
        for m in ("quad_perm:[1,0,3,2]", "quad_perm:[2,3,0,1]", "row_half_mirror"):
            for v in vs: a(f"{op}_dpp v{v}, v{v}, v{v} {m} {DPPF}")

    def build_a(j):
        A = vA + 4 * (j & 1)
        a(f"v_mov_b32_dpp v{vB}, v{vPK} row_newbcast:{j} {DPPF}")
        for r in range(4):
            a(f"v_perm_b32 v{A+r}, v{vB}, v{vB}, v{vSEL+r}")

    def mm(d, x, y, first):
        a(f"v_mfma_f32_16x16x32_bf16 {q4(d)}, {q4(x)}, {q4(y)}, {'0' if first else q4(d)}")

    def mfma(j, b, first): mm(vD, vA + 4 * (j & 1), b, first)

    def gemv(n, breg):
        build_a(0)
        for j in range(n):
            if j + 1 < n: build_a(j + 1)
            mfma(j, breg + 4 * j, j == 0)

    def red16(vaddr, v, mid=None):
        for t in range(4):
            a(f"ds_read2st64_b64 {q4(v+4*t)}, v{vaddr} offset0:{2*t} offset1:{2*t+1}")
        a("s_waitcnt lgkmcnt(2)")
        pkadd(v, v, v + 2); pkadd(v + 4, v + 4, v + 6); pkadd(v, v, v + 4)
        if mid: mid()
        a("s_waitcnt lgkmcnt(0)")
        pkadd(v + 8, v + 8, v + 10); pkadd(v + 12, v + 12, v + 14); pkadd(v + 8, v + 8, v + 12)
        pkadd(v + 2, v, v + 8); pkadd(v, v, v + 8)
        a(f"v_permlane32_swap_b32 v{v}, v{v+2}"); a(f"v_permlane32_swap_b32 v{v+1}, v{v+3}")
        pkadd(v, v, v + 2)

    def vor(tmp, rs):
        rs = list(rs)
        if len(rs) == 2:
            a(f"v_or_b32 v{tmp}, v{rs[0]}, v{rs[1]}"); return
        a(f"v_or3_b32 v{tmp}, v{rs[0]}, v{rs[1]}, v{rs[2]}"); rs = rs[3:]
        while rs:
            if len(rs) >= 2:
                a(f"v_or3_b32 v{tmp}, v{tmp}, v{rs[0]}, v{rs[1]}"); rs = rs[2:]
            else:
                a(f"v_or_b32 v{tmp}, v{tmp}, v{rs[0]}"); rs = rs[1:]

    npoll = [0]

    def spend():
        a(f"s_sub_u32 s{sBUD}, s{sBUD}, 1"); a("s_cbranch_scc1 L_exit")

    def poll(loads, tagged, tmp, entry=None):
        n = npoll[0]; npoll[0] += 1
        a(f"L_poll{n}:")
        if psleep: a(f"s_sleep {psleep}")
        for ld in loads: a(ld)
        spend()
        if entry: a(entry + ":")
        a("s_waitcnt vmcnt(0)")
        for r in tagged: a(f"v_xor_b32 v{r}, s{sTG8}, v{r}")
        vor(tmp, tagged)
        a(f"v_cmp_ne_u32_sdwa vcc, v{tmp}, v{vZERO} src0_sel:BYTE_0 src1_sel:DWORD")
        a(f"s_cbranch_vccnz L_poll{n}")

    def poll_tag(loads, tmp, slack=0, retry=None):
        n = npoll[0]; npoll[0] += 1
        for t in range(len(loads)): a(f"s_mov_b64 s[{sOFF+2*t}:{sOFF+2*t+1}], -1")
        a(f"L_poll{n}:")
        for t, ld in enumerate(loads):
            a(f"s_mov_b64 exec, s[{sOFF+2*t}:{sOFF+2*t+1}]"); a(ld[0])
        a("s_mov_b64 exec, -1")
        spend()
        a("s_waitcnt vmcnt(0)")
        a(f"s_mov_b64 s[{sE}:{sE+1}], 0")
        for t, (_, rs) in enumerate(loads):
            m = f"s[{sOFF+2*t}:{sOFF+2*t+1}]"
            a(f"v_xor_b32 v{tmp}, s{sTAG}, v{rs[0]}"); a(f"v_xor_b32 v{tmp+1}, s{sTAG}, v{rs[1]}"); a(f"v_or_b32 v{tmp}, v{tmp}, v{tmp+1}")
            a(f"v_cmp_lt_u32 {m}, {(1 << slack) - 1}, v{tmp}")
            a(f"s_or_b64 s[{sE}:{sE+1}], s[{sE}:{sE+1}], {m}")
        if retry is None:
            a(f"s_cbranch_scc1 L_poll{n}")
        else:
            a(f"s_cbranch_scc1 L_pagain{n}")

            def again():
                a(f"L_pagain{n}:"); retry(); a(f"s_branch L_poll{n}")
            far.append(again)

    def put_tag(d, s):
        a(f"v_bfi_b32 v{d}, v{vFF}, s{sTG8}, v{s}")

    nst = [0]

    def mode_store(text):
        if not local:
            a(text + " sc1"); return
        n = nst[0]; nst[0] += 1
        a(f"s_cbranch_scc1 L_stfar{n}")
        a(text)
        a(f"L_stdone{n}:")

        def other():
            a(f"L_stfar{n}:"); a(text + " sc1"); a(f"s_branch L_stdone{n}")
        far.append(other)

    def emit_far():
        for f in list(far): f()
        far.clear()

    def only_wave(w, label):
        a(f"s_cmp_lg_u32 s{sW}, {w}"); a(f"s_cbranch_scc1 {label}")

    def selectors():
        t0, t1, t2 = 32, 33, 34
        a(f"v_and_b32 v{t0}, 8, v0"); a(f"v_mov_b32 v{t1}, 0x0100"); a(f"v_mov_b32 v{t2}, 0x0302")
        a(f"v_cmp_ne_u32 vcc, 0, v{t0}"); a(f"v_cndmask_b32 v{t1}, v{t1}, v{t2}, vcc")
        a(f"v_or_b32 v{t2}, 0x0c0c0000, v{t1}")
        a(f"v_lshlrev_b32 v{t1}, 16, v{t1}"); a(f"v_or_b32 v{t1}, 0x0c0c, v{t1}")
        a(f"v_and_b32 v{t0}, 1, v0"); a(f"v_cmp_ne_u32 vcc, 0, v{t0}"); a(f"v_cndmask_b32 v{t1}, v{t2}, v{t1}, vcc")
        a(f"v_bfe_u32 v{t0}, v0, 1, 2"); a(f"v_mov_b32 v{t2}, 0x0c0c0c0c")
        for r in range(4):
            a(f"v_cmp_eq_u32 vcc, {r}, v{t0}"); a(f"v_cndmask_b32 v{vSEL+r}, v{t2}, v{t1}, vcc")

    def tag_from_epoch():
        a(f"s_add_u32 s{sTG8}, s{sTAG}, 1"); a(f"s_and_b32 s{sTG8}, s{sTG8}, 0xff")
        a(f"s_lshr_b32 s{sTAG}, s{sTAG}, 8"); a(f"s_mul_i32 s{sTAG}, s{sTAG}, 0x9e3779b1")
        a(f"s_add_u32 s{sTAG}, s{sTAG}, 0x7f4a7c15"); a(f"s_lshl_b32 s{sTAG}, s{sTAG}, 8")

    def role():
        a(f"s_and_b32 s{sT1}, s{sH}, 7"); a(f"s_min_u32 s{sT2}, s{sT1}, 3"); a(f"s_mul_i32 s{sUA}, s{sT1}, 5"); a(f"s_add_u32 s{sUA}, s{sUA}, s{sT2}")
        a(f"s_cmp_lt_u32 s{sT1}, 3"); a(f"s_cselect_b32 s{sT2}, 6, 5")
        a(f"s_lshr_b32 s{sMEM}, s2, 3")
        a(f"s_sub_u32 s{sT1}, s{sMEM}, 8"); a(f"s_add_u32 s{sT3}, s{sT1}, s{sUA}")
        a(f"s_cmp_lt_u32 s{sT1}, s{sT2}"); a(f"s_cselect_b32 s{sROLE}, s{sT3}, 63")
        a(f"s_add_u32 s{sT3}, s{sMEM}, 64")
        a(f"s_cmp_lt_u32 s{sMEM}, 8"); a(f"s_cselect_b32 s{sROLE}, s{sT3}, s{sROLE}")
        if "role" in abl: a(f"s_mov_b32 s{sROLE}, 63")

    T, MM = 26, 30

    nlds = [0]

    def lds_wait(read, regs_, sleep=0):
        n = nlds[0]; nlds[0] += 1
        a(f"L_lds{n}:")
        a(read)
        a("s_waitcnt lgkmcnt(0)")
        rs = list(regs_)
        if len(rs) == 1: a(f"v_cmp_eq_u32 vcc, -1, v{rs[0]}")
        else:
            if len(rs) == 2: a(f"v_max_u32 v{vB}, v{rs[0]}, v{rs[1]}")
            else: a(f"v_max3_u32 v{vB}, v{rs[0]}, v{rs[1]}, v{rs[2]}"); a(f"v_max_u32 v{vB}, v{vB}, v{rs[3]}")
            a(f"v_cmp_eq_u32 vcc, -1, v{vB}")
        a(f"s_cbranch_vccnz L_ldsagain{n}")

        def again():
            a(f"L_ldsagain{n}:")
            if sleep: a(f"s_sleep {sleep}")
            spend(); a(f"s_branch L_lds{n}")
        far.append(again)

    seq = [("k", j) for j in range(16)]
    npre = 0
    for j in range(16):
        seq.append(("v", j))
        if j < 16 - W:
            for _ in range(pfat.count(j)):
                seq.append(("p", npre)); npre += 1
    pos = {op: i for i, op in enumerate(seq)}
    issued, done = [0], [0]
    def vreg(j): return VREG + 4 * j if j < 8 else KREG + 16 + 4 * (j - 8)

    def issue_to(n):
        while issued[0] < min(n, len(seq)):
            kind, j = seq[issued[0]]
            if kind == "k": a.vmem(f"buffer_load_dwordx4 {q4(KREG+4*j)}, v{vKV}, {srd(rK)}, s{sOFF+j} offen nt", (kind, j))
            elif kind == "p":
                a(f"s_mov_b64 exec, s[{sPFM}:{sPFM+1}]")
                a.vmem(f"global_load_dwordx4 {q4(KREG+48)}, {q2(XREG+18)}, off", (kind, j))
                a("s_mov_b64 exec, -1")
                if j + 1 < nwo: a(f"v_lshl_add_u64 {q2(XREG+18)}, {q2(XREG+18)}, 0, s[{sE}:{sE+1}]")
            else: a.vmem(f"buffer_load_dwordx4 {q4(vreg(j))}, v{vKV}, {srd(rV)}, s{sOFF+j} offen nt", (kind, j))
            issued[0] += 1

    def advance(upto):
        while done[0] <= pos[upto]:
            a.wait_vm(seq[done[0]]); done[0] += 1
            issue_to(done[0] + W)
            if seq[done[0] - 1][0] != "p": tr(seq[done[0] - 1][1] + 16 * (seq[done[0] - 1][0] == "v"))

    def ids():
        a(f"s_and_b32 s{sH}, s2, 31"); a(f"s_lshr_b32 s{sSP}, s2, 5")

    def ids2():
        a(f"s_mov_b32 s{sBUD}, {budget}"); a(f"s_lshl3_add_u32 s{sIDX}, s{sH}, s{sSP}")
        a(f"s_getreg_b32 s{sXCC}, hwreg(HW_REG_XCC_ID, 0, 3)"); a(f"v_and_b32 v{vL}, 63, v0")

    def scatter(x, ch):
        return sum(((x >> k) & 1) << p for k, p in enumerate(13 + i for i, c in enumerate(pat) if c == ch))
    KVSIZE = scatter(15, "j") + 8192

    def offsets(js):
        for j in js:
            o = scatter(j, "j")
            a(f"s_movk_i32 s{sOFF+j}, {o:#x}" if o < 0x8000 else f"s_mov_b32 s{sOFF+j}, {o:#x}")

    def kv_base():
        ps = [13 + i for i, c in enumerate(pat) if c == "s"]
        a(f"s_lshl3_add_u32 s{sT0}, s{sH}, 7"); a(f"s_lshl_b32 s{sT0}, s{sT0}, 20")
        k = 0
        while k < 3:
            n = 1
            while k + n < 3 and ps[k + n] == ps[k] + n: n += 1
            if n == 3: a(f"s_lshl_b32 s{sT1}, s{sSP}, {ps[0]}")
            else: a(f"s_bfe_u32 s{sT1}, s{sSP}, {(n << 16) | k:#x}"); a(f"s_lshl_b32 s{sT1}, s{sT1}, {ps[k]}")
            a(f"s_add_u32 s{sT0}, s{sT0}, s{sT1}")
            k += n

    a(f"{KNAME}:")
    if stamps or amp: a(f"s_memrealtime s[{sST}:{sST+1}]")
    a(f"s_load_dwordx16 s[8:23], s[0:1], 0"); a("s_load_dwordx8 s[24:31], s[0:1], 64")
    a("s_cmpk_ge_u32 s2, 256"); a("s_cbranch_scc1 L_end")
    a(f"v_readfirstlane_b32 s{sW}, v0")
    a(f"s_cmpk_lt_u32 s{sW}, 64"); a("s_cbranch_scc1 L_helper0")
    a("v_subrev_u32 v0, 64, v0")
    if pfcode:
        a(f"s_getpc_b64 s[{sE}:{sE+1}]")
        a("L_pc:")
        a("v_lshlrev_b32 v24, 5, v0"); a("v_min_u32 v24, L_last-L_pc, v24")
        a(f"global_load_dword v3, v24, s[{sE}:{sE+1}]")
    ids()
    a(f"v_lshlrev_b32 v{vKV}, 4, v0")
    kv_base()
    offsets(range(W))
    a(f"s_mov_b32 s{rK+3}, 0x20000"); a(f"s_mov_b32 s{rK+2}, {KVSIZE:#x}")
    a("s_waitcnt lgkmcnt(0)")
    a(f"s_add_u32 s{rK}, s{pK}, s{sT0}"); a(f"s_addc_u32 s{rK+1}, s{pK+1}, 0")
    issue_to(k0)
    a("s_barrier")
    issue_to(W)
    a("s_branch L_stream")
    a(".p2align 8")

    a("L_helper0:")
    if hprio: a(f"s_setprio {hprio}")
    vXA, vXO, vQO = 22, 23, 3
    XA, XO = 28, 27
    a("v_lshlrev_b32 v24, 3, v0"); a("v_mov_b32 v30, -1"); a("v_mov_b32 v31, -1")
    a("ds_write_b64 v24, v[30:31]")
    ids()
    a(f"v_lshlrev_b32 v{vXA}, 4, v0")
    a("v_lshrrev_b32 v24, 4, v0"); a("v_and_b32 v25, 15, v0")
    a(f"s_lshl_b32 s{sT1}, s{sSP}, 6"); a(f"v_add_u32 v24, s{sT1}, v24")
    a(f"v_lshl_add_u32 v{vXO}, v25, 2, v24"); a(f"v_lshlrev_b32 v{vXO}, 1, v{vXO}")
    a(f"v_lshlrev_b32 v{vQO}, 13, v24"); a(f"v_lshl_add_u32 v{vQO}, v25, 4, v{vQO}")
    a(f"s_lshl_b32 s{sT0}, s{sH}, 8"); a(f"s_mov_b32 s{sT1}, 0x8000")
    a(f"s_mov_b32 s{rQ+2}, 0x400000"); a(f"s_mov_b32 s{rQ+3}, 0x20000")
    a("s_waitcnt lgkmcnt(0)")
    if bar0 == -1: a("s_barrier")
    a(f"global_load_dwordx4 {q4(XA)}, v{vXA}, s[{pX}:{pX+1}]")
    a(f"global_load_ushort v{XO}, v{vXO}, s[{pX}:{pX+1}]")
    a(f"s_mov_b64 s[{rQ}:{rQ+1}], s[{pWQ}:{pWQ+1}]")
    for j in range(16):
        a(f"buffer_load_dwordx4 {q4(KREG+4*j)}, v{vQO}, {srd(rQ)}, s{sT0} offen nt")
        if j < 15: a(f"s_add_u32 s{sT0}, s{sT0}, s{sT1}")
        if j == (15 if bar0 is True else bar0): a("s_barrier")
    a(f"s_mov_b32 s{sW}, -1")
    a("s_branch L_helper")

    a("L_stream:")
    if stamps: a(f"v_mov_b32 v{vSTAMP}, 0"); a(f"v_writelane_b32 v{vSTAMP}, s{sST}, 0")
    stamp("args")
    offsets(range(W, 16))
    a(f"s_lshr_b32 s{sW}, s{sW}, 6"); a(f"s_sub_u32 s{sW}, s{sW}, 1")
    ids2()
    mksrd(rV, pV, KVSIZE, sT0); mksrd(rX, pX, 1024)
    selectors()
    role()
    vG2, vJ, vSH, vOW, vRO, vP8, vPF, vPJ = range(XREG, XREG + 8)
    a(f"v_bfe_u32 v{vG2}, v0, 4, 2"); a(f"v_and_b32 v{vJ}, 7, v0"); a(f"v_bfe_u32 v{vSH}, v0, 3, 1")
    a(f"v_and_b32 v{vT}, 15, v0"); a(f"v_lshlrev_b32 v{vT}, 4, v{vT}")
    a(f"v_lshrrev_b32 v{vOW}, 5, v0"); a(f"v_lshlrev_b32 v{vOW}, 9, v{vOW}"); a(f"v_lshl_add_u32 v{vOW}, v{vT}, 1, v{vOW}")
    a(f"v_and_b32 v32, 1, v{vG2}"); a(f"v_lshl_add_u32 v{vOW}, v32, 4, v{vOW}")
    a(f"v_and_b32 v{vP8}, 31, v0"); a(f"v_lshlrev_b32 v{vP8}, 3, v{vP8}")
    a("v_bfe_u32 v32, v0, 5, 1"); a(f"v_lshl_add_u32 v{vRO}, v32, 12, v{vP8}")
    a(f"s_lshl_b32 s{sT1}, s{sW}, 8"); a(f"s_add_u32 s{sT2}, s{sT1}, {L_OP}"); a(f"v_add_u32 v{vRO}, s{sT2}, v{vRO}")
    a(f"s_lshl_b32 s{sU}, s{sIDX}, 9"); a(f"s_add_u32 s{sU}, s{sU}, s{sT1}")
    a(f"v_mov_b32 v{vFF}, 0xff"); a(f"v_mov_b32 v{vZERO}, 0")
    a(f"v_lshl_add_u32 v{vPJ}, v{vG2}, 3, v{vJ}")
    advance(("k", 3))
    a(f"s_load_dword s{sTAG}, s[{pWS}:{pWS+1}], {EPOCH}")
    mksrd(rWS, pWS, WS_SIZE)
    vAD64, vPA = XREG + 18, 44
    a(f"s_mov_b32 s{sE+1}, 0"); a("v_mov_b32 v33, 0"); a(f"s_mov_b32 s{sE}, 8192")
    a(f"s_sub_u32 s{sT2}, s{sSP}, {pfs}"); a(f"s_cselect_b32 s{sT2}, 0, s{sT2}")
    a(f"s_cselect_b64 s[{sPFM}:{sPFM+1}], 1, -1")
    a(f"s_cmp_ge_u32 s{sMEM}, 16"); a(f"s_cselect_b32 s{sPFM2}, -1, 0")
    a(f"s_mul_i32 s{sT2}, s{sT2}, {8192*nwo}"); a(f"s_min_u32 s{sT2}, s{sT2}, {131072 - 8192*nwo}")
    a(f"s_lshl_b32 s{sT1}, s{sH}, 17"); a(f"s_add_u32 s{sT1}, s{sT1}, s{sT2}")
    a(f"v_add_u32 v32, s{sT1}, v{vKV}")
    a(f"v_lshl_add_u64 {q2(vAD64)}, v[32:33], 0, s[{pWO}:{pWO+1}]")
    a(f"s_cmp_lt_u32 s{sROLE}, {NT2}"); a(f"s_cbranch_scc1 L_adT2")
    a(f"s_cmp_lt_u32 s{sROLE}, 64"); a(f"s_cbranch_scc1 L_adPF")
    a(f"v_lshl_add_u32 v32, v{vG2}, 4, v{vSH}")
    a(f"s_and_b32 s{sT1}, s{sH}, 7"); a(f"s_lshl_b32 s{sT1}, s{sT1}, 17")
    a(f"s_lshr_b32 s{sT2}, s{sW}, 1"); a(f"s_lshl_b32 s{sT2}, s{sT2}, 20"); a(f"s_add_u32 s{sT1}, s{sT1}, s{sT2}")
    a(f"s_and_b32 s{sT2}, s{sW}, 1"); a(f"s_lshl_b32 s{sT2}, s{sT2}, 16"); a(f"s_add_u32 s{sT1}, s{sT1}, s{sT2}")
    a(f"s_and_b32 s{sT2}, s{sROLE}, 7"); a(f"s_lshl_b32 s{sT2}, s{sT2}, 7"); a(f"s_add_u32 s{sT1}, s{sT1}, s{sT2}")
    a("v_lshlrev_b32 v32, 10, v32"); a(f"v_lshl_add_u32 v32, v{vJ}, 4, v32"); a(f"v_add_u32 v32, s{sT1}, v32")
    a(f"v_lshl_add_u64 {q2(vPA)}, v[32:33], 0, s[{pWO}:{pWO+1}]")
    a("s_branch L_addone")
    a("L_adT2:")
    a("v_and_b32 v32, 0x1f8, v0"); a("v_mul_u32_u24 v32, 2752, v32")
    a("v_and_b32 v34, 3, v0"); a("v_lshl_add_u32 v32, v34, 4, v32")
    a(f"s_lshl_b32 s{sT1}, s{sROLE}, 6"); a(f"v_add_u32 v32, s{sT1}, v32")
    a(f"v_lshl_add_u64 {q2(vPA)}, v[32:33], 0, s[{pWG}:{pWG+1}]")
    a("s_mov_b32 exec_lo, 0xf0f0f0f0"); a("s_mov_b32 exec_hi, 0xf0f0f0f0")
    a(f"v_lshl_add_u64 {q2(vPA)}, v[32:33], 0, s[{pWU}:{pWU+1}]")
    a("s_mov_b64 exec, -1")
    a("s_branch L_addone")
    a("L_adPF:")
    a(f"s_and_b32 s{sT1}, s{sH}, 7"); a(f"s_cmp_lt_u32 s{sT1}, 3"); a(f"s_cselect_b32 s{sT0}, 6, 5")
    a(f"s_lshl_b32 s{sT1}, s{sT0}, 6"); a(f"s_sub_u32 s{sT1}, s{sT1}, 4")
    a("v_and_b32 v32, 3, v0"); a("v_lshlrev_b32 v32, 7, v32"); a(f"v_min_u32 v32, s{sT1}, v32")
    a("v_bfe_u32 v34, v0, 3, 2"); a(f"v_mul_u32_u24 v34, 2752, v34"); a("v_add_u32 v32, v32, v34")
    a(f"s_and_b32 s{sT2}, s{sMEM}, 15"); a(f"s_lshl_b32 s{sT2}, s{sT2}, 3"); a(f"s_add_u32 s{sT2}, s{sT2}, s{sW}")
    a(f"s_mul_i32 s{sT1}, s{sT2}, {4*2752}"); a(f"s_lshl_b32 s{sT3}, s{sUA}, 6"); a(f"s_add_u32 s{sT1}, s{sT1}, s{sT3}")
    a(f"v_add_u32 v32, s{sT1}, v32")
    a(f"v_lshl_add_u64 {q2(vPA)}, v[32:33], 0, s[{pWG}:{pWG+1}]")
    a("s_mov_b32 exec_lo, 0xf0f0f0f0"); a("s_mov_b32 exec_hi, 0")
    a(f"v_lshl_add_u64 {q2(vPA)}, v[32:33], 0, s[{pWU}:{pWU+1}]")
    a("s_mov_b32 exec_lo, 0"); a("s_mov_b32 exec_hi, -1")
    a(f"s_lshl_b32 s{sT0}, s{sT0}, 1")
    a(f"s_mul_i32 s{sT2}, s{sT2}, s{sT0}"); a(f"s_lshl_b32 s{sT3}, s{sUA}, 8"); a(f"s_add_u32 s{sT2}, s{sT2}, s{sT3}")
    a(f"s_sub_u32 s{sT0}, s{sT0}, 1"); a("v_and_b32 v32, 15, v0"); a(f"v_min_u32 v32, s{sT0}, v32"); a(f"v_add_lshl_u32 v32, s{sT2}, v32, 7")
    a(f"v_lshl_add_u64 {q2(vPA)}, v[32:33], 0, s[{pWD}:{pWD+1}]")
    a("s_mov_b64 exec, -1")
    a("L_addone:")
    advance(("k", 8))
    a("s_waitcnt lgkmcnt(0)")
    if amp and len(amp) > 3 and amp[0] in ("start", "args"): diag_store()
    tag_from_epoch()

    def kv(n): return ("k", n) if n < 16 else ("v", n - 16)
    cur = [gpos]

    def step():
        cur[0] += 1; advance(kv(cur[0]))
    advance(kv(gpos))
    QP = 40
    lds_wait(f"ds_read_b128 {q4(QP)}, v{vT} offset:{L_QB}", range(QP, QP + 4))
    stamp("qgot")
    SJ = 24

    def dots(js):
        for i in range(4):
            for j in js:
                a(f"v_dot2_f32_bf16 v{SJ+j}, v{KREG+4*j+i}, v{QP+i}, {'0' if i == 0 else 'v%d' % (SJ+j)}")
    assert gpos >= 11
    assert issued[0] <= pos[("v", 8)]
    dots(range(4, 12))
    step()
    dots(range(4))
    while cur[0] < 15: step()
    dots(range(12, 16))
    step()
    for j in range(8):
        a(f"v_add_f32_dpp v{SJ+j}, v{SJ+j}, v{SJ+j} row_ror:8 row_mask:0xf bank_mask:0x3")
    for j in range(8):
        a(f"v_add_f32_dpp v{SJ+j}, v{SJ+j+8}, v{SJ+j+8} row_ror:8 row_mask:0xf bank_mask:0xc")
    for j in range(4):
        a(f"v_add_f32_dpp v{SJ+j}, v{SJ+j}, v{SJ+j} row_half_mirror row_mask:0xf bank_mask:0x5")
    for j in range(4):
        a(f"v_add_f32_dpp v{SJ+j}, v{SJ+j+4}, v{SJ+j+4} row_half_mirror row_mask:0xf bank_mask:0xa")
    for j in range(4):
        a(f"v_add_f32_dpp v{SJ+j}, v{SJ+j}, v{SJ+j} quad_perm:[1,0,3,2] {DPPF}")
    a("s_mov_b32 vcc_lo, 0xaaaaaaaa"); a("s_mov_b32 vcc_hi, 0xaaaaaaaa")
    a(f"v_cndmask_b32 v{SJ}, v{SJ}, v{SJ+1}, vcc"); a(f"v_cndmask_b32 v{SJ+2}, v{SJ+2}, v{SJ+3}, vcc")
    a(f"v_add_f32_dpp v{SJ}, v{SJ}, v{SJ} quad_perm:[2,3,0,1] {DPPF}")
    a(f"v_add_f32_dpp v{SJ+2}, v{SJ+2}, v{SJ+2} quad_perm:[2,3,0,1] {DPPF}")
    a("s_mov_b32 vcc_lo, 0xcccccccc"); a("s_mov_b32 vcc_hi, 0xcccccccc")
    SC = SJ
    a(f"v_cndmask_b32 v{SC}, v{SJ}, v{SJ+2}, vcc")
    bf16r(SC, SC); a(f"v_mul_f32 v{SC}, {SCALE:#x}, v{SC}"); bf16r(SC, SC)
    step()
    a(f"v_mov_b32 v{T}, v{SC}"); wave_red("v_max_f32", T, sMW)
    a(f"v_subrev_f32 v{SC}, s{sMW}, v{SC}"); a(f"v_mul_f32 v{SC}, {LOG2E:#x}, v{SC}"); a(f"v_exp_f32 v{SC}, v{SC}")

    def split_p():
        bf16r(T, SC); a(f"v_sub_f32 v{T}, v{SC}, v{T}")
        a(f"v_cvt_pk_bf16_f32 v{vPK}, v{SC}, v{T}")
    split_p()
    a(f"v_mov_b32 v{T}, v{SC}"); wave_red("v_add_f32", T, sT2)
    a(f"v_mov_b32 v{T}, s{sMW}"); a(f"v_mov_b32 v{T+1}, s{sT2}")
    a(f"s_lshl_b32 s{sT1}, s{sW}, 3"); a(f"v_mov_b32 v{T+2}, s{sT1}")
    a("s_mov_b64 exec, 1"); a(f"ds_write_b64 v{T+2}, {q2(T)} offset:{L_ST}"); a("s_mov_b64 exec, -1")
    stamp("p")

    for j in range(16 - W):
        build_a(j)
        if j % 4 == 0 and j + 16 <= cur[0] < 31 - W: step()
        advance(("v", j))
        mfma(j, vreg(j), j == 0)
        if j == cpos:
            a(f"v_lshrrev_b32 v{T+2}, 1, v{T+2}")
            lds_wait(f"ds_read_b32 v32, v{T+2} offset:{L_F}", [32])
            a(f"v_mul_f32 v{SC}, v{SC}, v32")
            for r in range(4): a(f"v_mul_f32 v{vD+r}, v{vD+r}, v32")
            split_p()
    assert issued[0] == len(seq) and cpos < 16 - W and all(p >= 16 - W for p in pfat) and len(e1) <= 4
    stamp("cbar")

    def tload(j):
        a(f"global_load_dwordx4 {q4(TREG+4*j)}, {q2(vPA)}, off")
        if j < 7: a(f"v_lshl_add_u64 {q2(vPA)}, {q2(vPA)}, 0, s[{sE}:{sE+1}]")

    def pv_tail(e):
        k = 0; kw_ = npre
        for j in range(16 - W, 16):
            build_a(j)
            a(f"s_waitcnt vmcnt({15 - j + k})")
            mfma(j, vreg(j), False)
            tr(16 + j)
            if e is not None:
                for _ in range(e.count(j)):
                    tload(k); k += 1
            else:
                for _ in range(pfat.count(j)):
                    a(f"s_mov_b64 exec, s[{sPFM}:{sPFM+1}]")
                    a(f"global_load_dwordx4 {q4(KREG+48)}, {q2(vAD64)}, off")
                    a("s_mov_b64 exec, -1")
                    k += 1; kw_ += 1
                    if kw_ < nwo: a(f"v_lshl_add_u64 {q2(vAD64)}, {q2(vAD64)}, 0, s[{sE}:{sE+1}]")
                for st, m in ffat:
                    if st == j:
                        a(f"s_and_b32 exec_lo, s{sPFM2}, {m & 0xffffffff:#x}"); a(f"s_and_b32 exec_hi, s{sPFM2}, {m >> 32:#x}"); a("s_or_b32 exec_lo, exec_lo, 1")
                        a(f"global_load_dword v3, {q2(vPA)}, off"); a("s_mov_b64 exec, -1")
                        k += 1
    assert len(pfat) == nwo
    if e1: a(f"s_cmp_ge_u32 s{sROLE}, 64"); a("s_cbranch_scc1 L_pv1")
    pv_tail(None)
    a("L_pvdone:")
    a(f"s_cmp_ge_u32 s{sW}, 2")
    a(f"ds_write_b128 v{vOW}, {q4(vD)} offset:{L_OP}")
    a("s_waitcnt lgkmcnt(0)"); a("s_barrier")
    stamp("obar")
    if amp and len(amp) > 3 and amp[0] == "obar":
        diag_store(); a(f"s_cmp_ge_u32 s{sW}, 2")
    a("s_cbranch_scc1 L_nopub")
    if local: a(f"ds_read_b32 v40, v{vZERO} offset:{L_MODE}")

    def getmode():
        a(f"v_readfirstlane_b32 s{sMODE}, v40"); a(f"s_cmp_lg_u32 s{sMODE}, 0")
    red16(vRO, 24, mid=getmode if local else None)
    a("s_mov_b32 exec_hi, 0")
    put_tag(25, 25)
    mode_store(f"buffer_store_dwordx2 v[24:25], v{vP8}, {srd(rWS)}, s{sU} offen")
    a("s_mov_b32 exec_hi, -1")
    a("L_nopub:")
    a(f"s_cmp_ge_u32 s{sROLE}, 64"); a("s_cbranch_scc1 L_T1")
    a("s_barrier")
    a(f"s_cmp_lt_u32 s{sROLE}, {NT2}"); a("s_cbranch_scc1 L_T2")
    rest = 0xfffffffffff
    for _, m in ffat: rest &= ~m
    if pfffn and rest:
        a(f"s_cmp_lt_u32 s{sMEM}, 16"); a("s_cbranch_scc1 L_exit")
        a(f"s_mov_b32 exec_lo, {rest & 0xffffffff:#x}"); a(f"s_mov_b32 exec_hi, {rest >> 32:#x}")
        a(f"global_load_dword v3, {q2(vPA)}, off")
    a("s_branch L_exit")
    emit_far()
    if e1:
        a("L_pv1:"); a(f"s_mov_b32 s{sE}, 2048"); pv_tail(e1); a("s_branch L_pvdone")

    a("L_helper:")
    if stamps: a(f"v_mov_b32 v{vSTAMP}, 0"); a(f"v_writelane_b32 v{vSTAMP}, s{sST}, 0")
    a(f"s_load_dword s{sTAG}, s[{pWS}:{pWS+1}], {EPOCH}")
    ids2()
    selectors()
    role()
    mksrd(rWS, pWS, WS_SIZE)
    a(f"v_mov_b32 v{vZERO}, 0")
    a(f"s_waitcnt vmcnt(16)")
    stamp("x")
    U = 32
    for i in range(4): unpack(U + 2 * i, U + 2 * i + 1, XA + i)
    S, M_, R_ = 40, 41, 42
    a(f"v_add_f32 v{S}, v{U}, v{U+1}")
    for i in range(2, 8): a(f"v_add_f32 v{S}, v{S}, v{U+i}")
    wave_red("v_add_f32", S, sT1)
    a(f"v_mov_b32 v{M_}, 0x3b000000"); a(f"v_mul_f32 v{M_}, s{sT1}, v{M_}")
    for i in range(8): a(f"v_sub_f32 v{U+i}, v{U+i}, v{M_}")
    a(f"v_mul_f32 v{S}, v{U}, v{U}")
    for i in range(1, 8): a(f"v_fmac_f32 v{S}, v{U+i}, v{U+i}")
    wave_red("v_add_f32", S, sT1)
    a(f"v_mov_b32 v{S}, 0x3b000000"); a(f"v_mul_f32 v{S}, s{sT1}, v{S}")
    bf16r(M_, M_); bf16r(S, S)
    a(f"v_add_f32 v{S}, {EPS:#x}, v{S}"); bf16r(S, S)
    a(f"v_sqrt_f32 v{S}, v{S}"); bf16r(S, S)
    a(f"v_rcp_f32 v{R_}, v{S}")
    a(f"v_lshlrev_b32 v{XO}, 16, v{XO}"); a(f"v_sub_f32 v{XO}, v{XO}, v{M_}"); bf16r(XO, XO)
    a(f"v_mul_f32 v{XO}, v{XO}, v{R_}")
    a(f"v_cvt_pk_bf16_f32 v{vPK}, v{XO}, 0")
    a(f"s_waitcnt lgkmcnt(0)")
    tag_from_epoch()
    for j in range(16):
        build_a(j)
        if j % 4 == 0: a(f"s_waitcnt vmcnt({12 - j})")
        mfma(j, KREG + 4 * j, j == 0)
    a("v_and_b32 v24, 15, v0"); a("v_bfe_u32 v25, v0, 4, 1"); a("v_lshrrev_b32 v26, 5, v0")
    a("v_lshlrev_b32 v24, 6, v24"); a("v_lshl_add_u32 v24, v25, 5, v24"); a("v_lshl_add_u32 v24, v26, 4, v24")
    a(f"s_lshl_b32 s{sT2}, s{sIDX}, 10"); a(f"s_add_u32 s{sT2}, s{sT2}, {MBQ}")
    a(f"s_xor_b32 s{sT3}, s{sTAG}, s{sXCC}")
    a(f"v_permlane32_swap_b32 v{vD}, v{vD+2}"); a(f"v_permlane32_swap_b32 v{vD+1}, v{vD+3}")
    a(f"v_mov_b32 v{vD+2}, v{vD+1}"); a(f"v_mov_b32 v{vD+1}, s{sTAG}"); a(f"v_mov_b32 v{vD+3}, s{sT3}")
    qstore = f"buffer_store_dwordx4 {q4(vD)}, v24, {srd(rWS)}, s{sT2} offen"
    if "hand" in abl: a("s_branch L_samedie")
    a(qstore + ("" if local else " sc1"))
    stamp("qpub")
    a(f"s_lshl_b32 s{sT0}, s{sH}, 13"); a(f"s_add_u32 s{sT0}, s{sT0}, {MBQ}"); a(f"s_add_u32 s{sU}, s{sT0}, 4096")
    a(f"s_mov_b32 s{sMODE}, 0")
    GQ = KREG

    def write_through_once(tag):
        a(f"s_cmp_lg_u32 s{sMODE}, 0"); a(f"s_cbranch_scc1 L_wt{tag}")
        a(qstore + " sc1"); a(f"s_mov_b32 s{sMODE}, 1")
        a(f"L_wt{tag}:")

    def q_retry():
        if wtafter > 1:
            a(f"s_add_u32 s{sT1}, s{sT1}, 1"); a(f"s_cmp_lt_u32 s{sT1}, {wtafter}"); a("s_cbranch_scc1 L_wta")
        write_through_once("a")
    a(f"s_mov_b32 s{sT1}, 0")
    if qwait == "ack": a("s_waitcnt vmcnt(0)")
    elif qwait: a(f"s_sleep {qwait}")
    poll_tag([(f"buffer_load_dwordx4 {q4(GQ+4*t)}, v{vXA}, {srd(rWS)}, s{sU if t >= 4 else sT0} offen offset:{(t&3)*1024} sc1", [GQ+4*t+1, GQ+4*t+3]) for t in range(8)],
             26, slack=3, retry=q_retry if local else None)
    if local:
        for t in range(8): a(f"v_xor_b32 v{GQ+4*t+3}, s{sT3}, v{GQ+4*t+3}")
        vor(26, [GQ + 4 * t + 3 for t in range(8)])
        a("v_cmp_ne_u32 vcc, 0, v26"); a("s_cbranch_vccz L_samedie")
        write_through_once("b")
        a("L_samedie:")
    for st in (16, 8, 4):
        for i in range(0, st, 2): a(f"v_add_f32 v{GQ+i}, v{GQ+i}, v{GQ+i+st}")
    a(f"v_cvt_pk_bf16_f32 v{GQ}, v{GQ}, v{GQ+2}"); a("v_lshlrev_b32 v25, 2, v0")
    a(f"v_min_u32 v{GQ}, -2, v{GQ}")
    a(f"ds_write_b32 v25, v{GQ} offset:{L_QB}")
    stamp("qgot")
    a("v_and_b32 v25, 3, v0"); a("v_bfe_u32 v26, v0, 2, 1"); a("v_lshlrev_b32 v25, 16, v25"); a("v_lshl_add_u32 v25, v26, 10, v25")
    a(f"s_and_b32 s{sT0}, s{sH}, 7"); a(f"s_lshl_b32 s{sT1}, s{sT0}, 13"); a(f"s_add_u32 s{sT1}, s{sT1}, {MBQ}")
    a(f"v_and_b32 v{T+2}, 7, v0"); a(f"v_lshlrev_b32 v{T+3}, 2, v{T+2}"); a(f"v_lshlrev_b32 v{T+2}, 3, v{T+2}")
    if local and "hand" not in abl: a(f"buffer_load_dword v40, v25, {srd(rWS)}, s{sT1} offen offset:12 sc1")
    lds_wait(f"ds_read_b64 {q2(T)}, v{T+2} offset:{L_ST}", [T, T + 1], sleep=hsleep)
    a(f"v_mov_b32 v{MM}, v{T}"); red8("v_max_f32", MM)
    a(f"v_sub_f32 v{T}, v{T}, v{MM}"); a(f"v_mul_f32 v{T}, {LOG2E:#x}, v{T}"); a(f"v_exp_f32 v{T}, v{T}")
    a(f"ds_write_b32 v{T+3}, v{T} offset:{L_F}")
    a(f"v_mov_b32 v36, v{MM}"); a(f"v_mov_b32 v37, s{sTAG}"); a(f"v_mul_f32 v38, v{T}, v{T+1}"); a(f"v_mov_b32 v39, s{sTAG}")
    red8("v_add_f32", 38)
    a(f"s_lshl_b32 s{sT1}, s{sIDX}, 7"); a(f"s_add_u32 s{sT1}, s{sT1}, {MBM}")
    if local:
        a("s_waitcnt vmcnt(0)")
        a(f"v_cmp_ne_u32 vcc, s{sT3}, v40"); a("s_cmp_lg_u64 vcc, 0"); a(f"s_cselect_b32 s{sMODE}, 1, 0")
        a(f"v_mov_b32 v40, s{sMODE}"); a("v_mov_b32 v41, 0")
    a("s_mov_b64 exec, 1")
    if local: a(f"ds_write_b32 v41, v40 offset:{L_MODE}")
    if "hand" not in abl: mode_store(f"buffer_store_dwordx4 v[36:39], off, {srd(rWS)}, s{sT1}")
    a("s_mov_b64 exec, -1")
    a("s_waitcnt lgkmcnt(0)")
    stamp("p")
    a(f"s_cmp_lt_u32 s{sROLE}, 64"); a(f"s_mov_b32 s{sROLE}, 63"); a("s_cbranch_scc1 L_exit")
    a("v_bfe_u32 v24, v0, 3, 2"); a("v_and_b32 v25, 7, v0"); a("v_lshlrev_b32 v24, 13, v24"); a("v_lshl_add_u32 v24, v25, 7, v24")
    a(f"s_lshl_b32 s{sT0}, s{sT0}, 10"); a(f"s_add_u32 s{sT0}, s{sT0}, {MBM}")
    if mlwait == "ack": a("s_waitcnt vmcnt(0)")
    elif mlwait: a(f"s_sleep {mlwait}")
    poll_tag([(f"buffer_load_dwordx4 v[32:35], v24, {srd(rWS)}, s{sT0} offen sc1", [33, 35])], 26)
    a("v_mov_b32 v36, v32"); red8("v_max_f32", 36)
    a("v_sub_f32 v32, v32, v36"); a(f"v_mul_f32 v32, {LOG2E:#x}, v32"); a("v_exp_f32 v32, v32")
    a("v_mul_f32 v34, v32, v34"); red8("v_add_f32", 34)
    a("v_rcp_f32 v34, v34"); a("v_and_b32 v24, 31, v0"); a("v_lshlrev_b32 v24, 2, v24")
    a("v_mul_f32 v32, v32, v34")
    a(f"ds_write_b32 v24, v32 offset:{L_C}")
    a("s_waitcnt lgkmcnt(0)")
    stamp("cbar")
    a("s_branch L_exit")
    emit_far()

    RAW, TMP = 40, 3

    def ror8_pair(v):
        for i in range(2): a(f"v_add_f32_dpp v{v+i}, v{v+i}, v{v+i} row_ror:8 {DPPF}")

    a("L_T1:")
    CW, vO, vPW, vYS = VREG, VREG + 4, VREG + 5, VREG + 6
    a(f"s_lshr_b32 s{sT1}, s{sW}, 1"); a(f"s_lshl_b32 s{sT0}, s{sT1}, 5"); a(f"v_lshl_add_u32 v{vO}, v{vSH}, 4, s{sT0}")
    a(f"ds_read_b128 {q4(CW)}, v{vO} offset:{L_C}")
    a(f"s_mov_b32 s{sE}, 2048")
    if bare and len(e1) < 8: a("s_barrier")
    for j in range(len(e1), 8): tload(j)
    a(f"s_and_b32 s{sT2}, s{sH}, 7"); a(f"s_lshl_b32 s{sT1}, s{sT1}, 3"); a(f"s_add_u32 s{sT3}, s{sT2}, s{sT1}")
    a(f"s_lshl_b32 s{sT3}, s{sT3}, 12"); a(f"s_and_b32 s{sT1}, s{sW}, 1"); a(f"s_lshl_b32 s{sT1}, s{sT1}, 8"); a(f"s_add_u32 s{sT1}, s{sT1}, s{sT3}")
    a(f"v_lshlrev_b32 v{vO}, 11, v{vSH}"); a(f"v_lshl_add_u32 v{vO}, v{vPJ}, 3, v{vO}")
    a(f"v_and_b32 v{vPW}, 0xfffffeff, v{vOW}")
    a(f"v_add_u32 v{vRO}, {L_P16 - L_OP}, v{vRO}")
    a(f"v_bfe_u32 v{vYS}, v0, 5, 1"); a(f"v_lshl_add_u32 v{vYS}, v{vYS}, 14, v{vP8}")
    a(f"s_lshl_b32 s{sT2}, s{sT2}, 11"); a(f"s_and_b32 s{sT3}, s{sROLE}, 7"); a(f"s_lshl_b32 s{sT3}, s{sT3}, 8")
    a(f"s_add_u32 s{sT2}, s{sT2}, s{sT3}"); a(f"s_add_u32 s{sT2}, s{sT2}, {MB2}")
    a(f"s_mov_b32 s{sE}, 0x00ff00ff"); a(f"s_mov_b32 s{sE+1}, 0xff00ff00")
    a("s_waitcnt lgkmcnt(0)")
    stamp("ready")
    poll([f"buffer_load_dwordx2 {q2(RAW+2*t)}, v{vO}, {srd(rWS)}, s{sT1} offen offset:{t*SLOT} sc1" for t in range(4)], [RAW + 2 * t + 1 for t in range(4)], TMP)
    stamp("got")
    a(f"v_pk_mul_f32 {q2(RAW)}, {q2(RAW)}, {q2(CW)} op_sel_hi:[1,0]")
    a(f"v_pk_fma_f32 {q2(RAW)}, {q2(RAW+2)}, {q2(CW)}, {q2(RAW)} op_sel:[0,1,0]")
    a(f"v_pk_fma_f32 {q2(RAW)}, {q2(RAW+4)}, {q2(CW+2)}, {q2(RAW)} op_sel_hi:[1,0,1]")
    a(f"v_pk_fma_f32 {q2(RAW)}, {q2(RAW+6)}, {q2(CW+2)}, {q2(RAW)} op_sel:[0,1,0]")
    ror8_pair(RAW)
    a(f"v_cvt_pk_bf16_f32 v{vPK}, v{RAW}, v{RAW+1}")
    gemv(8, TREG)
    a(f"s_mov_b64 exec, s[{sE}:{sE+1}]")
    a(f"s_cmp_lg_u32 s{sW}, 0")
    a(f"ds_write_b128 v{vPW}, {q4(vD)} offset:{L_P16}")
    a("s_mov_b64 exec, -1")
    a("s_waitcnt lgkmcnt(0)"); a("s_barrier")
    a("s_cbranch_scc1 L_exit")
    red16(vRO, 24)
    if not copies: a("s_mov_b32 exec_hi, 0")
    put_tag(25, 25)
    a(f"buffer_store_dwordx2 v[24:25], v{vYS}, {srd(rWS)}, s{sT2} offen sc1")
    if wb:
        a(f"s_cmp_lg_u32 s{sROLE}, 64"); a("s_cbranch_scc1 L_exit"); a("s_waitcnt vmcnt(0)"); a("buffer_wbl2 sc1")
    stamp("pub")
    a("s_branch L_exit")

    a("L_T2:")
    RD, BG, BD, ACC, AG = KREG + 32, VREG, KREG, KREG + 32, 24
    a(f"s_mov_b32 s{sE}, 2752")
    for j in range(8): tload(j)
    XP, vHA, vGU, vY2, vSR, vHW, vFA, vFO, vFH, vPW2 = range(XREG + 8, XREG + 18)
    XF = 12
    a(f"s_lshl_b32 s{sT1}, s{sW}, 7")
    a(f"v_lshlrev_b32 v{vHW}, 2, v{vPJ}")
    a(f"buffer_load_dword v{XP}, v{vHW}, {srd(rX)}, s{sT1} offen")
    a(f"v_add_u32 v{vHW}, s{sT1}, v{vHW}")
    a(f"s_cmp_ge_u32 s{sW}, 4"); a("s_cbranch_scc1 L_nodown")
    mksrd(rT, pWD, 1376 * 1024)
    a(f"v_lshl_add_u32 v30, v{vG2}, 11, v{vT}")
    a(f"s_lshl_b32 s{sT3}, s{sROLE}, 15"); a(f"s_lshl_b32 s{sU}, s{sW}, 8"); a(f"s_add_u32 s{sT3}, s{sT3}, s{sU}")
    for jj in range(4):
        for hi in range(2):
            a(f"buffer_load_dwordx4 {q4(RD+4*(jj+4*hi))}, v30, {srd(rT)}, s{sT3} offen offset:{hi*1024}")
        if jj < 3: a(f"s_add_u32 s{sT3}, s{sT3}, 8192")
    a("L_nodown:")
    a(f"v_lshlrev_b32 v{vHA}, 3, v{vPJ}"); a(f"v_lshl_add_u32 v{vHA}, v{vSH}, 13, v{vHA}")
    a(f"s_lshl_b32 s{sT0}, s{sW}, 8"); a(f"s_add_u32 s{sT0}, s{sT0}, {MB2}")
    if copies:
        a(f"s_lshr_b32 s{sT1}, s{sXCC}, 2"); a(f"s_lshl_b32 s{sT1}, s{sT1}, 14"); a(f"s_add_u32 s{sT0}, s{sT0}, s{sT1}")
    a(f"s_add_u32 s{sT1}, s{sT0}, 4096")
    a(f"s_mul_i32 s{sT2}, s{sW}, {2*PROW}"); a(f"s_add_u32 s{sT2}, s{sT2}, {L_P16}")
    a(f"v_mul_u32_u24 v{vPW2}, {PROW}, v{vSH}"); a(f"v_add_u32 v{vPW2}, s{sT2}, v{vPW2}")
    a("v_bfe_u32 v30, v0, 1, 1"); a(f"v_lshl_add_u32 v{vPW2}, v30, 4, v{vPW2}")
    a("v_bfe_u32 v30, v0, 2, 1"); a(f"v_lshl_add_u32 v{vPW2}, v30, 3, v{vPW2}")
    a("v_and_b32 v30, 1, v0"); a(f"v_lshl_add_u32 v{vPW2}, v30, 2, v{vPW2}")
    a(f"v_and_b32 v30, 1, v{vG2}"); a("v_mul_u32_u24 v30, 320, v30"); a(f"v_add_u32 v{vPW2}, v30, v{vPW2}")
    a("v_bfe_u32 v30, v0, 2, 2"); a(f"v_mul_u32_u24 v{vGU}, {4*PROW}, v30"); a(f"v_lshl_add_u32 v{vGU}, v{vG2}, 6, v{vGU}")
    a(f"v_and_b32 v31, 3, v0"); a(f"v_lshl_add_u32 v{vGU}, v31, 4, v{vGU}")
    a(f"v_mul_u32_u24 v{vSR}, {PROW // 16}, v{vT}"); a(f"v_add_u32 v{vSR}, {L_P16}, v{vSR}")
    a(f"v_lshlrev_b32 v{vY2}, 1, v{vT}"); a(f"v_lshl_add_u32 v{vY2}, v{vG2}, 3, v{vY2}")
    a(f"s_lshl_b32 s{sT2}, s{sROLE}, 11"); a(f"s_lshl_b32 s{sT3}, s{sW}, 9"); a(f"s_add_u32 s{sT2}, s{sT2}, s{sT3}"); a(f"s_add_u32 s{sT2}, s{sT2}, {MB3}")
    sFU = 68
    if fpriv:
        a(f"s_lshl_b32 s{sFU}, s{sROLE}, 1"); a(f"s_add_u32 s{sFU}, s{sFU}, s{sW}"); a(f"s_cmp_lt_u32 s{sW}, 2"); a(f"s_cselect_b32 s{sFU}, s{sFU}, 32")
    else:
        a(f"s_cmp_eq_u32 s{sW}, 0"); a(f"s_cselect_b32 s{sFU}, s{sROLE}, 32")
    a(f"s_min_u32 s{sFU}, s{sFU}, 32")
    a(f"v_lshrrev_b32 v{vFA}, 2, v{vL}"); a(f"v_lshlrev_b32 v{vFA}, 11, v{vFA}"); a(f"v_lshl_add_u32 v{vFA}, v31, 4, v{vFA}")
    a(f"v_lshl_add_u32 v{vFO}, v31, 2, v{vG2}"); a(f"s_lshl_b32 s{sT3}, s{sFU}, 4"); a(f"v_add_lshl_u32 v{vFO}, s{sT3}, v{vFO}, 1")
    sF0, sLO, sHI, sNL = 60, 64, 65, 66
    a(f"s_lshl_b32 s{sF0}, s{sFU}, 6"); a(f"s_add_u32 s{sF0}, s{sF0}, {MB3}"); a(f"s_add_u32 s{sF0+1}, s{sF0}, {16*2048}"); a(f"s_add_u32 s{sF0+2}, s{sF0}, {32*2048}")
    mksrd(rO, pOUT, 1024)
    a(f"s_mov_b32 s{sLO}, 0x05040100"); a(f"s_mov_b32 s{sHI}, 0x07060302")
    a(f"s_mov_b32 s{sNL}, {LOG2E ^ 0x80000000:#x}"); a(f"s_mov_b32 s{sNL+1}, {LOG2E ^ 0x80000000:#x}")
    a(f"s_mov_b32 s{sE}, 0xffff00ff"); a(f"s_mov_b32 s{sE+1}, 0x0000ff00")
    for r in range(4): a(f"v_mov_b32 v{vA+r}, 0x3f803f80")
    for r in range(16): a(f"v_mov_b32 v{AG+r}, 0")

    def transpose(dst, src):
        for q in range(4):
            for r in range(4):
                a(f"v_perm_b32 v{dst+8*q+r}, v{src+4*(2*r+1)+q}, v{src+4*(2*r)+q}, s{sLO}")
                a(f"v_perm_b32 v{dst+8*q+4+r}, v{src+4*(2*r+1)+q}, v{src+4*(2*r)+q}, s{sHI}")
    hloads = [f"buffer_load_dwordx2 {q2(RAW+2*t)}, v{vHA}, {srd(rWS)}, s{sT1 if t >= 2 else sT0} offen offset:{(t&1)*2048} sc1" for t in range(4)]
    a(f"s_cmp_ge_u32 s{sW}, 4"); a("s_cbranch_scc1 L_tr4")
    a("s_waitcnt vmcnt(8)")
    transpose(BG, TREG)
    a("s_waitcnt vmcnt(0)")
    if early_poll:
        for ld in hloads: a(ld)
    transpose(BD, RD)
    a("s_branch L_trdone")
    a("L_tr4:")
    a("s_waitcnt vmcnt(0)")
    if early_poll:
        for ld in hloads: a(ld)
    transpose(BG, TREG)
    a("L_trdone:")
    unpack(XF, XF + 1, XP)
    stamp("ready")
    if early_poll: a("s_branch L_hwait")
    poll(hloads, [RAW + 2 * t + 1 for t in range(4)], TMP, entry="L_hwait" if early_poll else None)
    stamp("got")
    pkadd(RAW, RAW, RAW + 2); pkadd(RAW + 4, RAW + 4, RAW + 6); pkadd(RAW, RAW, RAW + 4)
    a(f"s_cmp_ge_u32 s{sW}, 4")
    ror8_pair(RAW)
    a(f"v_cvt_pk_bf16_f32 v{RAW}, v{RAW}, v{RAW+1}")
    unpack(RAW, RAW + 1, RAW)
    pkadd(RAW, RAW, XF)
    a(f"v_cvt_pk_bf16_f32 v{vPK}, v{RAW}, v{RAW+1}")
    a(f"ds_write_b32 v{vHW}, v{vPK} offset:{L_H}")
    for r in range(4): a(f"v_mov_b32_dpp v{vA+r}, v{vPK} row_newbcast:{r} row_mask:0xf bank_mask:0x1")
    for r in range(4): a(f"v_mov_b32_dpp v{vA+r}, v{vPK} row_newbcast:{4+r} row_mask:0xf bank_mask:0x4")
    mm(vD, vA, vA, True)
    for i in range(8): mm(ACC + 4 * i, vA, BG + 4 * i, True)
    a(f"s_mov_b64 exec, s[{sE}:{sE+1}]")
    a(f"ds_write_b32 v{vPW2}, v{vD} offset:256")
    for k in range(4): a(f"ds_write2_b32 v{vPW2}, v{ACC+8*k}, v{ACC+8*k+4} offset0:{16*k} offset1:{16*k+8}")
    a("s_mov_b64 exec, -1")
    a("s_waitcnt lgkmcnt(0)"); a("s_barrier")
    a("s_cbranch_scc1 L_epoch")
    GU, CS, ST = VREG, VREG + 16, 40
    a(f"ds_read2_b32 {q2(ST)}, v{vSR} offset0:64 offset1:66")
    for t in range(4): a(f"ds_read_b128 {q4(CS+4*t)}, v{vGU} offset:{L_P16 + PROW*t + 320}")
    for t in range(4): a(f"ds_read_b128 {q4(GU+4*t)}, v{vGU} offset:{L_P16 + PROW*t}")
    a(f"ds_read_u16 v{vFH}, v{vFO} offset:{L_H}")
    a("s_waitcnt lgkmcnt(9)")
    steps = ("quad_perm:[1,0,3,2]", "quad_perm:[2,3,0,1]", "row_half_mirror", "row_mirror")

    def st_step(k):
        for i in range(2): a(f"v_add_f32_dpp v{ST+i}, v{ST+i}, v{ST+i} {steps[k]} {DPPF}")
    st_step(0); a("s_waitcnt lgkmcnt(7)"); pkadd(CS, CS, CS + 4)
    st_step(1); pkadd(CS + 2, CS + 2, CS + 6); a("s_waitcnt lgkmcnt(5)")
    st_step(2); pkadd(CS + 8, CS + 8, CS + 12)
    st_step(3); pkadd(CS + 10, CS + 10, CS + 14)
    MU, VAR = ST + 2, ST
    a(f"v_mul_f32 v{MU}, 0x3b000000, v{ST+1}"); a(f"v_mul_f32 v{VAR}, 0x3b000000, v{ST}")
    pkadd(CS, CS, CS + 8); pkadd(CS + 2, CS + 2, CS + 10)
    a(f"v_fma_f32 v{VAR}, -v{MU}, v{MU}, v{VAR}"); a(f"v_max_f32 v{VAR}, 0, v{VAR}")
    a(f"v_cvt_pk_bf16_f32 v{VAR}, v{VAR}, v{MU}")
    a("s_waitcnt lgkmcnt(3)")
    pkadd(GU, GU, GU + 4); pkadd(GU + 2, GU + 2, GU + 6)
    unpack(VAR, MU, VAR)
    a(f"v_add_f32 v{VAR}, {EPS:#x}, v{VAR}"); bf16r(VAR, VAR)
    a(f"v_sqrt_f32 v{VAR}, v{VAR}")
    a("s_waitcnt lgkmcnt(1)")
    pkadd(GU + 8, GU + 8, GU + 12); pkadd(GU + 10, GU + 10, GU + 14)
    for i in (0, 2): a(f"v_pk_fma_f32 {q2(GU+i)}, {q2(CS+i)}, {q2(MU)}, {q2(GU+i)} op_sel_hi:[1,0,1] neg_lo:[0,1,0] neg_hi:[0,1,0]")
    pkadd(GU, GU, GU + 8); pkadd(GU + 2, GU + 2, GU + 10)
    bf16r(VAR, VAR)
    for i in range(4): a(f"v_add_f32_dpp v{GU+i}, v{GU+i}, v{GU+i} row_ror:4 {DPPF}")
    a(f"v_rcp_f32 v{VAR}, v{VAR}")
    for i in range(4): a(f"v_add_f32_dpp v{GU+i}, v{GU+i}, v{GU+i} row_ror:8 {DPPF}")
    for i in (0, 2): a(f"v_pk_mul_f32 {q2(GU+i)}, {q2(GU+i)}, {q2(VAR)} op_sel_hi:[1,0]")
    a(f"v_cvt_pk_bf16_f32 v{GU}, v{GU}, v{GU+1}")
    unpack(GU, GU + 1, GU)
    a(f"v_pk_mul_f32 {q2(GU+4)}, {q2(GU)}, s[{sNL}:{sNL+1}]")
    for i in range(2): a(f"v_exp_f32 v{GU+4+i}, v{GU+4+i}")
    a(f"v_cvt_pk_bf16_f32 v{GU+2}, v{GU+2}, v{GU+3}")
    a(f"v_pk_add_f32 {q2(GU+4)}, {q2(GU+4)}, 1.0 op_sel_hi:[1,0]")
    for i in range(2): a(f"v_rcp_f32 v{GU+4+i}, v{GU+4+i}")
    unpack(GU + 2, GU + 3, GU + 2)
    a(f"v_pk_mul_f32 {q2(GU)}, {q2(GU)}, {q2(GU+4)}")
    a(f"v_cvt_pk_bf16_f32 v{GU}, v{GU}, v{GU+1}")
    unpack(GU, GU + 1, GU)
    a(f"v_pk_mul_f32 {q2(GU)}, {q2(GU)}, {q2(GU+2)}")
    a(f"v_cvt_pk_bf16_f32 v{vPK}, v{GU}, v{GU+1}")
    DE, DO = vD, vA + 4

    def ag(G, rs=range(4)):
        for r in rs: a(f"v_mov_b32_dpp v{AG+4*G+r}, v{vPK} row_newbcast:{r} row_mask:0xf bank_mask:{1 << G:#x}")
    ag(0); ag(1, (0, 1))
    for G in range(4):
        mm(DE, AG + 4 * G, BD + 8 * G, G == 0)
        if G < 3: ag(G + 1, (2, 3))
        mm(DO, AG + 4 * G, BD + 8 * G + 4, G == 0)
        if G < 2: ag(G + 2, (0, 1))
    FR = ACC
    a(f"s_cmp_ge_u32 s{sFU}, 32")
    put_tag(DE + 1, DO)
    a(f"buffer_store_dwordx2 {q2(DE)}, v{vY2}, {srd(rWS)}, s{sT2} offen sc1")
    stamp("pub")
    a("s_cbranch_scc1 L_exit")
    a(f"v_mov_b32 v{FR+8}, 0"); a(f"v_mov_b32 v{FR+10}, 0")
    a("s_waitcnt lgkmcnt(0)")
    a(f"v_lshlrev_b32 v{vFH}, 16, v{vFH}")
    if fwait: a("s_waitcnt vmcnt(0)")
    poll([f"buffer_load_dwordx4 {q4(FR)}, v{vFA}, {srd(rWS)}, s{sF0} offen {fpol}",
          f"buffer_load_dwordx4 {q4(FR+4)}, v{vFA}, {srd(rWS)}, s{sF0+1} offen {fpol}",
          f"v_mov_b32 v{FR+9}, s{sTG8}", f"v_mov_b32 v{FR+11}, s{sTG8}",
          "s_mov_b32 exec_hi, 0xfff",
          f"buffer_load_dwordx4 {q4(FR+8)}, v{vFA}, {srd(rWS)}, s{sF0+2} offen {fpol}",
          "s_mov_b32 exec_hi, -1"], [FR + 2 * t + 1 for t in range(6)], TMP)
    stamp("fgot")
    for i in (0, 2): pkadd(FR + i, FR + i, FR + 4 + i)
    for i in (0, 2): pkadd(FR + i, FR + i, FR + 8 + i)
    a(f"v_permlane32_swap_b32 v{FR}, v{FR+2}"); a(f"v_permlane32_swap_b32 v{FR+1}, v{FR+3}")
    pkadd(FR, FR, FR + 2)
    a(f"v_permlane16_swap_b32 v{FR}, v{FR+1}")
    a(f"v_add_f32 v{FR}, v{FR}, v{FR+1}")
    for m in ("row_ror:4", "row_ror:8"): a(f"v_add_f32_dpp v{FR}, v{FR}, v{FR} {m} {DPPF}")
    a("s_mov_b32 exec_lo, 0x000f000f"); a("s_mov_b32 exec_hi, 0x000f000f")
    bf16r(FR, FR); a(f"v_add_f32 v{FR}, v{FR}, v{vFH}")
    a(f"v_cvt_pk_bf16_f32 v{FR}, v{FR}, v{FR}")
    a(f"buffer_store_short v{FR}, v{vFO}, {srd(rO)}, 0 offen {outpol}")
    if amp:
        a(f"s_memrealtime s[{sE}:{sE+1}]"); a("s_waitcnt lgkmcnt(0)")
        a(f"s_sub_u32 s{sT0}, s{sST+2}, s{sST}")
        if len(amp) > 2 and amp[2] == "inv": a(f"s_sub_u32 s{sT0}, 2500, s{sT0}")
        if len(amp) > 2 and amp[2] == "fix": a(f"s_mov_b32 s{sT0}, 100")
        if len(amp) > 3: diag_stat()
        a(f"s_mul_i32 s{sT0}, s{sT0}, {amp[1]}")
        a(f"s_min_u32 s{sT0}, s{sT0}, 200000"); a(f"s_mov_b32 s{sT1}, s{sE}")
        a("L_amp:"); a(f"s_memrealtime s[{sE}:{sE+1}]"); a("s_waitcnt lgkmcnt(0)")
        a(f"s_sub_u32 s{sT2}, s{sE}, s{sT1}"); a(f"s_cmp_lt_u32 s{sT2}, s{sT0}"); a("s_cbranch_scc1 L_amp")
    a("L_exit:")
    if stamps:
        a("s_mov_b64 exec, -1")
        stamp("exit")
        a(f"v_writelane_b32 v{vSTAMP}, s{sROLE}, 14")
        a(f"s_mul_i32 s{sT0}, s2, {NWAVE}"); a(f"s_add_u32 s{sT0}, s{sT0}, s{sW}"); a(f"s_add_u32 s{sT0}, s{sT0}, 1")
        a(f"s_lshl_b32 s{sT0}, s{sT0}, {8 if trace else 6}"); a(f"s_add_u32 s{sT0}, s{sT0}, {STAMP}")
        a(f"v_lshlrev_b32 v{vSTAMP+1}, 2, v{vL}")
        if not trace: a("s_mov_b64 exec, 0xffff")
        a(f"buffer_store_dword v{vSTAMP}, v{vSTAMP+1}, {srd(rWS)}, s{sT0} offen")
    a("L_end:")
    a("s_endpgm")
    a("L_epoch:")
    a(f"s_lshl_b32 s{sT0}, s{sROLE}, 3"); a(f"s_add_u32 s{sT0}, s{sT0}, s{sW}"); a(f"s_cmp_lg_u32 s{sT0}, 4"); a("s_cbranch_scc1 L_exit")
    a(f"s_mov_b32 s{sT0}, {EPOCH}"); a(f"s_or_b32 s{sT1}, s{sTAG}, s{sTG8}"); a(f"v_mov_b32 v3, s{sT1}"); a("s_mov_b64 exec, 1")
    a(f"buffer_store_dword v3, off, {srd(rWS)}, s{sT0} sc1")
    a("L_last:")
    a("s_branch L_exit")
    assert not far

    out = HEADER + f"; @launch grid=(256,1,1) block=({64*NWAVE},1,1) lds={L_END}\n"
    out += f'.amdgcn_target "amdgcn-amd-amdhsa--gfx950"\n.text\n.globl {KNAME}\n.p2align 8\n.type {KNAME},@function\n'
    out += a.render()
    out += f'''.section .rodata,"a"
.p2align 6
.amdhsa_kernel {KNAME}
  .amdhsa_next_free_vgpr {NV}
  .amdhsa_next_free_sgpr 98
  .amdhsa_accum_offset {NV}
  .amdhsa_group_segment_fixed_size 0
  .amdhsa_kernarg_size 96
  .amdhsa_user_sgpr_count 2
  .amdhsa_user_sgpr_kernarg_segment_ptr 1
  .amdhsa_system_sgpr_workgroup_id_x 1
  .amdhsa_float_denorm_mode_32 3
.end_amdhsa_kernel
'''
    return out


if __name__ == "__main__":
    kw = {}
    for arg in sys.argv[2:]:
        k, v = arg.split("=")
        kw[k] = eval(v)
    open(sys.argv[1], "w").write(gen(**kw))
```

```python
import sys
from asmlib import Asm

KNAME = "sequential_preLN__sliding_block_cached__swiglu_ffn__decode_kernel"
HEADER = open("sequential_preLN__sliding_block_cached__swiglu_ffn__decode.s.ref").read().split("; Override launch")[0]

LOG2E = 0x3FB8AA3B
SCALE = 0x3DB504F3
EPS = 0x3727C5AC

SLOT = 512
MB1 = 0
MB2 = 256 * SLOT
MB3 = MB2 + 2 * 8 * 2048
MBQ = MB2 + 256 * 512
MBM = MBQ + 256 * 1024
EPOCH = MBM + 256 * 128
MB3H = 0xa0000
PROBE = 0x1c0000
STAMP = 1 << 20
WS_SIZE = 2 << 20
PROW = 608
L_BETA = 356
L_QB, L_ST, L_F, L_MODE, L_C, L_H, L_OP, L_P16 = 0, 256, 320, 352, 384, 512, 2048, 2048 + 8192
L_END = L_P16 + 16 * PROW

NT2 = 43
NWAVE = 9
DPPF = "row_mask:0xf bank_mask:0xf"
STAMPS = ["start", "args", "x", "qpub", "qgot", "p", "cbar", "obar", "ready", "got", "pub", "fgot", "exit"]

sH, sSP, sW, sTAG, sBUD = 3, 4, 5, 6, 7
pX, pK, pV, pWQ, pWO, pWG, pWU, pWD, pOUT, pDBG, pWS = 8, 10, 12, 14, 16, 20, 22, 24, 26, 28, 30
sMW, sXT = 18, 19
rK, rV, rQ, rX, rWS, rO, rT = 32, 36, 40, 44, 48, 52, 56
sOFF = 60
sT0, sT1, sT2, sT3 = 76, 77, 78, 79
sROLE, sIDX = 80, 81
sE = 82
sXCC, sU = 84, 85
sST = 86
sUA, sMEM = 90, 91
sPFM = 92
sTG8, sMODE = 94, 95
sNA = 96
vL, vKV = 1, 2
vSEL, vA, vD, vPK, vB = 4, 8, 16, 20, 21
vT = 22
KREG, VREG, XREG = 48, 112, 144
TREG = KREG
vFF, vZERO = 164, 165
vSTAMP = 166
NV = 168


def q4(r): return f"v[{r}:{r+3}]"
def q2(r): return f"v[{r}:{r+1}]"
def srd(r): return f"s[{r}:{r+3}]"


def gen(W=4, stamps=False, budget=1 << 18, gpos=15, cpos=11, local=True, amp=None, only=None, abl=(), trace=False,
        pat="jjjsssj", hprio=1, hsleep=2, pfcode=True, warm=True,
        pfs=4, pfat=(12, 12, 13, 14), pford=(0, 2, 1, 3), e1=(14, 15, 15, 15), e2=(), stages="ABdCD", t2ord="gd",
        un=(6, 6, 6, 5, 5, 5, 5, 5), h2=0, h3=0, fdelay=4, early_poll=True, psleep=0, burst=2, vote=3, nprobe=1, floop=True, pollfirst=False, prio=0, dn=0):
    nwo = len(pfat)
    assert W == 4 and sum(un) == NT2 and max(un) <= 7 and len(e2) in (0, 8)
    assert not pford or (pford[0] == 0 and sorted(pford) == list(range(nwo)))
    k0, bar0, copies, fpriv, fwait, fpol, outpol, bare = 4, -1, True, True, True, "sc1", "", True
    a = Asm()
    far = []

    def stamp(name):
        i = STAMPS.index(name)
        if stamps:
            if only and name not in only and name not in ("start", "exit"): return
            a(f"s_memrealtime s[{sST}:{sST+1}]"); a("s_waitcnt lgkmcnt(0)"); a(f"v_writelane_b32 v{vSTAMP}, s{sST}, {i}")
        elif amp and name == "start": a(f"s_memrealtime s[{sST}:{sST+1}]")
        elif amp and name == amp[0]: a(f"s_memrealtime s[{sST+2}:{sST+3}]\ns_waitcnt lgkmcnt(0)")

    def diag_store():
        only_wave(2, "L_nodiag")
        a(f"s_lshl_b32 s{sT1}, s2, 2"); a(f"s_add_u32 s{sT1}, s{sT1}, {STAMP}"); a(f"v_mov_b32 v46, s{sST + (0 if amp[0] == 'start' else 2)}"); a("s_mov_b64 exec, 1")
        a(f"buffer_store_dword v46, off, {srd(rWS)}, s{sT1} sc1"); a("s_mov_b64 exec, -1")
        a("L_nodiag:")

    def diag_stat():
        a(f"s_mov_b32 s{sT0}, 0"); a(f"s_cmp_lg_u32 s{sROLE}, 0"); a("s_cbranch_scc1 L_dodelay")
        a("s_mov_b64 exec, -1"); a(f"s_mov_b32 s{sT1}, {STAMP}"); a(f"v_lshlrev_b32 v24, 2, v{vL}")
        for t in range(4): a(f"buffer_load_dword v{28+t}, v24, {srd(rWS)}, s{sT1} offen offset:{256*t} sc1")
        a("s_waitcnt vmcnt(0)")
        for t in range(4): a(f"v_subrev_u32 v{28+t}, s{sST}, v{28+t}"); a(f"v_add_u32 v{28+t}, 0x10000, v{28+t}")
        a("v_min3_u32 v32, v28, v29, v30"); a("v_min_u32 v32, v32, v31"); wave_red("v_min_u32", 32, sT2)
        for t in range(4): a(f"v_subrev_u32 v{28+t}, s{sT2}, v{28+t}")
        kind, par = amp[2], amp[3]
        if kind == "range":
            a("v_max3_u32 v32, v28, v29, v30"); a("v_max_u32 v32, v32, v31"); wave_red("v_max_u32", 32, sT0)
        elif kind == "mean":
            a("v_add3_u32 v32, v28, v29, v30"); a("v_add_u32 v32, v32, v31"); wave_red("v_add_u32", 32, sT0); a(f"s_lshr_b32 s{sT0}, s{sT0}, 8")
        elif kind == "count":
            for t in range(4):
                a(f"v_cmp_lt_u32 vcc, {par}, v{28+t}"); a(f"s_bcnt1_i32_b64 s{sT1}, vcc"); a(f"s_add_u32 s{sT0}, s{sT0}, s{sT1}")
        elif kind == "groups":
            a("v_max3_u32 v32, v28, v29, v30"); a("v_max_u32 v32, v32, v31"); a(f"v_cmp_lt_u32 vcc, {par}, v32")
            a(f"s_or_b32 s{sT1}, vcc_lo, vcc_hi"); a(f"s_lshr_b32 s{sT2}, s{sT1}, 16"); a(f"s_or_b32 s{sT1}, s{sT1}, s{sT2}")
            a(f"s_lshr_b32 s{sT2}, s{sT1}, 8"); a(f"s_or_b32 s{sT1}, s{sT1}, s{sT2}"); a(f"s_and_b32 s{sT1}, s{sT1}, 0xff"); a(f"s_bcnt1_i32_b32 s{sT0}, s{sT1}")
        elif kind == "quarter":
            wave_red("v_add_u32", 28 + par, sT0); a(f"s_lshr_b32 s{sT0}, s{sT0}, 6")
        a("L_dodelay:")

    def lat_probe():
        p, off, stride, op, lanes, inv = amp[3]
        a(f"s_mov_b32 s{sT0}, 0"); a(f"s_cmp_lg_u32 s68, 0"); a("s_cbranch_scc1 L_dodelay")
        a("s_mov_b64 exec, -1")
        a(f"v_lshlrev_b32 v24, 7, v{vL}"); a(f"v_add_u32 v24, {off}, v24"); a("v_mov_b32 v25, 0")
        if lanes == 1: a("s_mov_b64 exec, 1")
        a("s_sleep 60"); a("s_waitcnt vmcnt(0)")
        a(f"s_memrealtime s[{sST}:{sST+1}]"); a(f"s_mov_b32 s{sT1}, 32")
        a("L_lat:")
        a(op.replace("P", f"s[{p}:{p+1}]")); a("s_waitcnt vmcnt(0)"); a(f"v_add_u32 v24, {stride}, v24")
        a(f"s_sub_u32 s{sT1}, s{sT1}, 1"); a(f"s_cmp_lg_u32 s{sT1}, 0"); a("s_cbranch_scc1 L_lat")
        a(f"s_memrealtime s[{sST+2}:{sST+3}]"); a("s_waitcnt lgkmcnt(0)")
        a(f"s_sub_u32 s{sT0}, s{sST+2}, s{sST}")
        if inv: a(f"s_sub_u32 s{sT0}, 4000, s{sT0}")
        a("L_dodelay:")

    def tr(i):
        if trace:
            a(f"s_memrealtime s[{sST}:{sST+1}]"); a("s_waitcnt lgkmcnt(0)"); a(f"v_writelane_b32 v{vSTAMP}, s{sST}, {16+i}")

    def mksrd(r, p, size, add=None):
        if add is None:
            a(f"s_mov_b32 s{r}, s{p}"); a(f"s_mov_b32 s{r+1}, s{p+1}")
        else:
            a(f"s_add_u32 s{r}, s{p}, s{add}"); a(f"s_addc_u32 s{r+1}, s{p+1}, 0")
        a(f"s_mov_b32 s{r+2}, {size}"); a(f"s_mov_b32 s{r+3}, 0x20000")

    def bf16r(d, s):
        a(f"v_cvt_pk_bf16_f32 v{d}, v{s}, v{s}"); a(f"v_lshlrev_b32 v{d}, 16, v{d}")

    def unpack(lo, hi, s):
        a(f"v_and_b32 v{hi}, 0xffff0000, v{s}"); a(f"v_lshlrev_b32 v{lo}, 16, v{s}")

    def pkadd(d, x, y): a(f"v_pk_add_f32 {q2(d)}, {q2(x)}, {q2(y)}")

    def wave_red(op, v, s):
        for m in ("quad_perm:[1,0,3,2]", "quad_perm:[2,3,0,1]", "row_half_mirror", "row_mirror"):
            a(f"{op}_dpp v{v}, v{v}, v{v} {m} {DPPF}")
        a(f"{op}_dpp v{v}, v{v}, v{v} row_bcast:15 row_mask:0xa bank_mask:0xf")
        a(f"{op}_dpp v{v}, v{v}, v{v} row_bcast:31 row_mask:0xc bank_mask:0xf")
        a(f"v_readlane_b32 s{s}, v{v}, 63")

    def red8(op, *vs):
        for m in ("quad_perm:[1,0,3,2]", "quad_perm:[2,3,0,1]", "row_half_mirror"):
            for v in vs: a(f"{op}_dpp v{v}, v{v}, v{v} {m} {DPPF}")

    def build_a(j):
        A = vA + 4 * (j & 1)
        a(f"v_mov_b32_dpp v{vB}, v{vPK} row_newbcast:{j} {DPPF}")
        for r in range(4):
            a(f"v_perm_b32 v{A+r}, v{vB}, v{vB}, v{vSEL+r}")

    def mm(d, x, y, first):
        a(f"v_mfma_f32_16x16x32_bf16 {q4(d)}, {q4(x)}, {q4(y)}, {'0' if first else q4(d)}")

    def mfma(j, b, first): mm(vD, vA + 4 * (j & 1), b, first)

    def gemv(n, breg):
        build_a(0)
        for j in range(n):
            if j + 1 < n: build_a(j + 1)
            mfma(j, breg + 4 * j, j == 0)

    def red16(vaddr, v, mid=None):
        for t in range(4):
            a(f"ds_read2st64_b64 {q4(v+4*t)}, v{vaddr} offset0:{2*t} offset1:{2*t+1}")
        a("s_waitcnt lgkmcnt(2)")
        pkadd(v, v, v + 2); pkadd(v + 4, v + 4, v + 6); pkadd(v, v, v + 4)
        if mid: mid()
        a("s_waitcnt lgkmcnt(0)")
        pkadd(v + 8, v + 8, v + 10); pkadd(v + 12, v + 12, v + 14); pkadd(v + 8, v + 8, v + 12)
        pkadd(v + 2, v, v + 8); pkadd(v, v, v + 8)
        a(f"v_permlane32_swap_b32 v{v}, v{v+2}"); a(f"v_permlane32_swap_b32 v{v+1}, v{v+3}")
        pkadd(v, v, v + 2)

    def vor(tmp, rs):
        rs = list(rs)
        if len(rs) == 2:
            a(f"v_or_b32 v{tmp}, v{rs[0]}, v{rs[1]}"); return
        a(f"v_or3_b32 v{tmp}, v{rs[0]}, v{rs[1]}, v{rs[2]}"); rs = rs[3:]
        while rs:
            if len(rs) >= 2:
                a(f"v_or3_b32 v{tmp}, v{tmp}, v{rs[0]}, v{rs[1]}"); rs = rs[2:]
            else:
                a(f"v_or_b32 v{tmp}, v{tmp}, v{rs[0]}"); rs = rs[1:]

    npoll = [0]

    def spend():
        a(f"s_sub_u32 s{sBUD}, s{sBUD}, 1"); a("s_cbranch_scc1 L_exit")

    def poll(loads, tagged, tmp, entry=None, check=None):
        n = npoll[0]; npoll[0] += 1
        a(f"L_poll{n}:")
        if psleep: a(f"s_sleep {psleep}")
        for ld in loads: a(ld)
        spend()
        if entry: a(entry + ":")
        a("s_waitcnt vmcnt(0)")
        if check: a(check + ":")
        for r in tagged: a(f"v_xor_b32 v{r}, s{sTG8}, v{r}")
        vor(tmp, tagged)
        a(f"v_cmp_ne_u32_sdwa vcc, v{tmp}, v{vZERO} src0_sel:BYTE_0 src1_sel:DWORD")
        a(f"s_cbranch_vccnz L_poll{n}")

    def poll_tag(loads, tmp, slack=0, retry=None, first=None, once=None):
        n = npoll[0]; npoll[0] += 1
        if first:
            for ld in loads: a(ld[0])
            first(); a(f"s_branch L_pwait{n}")
        else:
            for t in range(len(loads)): a(f"s_mov_b64 s[{sOFF+2*t}:{sOFF+2*t+1}], -1")
        a(f"L_poll{n}:")
        for t, ld in enumerate(loads):
            a(f"s_mov_b64 exec, s[{sOFF+2*t}:{sOFF+2*t+1}]"); a(ld[0])
        a("s_mov_b64 exec, -1")
        spend()
        if first: a(f"L_pwait{n}:")
        a("s_waitcnt vmcnt(0)")
        a(f"s_mov_b64 s[{sE}:{sE+1}], 0")
        for t, (_, rs) in enumerate(loads):
            m = f"s[{sOFF+2*t}:{sOFF+2*t+1}]"
            a(f"v_xor_b32 v{tmp}, s{sTAG}, v{rs[0]}"); a(f"v_xor_b32 v{tmp+1}, s{sTAG}, v{rs[1]}"); a(f"v_or_b32 v{tmp}, v{tmp}, v{tmp+1}")
            a(f"v_cmp_lt_u32 {m}, {(1 << slack) - 1}, v{tmp}")
            a(f"s_or_b64 s[{sE}:{sE+1}], s[{sE}:{sE+1}], {m}")
        if once: a(f"s_and_b64 s[{sE}:{sE+1}], s[{sE}:{sE+1}], s[{once}:{once+1}]")
        if retry is None:
            a(f"s_cbranch_scc1 L_poll{n}")
        else:
            a(f"s_cbranch_scc1 L_pagain{n}")

            def again():
                a(f"L_pagain{n}:"); retry(); a(f"s_branch L_poll{n}")
            far.append(again)

    def put_tag(d, s):
        a(f"v_bfi_b32 v{d}, v{vFF}, s{sTG8}, v{s}")

    nst = [0]

    def mode_store(text):
        if not local:
            a(text + " sc1"); return
        n = nst[0]; nst[0] += 1
        a(f"s_cbranch_scc1 L_stfar{n}")
        a(text)
        a(f"L_stdone{n}:")

        def other():
            a(f"L_stfar{n}:"); a(text + " sc1"); a(f"s_branch L_stdone{n}")
        far.append(other)

    def emit_far():
        for f in list(far): f()
        far.clear()

    def only_wave(w, label):
        a(f"s_cmp_lg_u32 s{sW}, {w}"); a(f"s_cbranch_scc1 {label}")

    def selectors():
        t0, t1, t2 = 32, 33, 34
        a(f"v_and_b32 v{t0}, 8, v0"); a(f"v_mov_b32 v{t1}, 0x0100"); a(f"v_mov_b32 v{t2}, 0x0302")
        a(f"v_cmp_ne_u32 vcc, 0, v{t0}"); a(f"v_cndmask_b32 v{t1}, v{t1}, v{t2}, vcc")
        a(f"v_or_b32 v{t2}, 0x0c0c0000, v{t1}")
        a(f"v_lshlrev_b32 v{t1}, 16, v{t1}"); a(f"v_or_b32 v{t1}, 0x0c0c, v{t1}")
        a(f"v_and_b32 v{t0}, 1, v0"); a(f"v_cmp_ne_u32 vcc, 0, v{t0}"); a(f"v_cndmask_b32 v{t1}, v{t2}, v{t1}, vcc")
        a(f"v_bfe_u32 v{t0}, v0, 1, 2"); a(f"v_mov_b32 v{t2}, 0x0c0c0c0c")
        for r in range(4):
            a(f"v_cmp_eq_u32 vcc, {r}, v{t0}"); a(f"v_cndmask_b32 v{vSEL+r}, v{t2}, v{t1}, vcc")

    def tag_from_epoch():
        a(f"s_add_u32 s{sTG8}, s{sTAG}, 1"); a(f"s_and_b32 s{sTG8}, s{sTG8}, 0xff")
        a(f"s_lshr_b32 s{sTAG}, s{sTAG}, 8"); a(f"s_mul_i32 s{sTAG}, s{sTAG}, 0x9e3779b1")
        a(f"s_add_u32 s{sTAG}, s{sTAG}, 0x7f4a7c15"); a(f"s_lshl_b32 s{sTAG}, s{sTAG}, 8")

    def role():
        first = [sum(un[:g]) for g in range(8)]
        a(f"s_and_b32 s{sT1}, s{sH}, 7"); a(f"s_lshl_b32 s{sT3}, s{sT1}, 3")
        a(f"s_mov_b32 s{sT0}, {sum(first[g] << (8 * g) for g in range(4)):#x}"); a(f"s_mov_b32 s{sT1}, {sum(first[g + 4] << (8 * g) for g in range(4)):#x}")
        a(f"s_lshr_b64 s[{sT0}:{sT0+1}], s[{sT0}:{sT0+1}], s{sT3}"); a(f"s_and_b32 s{sUA}, s{sT0}, 0xff")
        a(f"s_lshr_b32 s{sT3}, s{sT3}, 1"); a(f"s_lshr_b32 s{sNA}, {sum(un[g] << (4 * g) for g in range(8)):#x}, s{sT3}"); a(f"s_and_b32 s{sNA}, s{sNA}, 15")
        a(f"s_mov_b32 s{sT2}, s{sNA}")
        a(f"s_lshr_b32 s{sMEM}, s{sH}, 3"); a(f"s_lshl2_add_u32 s{sMEM}, s{sSP}, s{sMEM}")
        a(f"s_sub_u32 s{sT1}, s{sMEM}, 8"); a(f"s_add_u32 s{sT3}, s{sT1}, s{sUA}")
        a(f"s_cmp_lt_u32 s{sT1}, s{sT2}"); a(f"s_cselect_b32 s{sROLE}, s{sT3}, 63")
        a(f"s_add_u32 s{sT3}, s{sMEM}, 64")
        a(f"s_cmp_lt_u32 s{sMEM}, 8"); a(f"s_cselect_b32 s{sROLE}, s{sT3}, s{sROLE}")
        if "role" in abl: a(f"s_mov_b32 s{sROLE}, 63")

    T, MM = 26, 30

    nlds = [0]

    def lds_wait(read, regs_, sleep=0):
        n = nlds[0]; nlds[0] += 1
        a(f"L_lds{n}:")
        a(read)
        a("s_waitcnt lgkmcnt(0)")
        rs = list(regs_)
        if len(rs) == 1: a(f"v_cmp_eq_u32 vcc, -1, v{rs[0]}")
        else:
            if len(rs) == 2: a(f"v_max_u32 v{vB}, v{rs[0]}, v{rs[1]}")
            else: a(f"v_max3_u32 v{vB}, v{rs[0]}, v{rs[1]}, v{rs[2]}"); a(f"v_max_u32 v{vB}, v{vB}, v{rs[3]}")
            a(f"v_cmp_eq_u32 vcc, -1, v{vB}")
        a(f"s_cbranch_vccnz L_ldsagain{n}")

        def again():
            a(f"L_ldsagain{n}:")
            if sleep: a(f"s_sleep {sleep}")
            spend(); a(f"s_branch L_lds{n}")
        far.append(again)

    seq = [("k", j) for j in range(16)] + [("v", j) for j in range(16)]
    pos = {op: i for i, op in enumerate(seq)}
    issued, done = [0], [0]
    def vreg(j): return VREG + 4 * j if j < 8 else KREG + 16 + 4 * (j - 8)

    def issue_to(n):
        while issued[0] < min(n, len(seq)):
            kind, j = seq[issued[0]]
            if kind == "k": a.vmem(f"buffer_load_dwordx4 {q4(KREG+4*j)}, v{vKV}, {srd(rK)}, s{sOFF+j} offen nt", (kind, j))
            else: a.vmem(f"buffer_load_dwordx4 {q4(vreg(j))}, v{vKV}, {srd(rV)}, s{sOFF+j} offen nt", (kind, j))
            issued[0] += 1

    def advance(upto):
        while done[0] <= pos[upto]:
            a.wait_vm(seq[done[0]]); done[0] += 1
            issue_to(done[0] + W)
            tr(done[0] - 1)

    def ids():
        a(f"s_and_b32 s{sH}, s2, 31"); a(f"s_lshr_b32 s{sSP}, s2, 5")

    def ids2():
        a(f"s_mov_b32 s{sBUD}, {budget}"); a(f"s_lshl3_add_u32 s{sIDX}, s{sH}, s{sSP}")
        a(f"s_getreg_b32 s{sXCC}, hwreg(HW_REG_XCC_ID, 0, 3)"); a(f"v_and_b32 v{vL}, 63, v0")

    def scatter(x, ch):
        return sum(((x >> k) & 1) << p for k, p in enumerate(13 + i for i, c in enumerate(pat) if c == ch))
    KVSIZE = scatter(15, "j") + 8192

    def offsets(js):
        for j in js:
            o = scatter(j, "j")
            a(f"s_movk_i32 s{sOFF+j}, {o:#x}" if o < 0x8000 else f"s_mov_b32 s{sOFF+j}, {o:#x}")

    def kv_base():
        ps = [13 + i for i, c in enumerate(pat) if c == "s"]
        a(f"s_lshl3_add_u32 s{sT0}, s{sH}, 7"); a(f"s_lshl_b32 s{sT0}, s{sT0}, 20")
        k = 0
        while k < 3:
            n = 1
            while k + n < 3 and ps[k + n] == ps[k] + n: n += 1
            if n == 3: a(f"s_lshl_b32 s{sT1}, s{sSP}, {ps[0]}")
            else: a(f"s_bfe_u32 s{sT1}, s{sSP}, {(n << 16) | k:#x}"); a(f"s_lshl_b32 s{sT1}, s{sT1}, {ps[k]}")
            a(f"s_add_u32 s{sT0}, s{sT0}, s{sT1}")
            k += n

    a(f"{KNAME}:")
    if stamps or amp: a(f"s_memrealtime s[{sST}:{sST+1}]")
    a(f"s_load_dwordx16 s[8:23], s[0:1], 0"); a("s_load_dwordx8 s[24:31], s[0:1], 64")
    a("s_cmpk_ge_u32 s2, 256"); a("s_cbranch_scc1 L_end")
    a(f"v_readfirstlane_b32 s{sW}, v0")
    a(f"s_cmpk_lt_u32 s{sW}, 64"); a("s_cbranch_scc1 L_helper0")
    a("v_subrev_u32 v0, 64, v0")
    if pfcode:
        a(f"s_getpc_b64 s[{sE}:{sE+1}]")
        a("L_pc:")
        a("v_lshlrev_b32 v24, 5, v0"); a("v_min_u32 v24, L_last-L_pc, v24")
        a(f"global_load_dword v3, v24, s[{sE}:{sE+1}]")
    ids()
    a(f"v_lshlrev_b32 v{vKV}, 4, v0")
    kv_base()
    offsets(range(W))
    a(f"s_mov_b32 s{rK+3}, 0x20000"); a(f"s_mov_b32 s{rK+2}, {KVSIZE:#x}")
    a("s_waitcnt lgkmcnt(0)")
    a(f"s_add_u32 s{rK}, s{pK}, s{sT0}"); a(f"s_addc_u32 s{rK+1}, s{pK+1}, 0")
    issue_to(k0)
    a("s_barrier")
    issue_to(W)
    a("s_branch L_stream")
    a(".p2align 8")

    a("L_helper0:")
    if hprio: a(f"s_setprio {hprio}")
    vXA, vXO, vQO = 22, 23, 3
    XA, XO = 28, 27
    a("v_lshlrev_b32 v24, 3, v0"); a("v_mov_b32 v30, -1"); a("v_mov_b32 v31, -1")
    a("ds_write_b64 v24, v[30:31]")
    ids()
    a(f"v_lshlrev_b32 v{vXA}, 4, v0")
    a("v_lshrrev_b32 v24, 4, v0"); a("v_and_b32 v25, 15, v0")
    a(f"s_lshl_b32 s{sT1}, s{sSP}, 6"); a(f"v_add_u32 v24, s{sT1}, v24")
    a(f"v_lshl_add_u32 v{vXO}, v25, 2, v24"); a(f"v_lshlrev_b32 v{vXO}, 1, v{vXO}")
    a(f"v_lshlrev_b32 v{vQO}, 13, v24"); a(f"v_lshl_add_u32 v{vQO}, v25, 4, v{vQO}")
    a(f"s_lshl_b32 s{sT0}, s{sH}, 8"); a(f"s_mov_b32 s{sT1}, 0x8000")
    a(f"s_mov_b32 s{rQ+2}, 0x400000"); a(f"s_mov_b32 s{rQ+3}, 0x20000")
    a("s_waitcnt lgkmcnt(0)")
    if bar0 == -1: a("s_barrier")
    a(f"global_load_dwordx4 {q4(XA)}, v{vXA}, s[{pX}:{pX+1}]")
    a(f"global_load_ushort v{XO}, v{vXO}, s[{pX}:{pX+1}]")
    a(f"s_mov_b64 s[{rQ}:{rQ+1}], s[{pWQ}:{pWQ+1}]")
    for j in range(16):
        a(f"buffer_load_dwordx4 {q4(KREG+4*j)}, v{vQO}, {srd(rQ)}, s{sT0} offen nt")
        if j < 15: a(f"s_add_u32 s{sT0}, s{sT0}, s{sT1}")
        if j == (15 if bar0 is True else bar0): a("s_barrier")
    a(f"s_mov_b32 s{sW}, -1")
    a("s_branch L_helper")

    a("L_stream:")
    if stamps: a(f"v_mov_b32 v{vSTAMP}, 0"); a(f"v_writelane_b32 v{vSTAMP}, s{sST}, 0")
    stamp("args")
    offsets(range(W, 16))
    a(f"s_lshr_b32 s{sW}, s{sW}, 6"); a(f"s_sub_u32 s{sW}, s{sW}, 1")
    ids2()
    mksrd(rV, pV, KVSIZE, sT0); mksrd(rX, pX, 1024)
    selectors()
    a(f"s_mov_b32 s{sROLE}, 63")
    vG2, vJ, vSH, vOW, vRO, vP8, vPF, vPJ = range(XREG, XREG + 8)
    a(f"v_bfe_u32 v{vG2}, v0, 4, 2"); a(f"v_and_b32 v{vJ}, 7, v0"); a(f"v_bfe_u32 v{vSH}, v0, 3, 1")
    a(f"v_and_b32 v{vT}, 15, v0"); a(f"v_lshlrev_b32 v{vT}, 4, v{vT}")
    a(f"v_lshrrev_b32 v{vOW}, 5, v0"); a(f"v_lshlrev_b32 v{vOW}, 9, v{vOW}"); a(f"v_lshl_add_u32 v{vOW}, v{vT}, 1, v{vOW}")
    a(f"v_and_b32 v32, 1, v{vG2}"); a(f"v_lshl_add_u32 v{vOW}, v32, 4, v{vOW}")
    a(f"v_and_b32 v{vP8}, 31, v0"); a(f"v_lshlrev_b32 v{vP8}, 3, v{vP8}")
    a("v_bfe_u32 v32, v0, 5, 1"); a(f"v_lshl_add_u32 v{vRO}, v32, 12, v{vP8}")
    a(f"s_lshl_b32 s{sT1}, s{sW}, 8"); a(f"s_add_u32 s{sT2}, s{sT1}, {L_OP}"); a(f"v_add_u32 v{vRO}, s{sT2}, v{vRO}")
    a(f"s_lshl_b32 s{sU}, s{sIDX}, 9"); a(f"s_add_u32 s{sU}, s{sU}, s{sT1}")
    a(f"v_mov_b32 v{vFF}, 0xff"); a(f"v_mov_b32 v{vZERO}, 0")
    a(f"v_lshl_add_u32 v{vPJ}, v{vG2}, 3, v{vJ}")
    advance(("k", 3))
    a(f"s_load_dword s{sTAG}, s[{pWS}:{pWS+1}], {EPOCH}")
    mksrd(rWS, pWS, WS_SIZE)
    vAD64, vPA = XREG + 18, 44

    def duties():
        role()
        a(f"s_mov_b32 s{sE+1}, 0"); a("v_mov_b32 v33, 0"); a(f"s_mov_b32 s{sE}, 8192")
        a(f"s_sub_u32 s{sT2}, s{sSP}, {pfs}"); a(f"s_cselect_b32 s{sT2}, 0, s{sT2}")
        a(f"s_cselect_b64 s[{sPFM}:{sPFM+1}], 1, -1")
        a(f"s_mul_i32 s{sT2}, s{sT2}, {8192*nwo}"); a(f"s_min_u32 s{sT2}, s{sT2}, {131072 - 8192*nwo}")
        a(f"s_lshl_b32 s{sT1}, s{sH}, 17"); a(f"s_add_u32 s{sT1}, s{sT1}, s{sT2}")
        a(f"v_add_u32 v32, s{sT1}, v{vKV}")
        a(f"v_lshl_add_u64 {q2(vAD64)}, v[32:33], 0, s[{pWO}:{pWO+1}]")
        a(f"s_cmp_lt_u32 s{sROLE}, {NT2}"); a(f"s_cbranch_scc1 L_adT2")
        a(f"s_cmp_lt_u32 s{sROLE}, 64"); a(f"s_cbranch_scc1 L_adPF")
        a(f"v_lshl_add_u32 v32, v{vG2}, 4, v{vSH}")
        a(f"s_and_b32 s{sT1}, s{sH}, 7"); a(f"s_lshl_b32 s{sT1}, s{sT1}, 17")
        a(f"s_lshr_b32 s{sT2}, s{sW}, 1"); a(f"s_lshl_b32 s{sT2}, s{sT2}, 20"); a(f"s_add_u32 s{sT1}, s{sT1}, s{sT2}")
        a(f"s_and_b32 s{sT2}, s{sW}, 1"); a(f"s_lshl_b32 s{sT2}, s{sT2}, 16"); a(f"s_add_u32 s{sT1}, s{sT1}, s{sT2}")
        a(f"s_and_b32 s{sT2}, s{sROLE}, 7"); a(f"s_lshl_b32 s{sT2}, s{sT2}, 7"); a(f"s_add_u32 s{sT1}, s{sT1}, s{sT2}")
        a("v_lshlrev_b32 v32, 10, v32"); a(f"v_lshl_add_u32 v32, v{vJ}, 4, v32"); a(f"v_add_u32 v32, s{sT1}, v32")
        a(f"v_lshl_add_u64 {q2(vPA)}, v[32:33], 0, s[{pWO}:{pWO+1}]")
        a("s_branch L_addone")
        a("L_adT2:")
        a("v_and_b32 v32, 0x1f8, v0"); a("v_mul_u32_u24 v32, 2752, v32")
        a("v_and_b32 v34, 3, v0"); a("v_lshl_add_u32 v32, v34, 4, v32")
        a(f"s_lshl_b32 s{sT1}, s{sROLE}, 6"); a(f"v_add_u32 v32, s{sT1}, v32")
        a(f"v_lshl_add_u64 {q2(vPA)}, v[32:33], 0, s[{pWG}:{pWG+1}]")
        a("s_mov_b32 exec_lo, 0xf0f0f0f0"); a("s_mov_b32 exec_hi, 0xf0f0f0f0")
        a(f"v_lshl_add_u64 {q2(vPA)}, v[32:33], 0, s[{pWU}:{pWU+1}]")
        a("s_mov_b64 exec, -1")
        a("s_branch L_addone")
        a("L_adPF:")
        a(f"s_lshl_b32 s{sT1}, s{sNA}, 6"); a(f"s_sub_u32 s{sT1}, s{sT1}, 4")
        a("v_and_b32 v32, 3, v0"); a("v_lshlrev_b32 v32, 7, v32"); a(f"v_min_u32 v32, s{sT1}, v32")
        a("v_bfe_u32 v34, v0, 3, 2"); a("v_bfe_u32 v35, v0, 5, 1"); a("v_lshl_add_u32 v34, v35, 3, v34")
        a(f"v_mul_u32_u24 v34, 2752, v34"); a("v_add_u32 v32, v32, v34")
        a(f"s_and_b32 s{sT2}, s{sMEM}, 15")
        a(f"s_mul_i32 s{sT1}, s{sT2}, {16*2752}"); a(f"s_lshl_b32 s{sT3}, s{sUA}, 6"); a(f"s_add_u32 s{sT1}, s{sT1}, s{sT3}")
        a(f"v_add_u32 v32, s{sT1}, v32")
        a(f"v_lshl_add_u64 {q2(vPA)}, v[32:33], 0, s[{pWG}:{pWG+1}]")
        a("s_mov_b32 exec_lo, 0xf0f0f0f0"); a("s_mov_b32 exec_hi, 0xf0f0f0f0")
        a(f"v_lshl_add_u64 {q2(vPA)}, v[32:33], 0, s[{pWU}:{pWU+1}]")
        a("s_mov_b64 exec, -1")
        a("L_addone:")
    duties()
    advance(("k", 7 if burst else 8))
    a("s_waitcnt lgkmcnt(0)")
    if amp and len(amp) > 3 and amp[0] in ("start", "args"): diag_store()
    tag_from_epoch()

    def kv(n): return ("k", n) if n < 16 else ("v", n - 16)
    cur = [gpos]

    def step():
        if burst: return
        cur[0] += 1; advance(kv(cur[0]))
    advance(kv(gpos))
    QP = 40
    lds_wait(f"ds_read_b128 {q4(QP)}, v{vT} offset:{L_QB}", range(QP, QP + 4))
    stamp("qgot")
    SJ = 24

    def dots(js):
        for i in range(4):
            for j in js:
                a(f"v_dot2_f32_bf16 v{SJ+j}, v{KREG+4*j+i}, v{QP+i}, {'0' if i == 0 else 'v%d' % (SJ+j)}")
    assert gpos >= 11
    assert issued[0] <= pos[("v", 8)]
    dots(range(4, 12))
    step()
    dots(range(4))
    advance(("k", 15)); cur[0] = max(cur[0], 15)
    dots(range(12, 16))
    step()
    for j in range(8):
        a(f"v_add_f32_dpp v{SJ+j}, v{SJ+j}, v{SJ+j} row_ror:8 row_mask:0xf bank_mask:0x3")
    for j in range(8):
        a(f"v_add_f32_dpp v{SJ+j}, v{SJ+j+8}, v{SJ+j+8} row_ror:8 row_mask:0xf bank_mask:0xc")
    for j in range(4):
        a(f"v_add_f32_dpp v{SJ+j}, v{SJ+j}, v{SJ+j} row_half_mirror row_mask:0xf bank_mask:0x5")
    for j in range(4):
        a(f"v_add_f32_dpp v{SJ+j}, v{SJ+j+4}, v{SJ+j+4} row_half_mirror row_mask:0xf bank_mask:0xa")
    for j in range(4):
        a(f"v_add_f32_dpp v{SJ+j}, v{SJ+j}, v{SJ+j} quad_perm:[1,0,3,2] {DPPF}")
    a("s_mov_b32 vcc_lo, 0xaaaaaaaa"); a("s_mov_b32 vcc_hi, 0xaaaaaaaa")
    a(f"v_cndmask_b32 v{SJ}, v{SJ}, v{SJ+1}, vcc"); a(f"v_cndmask_b32 v{SJ+2}, v{SJ+2}, v{SJ+3}, vcc")
    a(f"v_add_f32_dpp v{SJ}, v{SJ}, v{SJ} quad_perm:[2,3,0,1] {DPPF}")
    a(f"v_add_f32_dpp v{SJ+2}, v{SJ+2}, v{SJ+2} quad_perm:[2,3,0,1] {DPPF}")
    a("s_mov_b32 vcc_lo, 0xcccccccc"); a("s_mov_b32 vcc_hi, 0xcccccccc")
    SC = SJ
    a(f"v_cndmask_b32 v{SC}, v{SJ}, v{SJ+2}, vcc")
    bf16r(SC, SC); a(f"v_mul_f32 v{SC}, {SCALE:#x}, v{SC}"); bf16r(SC, SC)
    step()
    a(f"v_mov_b32 v{T}, v{SC}"); wave_red("v_max_f32", T, sMW)
    a(f"v_subrev_f32 v{SC}, s{sMW}, v{SC}"); a(f"v_mul_f32 v{SC}, {LOG2E:#x}, v{SC}"); a(f"v_exp_f32 v{SC}, v{SC}")

    def split_p():
        bf16r(T, SC); a(f"v_sub_f32 v{T}, v{SC}, v{T}")
        a(f"v_cvt_pk_bf16_f32 v{vPK}, v{SC}, v{T}")
    split_p()
    a(f"v_mov_b32 v{T}, v{SC}"); wave_red("v_add_f32", T, sT2)
    a(f"v_mov_b32 v{T}, s{sMW}"); a(f"v_mov_b32 v{T+1}, s{sT2}")
    a(f"s_lshl_b32 s{sT1}, s{sW}, 3"); a(f"v_mov_b32 v{T+2}, s{sT1}")
    a("s_mov_b64 exec, 1"); a(f"ds_write_b64 v{T+2}, {q2(T)} offset:{L_ST}"); a("s_mov_b64 exec, -1")
    stamp("p")

    for j in range(16 - W):
        build_a(j)
        if j % 4 == 0 and j + 16 <= cur[0] < 31 - W: step()
        advance(("v", j | 3 if burst == 2 else j))
        mfma(j, vreg(j), j == 0)
        if j == cpos:
            a(f"v_lshrrev_b32 v{T+2}, 1, v{T+2}")
            lds_wait(f"ds_read_b32 v32, v{T+2} offset:{L_F}", [32])
            a(f"v_mul_f32 v{SC}, v{SC}, v32")
            for r in range(4): a(f"v_mul_f32 v{vD+r}, v{vD+r}, v32")
            split_p()
    assert issued[0] == len(seq) and cpos < 16 - W and all(p >= 16 - W for p in pfat)
    stamp("cbar")

    def w1reg(j): return TREG + 4 * j if j < 4 else VREG + 4 * j

    def tload1(j): tload(j, w1reg(j))

    def tload(j, reg=None):
        a(f"global_load_dwordx4 {q4(TREG+4*j if reg is None else reg)}, {q2(vPA)}, off")
        if j < 7: a(f"v_lshl_add_u64 {q2(vPA)}, {q2(vPA)}, 0, s[{sE}:{sE+1}]")

    def pf_load(k):
        a(f"s_mov_b64 exec, s[{sPFM}:{sPFM+1}]")
        a(f"global_load_dwordx4 {q4(KREG+48)}, {q2(vAD64)}, off")
        a("s_mov_b64 exec, -1")
        if k + 1 < nwo:
            d = (pford[k + 1] - pford[k] if pford else 1) * 8192
            a(f"s_mov_b32 s{sT0}, {d & 0xffffffff:#x}"); a(f"s_mov_b32 s{sT1}, {-1 if d < 0 else 0}")
            a(f"v_lshl_add_u64 {q2(vAD64)}, {q2(vAD64)}, 0, s[{sT0}:{sT0+1}]")

    def pv_tail(e, load):
        k = 0
        for j in range(16 - W, 16):
            build_a(j)
            a(f"s_waitcnt vmcnt({15 - j + k})")
            mfma(j, vreg(j), False)
            tr(16 + j)
            for _ in range(e.count(j)):
                load(k); k += 1
    if e1: a(f"s_cmp_ge_u32 s{sROLE}, 64"); a("s_cbranch_scc1 L_pv1")
    if e2:
        a(f"s_lshr_b32 s{sT0}, s{sW}, 2"); a(f"s_lshl_b32 s{sT0}, s{sT0}, 6"); a(f"s_add_u32 s{sT0}, s{sT0}, s{sROLE}")
        a(f"s_cmp_lt_u32 s{sT0}, {NT2}"); a("s_cbranch_scc1 L_pv2")
    pv_tail(pfat, pf_load)
    a("L_pvdone:")
    a(f"ds_write_b128 v{vOW}, {q4(vD)} offset:{L_OP}")
    a(f"s_cmp_ge_u32 s{sW}, 2")
    a("s_waitcnt lgkmcnt(0)"); a("s_barrier")
    stamp("obar")
    if amp and len(amp) > 3 and amp[0] == "obar":
        diag_store(); a(f"s_cmp_ge_u32 s{sW}, 2")
    a("s_cbranch_scc1 L_nopub")
    if local: a(f"ds_read_b32 v40, v{vZERO} offset:{L_MODE}")

    def getmode():
        a(f"v_readfirstlane_b32 s{sMODE}, v40"); a(f"s_cmp_lg_u32 s{sMODE}, 0")
    red16(vRO, 24, mid=getmode if local else None)
    a("s_mov_b32 exec_hi, 0")
    put_tag(25, 25)
    mode_store(f"buffer_store_dwordx2 v[24:25], v{vP8}, {srd(rWS)}, s{sU} offen")
    a("s_mov_b32 exec_hi, -1")
    stamp("x")
    a("L_nopub:")
    a(f"s_cmp_ge_u32 s{sROLE}, 64"); a("s_cbranch_scc1 L_T1")
    a("s_barrier")
    a(f"s_cmp_lt_u32 s{sROLE}, {NT2}"); a("s_cbranch_scc1 L_T2")
    if stages:
        a(f"s_cmp_lt_u32 s{sMEM}, 16"); a("s_cbranch_scc1 L_exit")
        only_wave(2, "L_exit")
        at = 0
        for c in stages:
            if c == "d":
                mksrd(rT, pWD, 1376 * 1024)
                a(f"s_lshl_b32 s{sT0}, s{sNA}, 4"); a(f"s_and_b32 s{sT2}, s{sMEM}, 15"); a(f"s_mul_i32 s{sT2}, s{sT2}, s{sT0}")
                a(f"s_lshl_b32 s{sT3}, s{sUA}, 8"); a(f"s_add_u32 s{sT2}, s{sT2}, s{sT3}"); a(f"s_lshl_b32 s{sT2}, s{sT2}, 7")
                a(f"v_lshlrev_b32 v32, 7, v{vL}"); a(f"buffer_load_dword v3, v32, {srd(rT)}, s{sT2} offen")
                a(f"s_sub_u32 s{sT0}, s{sT0}, 1"); a(f"v_add_u32 v32, 64, v{vL}"); a(f"v_min_u32 v32, s{sT0}, v32"); a("v_lshlrev_b32 v32, 7, v32")
                a(f"buffer_load_dword v3, v32, {srd(rT)}, s{sT2} offen")
            else:
                row = {"A": 0, "B": 4, "C": 256, "D": 260}[c]
                d = (row - at) * 2752; at = row
                if d:
                    a(f"s_mov_b32 s{sT0}, {d & 0xffffffff:#x}"); a(f"s_mov_b32 s{sT1}, {-1 if d < 0 else 0}")
                    a(f"v_lshl_add_u64 {q2(vPA)}, {q2(vPA)}, 0, s[{sT0}:{sT0+1}]")
                a(f"global_load_dword v3, {q2(vPA)}, off")
    a("s_branch L_exit")
    emit_far()

    a("L_helper:")
    if stamps: a(f"v_mov_b32 v{vSTAMP}, 0"); a(f"v_writelane_b32 v{vSTAMP}, s{sST}, 0")
    a(f"s_load_dword s{sTAG}, s[{pWS}:{pWS+1}], {EPOCH}")
    ids2()
    selectors()
    a(f"s_mov_b32 s{sROLE}, 63")
    mksrd(rWS, pWS, WS_SIZE)
    a(f"v_mov_b32 v{vZERO}, 0")
    sPB, sLA, sC0, sC1, sDM = rO, rO + 2, rT, rT + 2, rX

    def probe(r):
        if r == (2 if nprobe == 3 else 0):
            a(f"s_bfe_u32 s{sT1}, s2, 0x10003"); a(f"s_lshl2_add_u32 s{sT1}, s{sSP}, s{sT1}")
            a(f"s_lshl_b32 s{sT1}, s{sT1}, 6"); a(f"s_add_u32 s{sT1}, s{sT1}, s{sH}"); a(f"s_lshl_b32 s{sT1}, s{sT1}, 7"); a(f"s_add_u32 s{sPB}, s{sT1}, {PROBE}")
            a(f"s_xor_b32 s{sPB+1}, s{sPB}, 0x2000"); a(f"s_mov_b32 s{sLA}, 0")
        order = {1: ([0], [1]), 2: ([0, 1], [1, 0]), 3: ([1], [0], [0, 1])}[nprobe][r]
        a(f"s_memtime s[{sC0}:{sC0+1}]"); a("s_waitcnt lgkmcnt(0)")
        for t in order:
            a(f"s_load_dword s{sDM}, s[{pWS}:{pWS+1}], s{sPB+t} offset:{(0, 20480, 4096)[r]}"); a("s_waitcnt lgkmcnt(0)")
            a(f"s_memtime s[{sC1}:{sC1+1}]"); a("s_waitcnt lgkmcnt(0)")
            a(f"s_sub_u32 s{sT1}, s{sC1}, s{sC0}"); a(f"s_mov_b32 s{sC0}, s{sC1}")
            a(f"s_{'sub' if t else 'add'}_u32 s{sLA}, s{sLA}, s{sT1}")
    if vote and nprobe == 3:
        a("s_waitcnt lgkmcnt(0)"); probe(2)
    a(f"s_waitcnt vmcnt(16)")
    stamp("x")
    U = 32
    for i in range(4): unpack(U + 2 * i, U + 2 * i + 1, XA + i)
    S, M_, R_ = 40, 41, 42
    a(f"v_add_f32 v{S}, v{U}, v{U+1}")
    for i in range(2, 8): a(f"v_add_f32 v{S}, v{S}, v{U+i}")
    wave_red("v_add_f32", S, sT1)
    a(f"v_mov_b32 v{M_}, 0x3b000000"); a(f"v_mul_f32 v{M_}, s{sT1}, v{M_}")
    for i in range(8): a(f"v_sub_f32 v{U+i}, v{U+i}, v{M_}")
    a(f"v_mul_f32 v{S}, v{U}, v{U}")
    for i in range(1, 8): a(f"v_fmac_f32 v{S}, v{U+i}, v{U+i}")
    wave_red("v_add_f32", S, sT1)
    a(f"v_mov_b32 v{S}, 0x3b000000"); a(f"v_mul_f32 v{S}, s{sT1}, v{S}")
    bf16r(M_, M_); bf16r(S, S)
    a(f"v_add_f32 v{S}, {EPS:#x}, v{S}"); bf16r(S, S)
    a(f"v_sqrt_f32 v{S}, v{S}"); bf16r(S, S)
    a(f"v_rcp_f32 v{R_}, v{S}")
    a(f"v_lshlrev_b32 v{XO}, 16, v{XO}"); a(f"v_sub_f32 v{XO}, v{XO}, v{M_}"); bf16r(XO, XO)
    a(f"v_mul_f32 v{XO}, v{XO}, v{R_}")
    a(f"v_cvt_pk_bf16_f32 v{vPK}, v{XO}, 0")
    a(f"s_waitcnt lgkmcnt(0)")
    tag_from_epoch()
    for j in range(16):
        build_a(j)
        if j % 4 == 0: a(f"s_waitcnt vmcnt({12 - j})")
        mfma(j, KREG + 4 * j, j == 0)
    a("v_and_b32 v24, 15, v0"); a("v_bfe_u32 v25, v0, 4, 1"); a("v_lshrrev_b32 v26, 5, v0")
    a("v_lshlrev_b32 v24, 6, v24"); a("v_lshl_add_u32 v24, v25, 5, v24"); a("v_lshl_add_u32 v24, v26, 4, v24")
    a(f"s_lshl_b32 s{sT2}, s{sIDX}, 10"); a(f"s_add_u32 s{sT2}, s{sT2}, {MBQ}")
    a(f"s_xor_b32 s{sT3}, s{sTAG}, s{sXCC}")
    a(f"v_permlane32_swap_b32 v{vD}, v{vD+2}"); a(f"v_permlane32_swap_b32 v{vD+1}, v{vD+3}")
    a(f"v_mov_b32 v{vD+2}, v{vD+1}"); a(f"v_mov_b32 v{vD+1}, s{sTAG}"); a(f"v_mov_b32 v{vD+3}, s{sT3}")
    qstore = f"buffer_store_dwordx4 {q4(vD)}, v24, {srd(rWS)}, s{sT2} offen"
    if "hand" in abl: a("s_branch L_samedie")
    qfrac = 2 if "q2" in abl else 4 if "q4" in abl else 1
    if qfrac > 1:
        m = 0x00ff00ff if qfrac == 2 else 0x000f000f
        a(f"s_mov_b32 exec_lo, {m:#x}"); a(f"s_mov_b32 exec_hi, {m:#x}")
    a(qstore + ("" if local else " sc1"))
    if qfrac > 1: a("s_mov_b64 exec, -1"); a(f"v_and_b32 v{vXA}, {1024 // qfrac - 1}, v{vXA}")
    stamp("qpub")
    a(f"s_lshl_b32 s{sT0}, s{sH}, 13"); a(f"s_add_u32 s{sT0}, s{sT0}, {MBQ}"); a(f"s_add_u32 s{sU}, s{sT0}, 4096")
    a(f"s_mov_b32 s{sMODE}, 0")
    GQ = KREG

    def write_through_once(tag):
        a(f"s_cmp_lg_u32 s{sMODE}, 0"); a(f"s_cbranch_scc1 L_wt{tag}")
        a(qstore + " sc1"); a(f"s_mov_b32 s{sMODE}, 1")
        a(f"L_wt{tag}:")

    if vote: probe(0)
    a("s_waitcnt vmcnt(0)")
    poll_tag([(f"buffer_load_dwordx4 {q4(GQ+4*t)}, v{vXA}, {srd(rWS)}, s{sU if t >= 4 else sT0} offen offset:{(t&3)*1024} sc1", [GQ+4*t+1, GQ+4*t+3]) for t in range(8)],
             26, slack=3, retry=(lambda: write_through_once("a")) if local else None, first=(lambda: probe(1)) if vote else None)
    if local:
        for t in range(8): a(f"v_xor_b32 v{GQ+4*t+3}, s{sT3}, v{GQ+4*t+3}")
        vor(26, [GQ + 4 * t + 3 for t in range(8)])
        a("v_cmp_ne_u32 vcc, 0, v26"); a("s_cbranch_vccz L_samedie")
        write_through_once("b")
        a("L_samedie:")
    for st in (16, 8, 4):
        for i in range(0, st, 2): a(f"v_add_f32 v{GQ+i}, v{GQ+i}, v{GQ+i+st}")
    a(f"v_cvt_pk_bf16_f32 v{GQ}, v{GQ}, v{GQ+2}"); a("v_lshlrev_b32 v25, 2, v0")
    a(f"v_min_u32 v{GQ}, -2, v{GQ}")
    a(f"ds_write_b32 v25, v{GQ} offset:{L_QB}")
    stamp("qgot")
    a("v_and_b32 v25, 3, v0"); a(f"v_bfe_u32 v26, v0, 2, 1"); a("v_lshlrev_b32 v25, 16, v25"); a("v_lshl_add_u32 v25, v26, 10, v25")
    a(f"s_and_b32 s{sT0}, s{sH}, 7"); a(f"s_lshl_b32 s{sT1}, s{sT0}, 13"); a(f"s_add_u32 s{sT1}, s{sT1}, {MBQ}")
    a(f"v_and_b32 v{T+2}, 7, v0"); a(f"v_lshlrev_b32 v{T+3}, 2, v{T+2}"); a(f"v_lshlrev_b32 v{T+2}, 3, v{T+2}")
    if warm:
        a("v_and_b32 v41, 3, v0"); a("v_lshlrev_b32 v41, 7, v41"); a(f"s_lshl_b32 s{sT2}, s{sIDX}, 9")
        a(f"buffer_load_dword v43, v41, {srd(rWS)}, s{sT2} offen sc1")
    if local and "hand" not in abl: a(f"buffer_load_dword v40, v25, {srd(rWS)}, s{sT1} offen offset:12 sc1")
    lds_wait(f"ds_read_b64 {q2(T)}, v{T+2} offset:{L_ST}", [T, T + 1], sleep=hsleep)
    a(f"v_mov_b32 v{MM}, v{T}"); red8("v_max_f32", MM)
    a(f"v_sub_f32 v{T}, v{T}, v{MM}"); a(f"v_mul_f32 v{T}, {LOG2E:#x}, v{T}"); a(f"v_exp_f32 v{T}, v{T}")
    a(f"ds_write_b32 v{T+3}, v{T} offset:{L_F}")
    a(f"v_mov_b32 v36, v{MM}"); a(f"v_mov_b32 v37, s{sTAG}"); a(f"v_mul_f32 v38, v{T}, v{T+1}")
    if vote:
        a(f"s_cmp_gt_i32 s{sLA}, 0"); a(f"s_cselect_b32 s{sT1}, 1, 0"); a(f"s_lshr_b32 s{sT2}, s2, 3"); a(f"s_xor_b32 s{sT1}, s{sT1}, s{sT2}")
        a(f"s_lshr_b32 s{sT2}, s{sXCC}, 2"); a(f"s_xor_b32 s{sT1}, s{sT1}, s{sT2}"); a(f"s_and_b32 s{sT1}, s{sT1}, 1"); a(f"s_or_b32 s{sT1}, s{sT1}, s{sTAG}")
        a(f"v_mov_b32 v39, s{sT1}")
        if stamps: a(f"v_writelane_b32 v{vSTAMP}, s{sT1}, 13")
    else:
        a(f"v_mov_b32 v39, s{sTAG}")
    red8("v_add_f32", 38)
    a(f"s_lshl_b32 s{sT1}, s{sIDX}, 7"); a(f"s_add_u32 s{sT1}, s{sT1}, {MBM}")
    if local:
        a(f"s_waitcnt vmcnt(0)")
        a(f"v_cmp_ne_u32 vcc, s{sT3}, v40"); a("s_cmp_lg_u64 vcc, 0"); a(f"s_cselect_b32 s{sMODE}, 1, 0")
        a(f"v_mov_b32 v40, s{sMODE}"); a("v_mov_b32 v41, 0")
    a("s_mov_b64 exec, 1")
    if local: a(f"ds_write_b32 v41, v40 offset:{L_MODE}")
    if "hand" not in abl: mode_store(f"buffer_store_dwordx4 v[36:39], off, {srd(rWS)}, s{sT1}")
    a("s_mov_b64 exec, -1")
    a("s_waitcnt lgkmcnt(0)")
    stamp("p")
    a(f"s_cmp_ge_u32 s{sSP}, {0 if 'role' in abl else 4 if vote else 2}"); a("s_cbranch_scc1 L_exit")
    a("v_bfe_u32 v24, v0, 3, 2"); a("v_and_b32 v25, 7, v0"); a("v_lshlrev_b32 v24, 13, v24"); a("v_lshl_add_u32 v24, v25, 7, v24")
    a(f"s_lshl_b32 s{sT0}, s{sT0}, 10"); a(f"s_add_u32 s{sT0}, s{sT0}, {MBM}")
    a("s_waitcnt vmcnt(0)")
    if vote:
        a(f"s_cmp_lt_u32 s{sSP}, 2"); a(f"s_cselect_b64 s[{sPFM}:{sPFM+1}], -1, 0")
    poll_tag([(f"buffer_load_dwordx4 v[32:35], v24, {srd(rWS)}, s{sT0} offen sc1", [33, 35])], 26, slack=1 if vote else 0, once=sPFM if vote else None)
    if vote:
        a("v_cmp_eq_u32 vcc, 1, v26"); a(f"s_bcnt1_i32_b32 s{sT1}, vcc_lo"); a("v_cmp_eq_u32 vcc, 0, v26"); a(f"s_bcnt1_i32_b32 s{sT2}, vcc_lo")
        a(f"s_cmp_gt_u32 s{sT1}, s{sT2}"); a(f"s_cselect_b32 s{sT1}, 1, 0"); a(f"v_mov_b32 v36, s{sT1}")
        a(f"ds_write_b32 v{vZERO}, v36 offset:{L_BETA}")
        if stamps: a(f"v_writelane_b32 v{vSTAMP}, s{sT1}, 15")
    a("v_mov_b32 v36, v32"); red8("v_max_f32", 36)
    a("v_sub_f32 v32, v32, v36"); a(f"v_mul_f32 v32, {LOG2E:#x}, v32"); a("v_exp_f32 v32, v32")
    a("v_mul_f32 v34, v32, v34"); red8("v_add_f32", 34)
    a("v_rcp_f32 v34, v34"); a("v_and_b32 v24, 31, v0"); a("v_lshlrev_b32 v24, 2, v24")
    a("v_mul_f32 v32, v32, v34")
    a(f"ds_write_b32 v24, v32 offset:{L_C}")
    a("s_waitcnt lgkmcnt(0)")
    stamp("cbar")
    a("s_branch L_exit")
    emit_far()

    RAW, TMP = 40, 3

    def ror8_pair(v):
        for i in range(2): a(f"v_add_f32_dpp v{v+i}, v{v+i}, v{v+i} row_ror:8 {DPPF}")

    CW, vO, vPW, vYS, vCA = VREG, VREG + 4, VREG + 5, VREG + 6, VREG + 7
    sOG, sYS, sPM = 60, 61, 62

    def t1_setup():
        a(f"s_lshr_b32 s{sT1}, s{sW}, 1"); a(f"s_lshl_b32 s{sT0}, s{sT1}, 5"); a(f"v_lshl_add_u32 v{vCA}, v{vSH}, 4, s{sT0}")
        a(f"s_and_b32 s{sT2}, s{sH}, 7"); a(f"s_lshl3_add_u32 s{sT3}, s{sT1}, s{sT2}")
        a(f"s_lshl_b32 s{sT3}, s{sT3}, 12"); a(f"s_and_b32 s{sT1}, s{sW}, 1"); a(f"s_lshl_b32 s{sT1}, s{sT1}, 8"); a(f"s_add_u32 s{sOG}, s{sT1}, s{sT3}")
        a(f"v_lshlrev_b32 v{vO}, 11, v{vSH}"); a(f"v_lshl_add_u32 v{vO}, v{vPJ}, 3, v{vO}")
        a(f"v_and_b32 v{vPW}, 0xfffffeff, v{vOW}")
        a(f"v_bfe_u32 v{vYS}, v0, 5, 1"); a(f"v_lshl_add_u32 v{vYS}, v{vYS}, {14 if h2 is None else 13}, v{vP8}")
        if h2 is not None: a(f"s_and_b32 s{sT3}, s{sT2}, 4"); a(f"s_add_u32 s{sT2}, s{sT2}, s{sT3}")
        a(f"s_lshl_b32 s{sT2}, s{sT2}, 11"); a(f"s_and_b32 s{sT3}, s{sROLE}, 7"); a(f"s_lshl_b32 s{sT3}, s{sT3}, 8")
        a(f"s_add_u32 s{sT2}, s{sT2}, s{sT3}"); a(f"s_add_u32 s{sYS}, s{sT2}, {MB2}")
        a(f"s_mov_b32 s{sPM}, 0x00ff00ff"); a(f"s_mov_b32 s{sPM+1}, 0xff00ff00")
        a(f"s_mov_b32 s{sE}, 2048")
    if e1:
        a("L_pv1:"); t1_setup(); pv_tail(e1, tload1); a("s_branch L_pvdone")
    a("L_T1:")
    if not e1: t1_setup()
    RAW1 = 32
    oloads = [f"buffer_load_dwordx2 {q2(RAW1+2*t)}, v{vO}, {srd(rWS)}, s{sOG} offen offset:{t*SLOT} sc1" for t in range(4)]
    nlate = 8 - len(e1)
    a(f"ds_read_b128 {q4(CW)}, v{vCA} offset:{L_C}")
    vBE, vBM = VREG + 8, VREG + 9
    if vote & 2:
        a(f"ds_read_b32 v{vBE}, v{vZERO} offset:{L_BETA}")
        a(f"s_and_b32 s{sT0}, s{sH}, 7"); a(f"s_cselect_b32 s{sT0}, 0, 1"); a(f"v_mov_b32 v{vBM}, s{sT0}")
    if nlate: a("s_barrier")
    if pollfirst:
        for ld in oloads: a(ld)
    if "now" not in abl:
        for j in range(len(e1), 8): tload1(j)
    a(f"v_add_u32 v{vRO}, {L_P16 - L_OP}, v{vRO}")
    stamp("ready")
    if pollfirst:
        a(f"s_waitcnt vmcnt({nlate}) lgkmcnt(0)"); a("s_branch L_ocheck")
    else:
        a("s_waitcnt lgkmcnt(0)")
    poll(oloads, [RAW1 + 2 * t + 1 for t in range(4)], TMP, check="L_ocheck" if pollfirst else None)
    stamp("got")
    a(f"v_pk_mul_f32 {q2(RAW1)}, {q2(RAW1)}, {q2(CW)} op_sel_hi:[1,0]")
    a(f"v_pk_fma_f32 {q2(RAW1)}, {q2(RAW1+2)}, {q2(CW)}, {q2(RAW1)} op_sel:[0,1,0]")
    a(f"v_pk_fma_f32 {q2(RAW1)}, {q2(RAW1+4)}, {q2(CW+2)}, {q2(RAW1)} op_sel_hi:[1,0,1]")
    a(f"v_pk_fma_f32 {q2(RAW1)}, {q2(RAW1+6)}, {q2(CW+2)}, {q2(RAW1)} op_sel:[0,1,0]")
    ror8_pair(RAW1)
    a(f"v_cvt_pk_bf16_f32 v{vPK}, v{RAW1}, v{RAW1+1}")
    build_a(0)
    for j in range(8):
        if j < 7: build_a(j + 1)
        if pollfirst and j >= len(e1): a(f"s_waitcnt vmcnt({7 - j})")
        mfma(j, w1reg(j), j == 0)
    a(f"s_mov_b64 exec, s[{sPM}:{sPM+1}]")
    a(f"s_cmp_lg_u32 s{sW}, 0")
    a(f"ds_write_b128 v{vPW}, {q4(vD)} offset:{L_P16}")
    a("s_mov_b64 exec, -1")
    a("s_waitcnt lgkmcnt(0)"); a("s_barrier")
    a("s_cbranch_scc1 L_exit")
    red16(vRO, 24)
    if not copies: a("s_mov_b32 exec_hi, 0")
    put_tag(25, 25)
    if vote & 2: a(f"v_bfi_b32 v24, v{vBM}, v{vBE}, v24")
    a(f"buffer_store_dwordx2 v[24:25], v{vYS}, {srd(rWS)}, s{sYS} offen sc1")
    stamp("pub")
    a("s_branch L_exit")

    late = t2ord == "late"
    downfirst = bool(e2) or t2ord == "dg"
    if late: RD, BD, BG, ACC = KREG, VREG, VREG, KREG + 32
    elif downfirst: RD, BD, BG, ACC = VREG, KREG + 32, VREG, KREG
    else: RD, BD, BG, ACC = KREG + 32, KREG, VREG, KREG + 32
    AG = 24
    XP, vHA, vGU, vY2, vSR, vHW, vFA, vFO, vFH, vPW2 = range(XREG + 8, XREG + 18)
    XF = 12

    def gu_loads():
        a(f"s_mov_b32 s{sE}, 2752")
        if "nof" in abl: a("s_mov_b64 exec, 1"); a(f"s_mov_b32 s{sE}, 0")
        for j in range(8): tload(j)
        if "nof" in abl: a("s_mov_b64 exec, -1")
        a(f"s_lshl_b32 s{sT1}, s{sW}, 7")
        a(f"v_lshlrev_b32 v{vHW}, 2, v{vPJ}")
        a(f"buffer_load_dword v{XP}, v{vHW}, {srd(rX)}, s{sT1} offen")
        a(f"v_add_u32 v{vHW}, s{sT1}, v{vHW}")

    sDN = 69
    sWD = 70 if dn else sW
    assert not (dn and e2)

    def down_setup():
        mksrd(rT, pWD, 0 if "nof" in abl else 1376 * 1024)
        a(f"v_lshl_add_u32 v23, v{vG2}, 11, v{vT}")
        a(f"s_lshl_b32 s{sT3}, s{sROLE}, 15"); a(f"s_lshl_b32 s{sDN}, s{sWD}, 8"); a(f"s_add_u32 s{sDN}, s{sT3}, s{sDN}")

    def down_load(k):
        jj, hi = k >> 1, k & 1
        a(f"buffer_load_dwordx4 {q4(RD+4*(jj+4*hi))}, v23, {srd(rT)}, s{sDN} offen offset:{hi*1024}")
        if hi and jj < 3: a(f"s_add_u32 s{sDN}, s{sDN}, 8192")

    def down_loads():
        a(f"s_cmp_ge_u32 s{sWD}, 4"); a("s_cbranch_scc1 L_nodown")
        down_setup()
        for k in range(8): down_load(k)
        a("L_nodown:")
    if e2:
        a("L_pv2:"); down_setup(); pv_tail(e2, down_load); a("s_branch L_pvdone")
    a("L_T2:")
    if dn: a(f"s_xor_b32 s{sWD}, s{sW}, 4")
    if late: gu_loads(); down_setup()
    elif e2: gu_loads()
    elif downfirst: down_loads(); gu_loads()
    else: gu_loads(); down_loads()
    a(f"v_lshlrev_b32 v{vHA}, 3, v{vPJ}"); a(f"v_lshl_add_u32 v{vHA}, v{vSH}, {13 if h2 is None else 14}, v{vHA}")
    a(f"s_lshl_b32 s{sT0}, s{sW}, 8"); a(f"s_add_u32 s{sT0}, s{sT0}, {MB2}")
    if copies:
        a(f"s_lshr_b32 s{sT1}, s{sXCC}, 2")
        if vote & 1:
            a(f"ds_read_b32 v30, v{vZERO} offset:{L_BETA}"); a("s_waitcnt lgkmcnt(0)")
            a(f"v_readfirstlane_b32 s{sT2}, v30"); a(f"s_xor_b32 s{sT1}, s{sT1}, s{sT2}"); a(f"s_and_b32 s{sT1}, s{sT1}, 1")
        elif h2: a(f"s_xor_b32 s{sT1}, s{sT1}, 1")
        a(f"s_lshl_b32 s{sT1}, s{sT1}, {14 if h2 is None else 13}"); a(f"s_add_u32 s{sT0}, s{sT0}, s{sT1}")
    a(f"s_add_u32 s{sT1}, s{sT0}, 4096")
    a(f"s_mul_i32 s{sT2}, s{sW}, {2*PROW}"); a(f"s_add_u32 s{sT2}, s{sT2}, {L_P16}")
    a(f"v_mul_u32_u24 v{vPW2}, {PROW}, v{vSH}"); a(f"v_add_u32 v{vPW2}, s{sT2}, v{vPW2}")
    a("v_bfe_u32 v30, v0, 1, 1"); a(f"v_lshl_add_u32 v{vPW2}, v30, 4, v{vPW2}")
    a("v_bfe_u32 v30, v0, 2, 1"); a(f"v_lshl_add_u32 v{vPW2}, v30, 3, v{vPW2}")
    a("v_and_b32 v30, 1, v0"); a(f"v_lshl_add_u32 v{vPW2}, v30, 2, v{vPW2}")
    a(f"v_and_b32 v30, 1, v{vG2}"); a("v_mul_u32_u24 v30, 320, v30"); a(f"v_add_u32 v{vPW2}, v30, v{vPW2}")
    a("v_bfe_u32 v30, v0, 2, 2"); a(f"v_mul_u32_u24 v{vGU}, {4*PROW}, v30"); a(f"v_lshl_add_u32 v{vGU}, v{vG2}, 6, v{vGU}")
    a(f"v_and_b32 v31, 3, v0"); a(f"v_lshl_add_u32 v{vGU}, v31, 4, v{vGU}")
    a(f"v_mul_u32_u24 v{vSR}, {PROW // 16}, v{vT}"); a(f"v_add_u32 v{vSR}, {L_P16}, v{vSR}")
    a(f"v_lshlrev_b32 v{vY2}, 1, v{vT}"); a(f"v_lshl_add_u32 v{vY2}, v{vG2}, 3, v{vY2}")
    M3 = MB3 if h3 is None else MB3H + (0 if vote & 2 else h3 * 8192)
    R16 = 16 * 2048 * (1 if h3 is None else 2)
    if h3 is None: a(f"s_lshl_b32 s{sT2}, s{sROLE}, 11")
    else: a(f"s_and_b32 s{sT2}, s{sROLE}, -4"); a(f"s_add_u32 s{sT2}, s{sT2}, s{sROLE}"); a(f"s_lshl_b32 s{sT2}, s{sT2}, 11")
    a(f"s_lshl_b32 s{sT3}, s{sWD}, 9"); a(f"s_add_u32 s{sT2}, s{sT2}, s{sT3}"); a(f"s_add_u32 s{sT2}, s{sT2}, {M3}")
    sFU = 68
    if fpriv:
        a(f"s_lshl_b32 s{sFU}, s{sROLE}, 1"); a(f"s_add_u32 s{sFU}, s{sFU}, s{sWD}"); a(f"s_cmp_lt_u32 s{sWD}, 2"); a(f"s_cselect_b32 s{sFU}, s{sFU}, 32")
    else:
        a(f"s_cmp_eq_u32 s{sW}, 0"); a(f"s_cselect_b32 s{sFU}, s{sROLE}, 32")
    a(f"s_min_u32 s{sFU}, s{sFU}, 32")
    a(f"v_lshrrev_b32 v{vFA}, 2, v{vL}")
    if h3 is not None: a(f"v_lshl_add_u32 v{vFA}, v{vG2}, 2, v{vFA}")
    a(f"v_lshlrev_b32 v{vFA}, 11, v{vFA}"); a(f"v_lshl_add_u32 v{vFA}, v31, 4, v{vFA}")
    a(f"v_lshl_add_u32 v{vFO}, v31, 2, v{vG2}"); a(f"s_lshl_b32 s{sT3}, s{sFU}, 4"); a(f"v_add_lshl_u32 v{vFO}, s{sT3}, v{vFO}, 1")
    sF0, sLO, sHI, sNL = 60, 64, 65, 66
    a(f"s_lshl_b32 s{sF0}, s{sFU}, 6"); a(f"s_add_u32 s{sF0}, s{sF0}, {M3}"); a(f"s_add_u32 s{sF0+1}, s{sF0}, {R16}"); a(f"s_add_u32 s{sF0+2}, s{sF0}, {2*R16}")
    mksrd(rO, pOUT, 1024)
    a(f"s_mov_b32 s{sLO}, 0x05040100"); a(f"s_mov_b32 s{sHI}, 0x07060302")
    a(f"s_mov_b32 s{sNL}, {LOG2E ^ 0x80000000:#x}"); a(f"s_mov_b32 s{sNL+1}, {LOG2E ^ 0x80000000:#x}")
    a(f"s_mov_b32 s{sE}, 0xffff00ff"); a(f"s_mov_b32 s{sE+1}, 0x0000ff00")
    for r in range(4): a(f"v_mov_b32 v{vA+r}, 0x3f803f80")
    for r in range(16): a(f"v_mov_b32 v{AG+r}, 0")

    def transpose(dst, src):
        for q in range(4):
            for r in range(4):
                a(f"v_perm_b32 v{dst+8*q+r}, v{src+4*(2*r+1)+q}, v{src+4*(2*r)+q}, s{sLO}")
                a(f"v_perm_b32 v{dst+8*q+4+r}, v{src+4*(2*r+1)+q}, v{src+4*(2*r)+q}, s{sHI}")
    hloads = [f"buffer_load_dwordx2 {q2(RAW+2*t)}, v{vHA}, {srd(rWS)}, s{sT1 if t >= 2 else sT0} offen offset:{(t&1)*2048} sc1" for t in range(4)]
    if late:
        a(f"s_cmp_ge_u32 s{sWD}, 4")
        a("s_waitcnt vmcnt(0)")
        for ld in hloads: a(ld)
        transpose(BG, TREG)
        unpack(XF, XF + 1, XP)
        stamp("ready")
        a("s_cbranch_scc1 L_hwait")
        if prio: a(f"s_setprio {prio}")
        for k in range(8): down_load(k)
        a("s_waitcnt vmcnt(8)"); a("s_branch L_hcheck")
        poll(hloads, [RAW + 2 * t + 1 for t in range(4)], TMP, entry="L_hwait", check="L_hcheck")
    else:
        a(f"s_cmp_ge_u32 s{sWD}, 4"); a("s_cbranch_scc1 L_tr4")
        if downfirst:
            a("s_waitcnt vmcnt(9)")
            transpose(BD, RD)
        else:
            a("s_waitcnt vmcnt(8)")
            transpose(BG, TREG)
            a("s_waitcnt vmcnt(0)")
            if early_poll:
                for ld in hloads: a(ld)
            transpose(BD, RD)
            a("s_branch L_trdone")
        a("L_tr4:")
        a("s_waitcnt vmcnt(0)")
        if early_poll:
            for ld in hloads: a(ld)
        transpose(BG, TREG)
        a("L_trdone:")
        unpack(XF, XF + 1, XP)
        stamp("ready")
        if early_poll: a("s_branch L_hwait")
        poll(hloads, [RAW + 2 * t + 1 for t in range(4)], TMP, entry="L_hwait" if early_poll else None)
    stamp("got")
    if vote & 2: a(f"v_readfirstlane_b32 s{sT3}, v{RAW}"); a(f"v_and_b32 v{RAW}, -2, v{RAW}")
    pkadd(RAW, RAW, RAW + 2); pkadd(RAW + 4, RAW + 4, RAW + 6); pkadd(RAW, RAW, RAW + 4)
    a(f"s_cmp_ge_u32 s{sWD}, 4")
    ror8_pair(RAW)
    a(f"v_cvt_pk_bf16_f32 v{RAW}, v{RAW}, v{RAW+1}")
    unpack(RAW, RAW + 1, RAW)
    pkadd(RAW, RAW, XF)
    a(f"v_cvt_pk_bf16_f32 v{vPK}, v{RAW}, v{RAW+1}")
    a(f"ds_write_b32 v{vHW}, v{vPK} offset:{L_H}")
    for r in range(4): a(f"v_mov_b32_dpp v{vA+r}, v{vPK} row_newbcast:{r} row_mask:0xf bank_mask:0x1")
    for r in range(4): a(f"v_mov_b32_dpp v{vA+r}, v{vPK} row_newbcast:{4+r} row_mask:0xf bank_mask:0x4")
    mm(vD, vA, vA, True)
    for i in range(8): mm(ACC + 4 * i, vA, BG + 4 * i, True)
    a(f"s_mov_b64 exec, s[{sE}:{sE+1}]")
    a(f"ds_write_b32 v{vPW2}, v{vD} offset:256")
    for k in range(4): a(f"ds_write2_b32 v{vPW2}, v{ACC+8*k}, v{ACC+8*k+4} offset0:{16*k} offset1:{16*k+8}")
    a("s_mov_b64 exec, -1")
    if late:
        a("s_cbranch_scc1 L_notr")
        a("s_waitcnt vmcnt(0)")
        transpose(BD, RD)
        a("L_notr:")
        a("s_waitcnt lgkmcnt(0)"); a("s_barrier")
        a("s_cbranch_scc1 L_epoch")
        GU, CS, ST = ACC, ACC + 16, 40
    else:
        a("s_waitcnt lgkmcnt(0)"); a("s_barrier")
        a("s_cbranch_scc1 L_epoch")
        GU, CS, ST = BG, BG + 16, 40
    a(f"ds_read2_b32 {q2(ST)}, v{vSR} offset0:64 offset1:66")
    for t in range(4): a(f"ds_read_b128 {q4(CS+4*t)}, v{vGU} offset:{L_P16 + PROW*t + 320}")
    for t in range(4): a(f"ds_read_b128 {q4(GU+4*t)}, v{vGU} offset:{L_P16 + PROW*t}")
    a(f"ds_read_u16 v{vFH}, v{vFO} offset:{L_H}")
    if vote & 2:
        a(f"s_and_b32 s{sT3}, s{sT3}, 1"); a(f"s_lshl_b32 s{sT3}, s{sT3}, 13"); a(f"s_add_u32 s{sT2}, s{sT2}, s{sT3}")
        for t in range(3): a(f"s_add_u32 s{sF0+t}, s{sF0+t}, s{sT3}")
    a("s_waitcnt lgkmcnt(9)")
    steps = ("quad_perm:[1,0,3,2]", "quad_perm:[2,3,0,1]", "row_half_mirror", "row_mirror")

    def st_step(k):
        for i in range(2): a(f"v_add_f32_dpp v{ST+i}, v{ST+i}, v{ST+i} {steps[k]} {DPPF}")
    st_step(0); a("s_waitcnt lgkmcnt(7)"); pkadd(CS, CS, CS + 4)
    st_step(1); pkadd(CS + 2, CS + 2, CS + 6); a("s_waitcnt lgkmcnt(5)")
    st_step(2); pkadd(CS + 8, CS + 8, CS + 12)
    st_step(3); pkadd(CS + 10, CS + 10, CS + 14)
    MU, VAR = ST + 2, ST
    a(f"v_mul_f32 v{MU}, 0x3b000000, v{ST+1}"); a(f"v_mul_f32 v{VAR}, 0x3b000000, v{ST}")
    pkadd(CS, CS, CS + 8); pkadd(CS + 2, CS + 2, CS + 10)
    a(f"v_fma_f32 v{VAR}, -v{MU}, v{MU}, v{VAR}"); a(f"v_max_f32 v{VAR}, 0, v{VAR}")
    a(f"v_cvt_pk_bf16_f32 v{VAR}, v{VAR}, v{MU}")
    a("s_waitcnt lgkmcnt(3)")
    pkadd(GU, GU, GU + 4); pkadd(GU + 2, GU + 2, GU + 6)
    unpack(VAR, MU, VAR)
    a(f"v_add_f32 v{VAR}, {EPS:#x}, v{VAR}"); bf16r(VAR, VAR)
    a(f"v_sqrt_f32 v{VAR}, v{VAR}")
    a("s_waitcnt lgkmcnt(1)")
    pkadd(GU + 8, GU + 8, GU + 12); pkadd(GU + 10, GU + 10, GU + 14)
    for i in (0, 2): a(f"v_pk_fma_f32 {q2(GU+i)}, {q2(CS+i)}, {q2(MU)}, {q2(GU+i)} op_sel_hi:[1,0,1] neg_lo:[0,1,0] neg_hi:[0,1,0]")
    pkadd(GU, GU, GU + 8); pkadd(GU + 2, GU + 2, GU + 10)
    bf16r(VAR, VAR)
    for i in range(4): a(f"v_add_f32_dpp v{GU+i}, v{GU+i}, v{GU+i} row_ror:4 {DPPF}")
    a(f"v_rcp_f32 v{VAR}, v{VAR}")
    for i in range(4): a(f"v_add_f32_dpp v{GU+i}, v{GU+i}, v{GU+i} row_ror:8 {DPPF}")
    for i in (0, 2): a(f"v_pk_mul_f32 {q2(GU+i)}, {q2(GU+i)}, {q2(VAR)} op_sel_hi:[1,0]")
    a(f"v_cvt_pk_bf16_f32 v{GU}, v{GU}, v{GU+1}")
    unpack(GU, GU + 1, GU)
    a(f"v_pk_mul_f32 {q2(GU+4)}, {q2(GU)}, s[{sNL}:{sNL+1}]")
    for i in range(2): a(f"v_exp_f32 v{GU+4+i}, v{GU+4+i}")
    a(f"v_cvt_pk_bf16_f32 v{GU+2}, v{GU+2}, v{GU+3}")
    a(f"v_pk_add_f32 {q2(GU+4)}, {q2(GU+4)}, 1.0 op_sel_hi:[1,0]")
    for i in range(2): a(f"v_rcp_f32 v{GU+4+i}, v{GU+4+i}")
    unpack(GU + 2, GU + 3, GU + 2)
    a(f"v_pk_mul_f32 {q2(GU)}, {q2(GU)}, {q2(GU+4)}")
    a(f"v_cvt_pk_bf16_f32 v{GU}, v{GU}, v{GU+1}")
    unpack(GU, GU + 1, GU)
    a(f"v_pk_mul_f32 {q2(GU)}, {q2(GU)}, {q2(GU+2)}")
    a(f"v_cvt_pk_bf16_f32 v{vPK}, v{GU}, v{GU+1}")
    DE, DO = vD, vA + 4

    def ag(G, rs=range(4)):
        for r in rs: a(f"v_mov_b32_dpp v{AG+4*G+r}, v{vPK} row_newbcast:{r} row_mask:0xf bank_mask:{1 << G:#x}")
    ag(0); ag(1, (0, 1))
    for G in range(4):
        mm(DE, AG + 4 * G, BD + 8 * G, G == 0)
        if G < 3: ag(G + 1, (2, 3))
        mm(DO, AG + 4 * G, BD + 8 * G + 4, G == 0)
        if G < 2: ag(G + 2, (0, 1))
    FR = KREG if late else ACC
    a(f"s_cmp_ge_u32 s{sFU}, 32")
    put_tag(DE + 1, DO)
    a(f"buffer_store_dwordx2 {q2(DE)}, v{vY2}, {srd(rWS)}, s{sT2} offen sc1")
    stamp("pub")
    a("s_cbranch_scc1 L_exit")
    a(f"v_mov_b32 v{FR+8}, 0"); a(f"v_mov_b32 v{FR+10}, 0")
    a("s_waitcnt lgkmcnt(0)")
    a(f"v_lshlrev_b32 v{vFH}, 16, v{vFH}")
    if fwait: a("s_waitcnt vmcnt(0)")
    if fdelay and not floop: a(f"s_sleep {fdelay}")
    poll(([f"s_sleep {fdelay}"] if fdelay and floop else []) + [f"buffer_load_dwordx4 {q4(FR)}, v{vFA}, {srd(rWS)}, s{sF0} offen {fpol}",
          f"buffer_load_dwordx4 {q4(FR+4)}, v{vFA}, {srd(rWS)}, s{sF0+1} offen {fpol}",
          f"v_mov_b32 v{FR+9}, s{sTG8}", f"v_mov_b32 v{FR+11}, s{sTG8}",
          "s_mov_b32 exec_hi, 0xfff",
          f"buffer_load_dwordx4 {q4(FR+8)}, v{vFA}, {srd(rWS)}, s{sF0+2} offen {fpol}",
          "s_mov_b32 exec_hi, -1"], [FR + 2 * t + 1 for t in range(6)], TMP)
    stamp("fgot")
    for i in (0, 2): pkadd(FR + i, FR + i, FR + 4 + i)
    for i in (0, 2): pkadd(FR + i, FR + i, FR + 8 + i)
    a(f"v_permlane32_swap_b32 v{FR}, v{FR+2}"); a(f"v_permlane32_swap_b32 v{FR+1}, v{FR+3}")
    pkadd(FR, FR, FR + 2)
    a(f"v_permlane16_swap_b32 v{FR}, v{FR+1}")
    a(f"v_add_f32 v{FR}, v{FR}, v{FR+1}")
    for m in ("row_ror:4", "row_ror:8"): a(f"v_add_f32_dpp v{FR}, v{FR}, v{FR} {m} {DPPF}")
    a("s_mov_b32 exec_lo, 0x000f000f"); a("s_mov_b32 exec_hi, 0x000f000f")
    bf16r(FR, FR); a(f"v_add_f32 v{FR}, v{FR}, v{vFH}")
    a(f"v_cvt_pk_bf16_f32 v{FR}, v{FR}, v{FR}")
    a(f"buffer_store_short v{FR}, v{vFO}, {srd(rO)}, 0 offen {outpol}")
    if amp:
        a(f"s_memrealtime s[{sE}:{sE+1}]"); a("s_waitcnt lgkmcnt(0)")
        a(f"s_sub_u32 s{sT0}, s{sST+2}, s{sST}")
        if len(amp) > 2 and amp[2] == "inv": a(f"s_sub_u32 s{sT0}, 2500, s{sT0}")
        if len(amp) > 2 and amp[2] == "fix": a(f"s_mov_b32 s{sT0}, 100")
        if len(amp) > 3 and amp[2] == "lat": lat_probe()
        elif len(amp) > 3: diag_stat()
        a(f"s_mul_i32 s{sT0}, s{sT0}, {amp[1]}")
        a(f"s_min_u32 s{sT0}, s{sT0}, 200000"); a(f"s_mov_b32 s{sT1}, s{sE}")
        a("L_amp:"); a(f"s_memrealtime s[{sE}:{sE+1}]"); a("s_waitcnt lgkmcnt(0)")
        a(f"s_sub_u32 s{sT2}, s{sE}, s{sT1}"); a(f"s_cmp_lt_u32 s{sT2}, s{sT0}"); a("s_cbranch_scc1 L_amp")
    a("L_exit:")
    if stamps:
        a("s_mov_b64 exec, -1")
        stamp("exit")
        a(f"v_writelane_b32 v{vSTAMP}, s{sROLE}, 14")
        a(f"s_mul_i32 s{sT0}, s2, {NWAVE}"); a(f"s_add_u32 s{sT0}, s{sT0}, s{sW}"); a(f"s_add_u32 s{sT0}, s{sT0}, 1")
        a(f"s_lshl_b32 s{sT0}, s{sT0}, {8 if trace else 6}"); a(f"s_add_u32 s{sT0}, s{sT0}, {STAMP}")
        a(f"v_lshlrev_b32 v{vSTAMP+1}, 2, v{vL}")
        if not trace: a("s_mov_b64 exec, 0xffff")
        a(f"buffer_store_dword v{vSTAMP}, v{vSTAMP+1}, {srd(rWS)}, s{sT0} offen")
    a("L_end:")
    a("s_endpgm")
    a("L_epoch:")
    a(f"s_lshl_b32 s{sT0}, s{sROLE}, 3"); a(f"s_add_u32 s{sT0}, s{sT0}, s{sWD}"); a(f"s_cmp_lg_u32 s{sT0}, 4"); a("s_cbranch_scc1 L_exit")
    a(f"s_mov_b32 s{sT0}, {EPOCH}"); a(f"s_or_b32 s{sT1}, s{sTAG}, s{sTG8}"); a(f"v_mov_b32 v3, s{sT1}"); a("s_mov_b64 exec, 1")
    a(f"buffer_store_dword v3, off, {srd(rWS)}, s{sT0} sc1")
    a("L_last:")
    a("s_branch L_exit")
    assert not far

    out = HEADER + f"; @launch grid=(256,1,1) block=({64*NWAVE},1,1) lds={L_END}\n"
    out += f'.amdgcn_target "amdgcn-amd-amdhsa--gfx950"\n.text\n.globl {KNAME}\n.p2align 8\n.type {KNAME},@function\n'
    out += a.render()
    out += f'''.section .rodata,"a"
.p2align 6
.amdhsa_kernel {KNAME}
  .amdhsa_next_free_vgpr {NV}
  .amdhsa_next_free_sgpr 97
  .amdhsa_accum_offset {NV}
  .amdhsa_group_segment_fixed_size 0
  .amdhsa_kernarg_size 96
  .amdhsa_user_sgpr_count 2
  .amdhsa_user_sgpr_kernarg_segment_ptr 1
  .amdhsa_system_sgpr_workgroup_id_x 1
  .amdhsa_float_denorm_mode_32 3
.end_amdhsa_kernel
'''
    return out


if __name__ == "__main__":
    kw = {}
    for arg in sys.argv[2:]:
        k, v = arg.split("=")
        kw[k] = eval(v)
    open(sys.argv[1], "w").write(gen(**kw))
```

```python
import sys
from asmlib import Asm

KNAME = "sequential_preLN__sliding_block_cached__swiglu_ffn__decode_kernel"
HEADER = open("sequential_preLN__sliding_block_cached__swiglu_ffn__decode.s.ref").read().split("; Override launch")[0]

LOG2E = 0x3FB8AA3B
SCALE = 0x3DB504F3
EPS = 0x3727C5AC

SLOT = 512
MB1 = 0
MB2 = 256 * SLOT
MB3 = MB2 + 2 * 8 * 2048
MBQ = MB2 + 256 * 512
MBM = MBQ + 256 * 1024
EPOCH = MBM + 256 * 128
MB3H = 0xa0000
PROBE = 0x1c0000
STAMP = 1 << 20
WS_SIZE = 2 << 20
PROW = 608
L_BETA = 356
L_QB, L_ST, L_F, L_MODE, L_C, L_H, L_OP, L_P16 = 0, 256, 320, 352, 384, 512, 2048, 2048 + 8192
L_END = L_P16 + 16 * PROW

NT2 = 43
NWAVE = 9
DPPF = "row_mask:0xf bank_mask:0xf"
STAMPS = ["start", "args", "x", "qpub", "qgot", "p", "cbar", "obar", "ready", "got", "pub", "fgot", "exit"]

sH, sSP, sW, sTAG, sBUD = 3, 4, 5, 6, 7
pX, pK, pV, pWQ, pWO, pWG, pWU, pWD, pOUT, pDBG, pWS = 8, 10, 12, 14, 16, 20, 22, 24, 26, 28, 30
sMW, sEP = 18, 19
rK, rV, rQ, rX, rWS, rO, rT = 32, 36, 40, 44, 48, 52, 56
sOFF = 60
sT0, sT1, sT2, sT3 = 76, 77, 78, 79
sROLE, sIDX = 80, 81
sE = 82
sXCC, sU = 84, 85
sST = 86
sUA, sMEM = 90, 91
sPFM = 92
sTG8, sMODE = 94, 95
sNA = 96
vL, vKV = 1, 2
vSEL, vA, vD, vPK, vB = 4, 8, 16, 20, 21
vT = 22
KREG, VREG, XREG = 48, 112, 144
TREG = KREG
vFF, vZERO = 164, 165
vSTAMP = 166
NV = 168


def q4(r): return f"v[{r}:{r+3}]"
def q2(r): return f"v[{r}:{r+1}]"
def srd(r): return f"s[{r}:{r+3}]"


def gen(W=4, stamps=False, budget=1 << 18, gpos=15, cpos=11, local=True, amp=None, only=None, abl=(), trace=False,
        pat="jjjsssj", hprio=1, hsleep=2, pfcode=True, warm=True,
        pfs=4, pfat=(12, 12, 13, 14), pford=(0, 2, 1, 3), e1=(14, 15, 15, 15), e2=(), stages="ABdCD", t2ord="gd",
        un=(6, 6, 6, 5, 5, 5, 5, 5), h2=0, h3=0, fdelay=3, early_poll=True, psleep=0, burst=2, vote=3, nprobe=1, floop=True, pollfirst=False, prio=0, dn=0, lean=13, konly=True, nolo=False, latebr=True, pipe1=0, pipe2=0, mode_early=True, sl1=0, sl2=0, mask2=False):
    nwo = len(pfat)
    assert W == 4 and sum(un) == NT2 and max(un) <= 7 and len(e2) in (0, 8)
    assert not pford or (pford[0] == 0 and sorted(pford) == list(range(nwo)))
    k0, bar0, copies, fpriv, fwait, fpol, outpol, bare = 4, -1, True, True, True, "sc1", "", True
    a = Asm()
    far = []

    def stamp(name):
        i = STAMPS.index(name)
        if stamps:
            if only and name not in only and name not in ("start", "exit"): return
            a(f"s_memrealtime s[{sST}:{sST+1}]"); a("s_waitcnt lgkmcnt(0)"); a(f"v_writelane_b32 v{vSTAMP}, s{sST}, {i}")
        elif amp and name == "start": a(f"s_memrealtime s[{sST}:{sST+1}]")
        elif amp and name == amp[0]: a(f"s_memrealtime s[{sST+2}:{sST+3}]\ns_waitcnt lgkmcnt(0)")

    def diag_store():
        only_wave(2, "L_nodiag")
        a(f"s_lshl_b32 s{sT1}, s2, 2"); a(f"s_add_u32 s{sT1}, s{sT1}, {STAMP}"); a(f"v_mov_b32 v46, s{sST + (0 if amp[0] == 'start' else 2)}"); a("s_mov_b64 exec, 1")
        a(f"buffer_store_dword v46, off, {srd(rWS)}, s{sT1} sc1"); a("s_mov_b64 exec, -1")
        a("L_nodiag:")

    def diag_stat():
        a(f"s_mov_b32 s{sT0}, 0"); a(f"s_cmp_lg_u32 s{sROLE}, 0"); a("s_cbranch_scc1 L_dodelay")
        a("s_mov_b64 exec, -1"); a(f"s_mov_b32 s{sT1}, {STAMP}"); a(f"v_lshlrev_b32 v24, 2, v{vL}")
        for t in range(4): a(f"buffer_load_dword v{28+t}, v24, {srd(rWS)}, s{sT1} offen offset:{256*t} sc1")
        a("s_waitcnt vmcnt(0)")
        for t in range(4): a(f"v_subrev_u32 v{28+t}, s{sST}, v{28+t}"); a(f"v_add_u32 v{28+t}, 0x10000, v{28+t}")
        a("v_min3_u32 v32, v28, v29, v30"); a("v_min_u32 v32, v32, v31"); wave_red("v_min_u32", 32, sT2)
        for t in range(4): a(f"v_subrev_u32 v{28+t}, s{sT2}, v{28+t}")
        kind, par = amp[2], amp[3]
        if kind == "range":
            a("v_max3_u32 v32, v28, v29, v30"); a("v_max_u32 v32, v32, v31"); wave_red("v_max_u32", 32, sT0)
        elif kind == "mean":
            a("v_add3_u32 v32, v28, v29, v30"); a("v_add_u32 v32, v32, v31"); wave_red("v_add_u32", 32, sT0); a(f"s_lshr_b32 s{sT0}, s{sT0}, 8")
        elif kind == "count":
            for t in range(4):
                a(f"v_cmp_lt_u32 vcc, {par}, v{28+t}"); a(f"s_bcnt1_i32_b64 s{sT1}, vcc"); a(f"s_add_u32 s{sT0}, s{sT0}, s{sT1}")
        elif kind == "groups":
            a("v_max3_u32 v32, v28, v29, v30"); a("v_max_u32 v32, v32, v31"); a(f"v_cmp_lt_u32 vcc, {par}, v32")
            a(f"s_or_b32 s{sT1}, vcc_lo, vcc_hi"); a(f"s_lshr_b32 s{sT2}, s{sT1}, 16"); a(f"s_or_b32 s{sT1}, s{sT1}, s{sT2}")
            a(f"s_lshr_b32 s{sT2}, s{sT1}, 8"); a(f"s_or_b32 s{sT1}, s{sT1}, s{sT2}"); a(f"s_and_b32 s{sT1}, s{sT1}, 0xff"); a(f"s_bcnt1_i32_b32 s{sT0}, s{sT1}")
        elif kind == "quarter":
            wave_red("v_add_u32", 28 + par, sT0); a(f"s_lshr_b32 s{sT0}, s{sT0}, 6")
        a("L_dodelay:")

    def lat_probe():
        p, off, stride, op, lanes, inv = amp[3]
        a(f"s_mov_b32 s{sT0}, 0"); a(f"s_cmp_lg_u32 s68, 0"); a("s_cbranch_scc1 L_dodelay")
        a("s_mov_b64 exec, -1")
        a(f"v_lshlrev_b32 v24, 7, v{vL}"); a(f"v_add_u32 v24, {off}, v24"); a("v_mov_b32 v25, 0")
        if lanes == 1: a("s_mov_b64 exec, 1")
        a("s_sleep 60"); a("s_waitcnt vmcnt(0)")
        a(f"s_memrealtime s[{sST}:{sST+1}]"); a(f"s_mov_b32 s{sT1}, 32")
        a("L_lat:")
        a(op.replace("P", f"s[{p}:{p+1}]")); a("s_waitcnt vmcnt(0)"); a(f"v_add_u32 v24, {stride}, v24")
        a(f"s_sub_u32 s{sT1}, s{sT1}, 1"); a(f"s_cmp_lg_u32 s{sT1}, 0"); a("s_cbranch_scc1 L_lat")
        a(f"s_memrealtime s[{sST+2}:{sST+3}]"); a("s_waitcnt lgkmcnt(0)")
        a(f"s_sub_u32 s{sT0}, s{sST+2}, s{sST}")
        if inv: a(f"s_sub_u32 s{sT0}, 4000, s{sT0}")
        a("L_dodelay:")

    def tr(i):
        if trace:
            a(f"s_memrealtime s[{sST}:{sST+1}]"); a("s_waitcnt lgkmcnt(0)"); a(f"v_writelane_b32 v{vSTAMP}, s{sST}, {16+i}")

    def mksrd(r, p, size, add=None):
        if add is None:
            a(f"s_mov_b32 s{r}, s{p}"); a(f"s_mov_b32 s{r+1}, s{p+1}")
        else:
            a(f"s_add_u32 s{r}, s{p}, s{add}"); a(f"s_addc_u32 s{r+1}, s{p+1}, 0")
        a(f"s_mov_b32 s{r+2}, {size}"); a(f"s_mov_b32 s{r+3}, 0x20000")

    def bf16r(d, s):
        a(f"v_cvt_pk_bf16_f32 v{d}, v{s}, v{s}"); a(f"v_lshlrev_b32 v{d}, 16, v{d}")

    def unpack(lo, hi, s):
        a(f"v_and_b32 v{hi}, 0xffff0000, v{s}"); a(f"v_lshlrev_b32 v{lo}, 16, v{s}")

    def pkadd(d, x, y): a(f"v_pk_add_f32 {q2(d)}, {q2(x)}, {q2(y)}")

    def wave_red(op, v, s):
        for m in ("quad_perm:[1,0,3,2]", "quad_perm:[2,3,0,1]", "row_half_mirror", "row_mirror"):
            a(f"{op}_dpp v{v}, v{v}, v{v} {m} {DPPF}")
        a(f"{op}_dpp v{v}, v{v}, v{v} row_bcast:15 row_mask:0xa bank_mask:0xf")
        a(f"{op}_dpp v{v}, v{v}, v{v} row_bcast:31 row_mask:0xc bank_mask:0xf")
        a(f"v_readlane_b32 s{s}, v{v}, 63")

    def red8(op, *vs):
        for m in ("quad_perm:[1,0,3,2]", "quad_perm:[2,3,0,1]", "row_half_mirror"):
            for v in vs: a(f"{op}_dpp v{v}, v{v}, v{v} {m} {DPPF}")

    def build_a(j):
        A = vA + 4 * (j & 1)
        a(f"v_mov_b32_dpp v{vB}, v{vPK} row_newbcast:{j} {DPPF}")
        for r in range(4):
            a(f"v_perm_b32 v{A+r}, v{vB}, v{vB}, v{vSEL+r}")

    def mm(d, x, y, first):
        a(f"v_mfma_f32_16x16x32_bf16 {q4(d)}, {q4(x)}, {q4(y)}, {'0' if first else q4(d)}")

    def mfma(j, b, first): mm(vD, vA + 4 * (j & 1), b, first)

    def gemv(n, breg):
        build_a(0)
        for j in range(n):
            if j + 1 < n: build_a(j + 1)
            mfma(j, breg + 4 * j, j == 0)

    def red16(vaddr, v, mid=None, even=False):
        if even:
            for t in range(2): a(f"ds_read2st64_b64 {q4(v+4*t)}, v{vaddr} offset0:{4*t} offset1:{4*t+2}")
            if mid: mid()
            a("s_waitcnt lgkmcnt(1)"); pkadd(v, v, v + 2)
            a("s_waitcnt lgkmcnt(0)"); pkadd(v + 4, v + 4, v + 6)
            pkadd(v + 2, v, v + 4); pkadd(v, v, v + 4)
            a(f"v_permlane32_swap_b32 v{v}, v{v+2}"); a(f"v_permlane32_swap_b32 v{v+1}, v{v+3}")
            pkadd(v, v, v + 2)
            return
        for t in range(4):
            a(f"ds_read2st64_b64 {q4(v+4*t)}, v{vaddr} offset0:{2*t} offset1:{2*t+1}")
        a("s_waitcnt lgkmcnt(2)")
        pkadd(v, v, v + 2); pkadd(v + 4, v + 4, v + 6); pkadd(v, v, v + 4)
        if mid: mid()
        a("s_waitcnt lgkmcnt(0)")
        pkadd(v + 8, v + 8, v + 10); pkadd(v + 12, v + 12, v + 14); pkadd(v + 8, v + 8, v + 12)
        pkadd(v + 2, v, v + 8); pkadd(v, v, v + 8)
        a(f"v_permlane32_swap_b32 v{v}, v{v+2}"); a(f"v_permlane32_swap_b32 v{v+1}, v{v+3}")
        pkadd(v, v, v + 2)

    def vor(tmp, rs):
        rs = list(rs)
        if len(rs) == 2:
            a(f"v_or_b32 v{tmp}, v{rs[0]}, v{rs[1]}"); return
        a(f"v_or3_b32 v{tmp}, v{rs[0]}, v{rs[1]}, v{rs[2]}"); rs = rs[3:]
        while rs:
            if len(rs) >= 2:
                a(f"v_or3_b32 v{tmp}, v{tmp}, v{rs[0]}, v{rs[1]}"); rs = rs[2:]
            else:
                a(f"v_or_b32 v{tmp}, v{tmp}, v{rs[0]}"); rs = rs[1:]

    npoll = [0]

    def spend():
        a(f"s_sub_u32 s{sBUD}, s{sBUD}, 1"); a("s_cbranch_scc1 L_exit")

    def poll(loads, tagged, tmp, entry=None, check=None, tags=None, after=None, sleep=0):
        n = npoll[0]; npoll[0] += 1
        a(f"L_poll{n}:")
        if psleep or sleep: a(f"s_sleep {psleep or sleep}")
        for ld in loads: a(ld)
        spend()
        if entry: a(entry + ":")
        a("s_waitcnt vmcnt(0)")
        if check: a(check + ":")
        for k, r in enumerate(tagged): a(f"v_xor_b32 v{r}, {tags[k] if tags else 's%d' % sTG8}, v{r}")
        vor(tmp, tagged)
        a(f"v_cmp_ne_u32_sdwa vcc, v{tmp}, v{vZERO} src0_sel:BYTE_0 src1_sel:DWORD")
        if after and latebr: after()
        a(f"s_cbranch_vccnz L_poll{n}")
        if after and not latebr: after()

    def poll2(mk, A, B, tmp, combine, gap, entry=None):
        n = npoll[0]; npoll[0] += 1

        def check(r):
            for t in range(4): a(f"v_xor_b32 v{r+2*t+1}, s{sTG8}, v{r+2*t+1}")
            vor(tmp, [r + 2 * t + 1 for t in range(4)])
            a(f"v_cmp_ne_u32_sdwa vcc, v{tmp}, v{vZERO} src0_sel:BYTE_0 src1_sel:DWORD")
            combine(r)
        if entry: a(entry + ":")
        else:
            for ld in mk(A): a(ld)
        a("s_waitcnt vmcnt(0)"); check(A); a(f"s_cbranch_vccz L_pdone{n}")
        for ld in mk(A): a(ld)
        a(f"s_sleep {gap}")
        a(f"L_poll{n}:")
        for ld in mk(B): a(ld)
        spend()
        a("s_waitcnt vmcnt(4)"); check(A); a(f"s_cbranch_vccz L_pdone{n}")
        for ld in mk(A): a(ld)
        a("s_waitcnt vmcnt(4)"); check(B); a(f"s_cbranch_vccnz L_poll{n}")
        a(f"L_pdone{n}:")

    def poll_tag(loads, tmp, slack=0, retry=None, first=None, once=None):
        n = npoll[0]; npoll[0] += 1
        if first:
            for ld in loads: a(ld[0])
            first(); a(f"s_branch L_pwait{n}")
        else:
            for t in range(len(loads)): a(f"s_mov_b64 s[{sOFF+2*t}:{sOFF+2*t+1}], -1")
        a(f"L_poll{n}:")
        for t, ld in enumerate(loads):
            a(f"s_mov_b64 exec, s[{sOFF+2*t}:{sOFF+2*t+1}]"); a(ld[0])
        a("s_mov_b64 exec, -1")
        spend()
        if first: a(f"L_pwait{n}:")
        a("s_waitcnt vmcnt(0)")
        a(f"s_mov_b64 s[{sE}:{sE+1}], 0")
        for t, (_, rs) in enumerate(loads):
            m = f"s[{sOFF+2*t}:{sOFF+2*t+1}]"
            a(f"v_xor_b32 v{tmp}, s{sTAG}, v{rs[0]}"); a(f"v_xor_b32 v{tmp+1}, s{sTAG}, v{rs[1]}"); a(f"v_or_b32 v{tmp}, v{tmp}, v{tmp+1}")
            a(f"v_cmp_lt_u32 {m}, {(1 << slack) - 1}, v{tmp}")
            a(f"s_or_b64 s[{sE}:{sE+1}], s[{sE}:{sE+1}], {m}")
        if once: a(f"s_and_b64 s[{sE}:{sE+1}], s[{sE}:{sE+1}], s[{once}:{once+1}]")
        if retry is None:
            a(f"s_cbranch_scc1 L_poll{n}")
        else:
            a(f"s_cbranch_scc1 L_pagain{n}")

            def again():
                a(f"L_pagain{n}:"); retry(); a(f"s_branch L_poll{n}")
            far.append(again)

    def put_tag(d, s, tag=None):
        a(f"v_bfi_b32 v{d}, v{vFF}, {tag or 's%d' % sTG8}, v{s}")

    nst = [0]

    def mode_store(text):
        if not local:
            a(text + " sc1"); return
        n = nst[0]; nst[0] += 1
        a(f"s_cbranch_scc1 L_stfar{n}")
        a(text)
        a(f"L_stdone{n}:")

        def other():
            a(f"L_stfar{n}:"); a(text + " sc1"); a(f"s_branch L_stdone{n}")
        far.append(other)

    def emit_far():
        for f in list(far): f()
        far.clear()

    def only_wave(w, label):
        a(f"s_cmp_lg_u32 s{sW}, {w}"); a(f"s_cbranch_scc1 {label}")

    def selectors():
        t0, t1, t2 = 32, 33, 34
        a(f"v_and_b32 v{t0}, 8, v0"); a(f"v_mov_b32 v{t1}, 0x0100"); a(f"v_mov_b32 v{t2}, 0x0302")
        a(f"v_cmp_ne_u32 vcc, 0, v{t0}"); a(f"v_cndmask_b32 v{t1}, v{t1}, v{t2}, vcc")
        a(f"v_or_b32 v{t2}, 0x0c0c0000, v{t1}")
        a(f"v_lshlrev_b32 v{t1}, 16, v{t1}"); a(f"v_or_b32 v{t1}, 0x0c0c, v{t1}")
        a(f"v_and_b32 v{t0}, 1, v0"); a(f"v_cmp_ne_u32 vcc, 0, v{t0}"); a(f"v_cndmask_b32 v{t1}, v{t2}, v{t1}, vcc")
        a(f"v_bfe_u32 v{t0}, v0, 1, 2"); a(f"v_mov_b32 v{t2}, 0x0c0c0c0c")
        for r in range(4):
            a(f"v_cmp_eq_u32 vcc, {r}, v{t0}"); a(f"v_cndmask_b32 v{vSEL+r}, v{t2}, v{t1}, vcc")

    def tag_from_epoch():
        a(f"s_add_u32 s{sTG8}, s{sTAG}, 1"); a(f"s_and_b32 s{sTG8}, s{sTG8}, 0xff"); a(f"s_mov_b32 s{sEP}, s{sTG8}")
        for k, m in ((1, 255), (2, 253), (3, 251)):
            a(f"s_bfe_u32 s{sT1}, s{sTAG}, {0x80000 | 8*k:#x}"); a(f"s_add_u32 s{sT1}, s{sT1}, 1")
            a(f"s_cmp_lt_u32 s{sT1}, {m}"); a(f"s_cselect_b32 s{sT1}, s{sT1}, 0")
            a(f"s_lshl_b32 s{sT1}, s{sT1}, {8*k}"); a(f"s_or_b32 s{sEP}, s{sEP}, s{sT1}")
        a(f"s_and_b32 s{sTAG}, s{sEP}, -8")

    def role():
        first = [sum(un[:g]) for g in range(8)]
        a(f"s_and_b32 s{sT1}, s{sH}, 7"); a(f"s_lshl_b32 s{sT3}, s{sT1}, 3")
        a(f"s_mov_b32 s{sT0}, {sum(first[g] << (8 * g) for g in range(4)):#x}"); a(f"s_mov_b32 s{sT1}, {sum(first[g + 4] << (8 * g) for g in range(4)):#x}")
        a(f"s_lshr_b64 s[{sT0}:{sT0+1}], s[{sT0}:{sT0+1}], s{sT3}"); a(f"s_and_b32 s{sUA}, s{sT0}, 0xff")
        a(f"s_lshr_b32 s{sT3}, s{sT3}, 1"); a(f"s_lshr_b32 s{sNA}, {sum(un[g] << (4 * g) for g in range(8)):#x}, s{sT3}"); a(f"s_and_b32 s{sNA}, s{sNA}, 15")
        a(f"s_mov_b32 s{sT2}, s{sNA}")
        a(f"s_lshr_b32 s{sMEM}, s{sH}, 3"); a(f"s_lshl2_add_u32 s{sMEM}, s{sSP}, s{sMEM}")
        a(f"s_sub_u32 s{sT1}, s{sMEM}, 8"); a(f"s_add_u32 s{sT3}, s{sT1}, s{sUA}")
        a(f"s_cmp_lt_u32 s{sT1}, s{sT2}"); a(f"s_cselect_b32 s{sROLE}, s{sT3}, 63")
        a(f"s_add_u32 s{sT3}, s{sMEM}, 64")
        a(f"s_cmp_lt_u32 s{sMEM}, 8"); a(f"s_cselect_b32 s{sROLE}, s{sT3}, s{sROLE}")
        if "role" in abl: a(f"s_mov_b32 s{sROLE}, 63")

    T, MM = 26, 30

    nlds = [0]

    def lds_wait(read, regs_, sleep=0):
        n = nlds[0]; nlds[0] += 1
        a(f"L_lds{n}:")
        a(read)
        a("s_waitcnt lgkmcnt(0)")
        rs = list(regs_)
        if len(rs) == 1: a(f"v_cmp_eq_u32 vcc, -1, v{rs[0]}")
        else:
            if len(rs) == 2: a(f"v_max_u32 v{vB}, v{rs[0]}, v{rs[1]}")
            else: a(f"v_max3_u32 v{vB}, v{rs[0]}, v{rs[1]}, v{rs[2]}"); a(f"v_max_u32 v{vB}, v{vB}, v{rs[3]}")
            a(f"v_cmp_eq_u32 vcc, -1, v{vB}")
        a(f"s_cbranch_vccnz L_ldsagain{n}")

        def again():
            a(f"L_ldsagain{n}:")
            if sleep: a(f"s_sleep {sleep}")
            spend(); a(f"s_branch L_lds{n}")
        far.append(again)

    seq = [("k", j) for j in range(16)] + [("v", j) for j in range(16)]
    pos = {op: i for i, op in enumerate(seq)}
    issued, done = [0], [0]
    def vreg(j): return VREG + 4 * j if j < 8 else KREG + 16 + 4 * (j - 8)

    def issue_to(n):
        while issued[0] < min(n, len(seq)):
            kind, j = seq[issued[0]]
            if kind == "k": a.vmem(f"buffer_load_dwordx4 {q4(KREG+4*j)}, v{vKV}, {srd(rK)}, s{sOFF+j} offen nt", (kind, j))
            else: a.vmem(f"buffer_load_dwordx4 {q4(vreg(j))}, v{vKV}, {srd(rV)}, s{sOFF+j} offen nt", (kind, j))
            issued[0] += 1

    def advance(upto):
        while done[0] <= pos[upto]:
            a.wait_vm(seq[done[0]]); done[0] += 1
            issue_to(done[0] + W)
            tr(done[0] - 1)

    def ids():
        a(f"s_and_b32 s{sH}, s2, 31"); a(f"s_lshr_b32 s{sSP}, s2, 5")

    def ids2():
        a(f"s_mov_b32 s{sBUD}, {budget}"); a(f"s_lshl3_add_u32 s{sIDX}, s{sH}, s{sSP}")
        a(f"s_getreg_b32 s{sXCC}, hwreg(HW_REG_XCC_ID, 0, 3)"); a(f"v_and_b32 v{vL}, 63, v0")

    def scatter(x, ch):
        return sum(((x >> k) & 1) << p for k, p in enumerate(13 + i for i, c in enumerate(pat) if c == ch))
    KVSIZE = scatter(15, "j") + 8192

    def offsets(js):
        for j in js:
            o = scatter(j, "j")
            a(f"s_movk_i32 s{sOFF+j}, {o:#x}" if o < 0x8000 else f"s_mov_b32 s{sOFF+j}, {o:#x}")

    def kv_base():
        ps = [13 + i for i, c in enumerate(pat) if c == "s"]
        a(f"s_lshl3_add_u32 s{sT0}, s{sH}, 7"); a(f"s_lshl_b32 s{sT0}, s{sT0}, 20")
        k = 0
        while k < 3:
            n = 1
            while k + n < 3 and ps[k + n] == ps[k] + n: n += 1
            if n == 3: a(f"s_lshl_b32 s{sT1}, s{sSP}, {ps[0]}")
            else: a(f"s_bfe_u32 s{sT1}, s{sSP}, {(n << 16) | k:#x}"); a(f"s_lshl_b32 s{sT1}, s{sT1}, {ps[k]}")
            a(f"s_add_u32 s{sT0}, s{sT0}, s{sT1}")
            k += n

    a(f"{KNAME}:")
    if stamps or amp: a(f"s_memrealtime s[{sST}:{sST+1}]")
    allargs = "s_load_dwordx16 s[8:23], s[0:1], 0\ns_load_dwordx8 s[24:31], s[0:1], 64"
    a(f"s_load_dwordx2 s[{rK}:{rK+1}], s[0:1], 8" if konly else allargs)
    a("s_cmpk_ge_u32 s2, 256"); a("s_cbranch_scc1 L_end")
    a(f"v_readfirstlane_b32 s{sW}, v0")
    a(f"s_cmpk_lt_u32 s{sW}, 64"); a("s_cbranch_scc1 L_helper00" if konly else "s_cbranch_scc1 L_helper0")
    a("v_subrev_u32 v0, 64, v0")
    if pfcode:
        a(f"s_getpc_b64 s[{sE}:{sE+1}]")
        a("L_pc:")
        a("v_lshlrev_b32 v24, 5, v0"); a("v_min_u32 v24, L_last-L_pc, v24")
        a(f"global_load_dword v3, v24, s[{sE}:{sE+1}]")
    ids()
    a(f"v_lshlrev_b32 v{vKV}, 4, v0")
    kv_base()
    offsets(range(W))
    a(f"s_mov_b32 s{rK+3}, 0x20000"); a(f"s_mov_b32 s{rK+2}, {KVSIZE:#x}")
    a("s_waitcnt lgkmcnt(0)")
    kp = rK if konly else pK
    a(f"s_add_u32 s{rK}, s{kp}, s{sT0}"); a(f"s_addc_u32 s{rK+1}, s{kp+1}, 0")
    issue_to(k0)
    if konly: a(allargs)
    a("s_barrier")
    issue_to(W)
    a("s_branch L_stream")
    if konly: a("L_helper00:"); a(allargs); a("s_branch L_helper0")
    a(".p2align 8")

    a("L_helper0:")
    if hprio: a(f"s_setprio {hprio}")
    vXA, vXO, vQO = 22, 23, 3
    XA, XO = 28, 27
    a("v_lshlrev_b32 v24, 3, v0"); a("v_mov_b32 v30, -1"); a("v_mov_b32 v31, -1")
    a("ds_write_b64 v24, v[30:31]")
    ids()
    a(f"v_lshlrev_b32 v{vXA}, 4, v0")
    a("v_lshrrev_b32 v24, 4, v0"); a("v_and_b32 v25, 15, v0")
    a(f"s_lshl_b32 s{sT1}, s{sSP}, 6"); a(f"v_add_u32 v24, s{sT1}, v24")
    a(f"v_lshl_add_u32 v{vXO}, v25, 2, v24"); a(f"v_lshlrev_b32 v{vXO}, 1, v{vXO}")
    a(f"v_lshlrev_b32 v{vQO}, 13, v24"); a(f"v_lshl_add_u32 v{vQO}, v25, 4, v{vQO}")
    a(f"s_lshl_b32 s{sT0}, s{sH}, 8"); a(f"s_mov_b32 s{sT1}, 0x8000")
    a(f"s_mov_b32 s{rQ+2}, 0x400000"); a(f"s_mov_b32 s{rQ+3}, 0x20000")
    a("s_waitcnt lgkmcnt(0)")
    if bar0 == -1: a("s_barrier")
    a(f"global_load_dwordx4 {q4(XA)}, v{vXA}, s[{pX}:{pX+1}]")
    a(f"global_load_ushort v{XO}, v{vXO}, s[{pX}:{pX+1}]")
    a(f"s_mov_b64 s[{rQ}:{rQ+1}], s[{pWQ}:{pWQ+1}]")
    for j in range(16):
        a(f"buffer_load_dwordx4 {q4(KREG+4*j)}, v{vQO}, {srd(rQ)}, s{sT0} offen nt")
        if j < 15: a(f"s_add_u32 s{sT0}, s{sT0}, s{sT1}")
        if j == (15 if bar0 is True else bar0): a("s_barrier")
    a(f"s_mov_b32 s{sW}, -1")
    a("s_branch L_helper")

    a("L_stream:")
    if stamps: a(f"v_mov_b32 v{vSTAMP}, 0"); a(f"v_writelane_b32 v{vSTAMP}, s{sST}, 0")
    stamp("args")
    offsets(range(W, 16))
    a(f"s_lshr_b32 s{sW}, s{sW}, 6"); a(f"s_sub_u32 s{sW}, s{sW}, 1")
    ids2()
    if konly: a("s_waitcnt lgkmcnt(0)")
    mksrd(rV, pV, KVSIZE, sT0); mksrd(rX, pX, 1024)
    selectors()
    a(f"s_mov_b32 s{sROLE}, 63")
    vG2, vJ, vSH, vOW, vRO, vP8, vPF, vPJ = range(XREG, XREG + 8)
    a(f"v_bfe_u32 v{vG2}, v0, 4, 2"); a(f"v_and_b32 v{vJ}, 7, v0"); a(f"v_bfe_u32 v{vSH}, v0, 3, 1")
    a(f"v_and_b32 v{vT}, 15, v0"); a(f"v_lshlrev_b32 v{vT}, 4, v{vT}")
    a(f"v_lshrrev_b32 v{vOW}, 5, v0"); a(f"v_lshlrev_b32 v{vOW}, 9, v{vOW}"); a(f"v_lshl_add_u32 v{vOW}, v{vT}, 1, v{vOW}")
    a(f"v_and_b32 v32, 1, v{vG2}"); a(f"v_lshl_add_u32 v{vOW}, v32, 4, v{vOW}")
    a(f"v_and_b32 v{vP8}, 31, v0"); a(f"v_lshlrev_b32 v{vP8}, 3, v{vP8}")
    a("v_bfe_u32 v32, v0, 5, 1"); a(f"v_lshl_add_u32 v{vRO}, v32, 12, v{vP8}")
    a(f"s_lshl_b32 s{sT1}, s{sW}, 8"); a(f"s_add_u32 s{sT2}, s{sT1}, {L_OP}"); a(f"v_add_u32 v{vRO}, s{sT2}, v{vRO}")
    a(f"s_lshl_b32 s{sU}, s{sIDX}, 9"); a(f"s_add_u32 s{sU}, s{sU}, s{sT1}")
    a(f"v_mov_b32 v{vFF}, 0xff"); a(f"v_mov_b32 v{vZERO}, 0")
    a(f"v_lshl_add_u32 v{vPJ}, v{vG2}, 3, v{vJ}")
    advance(("k", 3))
    a(f"s_load_dword s{sTAG}, s[{pWS}:{pWS+1}], {EPOCH}")
    mksrd(rWS, pWS, WS_SIZE)
    vAD64, vPA = XREG + 18, 44

    def duties():
        role()
        a(f"s_mov_b32 s{sE+1}, 0"); a("v_mov_b32 v33, 0"); a(f"s_mov_b32 s{sE}, 8192")
        a(f"s_sub_u32 s{sT2}, s{sSP}, {pfs}"); a(f"s_cselect_b32 s{sT2}, 0, s{sT2}")
        a(f"s_cselect_b64 s[{sPFM}:{sPFM+1}], 1, -1")
        a(f"s_mul_i32 s{sT2}, s{sT2}, {8192*nwo}"); a(f"s_min_u32 s{sT2}, s{sT2}, {131072 - 8192*nwo}")
        a(f"s_lshl_b32 s{sT1}, s{sH}, 17"); a(f"s_add_u32 s{sT1}, s{sT1}, s{sT2}")
        a(f"v_add_u32 v32, s{sT1}, v{vKV}")
        a(f"v_lshl_add_u64 {q2(vAD64)}, v[32:33], 0, s[{pWO}:{pWO+1}]")
        a(f"s_cmp_lt_u32 s{sROLE}, {NT2}"); a(f"s_cbranch_scc1 L_adT2")
        a(f"s_cmp_lt_u32 s{sROLE}, 64"); a(f"s_cbranch_scc1 L_adPF")
        a(f"v_lshl_add_u32 v32, v{vG2}, 4, v{vSH}")
        a(f"s_and_b32 s{sT1}, s{sH}, 7"); a(f"s_lshl_b32 s{sT1}, s{sT1}, 17")
        a(f"s_lshr_b32 s{sT2}, s{sW}, 1"); a(f"s_lshl_b32 s{sT2}, s{sT2}, 20"); a(f"s_add_u32 s{sT1}, s{sT1}, s{sT2}")
        a(f"s_and_b32 s{sT2}, s{sW}, 1"); a(f"s_lshl_b32 s{sT2}, s{sT2}, 16"); a(f"s_add_u32 s{sT1}, s{sT1}, s{sT2}")
        a(f"s_and_b32 s{sT2}, s{sROLE}, 7"); a(f"s_lshl_b32 s{sT2}, s{sT2}, 7"); a(f"s_add_u32 s{sT1}, s{sT1}, s{sT2}")
        a("v_lshlrev_b32 v32, 10, v32"); a(f"v_lshl_add_u32 v32, v{vJ}, 4, v32"); a(f"v_add_u32 v32, s{sT1}, v32")
        a(f"v_lshl_add_u64 {q2(vPA)}, v[32:33], 0, s[{pWO}:{pWO+1}]")
        a("s_branch L_addone")
        a("L_adT2:")
        a("v_and_b32 v32, 0x1f8, v0"); a("v_mul_u32_u24 v32, 2752, v32")
        a("v_and_b32 v34, 3, v0"); a("v_lshl_add_u32 v32, v34, 4, v32")
        a(f"s_lshl_b32 s{sT1}, s{sROLE}, 6"); a(f"v_add_u32 v32, s{sT1}, v32")
        a(f"v_lshl_add_u64 {q2(vPA)}, v[32:33], 0, s[{pWG}:{pWG+1}]")
        a("s_mov_b32 exec_lo, 0xf0f0f0f0"); a("s_mov_b32 exec_hi, 0xf0f0f0f0")
        a(f"v_lshl_add_u64 {q2(vPA)}, v[32:33], 0, s[{pWU}:{pWU+1}]")
        a("s_mov_b64 exec, -1")
        a("s_branch L_addone")
        a("L_adPF:")
        a(f"s_lshl_b32 s{sT1}, s{sNA}, 6"); a(f"s_sub_u32 s{sT1}, s{sT1}, 4")
        a("v_and_b32 v32, 3, v0"); a("v_lshlrev_b32 v32, 7, v32"); a(f"v_min_u32 v32, s{sT1}, v32")
        a("v_bfe_u32 v34, v0, 3, 2"); a("v_bfe_u32 v35, v0, 5, 1"); a("v_lshl_add_u32 v34, v35, 3, v34")
        a(f"v_mul_u32_u24 v34, 2752, v34"); a("v_add_u32 v32, v32, v34")
        a(f"s_and_b32 s{sT2}, s{sMEM}, 15")
        a(f"s_mul_i32 s{sT1}, s{sT2}, {16*2752}"); a(f"s_lshl_b32 s{sT3}, s{sUA}, 6"); a(f"s_add_u32 s{sT1}, s{sT1}, s{sT3}")
        a(f"v_add_u32 v32, s{sT1}, v32")
        a(f"v_lshl_add_u64 {q2(vPA)}, v[32:33], 0, s[{pWG}:{pWG+1}]")
        a("s_mov_b32 exec_lo, 0xf0f0f0f0"); a("s_mov_b32 exec_hi, 0xf0f0f0f0")
        a(f"v_lshl_add_u64 {q2(vPA)}, v[32:33], 0, s[{pWU}:{pWU+1}]")
        a("s_mov_b64 exec, -1")
        a("L_addone:")
    duties()
    advance(("k", 7 if burst else 8))
    a("s_waitcnt lgkmcnt(0)")
    if amp and len(amp) > 3 and amp[0] in ("start", "args"): diag_store()
    tag_from_epoch()

    def kv(n): return ("k", n) if n < 16 else ("v", n - 16)
    cur = [gpos]

    def step():
        if burst: return
        cur[0] += 1; advance(kv(cur[0]))
    advance(kv(gpos))
    QP = 40
    lds_wait(f"ds_read_b128 {q4(QP)}, v{vT} offset:{L_QB}", range(QP, QP + 4))
    stamp("qgot")
    SJ = 24

    def dots(js):
        for i in range(4):
            for j in js:
                a(f"v_dot2_f32_bf16 v{SJ+j}, v{KREG+4*j+i}, v{QP+i}, {'0' if i == 0 else 'v%d' % (SJ+j)}")
    assert gpos >= 11
    assert issued[0] <= pos[("v", 8)]
    dots(range(4, 12))
    step()
    dots(range(4))
    advance(("k", 15)); cur[0] = max(cur[0], 15)
    dots(range(12, 16))
    step()
    for j in range(8):
        a(f"v_add_f32_dpp v{SJ+j}, v{SJ+j}, v{SJ+j} row_ror:8 row_mask:0xf bank_mask:0x3")
    for j in range(8):
        a(f"v_add_f32_dpp v{SJ+j}, v{SJ+j+8}, v{SJ+j+8} row_ror:8 row_mask:0xf bank_mask:0xc")
    for j in range(4):
        a(f"v_add_f32_dpp v{SJ+j}, v{SJ+j}, v{SJ+j} row_half_mirror row_mask:0xf bank_mask:0x5")
    for j in range(4):
        a(f"v_add_f32_dpp v{SJ+j}, v{SJ+j+4}, v{SJ+j+4} row_half_mirror row_mask:0xf bank_mask:0xa")
    for j in range(4):
        a(f"v_add_f32_dpp v{SJ+j}, v{SJ+j}, v{SJ+j} quad_perm:[1,0,3,2] {DPPF}")
    a("s_mov_b32 vcc_lo, 0xaaaaaaaa"); a("s_mov_b32 vcc_hi, 0xaaaaaaaa")
    a(f"v_cndmask_b32 v{SJ}, v{SJ}, v{SJ+1}, vcc"); a(f"v_cndmask_b32 v{SJ+2}, v{SJ+2}, v{SJ+3}, vcc")
    a(f"v_add_f32_dpp v{SJ}, v{SJ}, v{SJ} quad_perm:[2,3,0,1] {DPPF}")
    a(f"v_add_f32_dpp v{SJ+2}, v{SJ+2}, v{SJ+2} quad_perm:[2,3,0,1] {DPPF}")
    a("s_mov_b32 vcc_lo, 0xcccccccc"); a("s_mov_b32 vcc_hi, 0xcccccccc")
    SC = SJ
    a(f"v_cndmask_b32 v{SC}, v{SJ}, v{SJ+2}, vcc")
    bf16r(SC, SC); a(f"v_mul_f32 v{SC}, {SCALE:#x}, v{SC}"); bf16r(SC, SC)
    step()
    a(f"v_mov_b32 v{T}, v{SC}"); wave_red("v_max_f32", T, sMW)
    a(f"v_subrev_f32 v{SC}, s{sMW}, v{SC}"); a(f"v_mul_f32 v{SC}, {LOG2E:#x}, v{SC}"); a(f"v_exp_f32 v{SC}, v{SC}")

    def split_p():
        if nolo:
            a(f"v_cvt_pk_bf16_f32 v{vPK}, v{SC}, 0"); return
        bf16r(T, SC); a(f"v_sub_f32 v{T}, v{SC}, v{T}")
        a(f"v_cvt_pk_bf16_f32 v{vPK}, v{SC}, v{T}")
    split_p()
    a(f"v_mov_b32 v{T}, v{SC}"); wave_red("v_add_f32", T, sT2)
    a(f"v_mov_b32 v{T}, s{sMW}"); a(f"v_mov_b32 v{T+1}, s{sT2}")
    a(f"s_lshl_b32 s{sT1}, s{sW}, 3"); a(f"v_mov_b32 v{T+2}, s{sT1}")
    a("s_mov_b64 exec, 1"); a(f"ds_write_b64 v{T+2}, {q2(T)} offset:{L_ST}"); a("s_mov_b64 exec, -1")
    stamp("p")

    for j in range(16 - W):
        build_a(j)
        if j % 4 == 0 and j + 16 <= cur[0] < 31 - W: step()
        advance(("v", j | 3 if burst == 2 else j))
        mfma(j, vreg(j), j == 0)
        if j == cpos:
            a(f"v_lshrrev_b32 v{T+2}, 1, v{T+2}")
            if local and mode_early:
                lds_wait(f"ds_read_b32 v32, v{T+2} offset:{L_F}\nds_read_b32 v33, v{vZERO} offset:{L_MODE}", [32, 33])
                a(f"v_readfirstlane_b32 s{sMODE}, v33")
            else:
                lds_wait(f"ds_read_b32 v32, v{T+2} offset:{L_F}", [32])
            a(f"v_mul_f32 v{SC}, v{SC}, v32")
            for r in range(4): a(f"v_mul_f32 v{vD+r}, v{vD+r}, v32")
            split_p()
    assert issued[0] == len(seq) and cpos < 16 - W and all(p >= 16 - W for p in pfat)
    stamp("cbar")

    def w1reg(j): return TREG + 4 * j if j < 4 else VREG + 4 * j

    def tload1(j): tload(j, w1reg(j))

    def tload(j, reg=None):
        a(f"global_load_dwordx4 {q4(TREG+4*j if reg is None else reg)}, {q2(vPA)}, off")
        if j < 7: a(f"v_lshl_add_u64 {q2(vPA)}, {q2(vPA)}, 0, s[{sE}:{sE+1}]")

    def pf_load(k):
        a(f"s_mov_b64 exec, s[{sPFM}:{sPFM+1}]")
        a(f"global_load_dwordx4 {q4(KREG+48)}, {q2(vAD64)}, off")
        a("s_mov_b64 exec, -1")
        if k + 1 < nwo:
            d = (pford[k + 1] - pford[k] if pford else 1) * 8192
            a(f"s_mov_b32 s{sT0}, {d & 0xffffffff:#x}"); a(f"s_mov_b32 s{sT1}, {-1 if d < 0 else 0}")
            a(f"v_lshl_add_u64 {q2(vAD64)}, {q2(vAD64)}, 0, s[{sT0}:{sT0+1}]")

    def pv_tail(e, load):
        k = 0
        for j in range(16 - W, 16):
            build_a(j)
            a(f"s_waitcnt vmcnt({15 - j + k})")
            mfma(j, vreg(j), False)
            tr(16 + j)
            for _ in range(e.count(j)):
                load(k); k += 1
    if e1: a(f"s_cmp_ge_u32 s{sROLE}, 64"); a("s_cbranch_scc1 L_pv1")
    if e2:
        a(f"s_lshr_b32 s{sT0}, s{sW}, 2"); a(f"s_lshl_b32 s{sT0}, s{sT0}, 6"); a(f"s_add_u32 s{sT0}, s{sT0}, s{sROLE}")
        a(f"s_cmp_lt_u32 s{sT0}, {NT2}"); a("s_cbranch_scc1 L_pv2")
    pv_tail(pfat, pf_load)
    a("L_pvdone:")
    a(f"ds_write_b128 v{vOW}, {q4(vD)} offset:{L_OP}")
    a(f"s_cmp_ge_u32 s{sW}, 2")
    a("s_waitcnt lgkmcnt(0)"); a("s_barrier")
    stamp("obar")
    if amp and len(amp) > 3 and amp[0] == "obar":
        diag_store(); a(f"s_cmp_ge_u32 s{sW}, 2")
    a("s_cbranch_scc1 L_nopub")
    if local and not mode_early: a(f"ds_read_b32 v40, v{vZERO} offset:{L_MODE}")

    def getmode():
        if not mode_early: a(f"v_readfirstlane_b32 s{sMODE}, v40")
        a(f"s_cmp_lg_u32 s{sMODE}, 0")
    assert mode_early or not nolo
    red16(vRO, 24, mid=getmode if local else None, even=nolo)
    a("s_mov_b32 exec_hi, 0")
    put_tag(25, 25)
    mode_store(f"buffer_store_dwordx2 v[24:25], v{vP8}, {srd(rWS)}, s{sU} offen")
    a("s_mov_b32 exec_hi, -1")
    stamp("x")
    a("L_nopub:")
    a(f"s_cmp_ge_u32 s{sROLE}, 64"); a("s_cbranch_scc1 L_T1")
    a("s_barrier")
    a(f"s_cmp_lt_u32 s{sROLE}, {NT2}"); a("s_cbranch_scc1 L_T2")
    if stages:
        a(f"s_cmp_lt_u32 s{sMEM}, 16"); a("s_cbranch_scc1 L_exit")
        only_wave(2, "L_exit")
        at = 0
        for c in stages:
            if c == "d":
                mksrd(rT, pWD, 1376 * 1024)
                a(f"s_lshl_b32 s{sT0}, s{sNA}, 4"); a(f"s_and_b32 s{sT2}, s{sMEM}, 15"); a(f"s_mul_i32 s{sT2}, s{sT2}, s{sT0}")
                a(f"s_lshl_b32 s{sT3}, s{sUA}, 8"); a(f"s_add_u32 s{sT2}, s{sT2}, s{sT3}"); a(f"s_lshl_b32 s{sT2}, s{sT2}, 7")
                a(f"v_lshlrev_b32 v32, 7, v{vL}"); a(f"buffer_load_dword v3, v32, {srd(rT)}, s{sT2} offen")
                a(f"s_sub_u32 s{sT0}, s{sT0}, 1"); a(f"v_add_u32 v32, 64, v{vL}"); a(f"v_min_u32 v32, s{sT0}, v32"); a("v_lshlrev_b32 v32, 7, v32")
                a(f"buffer_load_dword v3, v32, {srd(rT)}, s{sT2} offen")
            else:
                row = {"A": 0, "B": 4, "C": 256, "D": 260}[c]
                d = (row - at) * 2752; at = row
                if d:
                    a(f"s_mov_b32 s{sT0}, {d & 0xffffffff:#x}"); a(f"s_mov_b32 s{sT1}, {-1 if d < 0 else 0}")
                    a(f"v_lshl_add_u64 {q2(vPA)}, {q2(vPA)}, 0, s[{sT0}:{sT0+1}]")
                a(f"global_load_dword v3, {q2(vPA)}, off")
    a("s_branch L_exit")
    emit_far()

    a("L_helper:")
    if stamps: a(f"v_mov_b32 v{vSTAMP}, 0"); a(f"v_writelane_b32 v{vSTAMP}, s{sST}, 0")
    a(f"s_load_dword s{sTAG}, s[{pWS}:{pWS+1}], {EPOCH}")
    ids2()
    selectors()
    a(f"s_mov_b32 s{sROLE}, 63")
    mksrd(rWS, pWS, WS_SIZE)
    a(f"v_mov_b32 v{vZERO}, 0")
    sPB, sLA, sC0, sC1, sDM = rO, rO + 2, rT, rT + 2, rX

    def probe(r):
        if r == (2 if nprobe == 3 else 0):
            a(f"s_bfe_u32 s{sT1}, s2, 0x10003"); a(f"s_lshl2_add_u32 s{sT1}, s{sSP}, s{sT1}")
            a(f"s_lshl_b32 s{sT1}, s{sT1}, 6"); a(f"s_add_u32 s{sT1}, s{sT1}, s{sH}"); a(f"s_lshl_b32 s{sT1}, s{sT1}, 7"); a(f"s_add_u32 s{sPB}, s{sT1}, {PROBE}")
            a(f"s_xor_b32 s{sPB+1}, s{sPB}, 0x2000"); a(f"s_mov_b32 s{sLA}, 0")
        order = {1: ([0], [1]), 2: ([0, 1], [1, 0]), 3: ([1], [0], [0, 1])}[nprobe][r]
        a(f"s_memtime s[{sC0}:{sC0+1}]"); a("s_waitcnt lgkmcnt(0)")
        for t in order:
            a(f"s_load_dword s{sDM}, s[{pWS}:{pWS+1}], s{sPB+t} offset:{(0, 20480, 4096)[r]}"); a("s_waitcnt lgkmcnt(0)")
            a(f"s_memtime s[{sC1}:{sC1+1}]"); a("s_waitcnt lgkmcnt(0)")
            a(f"s_sub_u32 s{sT1}, s{sC1}, s{sC0}"); a(f"s_mov_b32 s{sC0}, s{sC1}")
            a(f"s_{'sub' if t else 'add'}_u32 s{sLA}, s{sLA}, s{sT1}")
    if vote and nprobe == 3:
        a("s_waitcnt lgkmcnt(0)"); probe(2)
    a(f"s_waitcnt vmcnt(16)")
    stamp("x")
    U = 32
    for i in range(4): unpack(U + 2 * i, U + 2 * i + 1, XA + i)
    S, M_, R_ = 40, 41, 42
    a(f"v_add_f32 v{S}, v{U}, v{U+1}")
    for i in range(2, 8): a(f"v_add_f32 v{S}, v{S}, v{U+i}")
    wave_red("v_add_f32", S, sT1)
    a(f"v_mov_b32 v{M_}, 0x3b000000"); a(f"v_mul_f32 v{M_}, s{sT1}, v{M_}")
    for i in range(8): a(f"v_sub_f32 v{U+i}, v{U+i}, v{M_}")
    a(f"v_mul_f32 v{S}, v{U}, v{U}")
    for i in range(1, 8): a(f"v_fmac_f32 v{S}, v{U+i}, v{U+i}")
    wave_red("v_add_f32", S, sT1)
    a(f"v_mov_b32 v{S}, 0x3b000000"); a(f"v_mul_f32 v{S}, s{sT1}, v{S}")
    bf16r(M_, M_); bf16r(S, S)
    a(f"v_add_f32 v{S}, {EPS:#x}, v{S}"); bf16r(S, S)
    a(f"v_sqrt_f32 v{S}, v{S}"); bf16r(S, S)
    a(f"v_rcp_f32 v{R_}, v{S}")
    a(f"v_lshlrev_b32 v{XO}, 16, v{XO}"); a(f"v_sub_f32 v{XO}, v{XO}, v{M_}"); bf16r(XO, XO)
    a(f"v_mul_f32 v{XO}, v{XO}, v{R_}")
    a(f"v_cvt_pk_bf16_f32 v{vPK}, v{XO}, 0")
    a(f"s_waitcnt lgkmcnt(0)")
    tag_from_epoch()
    for j in range(16):
        build_a(j)
        if j % 4 == 0: a(f"s_waitcnt vmcnt({12 - j})")
        mfma(j, KREG + 4 * j, j == 0)
    a("v_and_b32 v24, 15, v0"); a("v_bfe_u32 v25, v0, 4, 1"); a("v_lshrrev_b32 v26, 5, v0")
    a("v_lshlrev_b32 v24, 6, v24"); a("v_lshl_add_u32 v24, v25, 5, v24"); a("v_lshl_add_u32 v24, v26, 4, v24")
    a(f"s_lshl_b32 s{sT2}, s{sIDX}, 10"); a(f"s_add_u32 s{sT2}, s{sT2}, {MBQ}")
    a(f"s_xor_b32 s{sT3}, s{sTAG}, s{sXCC}")
    a(f"v_permlane32_swap_b32 v{vD}, v{vD+2}"); a(f"v_permlane32_swap_b32 v{vD+1}, v{vD+3}")
    a(f"v_mov_b32 v{vD+2}, v{vD+1}"); a(f"v_mov_b32 v{vD+1}, s{sTAG}"); a(f"v_mov_b32 v{vD+3}, s{sT3}")
    qstore = f"buffer_store_dwordx4 {q4(vD)}, v24, {srd(rWS)}, s{sT2} offen"
    if "hand" in abl: a("s_branch L_samedie")
    qfrac = 2 if "q2" in abl else 4 if "q4" in abl else 1
    if qfrac > 1:
        m = 0x00ff00ff if qfrac == 2 else 0x000f000f
        a(f"s_mov_b32 exec_lo, {m:#x}"); a(f"s_mov_b32 exec_hi, {m:#x}")
    a(qstore + ("" if local else " sc1"))
    if qfrac > 1: a("s_mov_b64 exec, -1"); a(f"v_and_b32 v{vXA}, {1024 // qfrac - 1}, v{vXA}")
    stamp("qpub")
    a(f"s_lshl_b32 s{sT0}, s{sH}, 13"); a(f"s_add_u32 s{sT0}, s{sT0}, {MBQ}"); a(f"s_add_u32 s{sU}, s{sT0}, 4096")
    a(f"s_mov_b32 s{sMODE}, 0")
    GQ = KREG

    def write_through_once(tag):
        a(f"s_cmp_lg_u32 s{sMODE}, 0"); a(f"s_cbranch_scc1 L_wt{tag}")
        a(qstore + " sc1"); a(f"s_mov_b32 s{sMODE}, 1")
        a(f"L_wt{tag}:")

    if vote: probe(0)
    a("s_waitcnt vmcnt(0)")
    poll_tag([(f"buffer_load_dwordx4 {q4(GQ+4*t)}, v{vXA}, {srd(rWS)}, s{sU if t >= 4 else sT0} offen offset:{(t&3)*1024} sc1", [GQ+4*t+1, GQ+4*t+3]) for t in range(8)],
             26, slack=3, retry=(lambda: write_through_once("a")) if local else None, first=(lambda: probe(1)) if vote else None)
    if local:
        for t in range(8): a(f"v_xor_b32 v{GQ+4*t+3}, s{sT3}, v{GQ+4*t+3}")
        vor(26, [GQ + 4 * t + 3 for t in range(8)])
        a("v_cmp_ne_u32 vcc, 0, v26"); a("s_cbranch_vccz L_samedie")
        write_through_once("b")
        a("L_samedie:")
    for st in (16, 8, 4):
        for i in range(0, st, 2): a(f"v_add_f32 v{GQ+i}, v{GQ+i}, v{GQ+i+st}")
    a(f"v_cvt_pk_bf16_f32 v{GQ}, v{GQ}, v{GQ+2}"); a("v_lshlrev_b32 v25, 2, v0")
    a(f"v_min_u32 v{GQ}, -2, v{GQ}")
    a(f"ds_write_b32 v25, v{GQ} offset:{L_QB}")
    stamp("qgot")
    a("v_and_b32 v25, 3, v0"); a(f"v_bfe_u32 v26, v0, 2, 1"); a("v_lshlrev_b32 v25, 16, v25"); a("v_lshl_add_u32 v25, v26, 10, v25")
    a(f"s_and_b32 s{sT0}, s{sH}, 7"); a(f"s_lshl_b32 s{sT1}, s{sT0}, 13"); a(f"s_add_u32 s{sT1}, s{sT1}, {MBQ}")
    a(f"v_and_b32 v{T+2}, 7, v0"); a(f"v_lshlrev_b32 v{T+3}, 2, v{T+2}"); a(f"v_lshlrev_b32 v{T+2}, 3, v{T+2}")
    if warm:
        a("v_and_b32 v41, 3, v0"); a("v_lshlrev_b32 v41, 7, v41"); a(f"s_lshl_b32 s{sT2}, s{sIDX}, 9")
        a(f"buffer_load_dword v43, v41, {srd(rWS)}, s{sT2} offen sc1")
    if local and "hand" not in abl: a(f"buffer_load_dword v40, v25, {srd(rWS)}, s{sT1} offen offset:12 sc1")
    lds_wait(f"ds_read_b64 {q2(T)}, v{T+2} offset:{L_ST}", [T, T + 1], sleep=hsleep)
    a(f"v_mov_b32 v{MM}, v{T}"); red8("v_max_f32", MM)
    a(f"v_sub_f32 v{T}, v{T}, v{MM}"); a(f"v_mul_f32 v{T}, {LOG2E:#x}, v{T}"); a(f"v_exp_f32 v{T}, v{T}")
    a(f"ds_write_b32 v{T+3}, v{T} offset:{L_F}")
    a(f"v_mov_b32 v36, v{MM}"); a(f"v_mov_b32 v37, s{sTAG}"); a(f"v_mul_f32 v38, v{T}, v{T+1}")
    if vote:
        a(f"s_cmp_gt_i32 s{sLA}, 0"); a(f"s_cselect_b32 s{sT1}, 1, 0"); a(f"s_lshr_b32 s{sT2}, s2, 3"); a(f"s_xor_b32 s{sT1}, s{sT1}, s{sT2}")
        a(f"s_lshr_b32 s{sT2}, s{sXCC}, 2"); a(f"s_xor_b32 s{sT1}, s{sT1}, s{sT2}"); a(f"s_and_b32 s{sT1}, s{sT1}, 1"); a(f"s_or_b32 s{sT1}, s{sT1}, s{sTAG}")
        a(f"v_mov_b32 v39, s{sT1}")
        if stamps: a(f"v_writelane_b32 v{vSTAMP}, s{sT1}, 13")
    else:
        a(f"v_mov_b32 v39, s{sTAG}")
    red8("v_add_f32", 38)
    a(f"s_lshl_b32 s{sT1}, s{sIDX}, 7"); a(f"s_add_u32 s{sT1}, s{sT1}, {MBM}")
    if local:
        a(f"s_waitcnt vmcnt(0)")
        a(f"v_cmp_ne_u32 vcc, s{sT3}, v40"); a("s_cmp_lg_u64 vcc, 0"); a(f"s_cselect_b32 s{sMODE}, 1, 0")
        a(f"v_mov_b32 v40, s{sMODE}"); a("v_mov_b32 v41, 0")
    a("s_mov_b64 exec, 1")
    if local: a(f"ds_write_b32 v41, v40 offset:{L_MODE}")
    if "hand" not in abl: mode_store(f"buffer_store_dwordx4 v[36:39], off, {srd(rWS)}, s{sT1}")
    a("s_mov_b64 exec, -1")
    a("s_waitcnt lgkmcnt(0)")
    stamp("p")
    a(f"s_cmp_ge_u32 s{sSP}, {0 if 'role' in abl else 4 if vote else 2}"); a("s_cbranch_scc1 L_exit")
    a("v_bfe_u32 v24, v0, 3, 2"); a("v_and_b32 v25, 7, v0"); a("v_lshlrev_b32 v24, 13, v24"); a("v_lshl_add_u32 v24, v25, 7, v24")
    a(f"s_lshl_b32 s{sT0}, s{sT0}, 10"); a(f"s_add_u32 s{sT0}, s{sT0}, {MBM}")
    a("s_waitcnt vmcnt(0)")
    if vote:
        a(f"s_cmp_lt_u32 s{sSP}, 2"); a(f"s_cselect_b64 s[{sPFM}:{sPFM+1}], -1, 0")
    poll_tag([(f"buffer_load_dwordx4 v[32:35], v24, {srd(rWS)}, s{sT0} offen sc1", [33, 35])], 26, slack=1 if vote else 0, once=sPFM if vote else None)
    if vote:
        a("v_cmp_eq_u32 vcc, 1, v26"); a(f"s_bcnt1_i32_b32 s{sT1}, vcc_lo"); a("v_cmp_eq_u32 vcc, 0, v26"); a(f"s_bcnt1_i32_b32 s{sT2}, vcc_lo")
        a(f"s_cmp_gt_u32 s{sT1}, s{sT2}"); a(f"s_cselect_b32 s{sT1}, 1, 0"); a(f"v_mov_b32 v36, s{sT1}")
        a(f"ds_write_b32 v{vZERO}, v36 offset:{L_BETA}")
        if stamps: a(f"v_writelane_b32 v{vSTAMP}, s{sT1}, 15")
    a("v_mov_b32 v36, v32"); red8("v_max_f32", 36)
    a("v_sub_f32 v32, v32, v36"); a(f"v_mul_f32 v32, {LOG2E:#x}, v32"); a("v_exp_f32 v32, v32")
    a("v_mul_f32 v34, v32, v34"); red8("v_add_f32", 34)
    a("v_rcp_f32 v34, v34"); a("v_and_b32 v24, 31, v0"); a("v_lshlrev_b32 v24, 2, v24")
    a("v_mul_f32 v32, v32, v34")
    a(f"ds_write_b32 v24, v32 offset:{L_C}")
    a("s_waitcnt lgkmcnt(0)")
    stamp("cbar")
    a("s_branch L_exit")
    emit_far()

    RAW, TMP = 40, 3

    def ror8_pair(v):
        for i in range(2): a(f"v_add_f32_dpp v{v+i}, v{v+i}, v{v+i} row_ror:8 {DPPF}")

    CW, vO, vPW, vYS, vCA = VREG, VREG + 4, VREG + 5, VREG + 6, VREG + 7
    sOG, sYS, sPM = 60, 61, 62

    def t1_setup():
        a(f"s_lshr_b32 s{sT1}, s{sW}, 1"); a(f"s_lshl_b32 s{sT0}, s{sT1}, 5"); a(f"v_lshl_add_u32 v{vCA}, v{vSH}, 4, s{sT0}")
        a(f"s_and_b32 s{sT2}, s{sH}, 7"); a(f"s_lshl3_add_u32 s{sT3}, s{sT1}, s{sT2}")
        a(f"s_lshl_b32 s{sT3}, s{sT3}, 12"); a(f"s_and_b32 s{sT1}, s{sW}, 1"); a(f"s_lshl_b32 s{sT1}, s{sT1}, 8"); a(f"s_add_u32 s{sOG}, s{sT1}, s{sT3}")
        a(f"v_lshlrev_b32 v{vO}, 11, v{vSH}"); a(f"v_lshl_add_u32 v{vO}, v{vPJ}, 3, v{vO}")
        a(f"v_and_b32 v{vPW}, 0xfffffeff, v{vOW}")
        a(f"v_bfe_u32 v{vYS}, v0, 5, 1"); a(f"v_lshl_add_u32 v{vYS}, v{vYS}, {14 if h2 is None else 13}, v{vP8}")
        if h2 is not None: a(f"s_and_b32 s{sT3}, s{sT2}, 4"); a(f"s_add_u32 s{sT2}, s{sT2}, s{sT3}")
        a(f"s_lshl_b32 s{sT2}, s{sT2}, 11"); a(f"s_and_b32 s{sT3}, s{sROLE}, 7"); a(f"s_lshl_b32 s{sT3}, s{sT3}, 8")
        a(f"s_add_u32 s{sT2}, s{sT2}, s{sT3}"); a(f"s_add_u32 s{sYS}, s{sT2}, {MB2}")
        a(f"s_mov_b32 s{sPM}, 0x00ff00ff"); a(f"s_mov_b32 s{sPM+1}, 0xff00ff00")
        a(f"s_mov_b32 s{sE}, 2048")
    if e1:
        a("L_pv1:"); t1_setup()
        pv_tail(e1, tload1); a("s_branch L_pvdone")
    a("L_T1:")
    if not e1: t1_setup()
    RAW1 = 32
    oloads = [f"buffer_load_dwordx2 {q2(RAW1+2*t)}, v{vO}, {srd(rWS)}, s{sOG} offen offset:{t*SLOT} sc1" for t in range(4)]
    nlate = 8 - len(e1)
    a(f"ds_read_b128 {q4(CW)}, v{vCA} offset:{L_C}")
    vBE, vBM = VREG + 8, VREG + 9
    if vote & 2:
        a(f"ds_read_b32 v{vBE}, v{vZERO} offset:{L_BETA}")
        a(f"s_and_b32 s{sT0}, s{sH}, 7"); a(f"s_cselect_b32 s{sT0}, 0, 1"); a(f"v_mov_b32 v{vBM}, s{sT0}")
    if nlate: a("s_barrier")
    if pollfirst:
        for ld in oloads: a(ld)
    if "now" not in abl:
        for j in range(len(e1), 8): tload1(j)
    a(f"v_add_u32 v{vRO}, {L_P16 - L_OP}, v{vRO}")
    stamp("ready")
    if pollfirst:
        a(f"s_waitcnt vmcnt({nlate}) lgkmcnt(0)"); a("s_branch L_ocheck")
    else:
        a("s_waitcnt lgkmcnt(0)")
    def ocombine(r=RAW1):
        a(f"v_pk_mul_f32 {q2(RAW1)}, {q2(r)}, {q2(CW)} op_sel_hi:[1,0]")
        a(f"v_pk_fma_f32 {q2(RAW1)}, {q2(r+2)}, {q2(CW)}, {q2(RAW1)} op_sel:[0,1,0]")
        a(f"v_pk_fma_f32 {q2(RAW1)}, {q2(r+4)}, {q2(CW+2)}, {q2(RAW1)} op_sel_hi:[1,0,1]")
        a(f"v_pk_fma_f32 {q2(RAW1)}, {q2(r+6)}, {q2(CW+2)}, {q2(RAW1)} op_sel:[0,1,0]")
    if pipe1:
        poll2(lambda r: [f"buffer_load_dwordx2 {q2(r+2*t)}, v{vO}, {srd(rWS)}, s{sOG} offen offset:{t*SLOT} sc1" for t in range(4)], KREG + 16, KREG + 24, TMP, ocombine, pipe1)
    else:
        poll(oloads, [RAW1 + 2 * t + 1 for t in range(4)], TMP, check="L_ocheck" if pollfirst else None, after=ocombine, sleep=sl1)
    stamp("got")
    ror8_pair(RAW1)
    a(f"v_cvt_pk_bf16_f32 v{vPK}, v{RAW1}, v{RAW1+1}")
    build_a(0)
    for j in range(8):
        if j < 7: build_a(j + 1)
        if pollfirst and j >= len(e1): a(f"s_waitcnt vmcnt({7 - j})")
        mfma(j, w1reg(j), j == 0)
    a(f"s_mov_b64 exec, s[{sPM}:{sPM+1}]")
    a(f"s_cmp_lg_u32 s{sW}, 0")
    a(f"ds_write_b128 v{vPW}, {q4(vD)} offset:{L_P16}")
    a("s_mov_b64 exec, -1")
    a("s_waitcnt lgkmcnt(0)"); a("s_barrier")
    a("s_cbranch_scc1 L_exit")
    red16(vRO, 24)
    if not copies: a("s_mov_b32 exec_hi, 0")
    put_tag(25, 25)
    if vote & 2: a(f"v_bfi_b32 v24, v{vBM}, v{vBE}, v24")
    a(f"buffer_store_dwordx2 v[24:25], v{vYS}, {srd(rWS)}, s{sYS} offen sc1")
    stamp("pub")
    a("s_branch L_exit")

    late = t2ord == "late"
    downfirst = bool(e2) or t2ord == "dg"
    if late: RD, BD, BG, ACC = KREG, VREG, VREG, KREG + 32
    elif downfirst: RD, BD, BG, ACC = VREG, KREG + 32, VREG, KREG
    else: RD, BD, BG, ACC = KREG + 32, KREG, VREG, KREG + 32
    AG = 24
    XP, vHA, vGU, vY2, vSR, vHW, vFA, vFO, vFH, vPW2 = range(XREG + 8, XREG + 18)
    XF = 12

    def gu_loads():
        a(f"s_mov_b32 s{sE}, 2752")
        if "nof" in abl: a("s_mov_b64 exec, 1"); a(f"s_mov_b32 s{sE}, 0")
        for j in range(8): tload(j)
        if "nof" in abl: a("s_mov_b64 exec, -1")
        a(f"s_lshl_b32 s{sT1}, s{sW}, 7")
        a(f"v_lshlrev_b32 v{vHW}, 2, v{vPJ}")
        a(f"buffer_load_dword v{XP}, v{vHW}, {srd(rX)}, s{sT1} offen")
        a(f"v_add_u32 v{vHW}, s{sT1}, v{vHW}")

    sDN = 69
    sWD = 70 if dn else sW
    assert not (dn and e2)

    def down_setup():
        mksrd(rT, pWD, 0 if "nof" in abl else 1376 * 1024)
        a(f"v_lshl_add_u32 v23, v{vG2}, 11, v{vT}")
        a(f"s_lshl_b32 s{sT3}, s{sROLE}, 15"); a(f"s_lshl_b32 s{sDN}, s{sWD}, 8"); a(f"s_add_u32 s{sDN}, s{sT3}, s{sDN}")

    def down_load(k):
        jj, hi = k >> 1, k & 1
        a(f"buffer_load_dwordx4 {q4(RD+4*(jj+4*hi))}, v23, {srd(rT)}, s{sDN} offen offset:{hi*1024}")
        if hi and jj < 3: a(f"s_add_u32 s{sDN}, s{sDN}, 8192")

    def down_loads():
        a(f"s_cmp_ge_u32 s{sWD}, 4"); a("s_cbranch_scc1 L_nodown")
        down_setup()
        for k in range(8): down_load(k)
        a("L_nodown:")
    if e2:
        a("L_pv2:"); down_setup(); pv_tail(e2, down_load); a("s_branch L_pvdone")
    a("L_T2:")
    if dn: a(f"s_xor_b32 s{sWD}, s{sW}, 4")
    if late: gu_loads(); down_setup()
    elif e2: gu_loads()
    elif downfirst: down_loads(); gu_loads()
    else: gu_loads(); down_loads()
    a(f"v_lshlrev_b32 v{vHA}, 3, v{vPJ}"); a(f"v_lshl_add_u32 v{vHA}, v{vSH}, {13 if h2 is None else 14}, v{vHA}")
    a(f"s_lshl_b32 s{sT0}, s{sW}, 8"); a(f"s_add_u32 s{sT0}, s{sT0}, {MB2}")
    if copies:
        a(f"s_lshr_b32 s{sT1}, s{sXCC}, 2")
        if vote & 1:
            a(f"ds_read_b32 v30, v{vZERO} offset:{L_BETA}"); a("s_waitcnt lgkmcnt(0)")
            a(f"v_readfirstlane_b32 s{sT2}, v30"); a(f"s_xor_b32 s{sT1}, s{sT1}, s{sT2}"); a(f"s_and_b32 s{sT1}, s{sT1}, 1")
        elif h2: a(f"s_xor_b32 s{sT1}, s{sT1}, 1")
        a(f"s_lshl_b32 s{sT1}, s{sT1}, {14 if h2 is None else 13}"); a(f"s_add_u32 s{sT0}, s{sT0}, s{sT1}")
    a(f"s_add_u32 s{sT1}, s{sT0}, 4096")
    a(f"s_mul_i32 s{sT2}, s{sW}, {2*PROW}"); a(f"s_add_u32 s{sT2}, s{sT2}, {L_P16}")
    a(f"v_mul_u32_u24 v{vPW2}, {PROW}, v{vSH}"); a(f"v_add_u32 v{vPW2}, s{sT2}, v{vPW2}")
    a("v_bfe_u32 v30, v0, 1, 1"); a(f"v_lshl_add_u32 v{vPW2}, v30, 4, v{vPW2}")
    a("v_bfe_u32 v30, v0, 2, 1"); a(f"v_lshl_add_u32 v{vPW2}, v30, 3, v{vPW2}")
    a("v_and_b32 v30, 1, v0"); a(f"v_lshl_add_u32 v{vPW2}, v30, 2, v{vPW2}")
    a(f"v_and_b32 v30, 1, v{vG2}"); a("v_mul_u32_u24 v30, 320, v30"); a(f"v_add_u32 v{vPW2}, v30, v{vPW2}")
    a("v_bfe_u32 v30, v0, 2, 2"); a(f"v_mul_u32_u24 v{vGU}, {4*PROW}, v30"); a(f"v_lshl_add_u32 v{vGU}, v{vG2}, 6, v{vGU}")
    a(f"v_and_b32 v31, 3, v0"); a(f"v_lshl_add_u32 v{vGU}, v31, 4, v{vGU}")
    a(f"v_mul_u32_u24 v{vSR}, {PROW // 16}, v{vT}"); a(f"v_add_u32 v{vSR}, {L_P16}, v{vSR}")
    a(f"v_lshlrev_b32 v{vY2}, 1, v{vT}"); a(f"v_lshl_add_u32 v{vY2}, v{vG2}, 3, v{vY2}")
    M3 = MB3 if h3 is None else MB3H + (0 if vote & 2 else h3 * 8192)
    R16 = 16 * 2048 * (1 if h3 is None else 2)
    if h3 is None: a(f"s_lshl_b32 s{sT2}, s{sROLE}, 11")
    else: a(f"s_and_b32 s{sT2}, s{sROLE}, -4"); a(f"s_add_u32 s{sT2}, s{sT2}, s{sROLE}"); a(f"s_lshl_b32 s{sT2}, s{sT2}, 11")
    a(f"s_lshl_b32 s{sT3}, s{sWD}, 9"); a(f"s_add_u32 s{sT2}, s{sT2}, s{sT3}"); a(f"s_add_u32 s{sT2}, s{sT2}, {M3}")
    sFU = 68
    if fpriv:
        a(f"s_lshl_b32 s{sFU}, s{sROLE}, 1"); a(f"s_add_u32 s{sFU}, s{sFU}, s{sWD}"); a(f"s_cmp_lt_u32 s{sWD}, 2"); a(f"s_cselect_b32 s{sFU}, s{sFU}, 32")
    else:
        a(f"s_cmp_eq_u32 s{sW}, 0"); a(f"s_cselect_b32 s{sFU}, s{sROLE}, 32")
    a(f"s_min_u32 s{sFU}, s{sFU}, 32")
    a(f"v_lshrrev_b32 v{vFA}, 2, v{vL}")
    if h3 is not None: a(f"v_lshl_add_u32 v{vFA}, v{vG2}, 2, v{vFA}")
    a(f"v_lshlrev_b32 v{vFA}, 11, v{vFA}"); a(f"v_lshl_add_u32 v{vFA}, v31, 4, v{vFA}")
    a(f"v_lshl_add_u32 v{vFO}, v31, 2, v{vG2}"); a(f"s_lshl_b32 s{sT3}, s{sFU}, 4"); a(f"v_add_lshl_u32 v{vFO}, s{sT3}, v{vFO}, 1")
    sF0, sLO, sHI, sNL = 60, 64, 65, 66
    a(f"s_lshl_b32 s{sF0}, s{sFU}, 6"); a(f"s_add_u32 s{sF0}, s{sF0}, {M3}"); a(f"s_add_u32 s{sF0+1}, s{sF0}, {R16}"); a(f"s_add_u32 s{sF0+2}, s{sF0}, {2*R16}")
    mksrd(rO, pOUT, 1024)
    a(f"s_mov_b32 s{sLO}, 0x05040100"); a(f"s_mov_b32 s{sHI}, 0x07060302")
    a(f"s_mov_b32 s{sNL}, {LOG2E ^ 0x80000000:#x}"); a(f"s_mov_b32 s{sNL+1}, {LOG2E ^ 0x80000000:#x}")
    a(f"s_mov_b32 s{sE}, 0xffff00ff"); a(f"s_mov_b32 s{sE+1}, 0x0000ff00")
    vTP, vT0, vT1 = 4, 5, 6
    a(f"v_lshlrev_b32 v{vTP}, 3, v{vG2}"); a(f"v_bfe_u32 v{vTP}, s{sEP}, v{vTP}, 8")
    a(f"v_and_b32 v{vT0}, 1, v0"); a(f"v_lshlrev_b32 v{vT0}, 4, v{vT0}"); a(f"v_add_u32 v{vT1}, 8, v{vT0}")
    a(f"v_bfe_u32 v{vT0}, s{sEP}, v{vT0}, 8"); a(f"v_bfe_u32 v{vT1}, s{sEP}, v{vT1}, 8")
    for r in range(4): a(f"v_mov_b32 v{vA+r}, 0x3f803f80")
    for r in range(16): a(f"v_mov_b32 v{AG+r}, 0")

    def transpose(dst, src):
        for q in range(4):
            for r in range(4):
                a(f"v_perm_b32 v{dst+8*q+r}, v{src+4*(2*r+1)+q}, v{src+4*(2*r)+q}, s{sLO}")
                a(f"v_perm_b32 v{dst+8*q+4+r}, v{src+4*(2*r+1)+q}, v{src+4*(2*r)+q}, s{sHI}")
    def mkh(r): return [f"buffer_load_dwordx2 {q2(r+2*t)}, v{vHA}, {srd(rWS)}, s{sT1 if t >= 2 else sT0} offen offset:{(t&1)*2048} sc1" for t in range(4)]
    hloads = mkh(RAW)
    HS = 14

    def hcombine(r=RAW):
        if vote & 2: a(f"v_readfirstlane_b32 s{sT3}, v{r}"); a(f"v_and_b32 v{r}, -2, v{r}")
        pkadd(r, r, r + 2); pkadd(r + 4, r + 4, r + 6); pkadd(HS, r, r + 4)
    if late:
        a(f"s_cmp_ge_u32 s{sWD}, 4")
        a("s_waitcnt vmcnt(0)")
        for ld in hloads: a(ld)
        transpose(BG, TREG)
        unpack(XF, XF + 1, XP)
        stamp("ready")
        a("s_cbranch_scc1 L_hwait")
        if prio: a(f"s_setprio {prio}")
        for k in range(8): down_load(k)
        a("s_waitcnt vmcnt(8)"); a("s_branch L_hcheck")
        poll(hloads, [RAW + 2 * t + 1 for t in range(4)], TMP, entry="L_hwait", check="L_hcheck", after=hcombine)
    else:
        a(f"s_cmp_ge_u32 s{sWD}, 4"); a("s_cbranch_scc1 L_tr4")
        if downfirst:
            a("s_waitcnt vmcnt(9)")
            transpose(BD, RD)
        else:
            a("s_waitcnt vmcnt(8)")
            transpose(BG, TREG)
            a("s_waitcnt vmcnt(0)")
            if early_poll:
                for ld in hloads: a(ld)
            transpose(BD, RD)
            a("s_branch L_trdone")
        a("L_tr4:")
        a("s_waitcnt vmcnt(0)")
        if early_poll:
            for ld in hloads: a(ld)
        transpose(BG, TREG)
        a("L_trdone:")
        unpack(XF, XF + 1, XP)
        stamp("ready")
        if pipe2:
            poll2(mkh, RAW, XREG, TMP, hcombine, pipe2, entry="L_hwait")
        elif mask2:
            a("s_branch L_hwait")
            a("L_hagain:")
            for t in range(4):
                a(f"v_cmp_ne_u32_sdwa vcc, v{RAW+2*t+1}, v{vZERO} src0_sel:BYTE_0 src1_sel:DWORD")
                a(f"v_xor_b32 v{RAW+2*t+1}, s{sTG8}, v{RAW+2*t+1}")
                a(f"s_cbranch_vccz L_hskip{t}"); a(hloads[t]); a(f"L_hskip{t}:")
            spend()
            a("L_hwait:"); a("s_waitcnt vmcnt(0)")
            for t in range(4): a(f"v_xor_b32 v{RAW+2*t+1}, s{sTG8}, v{RAW+2*t+1}")
            vor(TMP, [RAW + 2 * t + 1 for t in range(4)])
            a(f"v_cmp_ne_u32_sdwa vcc, v{TMP}, v{vZERO} src0_sel:BYTE_0 src1_sel:DWORD")
            if vote & 2: a(f"v_readfirstlane_b32 s{sT3}, v{RAW}"); a(f"v_and_b32 v{vD}, -2, v{RAW}"); a(f"v_mov_b32 v{vD+1}, v{RAW+1}")
            pkadd(HS, RAW + 4, RAW + 6); pkadd(vD, vD if vote & 2 else RAW, RAW + 2); pkadd(HS, vD, HS)
            a("s_cbranch_vccnz L_hagain")
        else:
            if early_poll: a("s_branch L_hwait")
            poll(hloads, [RAW + 2 * t + 1 for t in range(4)], TMP, entry="L_hwait" if early_poll else None, after=hcombine, sleep=sl2)
    stamp("got")
    a(f"s_cmp_ge_u32 s{sWD}, 4")
    ror8_pair(HS)
    if not lean & 1:
        a(f"v_cvt_pk_bf16_f32 v{HS}, v{HS}, v{HS+1}")
        unpack(HS, HS + 1, HS)
    pkadd(HS, HS, XF)
    a(f"v_cvt_pk_bf16_f32 v{vPK}, v{HS}, v{HS+1}")
    a(f"ds_write_b32 v{vHW}, v{vPK} offset:{L_H}")
    for r in range(4): a(f"v_mov_b32_dpp v{vA+r}, v{vPK} row_newbcast:{r} row_mask:0xf bank_mask:0x1")
    for r in range(4): a(f"v_mov_b32_dpp v{vA+r}, v{vPK} row_newbcast:{4+r} row_mask:0xf bank_mask:0x4")
    mm(vD, vA, vA, True)
    for i in range(8): mm(ACC + 4 * i, vA, BG + 4 * i, True)
    a(f"s_mov_b64 exec, s[{sE}:{sE+1}]")
    a(f"ds_write_b32 v{vPW2}, v{vD} offset:256")
    for k in range(4): a(f"ds_write2_b32 v{vPW2}, v{ACC+8*k}, v{ACC+8*k+4} offset0:{16*k} offset1:{16*k+8}")
    a("s_mov_b64 exec, -1")
    if late:
        a("s_cbranch_scc1 L_notr")
        a("s_waitcnt vmcnt(0)")
        transpose(BD, RD)
        a("L_notr:")
        a("s_waitcnt lgkmcnt(0)"); a("s_barrier")
        a("s_cbranch_scc1 L_epoch")
        GU, CS, ST = ACC, ACC + 16, vA
    else:
        a("s_waitcnt lgkmcnt(0)"); a("s_barrier")
        a("s_cbranch_scc1 L_epoch")
        GU, CS, ST = BG, BG + 16, vA
    a(f"ds_read2_b32 {q2(ST)}, v{vSR} offset0:64 offset1:66")
    for t in range(4): a(f"ds_read_b128 {q4(CS+4*t)}, v{vGU} offset:{L_P16 + PROW*t + 320}")
    for t in range(4): a(f"ds_read_b128 {q4(GU+4*t)}, v{vGU} offset:{L_P16 + PROW*t}")
    a(f"ds_read_u16 v{vFH}, v{vFO} offset:{L_H}")
    if vote & 2:
        a(f"s_and_b32 s{sT3}, s{sT3}, 1"); a(f"s_lshl_b32 s{sT3}, s{sT3}, 13"); a(f"s_add_u32 s{sT2}, s{sT2}, s{sT3}")
        for t in range(3): a(f"s_add_u32 s{sF0+t}, s{sF0+t}, s{sT3}")
    a("s_waitcnt lgkmcnt(9)")
    steps = ("quad_perm:[1,0,3,2]", "quad_perm:[2,3,0,1]", "row_half_mirror", "row_mirror")

    def st_step(k):
        for i in range(2): a(f"v_add_f32_dpp v{ST+i}, v{ST+i}, v{ST+i} {steps[k]} {DPPF}")
    st_step(0); a("s_waitcnt lgkmcnt(7)"); pkadd(CS, CS, CS + 4)
    st_step(1); pkadd(CS + 2, CS + 2, CS + 6); a("s_waitcnt lgkmcnt(5)")
    st_step(2); pkadd(CS + 8, CS + 8, CS + 12)
    st_step(3); pkadd(CS + 10, CS + 10, CS + 14)
    MU, VAR = ST + 2, ST
    a(f"v_mul_f32 v{MU}, 0x3b000000, v{ST+1}"); a(f"v_mul_f32 v{VAR}, 0x3b000000, v{ST}")
    pkadd(CS, CS, CS + 8); pkadd(CS + 2, CS + 2, CS + 10)
    a(f"v_fma_f32 v{VAR}, -v{MU}, v{MU}, v{VAR}"); a(f"v_max_f32 v{VAR}, 0, v{VAR}")
    if not lean & 2: a(f"v_cvt_pk_bf16_f32 v{VAR}, v{VAR}, v{MU}")
    a("s_waitcnt lgkmcnt(3)")
    pkadd(GU, GU, GU + 4); pkadd(GU + 2, GU + 2, GU + 6)
    if not lean & 2: unpack(VAR, MU, VAR)
    a(f"v_add_f32 v{VAR}, {EPS:#x}, v{VAR}")
    if lean & 2: a(f"v_rsq_f32 v{VAR}, v{VAR}")
    else: bf16r(VAR, VAR); a(f"v_sqrt_f32 v{VAR}, v{VAR}")
    a("s_waitcnt lgkmcnt(1)")
    pkadd(GU + 8, GU + 8, GU + 12); pkadd(GU + 10, GU + 10, GU + 14)
    for i in (0, 2): a(f"v_pk_fma_f32 {q2(GU+i)}, {q2(CS+i)}, {q2(MU)}, {q2(GU+i)} op_sel_hi:[1,0,1] neg_lo:[0,1,0] neg_hi:[0,1,0]")
    pkadd(GU, GU, GU + 8); pkadd(GU + 2, GU + 2, GU + 10)
    if not lean & 2: bf16r(VAR, VAR)
    for i in range(4): a(f"v_add_f32_dpp v{GU+i}, v{GU+i}, v{GU+i} row_ror:4 {DPPF}")
    if not lean & 2: a(f"v_rcp_f32 v{VAR}, v{VAR}")
    for i in range(4): a(f"v_add_f32_dpp v{GU+i}, v{GU+i}, v{GU+i} row_ror:8 {DPPF}")
    for i in (0, 2): a(f"v_pk_mul_f32 {q2(GU+i)}, {q2(GU+i)}, {q2(VAR)} op_sel_hi:[1,0]")
    if lean & 4:
        a(f"v_pk_mul_f32 {q2(GU+4)}, {q2(GU)}, s[{sNL}:{sNL+1}]")
        for i in range(2): a(f"v_exp_f32 v{GU+4+i}, v{GU+4+i}")
        a(f"v_pk_mul_f32 {q2(GU)}, {q2(GU)}, {q2(GU+2)}")
        a(f"v_pk_add_f32 {q2(GU+4)}, {q2(GU+4)}, 1.0 op_sel_hi:[1,0]")
        for i in range(2): a(f"v_rcp_f32 v{GU+4+i}, v{GU+4+i}")
        a(f"v_pk_mul_f32 {q2(GU)}, {q2(GU)}, {q2(GU+4)}")
    else:
        a(f"v_cvt_pk_bf16_f32 v{GU}, v{GU}, v{GU+1}")
        unpack(GU, GU + 1, GU)
        a(f"v_pk_mul_f32 {q2(GU+4)}, {q2(GU)}, s[{sNL}:{sNL+1}]")
        for i in range(2): a(f"v_exp_f32 v{GU+4+i}, v{GU+4+i}")
        a(f"v_cvt_pk_bf16_f32 v{GU+2}, v{GU+2}, v{GU+3}")
        a(f"v_pk_add_f32 {q2(GU+4)}, {q2(GU+4)}, 1.0 op_sel_hi:[1,0]")
        for i in range(2): a(f"v_rcp_f32 v{GU+4+i}, v{GU+4+i}")
        unpack(GU + 2, GU + 3, GU + 2)
        a(f"v_pk_mul_f32 {q2(GU)}, {q2(GU)}, {q2(GU+4)}")
        a(f"v_cvt_pk_bf16_f32 v{GU}, v{GU}, v{GU+1}")
        unpack(GU, GU + 1, GU)
        a(f"v_pk_mul_f32 {q2(GU)}, {q2(GU)}, {q2(GU+2)}")
    a(f"v_cvt_pk_bf16_f32 v{vPK}, v{GU}, v{GU+1}")
    DE, DO = vD, vA + 4

    def ag(G, rs=range(4)):
        for r in rs: a(f"v_mov_b32_dpp v{AG+4*G+r}, v{vPK} row_newbcast:{r} row_mask:0xf bank_mask:{1 << G:#x}")
    ag(0); ag(1, (0, 1))
    for G in range(4):
        mm(DE, AG + 4 * G, BD + 8 * G, G == 0)
        if G < 3: ag(G + 1, (2, 3))
        mm(DO, AG + 4 * G, BD + 8 * G + 4, G == 0)
        if G < 2: ag(G + 2, (0, 1))
    FR = KREG if late else ACC
    a(f"s_cmp_ge_u32 s{sFU}, 32")
    put_tag(DE + 1, DO, f"v{vTP}")
    a(f"buffer_store_dwordx2 {q2(DE)}, v{vY2}, {srd(rWS)}, s{sT2} offen sc1")
    stamp("pub")
    a("s_cbranch_scc1 L_exit")
    a(f"v_mov_b32 v{FR+8}, 0"); a(f"v_mov_b32 v{FR+10}, 0")
    a("s_waitcnt lgkmcnt(0)")
    a(f"v_lshlrev_b32 v{vFH}, 16, v{vFH}")
    if fwait: a("s_waitcnt vmcnt(0)")
    def fcombine():
        for i in (0, 2): pkadd(FR + i, FR + i, FR + 4 + i)
        for i in (0, 2): pkadd(FR + i, FR + i, FR + 8 + i)
    if fdelay and not floop: a(f"s_sleep {fdelay}")
    poll(([f"s_sleep {fdelay}"] if fdelay and floop else []) + [f"buffer_load_dwordx4 {q4(FR)}, v{vFA}, {srd(rWS)}, s{sF0} offen {fpol}",
          f"buffer_load_dwordx4 {q4(FR+4)}, v{vFA}, {srd(rWS)}, s{sF0+1} offen {fpol}",
          f"v_mov_b32 v{FR+9}, v{vT0}", f"v_mov_b32 v{FR+11}, v{vT1}",
          "s_mov_b32 exec_hi, 0xfff",
          f"buffer_load_dwordx4 {q4(FR+8)}, v{vFA}, {srd(rWS)}, s{sF0+2} offen {fpol}",
          "s_mov_b32 exec_hi, -1"], [FR + 2 * t + 1 for t in range(6)], TMP, tags=[f"v{vT0}", f"v{vT1}"] * 3, after=fcombine)
    stamp("fgot")
    a(f"v_permlane32_swap_b32 v{FR}, v{FR+2}"); a(f"v_permlane32_swap_b32 v{FR+1}, v{FR+3}")
    pkadd(FR, FR, FR + 2)
    a(f"v_permlane16_swap_b32 v{FR}, v{FR+1}")
    a(f"v_add_f32 v{FR}, v{FR}, v{FR+1}")
    for m in ("row_ror:4", "row_ror:8"): a(f"v_add_f32_dpp v{FR}, v{FR}, v{FR} {m} {DPPF}")
    a("s_mov_b32 exec_lo, 0x000f000f"); a("s_mov_b32 exec_hi, 0x000f000f")
    if not lean & 8: bf16r(FR, FR)
    a(f"v_add_f32 v{FR}, v{FR}, v{vFH}")
    a(f"v_cvt_pk_bf16_f32 v{FR}, v{FR}, v{FR}")
    a(f"buffer_store_short v{FR}, v{vFO}, {srd(rO)}, 0 offen {outpol}")
    if amp:
        a(f"s_memrealtime s[{sE}:{sE+1}]"); a("s_waitcnt lgkmcnt(0)")
        a(f"s_sub_u32 s{sT0}, s{sST+2}, s{sST}")
        if len(amp) > 2 and amp[2] == "inv": a(f"s_sub_u32 s{sT0}, 2500, s{sT0}")
        if len(amp) > 2 and amp[2] == "fix": a(f"s_mov_b32 s{sT0}, 100")
        if len(amp) > 3 and amp[2] == "lat": lat_probe()
        elif len(amp) > 3: diag_stat()
        a(f"s_mul_i32 s{sT0}, s{sT0}, {amp[1]}")
        a(f"s_min_u32 s{sT0}, s{sT0}, 200000"); a(f"s_mov_b32 s{sT1}, s{sE}")
        a("L_amp:"); a(f"s_memrealtime s[{sE}:{sE+1}]"); a("s_waitcnt lgkmcnt(0)")
        a(f"s_sub_u32 s{sT2}, s{sE}, s{sT1}"); a(f"s_cmp_lt_u32 s{sT2}, s{sT0}"); a("s_cbranch_scc1 L_amp")
    a("L_exit:")
    if stamps:
        a("s_mov_b64 exec, -1")
        stamp("exit")
        a(f"v_writelane_b32 v{vSTAMP}, s{sROLE}, 14")
        a(f"s_mul_i32 s{sT0}, s2, {NWAVE}"); a(f"s_add_u32 s{sT0}, s{sT0}, s{sW}"); a(f"s_add_u32 s{sT0}, s{sT0}, 1")
        a(f"s_lshl_b32 s{sT0}, s{sT0}, {8 if trace else 6}"); a(f"s_add_u32 s{sT0}, s{sT0}, {STAMP}")
        a(f"v_lshlrev_b32 v{vSTAMP+1}, 2, v{vL}")
        if not trace: a("s_mov_b64 exec, 0xffff")
        a(f"buffer_store_dword v{vSTAMP}, v{vSTAMP+1}, {srd(rWS)}, s{sT0} offen")
    a("L_end:")
    a("s_endpgm")
    a("L_epoch:")
    a(f"s_lshl_b32 s{sT0}, s{sROLE}, 3"); a(f"s_add_u32 s{sT0}, s{sT0}, s{sWD}"); a(f"s_cmp_lg_u32 s{sT0}, 4"); a("s_cbranch_scc1 L_exit")
    a(f"s_mov_b32 s{sT0}, {EPOCH}"); a(f"v_mov_b32 v3, s{sEP}"); a("s_mov_b64 exec, 1")
    a(f"buffer_store_dword v3, off, {srd(rWS)}, s{sT0} sc1")
    a("L_last:")
    a("s_branch L_exit")
    assert not far

    out = HEADER + f"; @launch grid=(256,1,1) block=({64*NWAVE},1,1) lds={L_END}\n"
    out += f'.amdgcn_target "amdgcn-amd-amdhsa--gfx950"\n.text\n.globl {KNAME}\n.p2align 8\n.type {KNAME},@function\n'
    out += a.render()
    out += f'''.section .rodata,"a"
.p2align 6
.amdhsa_kernel {KNAME}
  .amdhsa_next_free_vgpr {NV}
  .amdhsa_next_free_sgpr 97
  .amdhsa_accum_offset {NV}
  .amdhsa_group_segment_fixed_size 0
  .amdhsa_kernarg_size 96
  .amdhsa_user_sgpr_count 2
  .amdhsa_user_sgpr_kernarg_segment_ptr 1
  .amdhsa_system_sgpr_workgroup_id_x 1
  .amdhsa_float_denorm_mode_32 3
.end_amdhsa_kernel
'''
    return out


if __name__ == "__main__":
    kw = {}
    for arg in sys.argv[2:]:
        k, v = arg.split("=")
        kw[k] = eval(v)
    open(sys.argv[1], "w").write(gen(**kw))
```

```python
import sys
from asmlib import Asm

KNAME = "sequential_preLN__sliding_block_cached__swiglu_ffn__decode_kernel"
HEADER = open("sequential_preLN__sliding_block_cached__swiglu_ffn__decode.s.ref").read().split("; Override launch")[0]

LOG2E = 0x3FB8AA3B
SCALE = 0x3DB504F3
EPS = 0x3727C5AC

SLOT = 512
MB1 = 0
MB2 = 256 * SLOT
MB3 = MB2 + 2 * 8 * 2048
MBQ = MB2 + 256 * 512
MBM = MBQ + 256 * 1024
EPOCH = MBM + 256 * 128
MB3H = 0xa0000
PROBE = 0x1c0000
STAMP = 1 << 20
WS_SIZE = 2 << 20
PROW = 608
L_BETA = 356
L_QB, L_ST, L_F, L_MODE, L_C, L_H, L_OP, L_P16 = 0, 256, 320, 352, 384, 512, 2048, 2048 + 8192
L_END = L_P16 + 16 * PROW

NT2 = 43
NWAVE = 9
DPPF = "row_mask:0xf bank_mask:0xf"
STAMPS = ["start", "args", "x", "qpub", "qgot", "p", "cbar", "obar", "ready", "got", "pub", "fgot", "exit"]

sH, sSP, sW, sTAG, sBUD = 3, 4, 5, 6, 7
pX, pK, pV, pWQ, pWO, pWG, pWU, pWD, pOUT, pDBG, pWS = 8, 10, 12, 14, 16, 20, 22, 24, 26, 28, 30
sMW, sEP = 18, 19
rK, rV, rQ, rX, rWS, rO, rT = 32, 36, 40, 44, 48, 52, 56
sOFF = 60
sT0, sT1, sT2, sT3 = 76, 77, 78, 79
sROLE, sIDX = 80, 81
sE = 82
sXCC, sU = 84, 85
sST = 86
sUA, sMEM = 90, 91
sPFM = 92
sTG8, sMODE = 94, 95
sNA = 96
vL, vKV = 1, 2
vSEL, vA, vD, vPK, vB = 4, 8, 16, 20, 21
vT = 22
KREG, VREG, XREG = 48, 112, 144
TREG = KREG
vFF, vZERO = 164, 165
vSTAMP = 166
NV = 168


def q4(r): return f"v[{r}:{r+3}]"
def q2(r): return f"v[{r}:{r+1}]"
def srd(r): return f"s[{r}:{r+3}]"


def gen(W=4, stamps=False, budget=1 << 18, gpos=15, cpos=11, local=True, amp=None, only=None, abl=(), trace=False,
        pat="jjjsssj", hprio=1, hsleep=2, pfcode=True, warm=True,
        pfs=4, pfat=(12, 12, 13, 14), pford=(0, 2, 1, 3), e1=(14, 15, 15, 15), e2=(), stages="ABdCD", t2ord="gd",
        un=(6, 6, 6, 5, 5, 5, 5, 5), h2=0, h3=0, fdelay=3, early_poll=True, psleep=0, burst=2, vote=3, nprobe=1, floop=True, pollfirst=False, prio=0, dn=0, lean=13, konly=True, nolo=False, latebr=True, pipe1=0, pipe2=0, mode_early=True, sl1=0, sl2=0, mask2=False):
    nwo = len(pfat)
    assert W == 4 and sum(un) == NT2 and max(un) <= 7 and len(e2) in (0, 8)
    assert not pford or (pford[0] == 0 and sorted(pford) == list(range(nwo)))
    k0, bar0, copies, fpriv, fwait, fpol, outpol, bare = 4, -1, True, True, True, "sc1", "", True
    a = Asm()
    far = []

    def stamp(name):
        i = STAMPS.index(name)
        if stamps:
            if only and name not in only and name not in ("start", "exit"): return
            a(f"s_memrealtime s[{sST}:{sST+1}]"); a("s_waitcnt lgkmcnt(0)"); a(f"v_writelane_b32 v{vSTAMP}, s{sST}, {i}")
        elif amp and name == "start": a(f"s_memrealtime s[{sST}:{sST+1}]")
        elif amp and name == amp[0]: a(f"s_memrealtime s[{sST+2}:{sST+3}]\ns_waitcnt lgkmcnt(0)")

    def diag_store():
        only_wave(2, "L_nodiag")
        a(f"s_lshl_b32 s{sT1}, s2, 2"); a(f"s_add_u32 s{sT1}, s{sT1}, {STAMP}"); a(f"v_mov_b32 v46, s{sST + (0 if amp[0] == 'start' else 2)}"); a("s_mov_b64 exec, 1")
        a(f"buffer_store_dword v46, off, {srd(rWS)}, s{sT1} sc1"); a("s_mov_b64 exec, -1")
        a("L_nodiag:")

    def diag_stat():
        a(f"s_mov_b32 s{sT0}, 0"); a(f"s_cmp_lg_u32 s{sROLE}, 0"); a("s_cbranch_scc1 L_dodelay")
        a("s_mov_b64 exec, -1"); a(f"s_mov_b32 s{sT1}, {STAMP}"); a(f"v_lshlrev_b32 v24, 2, v{vL}")
        for t in range(4): a(f"buffer_load_dword v{28+t}, v24, {srd(rWS)}, s{sT1} offen offset:{256*t} sc1")
        a("s_waitcnt vmcnt(0)")
        for t in range(4): a(f"v_subrev_u32 v{28+t}, s{sST}, v{28+t}"); a(f"v_add_u32 v{28+t}, 0x10000, v{28+t}")
        a("v_min3_u32 v32, v28, v29, v30"); a("v_min_u32 v32, v32, v31"); wave_red("v_min_u32", 32, sT2)
        for t in range(4): a(f"v_subrev_u32 v{28+t}, s{sT2}, v{28+t}")
        kind, par = amp[2], amp[3]
        if kind == "range":
            a("v_max3_u32 v32, v28, v29, v30"); a("v_max_u32 v32, v32, v31"); wave_red("v_max_u32", 32, sT0)
        elif kind == "mean":
            a("v_add3_u32 v32, v28, v29, v30"); a("v_add_u32 v32, v32, v31"); wave_red("v_add_u32", 32, sT0); a(f"s_lshr_b32 s{sT0}, s{sT0}, 8")
        elif kind == "count":
            for t in range(4):
                a(f"v_cmp_lt_u32 vcc, {par}, v{28+t}"); a(f"s_bcnt1_i32_b64 s{sT1}, vcc"); a(f"s_add_u32 s{sT0}, s{sT0}, s{sT1}")
        elif kind == "groups":
            a("v_max3_u32 v32, v28, v29, v30"); a("v_max_u32 v32, v32, v31"); a(f"v_cmp_lt_u32 vcc, {par}, v32")
            a(f"s_or_b32 s{sT1}, vcc_lo, vcc_hi"); a(f"s_lshr_b32 s{sT2}, s{sT1}, 16"); a(f"s_or_b32 s{sT1}, s{sT1}, s{sT2}")
            a(f"s_lshr_b32 s{sT2}, s{sT1}, 8"); a(f"s_or_b32 s{sT1}, s{sT1}, s{sT2}"); a(f"s_and_b32 s{sT1}, s{sT1}, 0xff"); a(f"s_bcnt1_i32_b32 s{sT0}, s{sT1}")
        elif kind == "digits":
            a(f"s_mov_b32 s{sT0}, 0")
            for g in range(par, par + 3):
                a(f"v_readlane_b32 s{sT1}, v28, {g & 7}"); a(f"s_add_u32 s{sT1}, s{sT1}, 5"); a(f"s_mul_i32 s{sT1}, s{sT1}, 6554"); a(f"s_lshr_b32 s{sT1}, s{sT1}, 16")
                a(f"s_min_u32 s{sT1}, s{sT1}, 15"); a(f"s_lshl4_add_u32 s{sT0}, s{sT0}, s{sT1}")
        elif kind == "argmax":
            a("v_and_b32 v33, 7, v0"); a("v_lshl_add_u32 v32, v28, 3, v33"); wave_red("v_max_u32", 32, sT0); a(f"s_and_b32 s{sT0}, s{sT0}, 7")
        elif kind == "quarter":
            wave_red("v_add_u32", 28 + par, sT0); a(f"s_lshr_b32 s{sT0}, s{sT0}, 6")
        a("L_dodelay:")

    def lat_probe():
        p, off, stride, op, lanes, inv = amp[3]
        a(f"s_mov_b32 s{sT0}, 0"); a(f"s_cmp_lg_u32 s68, 0"); a("s_cbranch_scc1 L_dodelay")
        a("s_mov_b64 exec, -1")
        a(f"v_lshlrev_b32 v24, 7, v{vL}"); a(f"v_add_u32 v24, {off}, v24"); a("v_mov_b32 v25, 0")
        if lanes == 1: a("s_mov_b64 exec, 1")
        a("s_sleep 60"); a("s_waitcnt vmcnt(0)")
        a(f"s_memrealtime s[{sST}:{sST+1}]"); a(f"s_mov_b32 s{sT1}, 32")
        a("L_lat:")
        a(op.replace("P", f"s[{p}:{p+1}]")); a("s_waitcnt vmcnt(0)"); a(f"v_add_u32 v24, {stride}, v24")
        a(f"s_sub_u32 s{sT1}, s{sT1}, 1"); a(f"s_cmp_lg_u32 s{sT1}, 0"); a("s_cbranch_scc1 L_lat")
        a(f"s_memrealtime s[{sST+2}:{sST+3}]"); a("s_waitcnt lgkmcnt(0)")
        a(f"s_sub_u32 s{sT0}, s{sST+2}, s{sST}")
        if inv: a(f"s_sub_u32 s{sT0}, 4000, s{sT0}")
        a("L_dodelay:")

    def tr(i):
        if trace:
            a(f"s_memrealtime s[{sST}:{sST+1}]"); a("s_waitcnt lgkmcnt(0)"); a(f"v_writelane_b32 v{vSTAMP}, s{sST}, {16+i}")

    def mksrd(r, p, size, add=None):
        if add is None:
            a(f"s_mov_b32 s{r}, s{p}"); a(f"s_mov_b32 s{r+1}, s{p+1}")
        else:
            a(f"s_add_u32 s{r}, s{p}, s{add}"); a(f"s_addc_u32 s{r+1}, s{p+1}, 0")
        a(f"s_mov_b32 s{r+2}, {size}"); a(f"s_mov_b32 s{r+3}, 0x20000")

    def bf16r(d, s):
        a(f"v_cvt_pk_bf16_f32 v{d}, v{s}, v{s}"); a(f"v_lshlrev_b32 v{d}, 16, v{d}")

    def unpack(lo, hi, s):
        a(f"v_and_b32 v{hi}, 0xffff0000, v{s}"); a(f"v_lshlrev_b32 v{lo}, 16, v{s}")

    def pkadd(d, x, y): a(f"v_pk_add_f32 {q2(d)}, {q2(x)}, {q2(y)}")

    def wave_red(op, v, s):
        for m in ("quad_perm:[1,0,3,2]", "quad_perm:[2,3,0,1]", "row_half_mirror", "row_mirror"):
            a(f"{op}_dpp v{v}, v{v}, v{v} {m} {DPPF}")
        a(f"{op}_dpp v{v}, v{v}, v{v} row_bcast:15 row_mask:0xa bank_mask:0xf")
        a(f"{op}_dpp v{v}, v{v}, v{v} row_bcast:31 row_mask:0xc bank_mask:0xf")
        a(f"v_readlane_b32 s{s}, v{v}, 63")

    def red8(op, *vs):
        for m in ("quad_perm:[1,0,3,2]", "quad_perm:[2,3,0,1]", "row_half_mirror"):
            for v in vs: a(f"{op}_dpp v{v}, v{v}, v{v} {m} {DPPF}")

    def build_a(j):
        A = vA + 4 * (j & 1)
        a(f"v_mov_b32_dpp v{vB}, v{vPK} row_newbcast:{j} {DPPF}")
        for r in range(4):
            a(f"v_perm_b32 v{A+r}, v{vB}, v{vB}, v{vSEL+r}")

    def mm(d, x, y, first):
        a(f"v_mfma_f32_16x16x32_bf16 {q4(d)}, {q4(x)}, {q4(y)}, {'0' if first else q4(d)}")

    def mfma(j, b, first): mm(vD, vA + 4 * (j & 1), b, first)

    def gemv(n, breg):
        build_a(0)
        for j in range(n):
            if j + 1 < n: build_a(j + 1)
            mfma(j, breg + 4 * j, j == 0)

    def red16(vaddr, v, mid=None, even=False):
        if even:
            for t in range(2): a(f"ds_read2st64_b64 {q4(v+4*t)}, v{vaddr} offset0:{4*t} offset1:{4*t+2}")
            if mid: mid()
            a("s_waitcnt lgkmcnt(1)"); pkadd(v, v, v + 2)
            a("s_waitcnt lgkmcnt(0)"); pkadd(v + 4, v + 4, v + 6)
            pkadd(v + 2, v, v + 4); pkadd(v, v, v + 4)
            a(f"v_permlane32_swap_b32 v{v}, v{v+2}"); a(f"v_permlane32_swap_b32 v{v+1}, v{v+3}")
            pkadd(v, v, v + 2)
            return
        for t in range(4):
            a(f"ds_read2st64_b64 {q4(v+4*t)}, v{vaddr} offset0:{2*t} offset1:{2*t+1}")
        a("s_waitcnt lgkmcnt(2)")
        pkadd(v, v, v + 2); pkadd(v + 4, v + 4, v + 6); pkadd(v, v, v + 4)
        if mid: mid()
        a("s_waitcnt lgkmcnt(0)")
        pkadd(v + 8, v + 8, v + 10); pkadd(v + 12, v + 12, v + 14); pkadd(v + 8, v + 8, v + 12)
        pkadd(v + 2, v, v + 8); pkadd(v, v, v + 8)
        a(f"v_permlane32_swap_b32 v{v}, v{v+2}"); a(f"v_permlane32_swap_b32 v{v+1}, v{v+3}")
        pkadd(v, v, v + 2)

    def vor(tmp, rs):
        rs = list(rs)
        if len(rs) == 2:
            a(f"v_or_b32 v{tmp}, v{rs[0]}, v{rs[1]}"); return
        a(f"v_or3_b32 v{tmp}, v{rs[0]}, v{rs[1]}, v{rs[2]}"); rs = rs[3:]
        while rs:
            if len(rs) >= 2:
                a(f"v_or3_b32 v{tmp}, v{tmp}, v{rs[0]}, v{rs[1]}"); rs = rs[2:]
            else:
                a(f"v_or_b32 v{tmp}, v{tmp}, v{rs[0]}"); rs = rs[1:]

    npoll = [0]

    def spend():
        a(f"s_sub_u32 s{sBUD}, s{sBUD}, 1"); a("s_cbranch_scc1 L_exit")

    def poll(loads, tagged, tmp, entry=None, check=None, tags=None, after=None, sleep=0):
        n = npoll[0]; npoll[0] += 1
        a(f"L_poll{n}:")
        if psleep or sleep: a(f"s_sleep {psleep or sleep}")
        for ld in loads: a(ld)
        spend()
        if entry: a(entry + ":")
        a("s_waitcnt vmcnt(0)")
        if check: a(check + ":")
        for k, r in enumerate(tagged): a(f"v_xor_b32 v{r}, {tags[k] if tags else 's%d' % sTG8}, v{r}")
        vor(tmp, tagged)
        a(f"v_cmp_ne_u32_sdwa vcc, v{tmp}, v{vZERO} src0_sel:BYTE_0 src1_sel:DWORD")
        if after and latebr: after()
        a(f"s_cbranch_vccnz L_poll{n}")
        if after and not latebr: after()

    def poll2(mk, A, B, tmp, combine, gap, entry=None):
        n = npoll[0]; npoll[0] += 1

        def check(r):
            for t in range(4): a(f"v_xor_b32 v{r+2*t+1}, s{sTG8}, v{r+2*t+1}")
            vor(tmp, [r + 2 * t + 1 for t in range(4)])
            a(f"v_cmp_ne_u32_sdwa vcc, v{tmp}, v{vZERO} src0_sel:BYTE_0 src1_sel:DWORD")
            combine(r)
        if entry: a(entry + ":")
        else:
            for ld in mk(A): a(ld)
        a("s_waitcnt vmcnt(0)"); check(A); a(f"s_cbranch_vccz L_pdone{n}")
        for ld in mk(A): a(ld)
        a(f"s_sleep {gap}")
        a(f"L_poll{n}:")
        for ld in mk(B): a(ld)
        spend()
        a("s_waitcnt vmcnt(4)"); check(A); a(f"s_cbranch_vccz L_pdone{n}")
        for ld in mk(A): a(ld)
        a("s_waitcnt vmcnt(4)"); check(B); a(f"s_cbranch_vccnz L_poll{n}")
        a(f"L_pdone{n}:")

    def poll_tag(loads, tmp, slack=0, retry=None, first=None, once=None):
        n = npoll[0]; npoll[0] += 1
        if first:
            for ld in loads: a(ld[0])
            first(); a(f"s_branch L_pwait{n}")
        else:
            for t in range(len(loads)): a(f"s_mov_b64 s[{sOFF+2*t}:{sOFF+2*t+1}], -1")
        a(f"L_poll{n}:")
        for t, ld in enumerate(loads):
            a(f"s_mov_b64 exec, s[{sOFF+2*t}:{sOFF+2*t+1}]"); a(ld[0])
        a("s_mov_b64 exec, -1")
        spend()
        if first: a(f"L_pwait{n}:")
        a("s_waitcnt vmcnt(0)")
        a(f"s_mov_b64 s[{sE}:{sE+1}], 0")
        for t, (_, rs) in enumerate(loads):
            m = f"s[{sOFF+2*t}:{sOFF+2*t+1}]"
            a(f"v_xor_b32 v{tmp}, s{sTAG}, v{rs[0]}"); a(f"v_xor_b32 v{tmp+1}, s{sTAG}, v{rs[1]}"); a(f"v_or_b32 v{tmp}, v{tmp}, v{tmp+1}")
            a(f"v_cmp_lt_u32 {m}, {(1 << slack) - 1}, v{tmp}")
            a(f"s_or_b64 s[{sE}:{sE+1}], s[{sE}:{sE+1}], {m}")
        if once: a(f"s_and_b64 s[{sE}:{sE+1}], s[{sE}:{sE+1}], s[{once}:{once+1}]")
        if retry is None:
            a(f"s_cbranch_scc1 L_poll{n}")
        else:
            a(f"s_cbranch_scc1 L_pagain{n}")

            def again():
                a(f"L_pagain{n}:"); retry(); a(f"s_branch L_poll{n}")
            far.append(again)

    def put_tag(d, s, tag=None):
        a(f"v_bfi_b32 v{d}, v{vFF}, {tag or 's%d' % sTG8}, v{s}")

    nst = [0]

    def mode_store(text):
        if not local:
            a(text + " sc1"); return
        n = nst[0]; nst[0] += 1
        a(f"s_cbranch_scc1 L_stfar{n}")
        a(text)
        a(f"L_stdone{n}:")

        def other():
            a(f"L_stfar{n}:"); a(text + " sc1"); a(f"s_branch L_stdone{n}")
        far.append(other)

    def emit_far():
        for f in list(far): f()
        far.clear()

    def only_wave(w, label):
        a(f"s_cmp_lg_u32 s{sW}, {w}"); a(f"s_cbranch_scc1 {label}")

    def selectors():
        t0, t1, t2 = 32, 33, 34
        a(f"v_and_b32 v{t0}, 8, v0"); a(f"v_mov_b32 v{t1}, 0x0100"); a(f"v_mov_b32 v{t2}, 0x0302")
        a(f"v_cmp_ne_u32 vcc, 0, v{t0}"); a(f"v_cndmask_b32 v{t1}, v{t1}, v{t2}, vcc")
        a(f"v_or_b32 v{t2}, 0x0c0c0000, v{t1}")
        a(f"v_lshlrev_b32 v{t1}, 16, v{t1}"); a(f"v_or_b32 v{t1}, 0x0c0c, v{t1}")
        a(f"v_and_b32 v{t0}, 1, v0"); a(f"v_cmp_ne_u32 vcc, 0, v{t0}"); a(f"v_cndmask_b32 v{t1}, v{t2}, v{t1}, vcc")
        a(f"v_bfe_u32 v{t0}, v0, 1, 2"); a(f"v_mov_b32 v{t2}, 0x0c0c0c0c")
        for r in range(4):
            a(f"v_cmp_eq_u32 vcc, {r}, v{t0}"); a(f"v_cndmask_b32 v{vSEL+r}, v{t2}, v{t1}, vcc")

    def tag_from_epoch():
        a(f"s_add_u32 s{sTG8}, s{sTAG}, 1"); a(f"s_and_b32 s{sTG8}, s{sTG8}, 0xff"); a(f"s_mov_b32 s{sEP}, s{sTG8}")
        for k, m in ((1, 255), (2, 253), (3, 251)):
            a(f"s_bfe_u32 s{sT1}, s{sTAG}, {0x80000 | 8*k:#x}"); a(f"s_add_u32 s{sT1}, s{sT1}, 1")
            a(f"s_cmp_lt_u32 s{sT1}, {m}"); a(f"s_cselect_b32 s{sT1}, s{sT1}, 0")
            a(f"s_lshl_b32 s{sT1}, s{sT1}, {8*k}"); a(f"s_or_b32 s{sEP}, s{sEP}, s{sT1}")
        a(f"s_and_b32 s{sTAG}, s{sEP}, -8")

    def role():
        first = [sum(un[:g]) for g in range(8)]
        a(f"s_and_b32 s{sT1}, s{sH}, 7"); a(f"s_lshl_b32 s{sT3}, s{sT1}, 3")
        a(f"s_mov_b32 s{sT0}, {sum(first[g] << (8 * g) for g in range(4)):#x}"); a(f"s_mov_b32 s{sT1}, {sum(first[g + 4] << (8 * g) for g in range(4)):#x}")
        a(f"s_lshr_b64 s[{sT0}:{sT0+1}], s[{sT0}:{sT0+1}], s{sT3}"); a(f"s_and_b32 s{sUA}, s{sT0}, 0xff")
        a(f"s_lshr_b32 s{sT3}, s{sT3}, 1"); a(f"s_lshr_b32 s{sNA}, {sum(un[g] << (4 * g) for g in range(8)):#x}, s{sT3}"); a(f"s_and_b32 s{sNA}, s{sNA}, 15")
        a(f"s_mov_b32 s{sT2}, s{sNA}")
        a(f"s_lshr_b32 s{sMEM}, s{sH}, 3"); a(f"s_lshl2_add_u32 s{sMEM}, s{sSP}, s{sMEM}")
        a(f"s_sub_u32 s{sT1}, s{sMEM}, 8"); a(f"s_add_u32 s{sT3}, s{sT1}, s{sUA}")
        a(f"s_cmp_lt_u32 s{sT1}, s{sT2}"); a(f"s_cselect_b32 s{sROLE}, s{sT3}, 63")
        a(f"s_add_u32 s{sT3}, s{sMEM}, 64")
        a(f"s_cmp_lt_u32 s{sMEM}, 8"); a(f"s_cselect_b32 s{sROLE}, s{sT3}, s{sROLE}")
        if "role" in abl: a(f"s_mov_b32 s{sROLE}, 63")

    T, MM = 26, 30

    nlds = [0]

    def lds_wait(read, regs_, sleep=0):
        n = nlds[0]; nlds[0] += 1
        a(f"L_lds{n}:")
        a(read)
        a("s_waitcnt lgkmcnt(0)")
        rs = list(regs_)
        if len(rs) == 1: a(f"v_cmp_eq_u32 vcc, -1, v{rs[0]}")
        else:
            if len(rs) == 2: a(f"v_max_u32 v{vB}, v{rs[0]}, v{rs[1]}")
            else: a(f"v_max3_u32 v{vB}, v{rs[0]}, v{rs[1]}, v{rs[2]}"); a(f"v_max_u32 v{vB}, v{vB}, v{rs[3]}")
            a(f"v_cmp_eq_u32 vcc, -1, v{vB}")
        a(f"s_cbranch_vccnz L_ldsagain{n}")

        def again():
            a(f"L_ldsagain{n}:")
            if sleep: a(f"s_sleep {sleep}")
            spend(); a(f"s_branch L_lds{n}")
        far.append(again)

    seq = [("k", j) for j in range(16)] + [("v", j) for j in range(16)]
    pos = {op: i for i, op in enumerate(seq)}
    issued, done = [0], [0]
    def vreg(j): return VREG + 4 * j if j < 8 else KREG + 16 + 4 * (j - 8)

    def issue_to(n):
        while issued[0] < min(n, len(seq)):
            kind, j = seq[issued[0]]
            if kind == "k": a.vmem(f"buffer_load_dwordx4 {q4(KREG+4*j)}, v{vKV}, {srd(rK)}, s{sOFF+j} offen nt", (kind, j))
            else: a.vmem(f"buffer_load_dwordx4 {q4(vreg(j))}, v{vKV}, {srd(rV)}, s{sOFF+j} offen nt", (kind, j))
            issued[0] += 1

    def advance(upto):
        while done[0] <= pos[upto]:
            a.wait_vm(seq[done[0]]); done[0] += 1
            issue_to(done[0] + W)
            tr(done[0] - 1)

    def ids():
        a(f"s_and_b32 s{sH}, s2, 31"); a(f"s_lshr_b32 s{sSP}, s2, 5")

    def ids2():
        a(f"s_mov_b32 s{sBUD}, {budget}"); a(f"s_lshl3_add_u32 s{sIDX}, s{sH}, s{sSP}")
        a(f"s_getreg_b32 s{sXCC}, hwreg(HW_REG_XCC_ID, 0, 3)"); a(f"v_and_b32 v{vL}, 63, v0")

    def scatter(x, ch):
        return sum(((x >> k) & 1) << p for k, p in enumerate(13 + i for i, c in enumerate(pat) if c == ch))
    KVSIZE = scatter(15, "j") + 8192

    def offsets(js):
        for j in js:
            o = scatter(j, "j")
            a(f"s_movk_i32 s{sOFF+j}, {o:#x}" if o < 0x8000 else f"s_mov_b32 s{sOFF+j}, {o:#x}")

    def kv_base():
        ps = [13 + i for i, c in enumerate(pat) if c == "s"]
        a(f"s_lshl3_add_u32 s{sT0}, s{sH}, 7"); a(f"s_lshl_b32 s{sT0}, s{sT0}, 20")
        k = 0
        while k < 3:
            n = 1
            while k + n < 3 and ps[k + n] == ps[k] + n: n += 1
            if n == 3: a(f"s_lshl_b32 s{sT1}, s{sSP}, {ps[0]}")
            else: a(f"s_bfe_u32 s{sT1}, s{sSP}, {(n << 16) | k:#x}"); a(f"s_lshl_b32 s{sT1}, s{sT1}, {ps[k]}")
            a(f"s_add_u32 s{sT0}, s{sT0}, s{sT1}")
            k += n

    a(f"{KNAME}:")
    if stamps or amp: a(f"s_memrealtime s[{sST}:{sST+1}]")
    allargs = "s_load_dwordx16 s[8:23], s[0:1], 0\ns_load_dwordx8 s[24:31], s[0:1], 64"
    a(f"s_load_dwordx2 s[{rK}:{rK+1}], s[0:1], 8" if konly else allargs)
    a("s_cmpk_ge_u32 s2, 256"); a("s_cbranch_scc1 L_end")
    a(f"v_readfirstlane_b32 s{sW}, v0")
    a(f"s_cmpk_lt_u32 s{sW}, 64"); a("s_cbranch_scc1 L_helper00" if konly else "s_cbranch_scc1 L_helper0")
    a("v_subrev_u32 v0, 64, v0")
    if pfcode:
        a(f"s_getpc_b64 s[{sE}:{sE+1}]")
        a("L_pc:")
        a("v_lshlrev_b32 v24, 5, v0"); a("v_min_u32 v24, L_last-L_pc, v24")
        a(f"global_load_dword v3, v24, s[{sE}:{sE+1}]")
    ids()
    a(f"v_lshlrev_b32 v{vKV}, 4, v0")
    kv_base()
    offsets(range(W))
    a(f"s_mov_b32 s{rK+3}, 0x20000"); a(f"s_mov_b32 s{rK+2}, {KVSIZE:#x}")
    a("s_waitcnt lgkmcnt(0)")
    kp = rK if konly else pK
    a(f"s_add_u32 s{rK}, s{kp}, s{sT0}"); a(f"s_addc_u32 s{rK+1}, s{kp+1}, 0")
    issue_to(k0)
    if konly: a(allargs)
    a("s_barrier")
    issue_to(W)
    a("s_branch L_stream")
    if konly: a("L_helper00:"); a(allargs); a("s_branch L_helper0")
    a(".p2align 8")

    a("L_helper0:")
    if hprio: a(f"s_setprio {hprio}")
    vXA, vXO, vQO = 22, 23, 3
    XA, XO = 28, 27
    a("v_lshlrev_b32 v24, 3, v0"); a("v_mov_b32 v30, -1"); a("v_mov_b32 v31, -1")
    a("ds_write_b64 v24, v[30:31]")
    ids()
    a(f"v_lshlrev_b32 v{vXA}, 4, v0")
    a("v_lshrrev_b32 v24, 4, v0"); a("v_and_b32 v25, 15, v0")
    a(f"s_lshl_b32 s{sT1}, s{sSP}, 6"); a(f"v_add_u32 v24, s{sT1}, v24")
    a(f"v_lshl_add_u32 v{vXO}, v25, 2, v24"); a(f"v_lshlrev_b32 v{vXO}, 1, v{vXO}")
    a(f"v_lshlrev_b32 v{vQO}, 13, v24"); a(f"v_lshl_add_u32 v{vQO}, v25, 4, v{vQO}")
    a(f"s_lshl_b32 s{sT0}, s{sH}, 8"); a(f"s_mov_b32 s{sT1}, 0x8000")
    a(f"s_mov_b32 s{rQ+2}, 0x400000"); a(f"s_mov_b32 s{rQ+3}, 0x20000")
    a("s_waitcnt lgkmcnt(0)")
    if bar0 == -1: a("s_barrier")
    a(f"global_load_dwordx4 {q4(XA)}, v{vXA}, s[{pX}:{pX+1}]")
    a(f"global_load_ushort v{XO}, v{vXO}, s[{pX}:{pX+1}]")
    a(f"s_mov_b64 s[{rQ}:{rQ+1}], s[{pWQ}:{pWQ+1}]")
    for j in range(16):
        a(f"buffer_load_dwordx4 {q4(KREG+4*j)}, v{vQO}, {srd(rQ)}, s{sT0} offen nt")
        if j < 15: a(f"s_add_u32 s{sT0}, s{sT0}, s{sT1}")
        if j == (15 if bar0 is True else bar0): a("s_barrier")
    a(f"s_mov_b32 s{sW}, -1")
    a("s_branch L_helper")

    a("L_stream:")
    if stamps: a(f"v_mov_b32 v{vSTAMP}, 0"); a(f"v_writelane_b32 v{vSTAMP}, s{sST}, 0")
    stamp("args")
    offsets(range(W, 16))
    a(f"s_lshr_b32 s{sW}, s{sW}, 6"); a(f"s_sub_u32 s{sW}, s{sW}, 1")
    ids2()
    if konly: a("s_waitcnt lgkmcnt(0)")
    mksrd(rV, pV, KVSIZE, sT0); mksrd(rX, pX, 1024)
    selectors()
    a(f"s_mov_b32 s{sROLE}, 63")
    vG2, vJ, vSH, vOW, vRO, vP8, vPF, vPJ = range(XREG, XREG + 8)
    a(f"v_bfe_u32 v{vG2}, v0, 4, 2"); a(f"v_and_b32 v{vJ}, 7, v0"); a(f"v_bfe_u32 v{vSH}, v0, 3, 1")
    a(f"v_and_b32 v{vT}, 15, v0"); a(f"v_lshlrev_b32 v{vT}, 4, v{vT}")
    a(f"v_lshrrev_b32 v{vOW}, 5, v0"); a(f"v_lshlrev_b32 v{vOW}, 9, v{vOW}"); a(f"v_lshl_add_u32 v{vOW}, v{vT}, 1, v{vOW}")
    a(f"v_and_b32 v32, 1, v{vG2}"); a(f"v_lshl_add_u32 v{vOW}, v32, 4, v{vOW}")
    a(f"v_and_b32 v{vP8}, 31, v0"); a(f"v_lshlrev_b32 v{vP8}, 3, v{vP8}")
    a("v_bfe_u32 v32, v0, 5, 1"); a(f"v_lshl_add_u32 v{vRO}, v32, 12, v{vP8}")
    a(f"s_lshl_b32 s{sT1}, s{sW}, 8"); a(f"s_add_u32 s{sT2}, s{sT1}, {L_OP}"); a(f"v_add_u32 v{vRO}, s{sT2}, v{vRO}")
    a(f"s_lshl_b32 s{sU}, s{sIDX}, 9"); a(f"s_add_u32 s{sU}, s{sU}, s{sT1}")
    a(f"v_mov_b32 v{vFF}, 0xff"); a(f"v_mov_b32 v{vZERO}, 0")
    a(f"v_lshl_add_u32 v{vPJ}, v{vG2}, 3, v{vJ}")
    advance(("k", 3))
    a(f"s_load_dword s{sTAG}, s[{pWS}:{pWS+1}], {EPOCH}")
    mksrd(rWS, pWS, WS_SIZE)
    vAD64, vPA = XREG + 18, 44

    def duties():
        role()
        a(f"s_mov_b32 s{sE+1}, 0"); a("v_mov_b32 v33, 0"); a(f"s_mov_b32 s{sE}, 8192")
        a(f"s_sub_u32 s{sT2}, s{sSP}, {pfs}"); a(f"s_cselect_b32 s{sT2}, 0, s{sT2}")
        a(f"s_cselect_b64 s[{sPFM}:{sPFM+1}], 1, -1")
        a(f"s_mul_i32 s{sT2}, s{sT2}, {8192*nwo}"); a(f"s_min_u32 s{sT2}, s{sT2}, {131072 - 8192*nwo}")
        a(f"s_lshl_b32 s{sT1}, s{sH}, 17"); a(f"s_add_u32 s{sT1}, s{sT1}, s{sT2}")
        a(f"v_add_u32 v32, s{sT1}, v{vKV}")
        a(f"v_lshl_add_u64 {q2(vAD64)}, v[32:33], 0, s[{pWO}:{pWO+1}]")
        a(f"s_cmp_lt_u32 s{sROLE}, {NT2}"); a(f"s_cbranch_scc1 L_adT2")
        a(f"s_cmp_lt_u32 s{sROLE}, 64"); a(f"s_cbranch_scc1 L_adPF")
        a(f"v_lshl_add_u32 v32, v{vG2}, 4, v{vSH}")
        a(f"s_and_b32 s{sT1}, s{sH}, 7"); a(f"s_lshl_b32 s{sT1}, s{sT1}, 17")
        a(f"s_lshr_b32 s{sT2}, s{sW}, 1"); a(f"s_lshl_b32 s{sT2}, s{sT2}, 20"); a(f"s_add_u32 s{sT1}, s{sT1}, s{sT2}")
        a(f"s_and_b32 s{sT2}, s{sW}, 1"); a(f"s_lshl_b32 s{sT2}, s{sT2}, 16"); a(f"s_add_u32 s{sT1}, s{sT1}, s{sT2}")
        a(f"s_and_b32 s{sT2}, s{sROLE}, 7"); a(f"s_lshl_b32 s{sT2}, s{sT2}, 7"); a(f"s_add_u32 s{sT1}, s{sT1}, s{sT2}")
        a("v_lshlrev_b32 v32, 10, v32"); a(f"v_lshl_add_u32 v32, v{vJ}, 4, v32"); a(f"v_add_u32 v32, s{sT1}, v32")
        a(f"v_lshl_add_u64 {q2(vPA)}, v[32:33], 0, s[{pWO}:{pWO+1}]")
        a("s_branch L_addone")
        a("L_adT2:")
        a("v_and_b32 v32, 0x1f8, v0"); a("v_mul_u32_u24 v32, 2752, v32")
        a("v_and_b32 v34, 3, v0"); a("v_lshl_add_u32 v32, v34, 4, v32")
        a(f"s_lshl_b32 s{sT1}, s{sROLE}, 6"); a(f"v_add_u32 v32, s{sT1}, v32")
        a(f"v_lshl_add_u64 {q2(vPA)}, v[32:33], 0, s[{pWG}:{pWG+1}]")
        a("s_mov_b32 exec_lo, 0xf0f0f0f0"); a("s_mov_b32 exec_hi, 0xf0f0f0f0")
        a(f"v_lshl_add_u64 {q2(vPA)}, v[32:33], 0, s[{pWU}:{pWU+1}]")
        a("s_mov_b64 exec, -1")
        a("s_branch L_addone")
        a("L_adPF:")
        a(f"s_lshl_b32 s{sT1}, s{sNA}, 6"); a(f"s_sub_u32 s{sT1}, s{sT1}, 4")
        a("v_and_b32 v32, 3, v0"); a("v_lshlrev_b32 v32, 7, v32"); a(f"v_min_u32 v32, s{sT1}, v32")
        a("v_bfe_u32 v34, v0, 3, 2"); a("v_bfe_u32 v35, v0, 5, 1"); a("v_lshl_add_u32 v34, v35, 3, v34")
        a(f"v_mul_u32_u24 v34, 2752, v34"); a("v_add_u32 v32, v32, v34")
        a(f"s_and_b32 s{sT2}, s{sMEM}, 15")
        a(f"s_mul_i32 s{sT1}, s{sT2}, {16*2752}"); a(f"s_lshl_b32 s{sT3}, s{sUA}, 6"); a(f"s_add_u32 s{sT1}, s{sT1}, s{sT3}")
        a(f"v_add_u32 v32, s{sT1}, v32")
        a(f"v_lshl_add_u64 {q2(vPA)}, v[32:33], 0, s[{pWG}:{pWG+1}]")
        a("s_mov_b32 exec_lo, 0xf0f0f0f0"); a("s_mov_b32 exec_hi, 0xf0f0f0f0")
        a(f"v_lshl_add_u64 {q2(vPA)}, v[32:33], 0, s[{pWU}:{pWU+1}]")
        a("s_mov_b64 exec, -1")
        a("L_addone:")
    duties()
    advance(("k", 7 if burst else 8))
    a("s_waitcnt lgkmcnt(0)")
    if amp and len(amp) > 3 and amp[0] in ("start", "args"): diag_store()
    tag_from_epoch()

    def kv(n): return ("k", n) if n < 16 else ("v", n - 16)
    cur = [gpos]

    def step():
        if burst: return
        cur[0] += 1; advance(kv(cur[0]))
    advance(kv(gpos))
    QP = 40
    lds_wait(f"ds_read_b128 {q4(QP)}, v{vT} offset:{L_QB}", range(QP, QP + 4))
    stamp("qgot")
    SJ = 24

    def dots(js):
        for i in range(4):
            for j in js:
                a(f"v_dot2_f32_bf16 v{SJ+j}, v{KREG+4*j+i}, v{QP+i}, {'0' if i == 0 else 'v%d' % (SJ+j)}")
    assert gpos >= 11
    assert issued[0] <= pos[("v", 8)]
    dots(range(4, 12))
    step()
    dots(range(4))
    advance(("k", 15)); cur[0] = max(cur[0], 15)
    dots(range(12, 16))
    step()
    for j in range(8):
        a(f"v_add_f32_dpp v{SJ+j}, v{SJ+j}, v{SJ+j} row_ror:8 row_mask:0xf bank_mask:0x3")
    for j in range(8):
        a(f"v_add_f32_dpp v{SJ+j}, v{SJ+j+8}, v{SJ+j+8} row_ror:8 row_mask:0xf bank_mask:0xc")
    for j in range(4):
        a(f"v_add_f32_dpp v{SJ+j}, v{SJ+j}, v{SJ+j} row_half_mirror row_mask:0xf bank_mask:0x5")
    for j in range(4):
        a(f"v_add_f32_dpp v{SJ+j}, v{SJ+j+4}, v{SJ+j+4} row_half_mirror row_mask:0xf bank_mask:0xa")
    for j in range(4):
        a(f"v_add_f32_dpp v{SJ+j}, v{SJ+j}, v{SJ+j} quad_perm:[1,0,3,2] {DPPF}")
    a("s_mov_b32 vcc_lo, 0xaaaaaaaa"); a("s_mov_b32 vcc_hi, 0xaaaaaaaa")
    a(f"v_cndmask_b32 v{SJ}, v{SJ}, v{SJ+1}, vcc"); a(f"v_cndmask_b32 v{SJ+2}, v{SJ+2}, v{SJ+3}, vcc")
    a(f"v_add_f32_dpp v{SJ}, v{SJ}, v{SJ} quad_perm:[2,3,0,1] {DPPF}")
    a(f"v_add_f32_dpp v{SJ+2}, v{SJ+2}, v{SJ+2} quad_perm:[2,3,0,1] {DPPF}")
    a("s_mov_b32 vcc_lo, 0xcccccccc"); a("s_mov_b32 vcc_hi, 0xcccccccc")
    SC = SJ
    a(f"v_cndmask_b32 v{SC}, v{SJ}, v{SJ+2}, vcc")
    bf16r(SC, SC); a(f"v_mul_f32 v{SC}, {SCALE:#x}, v{SC}"); bf16r(SC, SC)
    step()
    a(f"v_mov_b32 v{T}, v{SC}"); wave_red("v_max_f32", T, sMW)
    a(f"v_subrev_f32 v{SC}, s{sMW}, v{SC}"); a(f"v_mul_f32 v{SC}, {LOG2E:#x}, v{SC}"); a(f"v_exp_f32 v{SC}, v{SC}")

    def split_p():
        if nolo:
            a(f"v_cvt_pk_bf16_f32 v{vPK}, v{SC}, 0"); return
        bf16r(T, SC); a(f"v_sub_f32 v{T}, v{SC}, v{T}")
        a(f"v_cvt_pk_bf16_f32 v{vPK}, v{SC}, v{T}")
    split_p()
    a(f"v_mov_b32 v{T}, v{SC}"); wave_red("v_add_f32", T, sT2)
    a(f"v_mov_b32 v{T}, s{sMW}"); a(f"v_mov_b32 v{T+1}, s{sT2}")
    a(f"s_lshl_b32 s{sT1}, s{sW}, 3"); a(f"v_mov_b32 v{T+2}, s{sT1}")
    a("s_mov_b64 exec, 1"); a(f"ds_write_b64 v{T+2}, {q2(T)} offset:{L_ST}"); a("s_mov_b64 exec, -1")
    stamp("p")

    for j in range(16 - W):
        build_a(j)
        if j % 4 == 0 and j + 16 <= cur[0] < 31 - W: step()
        advance(("v", j | 3 if burst == 2 else j))
        mfma(j, vreg(j), j == 0)
        if j == cpos:
            a(f"v_lshrrev_b32 v{T+2}, 1, v{T+2}")
            if local and mode_early:
                lds_wait(f"ds_read_b32 v32, v{T+2} offset:{L_F}\nds_read_b32 v33, v{vZERO} offset:{L_MODE}", [32, 33])
                a(f"v_readfirstlane_b32 s{sMODE}, v33")
            else:
                lds_wait(f"ds_read_b32 v32, v{T+2} offset:{L_F}", [32])
            a(f"v_mul_f32 v{SC}, v{SC}, v32")
            for r in range(4): a(f"v_mul_f32 v{vD+r}, v{vD+r}, v32")
            split_p()
    assert issued[0] == len(seq) and cpos < 16 - W and all(p >= 16 - W for p in pfat)
    stamp("cbar")

    def w1reg(j): return TREG + 4 * j if j < 4 else VREG + 4 * j

    def tload1(j): tload(j, w1reg(j))

    def tload(j, reg=None):
        a(f"global_load_dwordx4 {q4(TREG+4*j if reg is None else reg)}, {q2(vPA)}, off")
        if j < 7: a(f"v_lshl_add_u64 {q2(vPA)}, {q2(vPA)}, 0, s[{sE}:{sE+1}]")

    def pf_load(k):
        a(f"s_mov_b64 exec, s[{sPFM}:{sPFM+1}]")
        a(f"global_load_dwordx4 {q4(KREG+48)}, {q2(vAD64)}, off")
        a("s_mov_b64 exec, -1")
        if k + 1 < nwo:
            d = (pford[k + 1] - pford[k] if pford else 1) * 8192
            a(f"s_mov_b32 s{sT0}, {d & 0xffffffff:#x}"); a(f"s_mov_b32 s{sT1}, {-1 if d < 0 else 0}")
            a(f"v_lshl_add_u64 {q2(vAD64)}, {q2(vAD64)}, 0, s[{sT0}:{sT0+1}]")

    def pv_tail(e, load):
        k = 0
        for j in range(16 - W, 16):
            build_a(j)
            a(f"s_waitcnt vmcnt({15 - j + k})")
            mfma(j, vreg(j), False)
            tr(16 + j)
            for _ in range(e.count(j)):
                load(k); k += 1
    if e1: a(f"s_cmp_ge_u32 s{sROLE}, 64"); a("s_cbranch_scc1 L_pv1")
    if e2:
        a(f"s_lshr_b32 s{sT0}, s{sW}, 2"); a(f"s_lshl_b32 s{sT0}, s{sT0}, 6"); a(f"s_add_u32 s{sT0}, s{sT0}, s{sROLE}")
        a(f"s_cmp_lt_u32 s{sT0}, {NT2}"); a("s_cbranch_scc1 L_pv2")
    pv_tail(pfat, pf_load)
    a("L_pvdone:")
    a(f"ds_write_b128 v{vOW}, {q4(vD)} offset:{L_OP}")
    a(f"s_cmp_ge_u32 s{sW}, 2")
    a("s_waitcnt lgkmcnt(0)"); a("s_barrier")
    stamp("obar")
    if amp and len(amp) > 3 and amp[0] == "obar":
        diag_store(); a(f"s_cmp_ge_u32 s{sW}, 2")
    a("s_cbranch_scc1 L_nopub")
    if local and not mode_early: a(f"ds_read_b32 v40, v{vZERO} offset:{L_MODE}")

    def getmode():
        if not mode_early: a(f"v_readfirstlane_b32 s{sMODE}, v40")
        a(f"s_cmp_lg_u32 s{sMODE}, 0")
    assert mode_early or not nolo
    red16(vRO, 24, mid=getmode if local else None, even=nolo)
    a("s_mov_b32 exec_hi, 0")
    put_tag(25, 25)
    mode_store(f"buffer_store_dwordx2 v[24:25], v{vP8}, {srd(rWS)}, s{sU} offen")
    a("s_mov_b32 exec_hi, -1")
    stamp("x")
    a("L_nopub:")
    a(f"s_cmp_ge_u32 s{sROLE}, 64"); a("s_cbranch_scc1 L_T1")
    a("s_barrier")
    a(f"s_cmp_lt_u32 s{sROLE}, {NT2}"); a("s_cbranch_scc1 L_T2")
    if stages:
        a(f"s_cmp_lt_u32 s{sMEM}, 16"); a("s_cbranch_scc1 L_exit")
        only_wave(2, "L_exit")
        at = 0
        for c in stages:
            if c == "d":
                mksrd(rT, pWD, 1376 * 1024)
                a(f"s_lshl_b32 s{sT0}, s{sNA}, 4"); a(f"s_and_b32 s{sT2}, s{sMEM}, 15"); a(f"s_mul_i32 s{sT2}, s{sT2}, s{sT0}")
                a(f"s_lshl_b32 s{sT3}, s{sUA}, 8"); a(f"s_add_u32 s{sT2}, s{sT2}, s{sT3}"); a(f"s_lshl_b32 s{sT2}, s{sT2}, 7")
                a(f"v_lshlrev_b32 v32, 7, v{vL}"); a(f"buffer_load_dword v3, v32, {srd(rT)}, s{sT2} offen")
                a(f"s_sub_u32 s{sT0}, s{sT0}, 1"); a(f"v_add_u32 v32, 64, v{vL}"); a(f"v_min_u32 v32, s{sT0}, v32"); a("v_lshlrev_b32 v32, 7, v32")
                a(f"buffer_load_dword v3, v32, {srd(rT)}, s{sT2} offen")
            else:
                row = {"A": 0, "B": 4, "C": 256, "D": 260}[c]
                d = (row - at) * 2752; at = row
                if d:
                    a(f"s_mov_b32 s{sT0}, {d & 0xffffffff:#x}"); a(f"s_mov_b32 s{sT1}, {-1 if d < 0 else 0}")
                    a(f"v_lshl_add_u64 {q2(vPA)}, {q2(vPA)}, 0, s[{sT0}:{sT0+1}]")
                a(f"global_load_dword v3, {q2(vPA)}, off")
    a("s_branch L_exit")
    emit_far()

    a("L_helper:")
    if stamps: a(f"v_mov_b32 v{vSTAMP}, 0"); a(f"v_writelane_b32 v{vSTAMP}, s{sST}, 0")
    a(f"s_load_dword s{sTAG}, s[{pWS}:{pWS+1}], {EPOCH}")
    ids2()
    selectors()
    a(f"s_mov_b32 s{sROLE}, 63")
    mksrd(rWS, pWS, WS_SIZE)
    a(f"v_mov_b32 v{vZERO}, 0")
    sPB, sLA, sC0, sC1, sDM = rO, rO + 2, rT, rT + 2, rX

    def probe(r):
        if r == (2 if nprobe == 3 else 0):
            a(f"s_bfe_u32 s{sT1}, s2, 0x10003"); a(f"s_lshl2_add_u32 s{sT1}, s{sSP}, s{sT1}")
            a(f"s_lshl_b32 s{sT1}, s{sT1}, 6"); a(f"s_add_u32 s{sT1}, s{sT1}, s{sH}"); a(f"s_lshl_b32 s{sT1}, s{sT1}, 7"); a(f"s_add_u32 s{sPB}, s{sT1}, {PROBE}")
            a(f"s_xor_b32 s{sPB+1}, s{sPB}, 0x2000"); a(f"s_mov_b32 s{sLA}, 0")
        order = {1: ([0], [1]), 2: ([0, 1], [1, 0]), 3: ([1], [0], [0, 1])}[nprobe][r]
        a(f"s_memtime s[{sC0}:{sC0+1}]"); a("s_waitcnt lgkmcnt(0)")
        for t in order:
            a(f"s_load_dword s{sDM}, s[{pWS}:{pWS+1}], s{sPB+t} offset:{(0, 20480, 4096)[r]}"); a("s_waitcnt lgkmcnt(0)")
            a(f"s_memtime s[{sC1}:{sC1+1}]"); a("s_waitcnt lgkmcnt(0)")
            a(f"s_sub_u32 s{sT1}, s{sC1}, s{sC0}"); a(f"s_mov_b32 s{sC0}, s{sC1}")
            a(f"s_{'sub' if t else 'add'}_u32 s{sLA}, s{sLA}, s{sT1}")
    if vote and nprobe == 3:
        a("s_waitcnt lgkmcnt(0)"); probe(2)
    a(f"s_waitcnt vmcnt(16)")
    stamp("x")
    U = 32
    for i in range(4): unpack(U + 2 * i, U + 2 * i + 1, XA + i)
    S, M_, R_ = 40, 41, 42
    a(f"v_add_f32 v{S}, v{U}, v{U+1}")
    for i in range(2, 8): a(f"v_add_f32 v{S}, v{S}, v{U+i}")
    wave_red("v_add_f32", S, sT1)
    a(f"v_mov_b32 v{M_}, 0x3b000000"); a(f"v_mul_f32 v{M_}, s{sT1}, v{M_}")
    for i in range(8): a(f"v_sub_f32 v{U+i}, v{U+i}, v{M_}")
    a(f"v_mul_f32 v{S}, v{U}, v{U}")
    for i in range(1, 8): a(f"v_fmac_f32 v{S}, v{U+i}, v{U+i}")
    wave_red("v_add_f32", S, sT1)
    a(f"v_mov_b32 v{S}, 0x3b000000"); a(f"v_mul_f32 v{S}, s{sT1}, v{S}")
    bf16r(M_, M_); bf16r(S, S)
    a(f"v_add_f32 v{S}, {EPS:#x}, v{S}"); bf16r(S, S)
    a(f"v_sqrt_f32 v{S}, v{S}"); bf16r(S, S)
    a(f"v_rcp_f32 v{R_}, v{S}")
    a(f"v_lshlrev_b32 v{XO}, 16, v{XO}"); a(f"v_sub_f32 v{XO}, v{XO}, v{M_}"); bf16r(XO, XO)
    a(f"v_mul_f32 v{XO}, v{XO}, v{R_}")
    a(f"v_cvt_pk_bf16_f32 v{vPK}, v{XO}, 0")
    a(f"s_waitcnt lgkmcnt(0)")
    tag_from_epoch()
    for j in range(16):
        build_a(j)
        if j % 4 == 0: a(f"s_waitcnt vmcnt({12 - j})")
        mfma(j, KREG + 4 * j, j == 0)
    a("v_and_b32 v24, 15, v0"); a("v_bfe_u32 v25, v0, 4, 1"); a("v_lshrrev_b32 v26, 5, v0")
    a("v_lshlrev_b32 v24, 6, v24"); a("v_lshl_add_u32 v24, v25, 5, v24"); a("v_lshl_add_u32 v24, v26, 4, v24")
    a(f"s_lshl_b32 s{sT2}, s{sIDX}, 10"); a(f"s_add_u32 s{sT2}, s{sT2}, {MBQ}")
    a(f"s_xor_b32 s{sT3}, s{sTAG}, s{sXCC}")
    a(f"v_permlane32_swap_b32 v{vD}, v{vD+2}"); a(f"v_permlane32_swap_b32 v{vD+1}, v{vD+3}")
    a(f"v_mov_b32 v{vD+2}, v{vD+1}"); a(f"v_mov_b32 v{vD+1}, s{sTAG}"); a(f"v_mov_b32 v{vD+3}, s{sT3}")
    qstore = f"buffer_store_dwordx4 {q4(vD)}, v24, {srd(rWS)}, s{sT2} offen"
    if "hand" in abl: a("s_branch L_samedie")
    qfrac = 2 if "q2" in abl else 4 if "q4" in abl else 1
    if qfrac > 1:
        m = 0x00ff00ff if qfrac == 2 else 0x000f000f
        a(f"s_mov_b32 exec_lo, {m:#x}"); a(f"s_mov_b32 exec_hi, {m:#x}")
    a(qstore + ("" if local else " sc1"))
    if qfrac > 1: a("s_mov_b64 exec, -1"); a(f"v_and_b32 v{vXA}, {1024 // qfrac - 1}, v{vXA}")
    stamp("qpub")
    a(f"s_lshl_b32 s{sT0}, s{sH}, 13"); a(f"s_add_u32 s{sT0}, s{sT0}, {MBQ}"); a(f"s_add_u32 s{sU}, s{sT0}, 4096")
    a(f"s_mov_b32 s{sMODE}, 0")
    GQ = KREG

    def write_through_once(tag):
        a(f"s_cmp_lg_u32 s{sMODE}, 0"); a(f"s_cbranch_scc1 L_wt{tag}")
        a(qstore + " sc1"); a(f"s_mov_b32 s{sMODE}, 1")
        a(f"L_wt{tag}:")

    if vote: probe(0)
    a("s_waitcnt vmcnt(0)")
    poll_tag([(f"buffer_load_dwordx4 {q4(GQ+4*t)}, v{vXA}, {srd(rWS)}, s{sU if t >= 4 else sT0} offen offset:{(t&3)*1024} sc1", [GQ+4*t+1, GQ+4*t+3]) for t in range(8)],
             26, slack=3, retry=(lambda: write_through_once("a")) if local else None, first=(lambda: probe(1)) if vote else None)
    if local:
        for t in range(8): a(f"v_xor_b32 v{GQ+4*t+3}, s{sT3}, v{GQ+4*t+3}")
        vor(26, [GQ + 4 * t + 3 for t in range(8)])
        a("v_cmp_ne_u32 vcc, 0, v26"); a("s_cbranch_vccz L_samedie")
        write_through_once("b")
        a("L_samedie:")
    for st in (16, 8, 4):
        for i in range(0, st, 2): a(f"v_add_f32 v{GQ+i}, v{GQ+i}, v{GQ+i+st}")
    a(f"v_cvt_pk_bf16_f32 v{GQ}, v{GQ}, v{GQ+2}"); a("v_lshlrev_b32 v25, 2, v0")
    a(f"v_min_u32 v{GQ}, -2, v{GQ}")
    a(f"ds_write_b32 v25, v{GQ} offset:{L_QB}")
    stamp("qgot")
    a("v_and_b32 v25, 3, v0"); a(f"v_bfe_u32 v26, v0, 2, 1"); a("v_lshlrev_b32 v25, 16, v25"); a("v_lshl_add_u32 v25, v26, 10, v25")
    a(f"s_and_b32 s{sT0}, s{sH}, 7"); a(f"s_lshl_b32 s{sT1}, s{sT0}, 13"); a(f"s_add_u32 s{sT1}, s{sT1}, {MBQ}")
    a(f"v_and_b32 v{T+2}, 7, v0"); a(f"v_lshlrev_b32 v{T+3}, 2, v{T+2}"); a(f"v_lshlrev_b32 v{T+2}, 3, v{T+2}")
    if warm:
        a("v_and_b32 v41, 3, v0"); a("v_lshlrev_b32 v41, 7, v41"); a(f"s_lshl_b32 s{sT2}, s{sIDX}, 9")
        a(f"buffer_load_dword v43, v41, {srd(rWS)}, s{sT2} offen sc1")
    if local and "hand" not in abl: a(f"buffer_load_dword v40, v25, {srd(rWS)}, s{sT1} offen offset:12 sc1")
    lds_wait(f"ds_read_b64 {q2(T)}, v{T+2} offset:{L_ST}", [T, T + 1], sleep=hsleep)
    a(f"v_mov_b32 v{MM}, v{T}"); red8("v_max_f32", MM)
    a(f"v_sub_f32 v{T}, v{T}, v{MM}"); a(f"v_mul_f32 v{T}, {LOG2E:#x}, v{T}"); a(f"v_exp_f32 v{T}, v{T}")
    a(f"ds_write_b32 v{T+3}, v{T} offset:{L_F}")
    a(f"v_mov_b32 v36, v{MM}"); a(f"v_mov_b32 v37, s{sTAG}"); a(f"v_mul_f32 v38, v{T}, v{T+1}")
    if vote:
        a(f"s_cmp_gt_i32 s{sLA}, 0"); a(f"s_cselect_b32 s{sT1}, 1, 0"); a(f"s_lshr_b32 s{sT2}, s2, 3"); a(f"s_xor_b32 s{sT1}, s{sT1}, s{sT2}")
        a(f"s_lshr_b32 s{sT2}, s{sXCC}, 2"); a(f"s_xor_b32 s{sT1}, s{sT1}, s{sT2}"); a(f"s_and_b32 s{sT1}, s{sT1}, 1"); a(f"s_or_b32 s{sT1}, s{sT1}, s{sTAG}")
        a(f"v_mov_b32 v39, s{sT1}")
        if stamps: a(f"v_writelane_b32 v{vSTAMP}, s{sT1}, 13")
    else:
        a(f"v_mov_b32 v39, s{sTAG}")
    red8("v_add_f32", 38)
    a(f"s_lshl_b32 s{sT1}, s{sIDX}, 7"); a(f"s_add_u32 s{sT1}, s{sT1}, {MBM}")
    if local:
        a(f"s_waitcnt vmcnt(0)")
        a(f"v_cmp_ne_u32 vcc, s{sT3}, v40"); a("s_cmp_lg_u64 vcc, 0"); a(f"s_cselect_b32 s{sMODE}, 1, 0")
        a(f"v_mov_b32 v40, s{sMODE}"); a("v_mov_b32 v41, 0")
    a("s_mov_b64 exec, 1")
    if local: a(f"ds_write_b32 v41, v40 offset:{L_MODE}")
    if "hand" not in abl: mode_store(f"buffer_store_dwordx4 v[36:39], off, {srd(rWS)}, s{sT1}")
    a("s_mov_b64 exec, -1")
    a("s_waitcnt lgkmcnt(0)")
    stamp("p")
    a(f"s_cmp_ge_u32 s{sSP}, {0 if 'role' in abl else 4 if vote else 2}"); a("s_cbranch_scc1 L_exit")
    a("v_bfe_u32 v24, v0, 3, 2"); a("v_and_b32 v25, 7, v0"); a("v_lshlrev_b32 v24, 13, v24"); a("v_lshl_add_u32 v24, v25, 7, v24")
    a(f"s_lshl_b32 s{sT0}, s{sT0}, 10"); a(f"s_add_u32 s{sT0}, s{sT0}, {MBM}")
    a("s_waitcnt vmcnt(0)")
    if vote:
        a(f"s_cmp_lt_u32 s{sSP}, 2"); a(f"s_cselect_b64 s[{sPFM}:{sPFM+1}], -1, 0")
    poll_tag([(f"buffer_load_dwordx4 v[32:35], v24, {srd(rWS)}, s{sT0} offen sc1", [33, 35])], 26, slack=1 if vote else 0, once=sPFM if vote else None)
    if vote:
        a("v_cmp_eq_u32 vcc, 1, v26"); a(f"s_bcnt1_i32_b32 s{sT1}, vcc_lo"); a("v_cmp_eq_u32 vcc, 0, v26"); a(f"s_bcnt1_i32_b32 s{sT2}, vcc_lo")
        a(f"s_cmp_gt_u32 s{sT1}, s{sT2}"); a(f"s_cselect_b32 s{sT1}, 1, 0"); a(f"v_mov_b32 v36, s{sT1}")
        a(f"ds_write_b32 v{vZERO}, v36 offset:{L_BETA}")
        if stamps: a(f"v_writelane_b32 v{vSTAMP}, s{sT1}, 15")
    a("v_mov_b32 v36, v32"); red8("v_max_f32", 36)
    a("v_sub_f32 v32, v32, v36"); a(f"v_mul_f32 v32, {LOG2E:#x}, v32"); a("v_exp_f32 v32, v32")
    a("v_mul_f32 v34, v32, v34"); red8("v_add_f32", 34)
    a("v_rcp_f32 v34, v34"); a("v_and_b32 v24, 31, v0"); a("v_lshlrev_b32 v24, 2, v24")
    a("v_mul_f32 v32, v32, v34")
    a(f"ds_write_b32 v24, v32 offset:{L_C}")
    a("s_waitcnt lgkmcnt(0)")
    stamp("cbar")
    a("s_branch L_exit")
    emit_far()

    RAW, TMP = 40, 3

    def ror8_pair(v):
        for i in range(2): a(f"v_add_f32_dpp v{v+i}, v{v+i}, v{v+i} row_ror:8 {DPPF}")

    CW, vO, vPW, vYS, vCA = VREG, VREG + 4, VREG + 5, VREG + 6, VREG + 7
    sOG, sYS, sPM = 60, 61, 62

    def t1_setup():
        a(f"s_lshr_b32 s{sT1}, s{sW}, 1"); a(f"s_lshl_b32 s{sT0}, s{sT1}, 5"); a(f"v_lshl_add_u32 v{vCA}, v{vSH}, 4, s{sT0}")
        a(f"s_and_b32 s{sT2}, s{sH}, 7"); a(f"s_lshl3_add_u32 s{sT3}, s{sT1}, s{sT2}")
        a(f"s_lshl_b32 s{sT3}, s{sT3}, 12"); a(f"s_and_b32 s{sT1}, s{sW}, 1"); a(f"s_lshl_b32 s{sT1}, s{sT1}, 8"); a(f"s_add_u32 s{sOG}, s{sT1}, s{sT3}")
        a(f"v_lshlrev_b32 v{vO}, 11, v{vSH}"); a(f"v_lshl_add_u32 v{vO}, v{vPJ}, 3, v{vO}")
        a(f"v_and_b32 v{vPW}, 0xfffffeff, v{vOW}")
        a(f"v_bfe_u32 v{vYS}, v0, 5, 1"); a(f"v_lshl_add_u32 v{vYS}, v{vYS}, {14 if h2 is None else 13}, v{vP8}")
        if h2 is not None: a(f"s_and_b32 s{sT3}, s{sT2}, 4"); a(f"s_add_u32 s{sT2}, s{sT2}, s{sT3}")
        a(f"s_lshl_b32 s{sT2}, s{sT2}, 11"); a(f"s_and_b32 s{sT3}, s{sROLE}, 7"); a(f"s_lshl_b32 s{sT3}, s{sT3}, 8")
        a(f"s_add_u32 s{sT2}, s{sT2}, s{sT3}"); a(f"s_add_u32 s{sYS}, s{sT2}, {MB2}")
        a(f"s_mov_b32 s{sPM}, 0x00ff00ff"); a(f"s_mov_b32 s{sPM+1}, 0xff00ff00")
        a(f"s_mov_b32 s{sE}, 2048")
    if e1:
        a("L_pv1:"); t1_setup()
        pv_tail(e1, tload1); a("s_branch L_pvdone")
    a("L_T1:")
    if not e1: t1_setup()
    RAW1 = 32
    oloads = [f"buffer_load_dwordx2 {q2(RAW1+2*t)}, v{vO}, {srd(rWS)}, s{sOG} offen offset:{t*SLOT} sc1" for t in range(4)]
    nlate = 8 - len(e1)
    a(f"ds_read_b128 {q4(CW)}, v{vCA} offset:{L_C}")
    vBE, vBM = VREG + 8, VREG + 9
    if vote & 2:
        a(f"ds_read_b32 v{vBE}, v{vZERO} offset:{L_BETA}")
        a(f"s_and_b32 s{sT0}, s{sH}, 7"); a(f"s_cselect_b32 s{sT0}, 0, 1"); a(f"v_mov_b32 v{vBM}, s{sT0}")
    if nlate: a("s_barrier")
    if pollfirst:
        for ld in oloads: a(ld)
    if "now" not in abl:
        for j in range(len(e1), 8): tload1(j)
    a(f"v_add_u32 v{vRO}, {L_P16 - L_OP}, v{vRO}")
    stamp("ready")
    if pollfirst:
        a(f"s_waitcnt vmcnt({nlate}) lgkmcnt(0)"); a("s_branch L_ocheck")
    else:
        a("s_waitcnt lgkmcnt(0)")
    def ocombine(r=RAW1):
        a(f"v_pk_mul_f32 {q2(RAW1)}, {q2(r)}, {q2(CW)} op_sel_hi:[1,0]")
        a(f"v_pk_fma_f32 {q2(RAW1)}, {q2(r+2)}, {q2(CW)}, {q2(RAW1)} op_sel:[0,1,0]")
        a(f"v_pk_fma_f32 {q2(RAW1)}, {q2(r+4)}, {q2(CW+2)}, {q2(RAW1)} op_sel_hi:[1,0,1]")
        a(f"v_pk_fma_f32 {q2(RAW1)}, {q2(r+6)}, {q2(CW+2)}, {q2(RAW1)} op_sel:[0,1,0]")
    if pipe1:
        poll2(lambda r: [f"buffer_load_dwordx2 {q2(r+2*t)}, v{vO}, {srd(rWS)}, s{sOG} offen offset:{t*SLOT} sc1" for t in range(4)], KREG + 16, KREG + 24, TMP, ocombine, pipe1)
    else:
        poll(oloads, [RAW1 + 2 * t + 1 for t in range(4)], TMP, check="L_ocheck" if pollfirst else None, after=ocombine, sleep=sl1)
    stamp("got")
    ror8_pair(RAW1)
    a(f"v_cvt_pk_bf16_f32 v{vPK}, v{RAW1}, v{RAW1+1}")
    build_a(0)
    for j in range(8):
        if j < 7: build_a(j + 1)
        if pollfirst and j >= len(e1): a(f"s_waitcnt vmcnt({7 - j})")
        mfma(j, w1reg(j), j == 0)
    a(f"s_mov_b64 exec, s[{sPM}:{sPM+1}]")
    a(f"s_cmp_lg_u32 s{sW}, 0")
    a(f"ds_write_b128 v{vPW}, {q4(vD)} offset:{L_P16}")
    a("s_mov_b64 exec, -1")
    a("s_waitcnt lgkmcnt(0)"); a("s_barrier")
    a("s_cbranch_scc1 L_exit")
    red16(vRO, 24)
    if not copies: a("s_mov_b32 exec_hi, 0")
    put_tag(25, 25)
    if vote & 2: a(f"v_bfi_b32 v24, v{vBM}, v{vBE}, v24")
    a(f"buffer_store_dwordx2 v[24:25], v{vYS}, {srd(rWS)}, s{sYS} offen sc1")
    stamp("pub")
    a("s_branch L_exit")

    late = t2ord == "late"
    downfirst = bool(e2) or t2ord == "dg"
    if late: RD, BD, BG, ACC = KREG, VREG, VREG, KREG + 32
    elif downfirst: RD, BD, BG, ACC = VREG, KREG + 32, VREG, KREG
    else: RD, BD, BG, ACC = KREG + 32, KREG, VREG, KREG + 32
    AG = 24
    XP, vHA, vGU, vY2, vSR, vHW, vFA, vFO, vFH, vPW2 = range(XREG + 8, XREG + 18)
    XF = 12

    def gu_loads():
        a(f"s_mov_b32 s{sE}, 2752")
        if "nof" in abl: a("s_mov_b64 exec, 1"); a(f"s_mov_b32 s{sE}, 0")
        for j in range(8): tload(j)
        if "nof" in abl: a("s_mov_b64 exec, -1")
        a(f"s_lshl_b32 s{sT1}, s{sW}, 7")
        a(f"v_lshlrev_b32 v{vHW}, 2, v{vPJ}")
        a(f"buffer_load_dword v{XP}, v{vHW}, {srd(rX)}, s{sT1} offen")
        a(f"v_add_u32 v{vHW}, s{sT1}, v{vHW}")

    sDN = 69
    sWD = 70 if dn else sW
    assert not (dn and e2)

    def down_setup():
        mksrd(rT, pWD, 0 if "nof" in abl else 1376 * 1024)
        a(f"v_lshl_add_u32 v23, v{vG2}, 11, v{vT}")
        a(f"s_lshl_b32 s{sT3}, s{sROLE}, 15"); a(f"s_lshl_b32 s{sDN}, s{sWD}, 8"); a(f"s_add_u32 s{sDN}, s{sT3}, s{sDN}")

    def down_load(k):
        jj, hi = k >> 1, k & 1
        a(f"buffer_load_dwordx4 {q4(RD+4*(jj+4*hi))}, v23, {srd(rT)}, s{sDN} offen offset:{hi*1024}")
        if hi and jj < 3: a(f"s_add_u32 s{sDN}, s{sDN}, 8192")

    def down_loads():
        a(f"s_cmp_ge_u32 s{sWD}, 4"); a("s_cbranch_scc1 L_nodown")
        down_setup()
        for k in range(8): down_load(k)
        a("L_nodown:")
    if e2:
        a("L_pv2:"); down_setup(); pv_tail(e2, down_load); a("s_branch L_pvdone")
    a("L_T2:")
    if dn: a(f"s_xor_b32 s{sWD}, s{sW}, 4")
    if late: gu_loads(); down_setup()
    elif e2: gu_loads()
    elif downfirst: down_loads(); gu_loads()
    else: gu_loads(); down_loads()
    a(f"v_lshlrev_b32 v{vHA}, 3, v{vPJ}"); a(f"v_lshl_add_u32 v{vHA}, v{vSH}, {13 if h2 is None else 14}, v{vHA}")
    a(f"s_lshl_b32 s{sT0}, s{sW}, 8"); a(f"s_add_u32 s{sT0}, s{sT0}, {MB2}")
    if copies:
        a(f"s_lshr_b32 s{sT1}, s{sXCC}, 2")
        if vote & 1:
            a(f"ds_read_b32 v30, v{vZERO} offset:{L_BETA}"); a("s_waitcnt lgkmcnt(0)")
            a(f"v_readfirstlane_b32 s{sT2}, v30"); a(f"s_xor_b32 s{sT1}, s{sT1}, s{sT2}"); a(f"s_and_b32 s{sT1}, s{sT1}, 1")
        elif h2: a(f"s_xor_b32 s{sT1}, s{sT1}, 1")
        a(f"s_lshl_b32 s{sT1}, s{sT1}, {14 if h2 is None else 13}"); a(f"s_add_u32 s{sT0}, s{sT0}, s{sT1}")
    a(f"s_add_u32 s{sT1}, s{sT0}, 4096")
    a(f"s_mul_i32 s{sT2}, s{sW}, {2*PROW}"); a(f"s_add_u32 s{sT2}, s{sT2}, {L_P16}")
    a(f"v_mul_u32_u24 v{vPW2}, {PROW}, v{vSH}"); a(f"v_add_u32 v{vPW2}, s{sT2}, v{vPW2}")
    a("v_bfe_u32 v30, v0, 1, 1"); a(f"v_lshl_add_u32 v{vPW2}, v30, 4, v{vPW2}")
    a("v_bfe_u32 v30, v0, 2, 1"); a(f"v_lshl_add_u32 v{vPW2}, v30, 3, v{vPW2}")
    a("v_and_b32 v30, 1, v0"); a(f"v_lshl_add_u32 v{vPW2}, v30, 2, v{vPW2}")
    a(f"v_and_b32 v30, 1, v{vG2}"); a("v_mul_u32_u24 v30, 320, v30"); a(f"v_add_u32 v{vPW2}, v30, v{vPW2}")
    a("v_bfe_u32 v30, v0, 2, 2"); a(f"v_mul_u32_u24 v{vGU}, {4*PROW}, v30"); a(f"v_lshl_add_u32 v{vGU}, v{vG2}, 6, v{vGU}")
    a(f"v_and_b32 v31, 3, v0"); a(f"v_lshl_add_u32 v{vGU}, v31, 4, v{vGU}")
    a(f"v_mul_u32_u24 v{vSR}, {PROW // 16}, v{vT}"); a(f"v_add_u32 v{vSR}, {L_P16}, v{vSR}")
    a(f"v_lshlrev_b32 v{vY2}, 1, v{vT}"); a(f"v_lshl_add_u32 v{vY2}, v{vG2}, 3, v{vY2}")
    M3 = MB3 if h3 is None else MB3H + (0 if vote & 2 else h3 * 8192)
    R16 = 16 * 2048 * (1 if h3 is None else 2)
    if h3 is None: a(f"s_lshl_b32 s{sT2}, s{sROLE}, 11")
    else: a(f"s_and_b32 s{sT2}, s{sROLE}, -4"); a(f"s_add_u32 s{sT2}, s{sT2}, s{sROLE}"); a(f"s_lshl_b32 s{sT2}, s{sT2}, 11")
    a(f"s_lshl_b32 s{sT3}, s{sWD}, 9"); a(f"s_add_u32 s{sT2}, s{sT2}, s{sT3}"); a(f"s_add_u32 s{sT2}, s{sT2}, {M3}")
    sFU = 68
    if fpriv:
        a(f"s_lshl_b32 s{sFU}, s{sROLE}, 1"); a(f"s_add_u32 s{sFU}, s{sFU}, s{sWD}"); a(f"s_cmp_lt_u32 s{sWD}, 2"); a(f"s_cselect_b32 s{sFU}, s{sFU}, 32")
    else:
        a(f"s_cmp_eq_u32 s{sW}, 0"); a(f"s_cselect_b32 s{sFU}, s{sROLE}, 32")
    a(f"s_min_u32 s{sFU}, s{sFU}, 32")
    a(f"v_lshrrev_b32 v{vFA}, 2, v{vL}")
    if h3 is not None: a(f"v_lshl_add_u32 v{vFA}, v{vG2}, 2, v{vFA}")
    a(f"v_lshlrev_b32 v{vFA}, 11, v{vFA}"); a(f"v_lshl_add_u32 v{vFA}, v31, 4, v{vFA}")
    a(f"v_lshl_add_u32 v{vFO}, v31, 2, v{vG2}"); a(f"s_lshl_b32 s{sT3}, s{sFU}, 4"); a(f"v_add_lshl_u32 v{vFO}, s{sT3}, v{vFO}, 1")
    sF0, sLO, sHI, sNL = 60, 64, 65, 66
    a(f"s_lshl_b32 s{sF0}, s{sFU}, 6"); a(f"s_add_u32 s{sF0}, s{sF0}, {M3}"); a(f"s_add_u32 s{sF0+1}, s{sF0}, {R16}"); a(f"s_add_u32 s{sF0+2}, s{sF0}, {2*R16}")
    mksrd(rO, pOUT, 1024)
    a(f"s_mov_b32 s{sLO}, 0x05040100"); a(f"s_mov_b32 s{sHI}, 0x07060302")
    a(f"s_mov_b32 s{sNL}, {LOG2E ^ 0x80000000:#x}"); a(f"s_mov_b32 s{sNL+1}, {LOG2E ^ 0x80000000:#x}")
    a(f"s_mov_b32 s{sE}, 0xffff00ff"); a(f"s_mov_b32 s{sE+1}, 0x0000ff00")
    vTP, vT0, vT1 = 4, 5, 6
    a(f"v_lshlrev_b32 v{vTP}, 3, v{vG2}"); a(f"v_bfe_u32 v{vTP}, s{sEP}, v{vTP}, 8")
    a(f"v_and_b32 v{vT0}, 1, v0"); a(f"v_lshlrev_b32 v{vT0}, 4, v{vT0}"); a(f"v_add_u32 v{vT1}, 8, v{vT0}")
    a(f"v_bfe_u32 v{vT0}, s{sEP}, v{vT0}, 8"); a(f"v_bfe_u32 v{vT1}, s{sEP}, v{vT1}, 8")
    for r in range(4): a(f"v_mov_b32 v{vA+r}, 0x3f803f80")
    for r in range(16): a(f"v_mov_b32 v{AG+r}, 0")

    def transpose(dst, src):
        for q in range(4):
            for r in range(4):
                a(f"v_perm_b32 v{dst+8*q+r}, v{src+4*(2*r+1)+q}, v{src+4*(2*r)+q}, s{sLO}")
                a(f"v_perm_b32 v{dst+8*q+4+r}, v{src+4*(2*r+1)+q}, v{src+4*(2*r)+q}, s{sHI}")
    def mkh(r): return [f"buffer_load_dwordx2 {q2(r+2*t)}, v{vHA}, {srd(rWS)}, s{sT1 if t >= 2 else sT0} offen offset:{(t&1)*2048} sc1" for t in range(4)]
    hloads = mkh(RAW)
    HS = 14

    def hcombine(r=RAW):
        if vote & 2: a(f"v_readfirstlane_b32 s{sT3}, v{r}"); a(f"v_and_b32 v{r}, -2, v{r}")
        pkadd(r, r, r + 2); pkadd(r + 4, r + 4, r + 6); pkadd(HS, r, r + 4)
    if late:
        a(f"s_cmp_ge_u32 s{sWD}, 4")
        a("s_waitcnt vmcnt(0)")
        for ld in hloads: a(ld)
        transpose(BG, TREG)
        unpack(XF, XF + 1, XP)
        stamp("ready")
        a("s_cbranch_scc1 L_hwait")
        if prio: a(f"s_setprio {prio}")
        for k in range(8): down_load(k)
        a("s_waitcnt vmcnt(8)"); a("s_branch L_hcheck")
        poll(hloads, [RAW + 2 * t + 1 for t in range(4)], TMP, entry="L_hwait", check="L_hcheck", after=hcombine)
    else:
        a(f"s_cmp_ge_u32 s{sWD}, 4"); a("s_cbranch_scc1 L_tr4")
        if downfirst:
            a("s_waitcnt vmcnt(9)")
            transpose(BD, RD)
        else:
            a("s_waitcnt vmcnt(8)")
            transpose(BG, TREG)
            a("s_waitcnt vmcnt(0)")
            if early_poll:
                for ld in hloads: a(ld)
            transpose(BD, RD)
            a("s_branch L_trdone")
        a("L_tr4:")
        a("s_waitcnt vmcnt(0)")
        if early_poll:
            for ld in hloads: a(ld)
        transpose(BG, TREG)
        a("L_trdone:")
        unpack(XF, XF + 1, XP)
        stamp("ready")
        if pipe2:
            poll2(mkh, RAW, XREG, TMP, hcombine, pipe2, entry="L_hwait")
        elif mask2:
            a("s_branch L_hwait")
            a("L_hagain:")
            for t in range(4):
                a(f"v_cmp_ne_u32_sdwa vcc, v{RAW+2*t+1}, v{vZERO} src0_sel:BYTE_0 src1_sel:DWORD")
                a(f"v_xor_b32 v{RAW+2*t+1}, s{sTG8}, v{RAW+2*t+1}")
                a(f"s_cbranch_vccz L_hskip{t}"); a(hloads[t]); a(f"L_hskip{t}:")
            spend()
            a("L_hwait:"); a("s_waitcnt vmcnt(0)")
            for t in range(4): a(f"v_xor_b32 v{RAW+2*t+1}, s{sTG8}, v{RAW+2*t+1}")
            vor(TMP, [RAW + 2 * t + 1 for t in range(4)])
            a(f"v_cmp_ne_u32_sdwa vcc, v{TMP}, v{vZERO} src0_sel:BYTE_0 src1_sel:DWORD")
            if vote & 2: a(f"v_readfirstlane_b32 s{sT3}, v{RAW}"); a(f"v_and_b32 v{vD}, -2, v{RAW}"); a(f"v_mov_b32 v{vD+1}, v{RAW+1}")
            pkadd(HS, RAW + 4, RAW + 6); pkadd(vD, vD if vote & 2 else RAW, RAW + 2); pkadd(HS, vD, HS)
            a("s_cbranch_vccnz L_hagain")
        else:
            if early_poll: a("s_branch L_hwait")
            poll(hloads, [RAW + 2 * t + 1 for t in range(4)], TMP, entry="L_hwait" if early_poll else None, after=hcombine, sleep=sl2)
    stamp("got")
    a(f"s_cmp_ge_u32 s{sWD}, 4")
    ror8_pair(HS)
    if not lean & 1:
        a(f"v_cvt_pk_bf16_f32 v{HS}, v{HS}, v{HS+1}")
        unpack(HS, HS + 1, HS)
    pkadd(HS, HS, XF)
    a(f"v_cvt_pk_bf16_f32 v{vPK}, v{HS}, v{HS+1}")
    a(f"ds_write_b32 v{vHW}, v{vPK} offset:{L_H}")
    for r in range(4): a(f"v_mov_b32_dpp v{vA+r}, v{vPK} row_newbcast:{r} row_mask:0xf bank_mask:0x1")
    for r in range(4): a(f"v_mov_b32_dpp v{vA+r}, v{vPK} row_newbcast:{4+r} row_mask:0xf bank_mask:0x4")
    mm(vD, vA, vA, True)
    for i in range(8): mm(ACC + 4 * i, vA, BG + 4 * i, True)
    a(f"s_mov_b64 exec, s[{sE}:{sE+1}]")
    a(f"ds_write_b32 v{vPW2}, v{vD} offset:256")
    for k in range(4): a(f"ds_write2_b32 v{vPW2}, v{ACC+8*k}, v{ACC+8*k+4} offset0:{16*k} offset1:{16*k+8}")
    a("s_mov_b64 exec, -1")
    if late:
        a("s_cbranch_scc1 L_notr")
        a("s_waitcnt vmcnt(0)")
        transpose(BD, RD)
        a("L_notr:")
        a("s_waitcnt lgkmcnt(0)"); a("s_barrier")
        a("s_cbranch_scc1 L_epoch")
        GU, CS, ST = ACC, ACC + 16, vA
    else:
        a("s_waitcnt lgkmcnt(0)"); a("s_barrier")
        a("s_cbranch_scc1 L_epoch")
        GU, CS, ST = BG, BG + 16, vA
    a(f"ds_read2_b32 {q2(ST)}, v{vSR} offset0:64 offset1:66")
    for t in range(4): a(f"ds_read_b128 {q4(CS+4*t)}, v{vGU} offset:{L_P16 + PROW*t + 320}")
    for t in range(4): a(f"ds_read_b128 {q4(GU+4*t)}, v{vGU} offset:{L_P16 + PROW*t}")
    a(f"ds_read_u16 v{vFH}, v{vFO} offset:{L_H}")
    if vote & 2:
        a(f"s_and_b32 s{sT3}, s{sT3}, 1"); a(f"s_lshl_b32 s{sT3}, s{sT3}, 13"); a(f"s_add_u32 s{sT2}, s{sT2}, s{sT3}")
        for t in range(3): a(f"s_add_u32 s{sF0+t}, s{sF0+t}, s{sT3}")
    a("s_waitcnt lgkmcnt(9)")
    steps = ("quad_perm:[1,0,3,2]", "quad_perm:[2,3,0,1]", "row_half_mirror", "row_mirror")

    def st_step(k):
        for i in range(2): a(f"v_add_f32_dpp v{ST+i}, v{ST+i}, v{ST+i} {steps[k]} {DPPF}")
    st_step(0); a("s_waitcnt lgkmcnt(7)"); pkadd(CS, CS, CS + 4)
    st_step(1); pkadd(CS + 2, CS + 2, CS + 6); a("s_waitcnt lgkmcnt(5)")
    st_step(2); pkadd(CS + 8, CS + 8, CS + 12)
    st_step(3); pkadd(CS + 10, CS + 10, CS + 14)
    MU, VAR = ST + 2, ST
    a(f"v_mul_f32 v{MU}, 0x3b000000, v{ST+1}"); a(f"v_mul_f32 v{VAR}, 0x3b000000, v{ST}")
    pkadd(CS, CS, CS + 8); pkadd(CS + 2, CS + 2, CS + 10)
    a(f"v_fma_f32 v{VAR}, -v{MU}, v{MU}, v{VAR}"); a(f"v_max_f32 v{VAR}, 0, v{VAR}")
    if not lean & 2: a(f"v_cvt_pk_bf16_f32 v{VAR}, v{VAR}, v{MU}")
    a("s_waitcnt lgkmcnt(3)")
    pkadd(GU, GU, GU + 4); pkadd(GU + 2, GU + 2, GU + 6)
    if not lean & 2: unpack(VAR, MU, VAR)
    a(f"v_add_f32 v{VAR}, {EPS:#x}, v{VAR}")
    if lean & 2: a(f"v_rsq_f32 v{VAR}, v{VAR}")
    else: bf16r(VAR, VAR); a(f"v_sqrt_f32 v{VAR}, v{VAR}")
    a("s_waitcnt lgkmcnt(1)")
    pkadd(GU + 8, GU + 8, GU + 12); pkadd(GU + 10, GU + 10, GU + 14)
    for i in (0, 2): a(f"v_pk_fma_f32 {q2(GU+i)}, {q2(CS+i)}, {q2(MU)}, {q2(GU+i)} op_sel_hi:[1,0,1] neg_lo:[0,1,0] neg_hi:[0,1,0]")
    pkadd(GU, GU, GU + 8); pkadd(GU + 2, GU + 2, GU + 10)
    if not lean & 2: bf16r(VAR, VAR)
    for i in range(4): a(f"v_add_f32_dpp v{GU+i}, v{GU+i}, v{GU+i} row_ror:4 {DPPF}")
    if not lean & 2: a(f"v_rcp_f32 v{VAR}, v{VAR}")
    for i in range(4): a(f"v_add_f32_dpp v{GU+i}, v{GU+i}, v{GU+i} row_ror:8 {DPPF}")
    for i in (0, 2): a(f"v_pk_mul_f32 {q2(GU+i)}, {q2(GU+i)}, {q2(VAR)} op_sel_hi:[1,0]")
    if lean & 4:
        a(f"v_pk_mul_f32 {q2(GU+4)}, {q2(GU)}, s[{sNL}:{sNL+1}]")
        for i in range(2): a(f"v_exp_f32 v{GU+4+i}, v{GU+4+i}")
        a(f"v_pk_mul_f32 {q2(GU)}, {q2(GU)}, {q2(GU+2)}")
        a(f"v_pk_add_f32 {q2(GU+4)}, {q2(GU+4)}, 1.0 op_sel_hi:[1,0]")
        for i in range(2): a(f"v_rcp_f32 v{GU+4+i}, v{GU+4+i}")
        a(f"v_pk_mul_f32 {q2(GU)}, {q2(GU)}, {q2(GU+4)}")
    else:
        a(f"v_cvt_pk_bf16_f32 v{GU}, v{GU}, v{GU+1}")
        unpack(GU, GU + 1, GU)
        a(f"v_pk_mul_f32 {q2(GU+4)}, {q2(GU)}, s[{sNL}:{sNL+1}]")
        for i in range(2): a(f"v_exp_f32 v{GU+4+i}, v{GU+4+i}")
        a(f"v_cvt_pk_bf16_f32 v{GU+2}, v{GU+2}, v{GU+3}")
        a(f"v_pk_add_f32 {q2(GU+4)}, {q2(GU+4)}, 1.0 op_sel_hi:[1,0]")
        for i in range(2): a(f"v_rcp_f32 v{GU+4+i}, v{GU+4+i}")
        unpack(GU + 2, GU + 3, GU + 2)
        a(f"v_pk_mul_f32 {q2(GU)}, {q2(GU)}, {q2(GU+4)}")
        a(f"v_cvt_pk_bf16_f32 v{GU}, v{GU}, v{GU+1}")
        unpack(GU, GU + 1, GU)
        a(f"v_pk_mul_f32 {q2(GU)}, {q2(GU)}, {q2(GU+2)}")
    a(f"v_cvt_pk_bf16_f32 v{vPK}, v{GU}, v{GU+1}")
    DE, DO = vD, vA + 4

    def ag(G, rs=range(4)):
        for r in rs: a(f"v_mov_b32_dpp v{AG+4*G+r}, v{vPK} row_newbcast:{r} row_mask:0xf bank_mask:{1 << G:#x}")
    ag(0); ag(1, (0, 1))
    for G in range(4):
        mm(DE, AG + 4 * G, BD + 8 * G, G == 0)
        if G < 3: ag(G + 1, (2, 3))
        mm(DO, AG + 4 * G, BD + 8 * G + 4, G == 0)
        if G < 2: ag(G + 2, (0, 1))
    FR = KREG if late else ACC
    a(f"s_cmp_ge_u32 s{sFU}, 32")
    put_tag(DE + 1, DO, f"v{vTP}")
    a(f"buffer_store_dwordx2 {q2(DE)}, v{vY2}, {srd(rWS)}, s{sT2} offen sc1")
    stamp("pub")
    a("s_cbranch_scc1 L_exit")
    a(f"v_mov_b32 v{FR+8}, 0"); a(f"v_mov_b32 v{FR+10}, 0")
    a("s_waitcnt lgkmcnt(0)")
    a(f"v_lshlrev_b32 v{vFH}, 16, v{vFH}")
    if fwait: a("s_waitcnt vmcnt(0)")
    def fcombine():
        for i in (0, 2): pkadd(FR + i, FR + i, FR + 4 + i)
        for i in (0, 2): pkadd(FR + i, FR + i, FR + 8 + i)
    if fdelay and not floop: a(f"s_sleep {fdelay}")
    poll(([f"s_sleep {fdelay}"] if fdelay and floop else []) + [f"buffer_load_dwordx4 {q4(FR)}, v{vFA}, {srd(rWS)}, s{sF0} offen {fpol}",
          f"buffer_load_dwordx4 {q4(FR+4)}, v{vFA}, {srd(rWS)}, s{sF0+1} offen {fpol}",
          f"v_mov_b32 v{FR+9}, v{vT0}", f"v_mov_b32 v{FR+11}, v{vT1}",
          "s_mov_b32 exec_hi, 0xfff",
          f"buffer_load_dwordx4 {q4(FR+8)}, v{vFA}, {srd(rWS)}, s{sF0+2} offen {fpol}",
          "s_mov_b32 exec_hi, -1"], [FR + 2 * t + 1 for t in range(6)], TMP, tags=[f"v{vT0}", f"v{vT1}"] * 3, after=fcombine)
    stamp("fgot")
    a(f"v_permlane32_swap_b32 v{FR}, v{FR+2}"); a(f"v_permlane32_swap_b32 v{FR+1}, v{FR+3}")
    pkadd(FR, FR, FR + 2)
    a(f"v_permlane16_swap_b32 v{FR}, v{FR+1}")
    a(f"v_add_f32 v{FR}, v{FR}, v{FR+1}")
    for m in ("row_ror:4", "row_ror:8"): a(f"v_add_f32_dpp v{FR}, v{FR}, v{FR} {m} {DPPF}")
    a("s_mov_b32 exec_lo, 0x000f000f"); a("s_mov_b32 exec_hi, 0x000f000f")
    if not lean & 8: bf16r(FR, FR)
    a(f"v_add_f32 v{FR}, v{FR}, v{vFH}")
    a(f"v_cvt_pk_bf16_f32 v{FR}, v{FR}, v{FR}")
    a(f"buffer_store_short v{FR}, v{vFO}, {srd(rO)}, 0 offen {outpol}")
    if amp:
        a(f"s_memrealtime s[{sE}:{sE+1}]"); a("s_waitcnt lgkmcnt(0)")
        a(f"s_sub_u32 s{sT0}, s{sST+2}, s{sST}")
        if len(amp) > 2 and amp[2] == "inv": a(f"s_sub_u32 s{sT0}, 2500, s{sT0}")
        if len(amp) > 2 and amp[2] == "fix": a(f"s_mov_b32 s{sT0}, 100")
        if len(amp) > 3 and amp[2] == "lat": lat_probe()
        elif len(amp) > 3: diag_stat()
        a(f"s_mul_i32 s{sT0}, s{sT0}, {amp[1]}")
        a(f"s_min_u32 s{sT0}, s{sT0}, 200000"); a(f"s_mov_b32 s{sT1}, s{sE}")
        a("L_amp:"); a(f"s_memrealtime s[{sE}:{sE+1}]"); a("s_waitcnt lgkmcnt(0)")
        a(f"s_sub_u32 s{sT2}, s{sE}, s{sT1}"); a(f"s_cmp_lt_u32 s{sT2}, s{sT0}"); a("s_cbranch_scc1 L_amp")
    a("L_exit:")
    if stamps:
        a("s_mov_b64 exec, -1")
        stamp("exit")
        a(f"v_writelane_b32 v{vSTAMP}, s{sROLE}, 14")
        a(f"s_mul_i32 s{sT0}, s2, {NWAVE}"); a(f"s_add_u32 s{sT0}, s{sT0}, s{sW}"); a(f"s_add_u32 s{sT0}, s{sT0}, 1")
        a(f"s_lshl_b32 s{sT0}, s{sT0}, {8 if trace else 6}"); a(f"s_add_u32 s{sT0}, s{sT0}, {STAMP}")
        a(f"v_lshlrev_b32 v{vSTAMP+1}, 2, v{vL}")
        if not trace: a("s_mov_b64 exec, 0xffff")
        a(f"buffer_store_dword v{vSTAMP}, v{vSTAMP+1}, {srd(rWS)}, s{sT0} offen")
    a("L_end:")
    a("s_endpgm")
    a("L_epoch:")
    a(f"s_lshl_b32 s{sT0}, s{sROLE}, 3"); a(f"s_add_u32 s{sT0}, s{sT0}, s{sWD}"); a(f"s_cmp_lg_u32 s{sT0}, 4"); a("s_cbranch_scc1 L_exit")
    a(f"s_mov_b32 s{sT0}, {EPOCH}"); a(f"v_mov_b32 v3, s{sEP}"); a("s_mov_b64 exec, 1")
    a(f"buffer_store_dword v3, off, {srd(rWS)}, s{sT0} sc1")
    a("L_last:")
    a("s_branch L_exit")
    assert not far

    out = HEADER + f"; @launch grid=(256,1,1) block=({64*NWAVE},1,1) lds={L_END}\n"
    out += f'.amdgcn_target "amdgcn-amd-amdhsa--gfx950"\n.text\n.globl {KNAME}\n.p2align 8\n.type {KNAME},@function\n'
    out += a.render()
    out += f'''.section .rodata,"a"
.p2align 6
.amdhsa_kernel {KNAME}
  .amdhsa_next_free_vgpr {NV}
  .amdhsa_next_free_sgpr 97
  .amdhsa_accum_offset {NV}
  .amdhsa_group_segment_fixed_size 0
  .amdhsa_kernarg_size 96
  .amdhsa_user_sgpr_count 2
  .amdhsa_user_sgpr_kernarg_segment_ptr 1
  .amdhsa_system_sgpr_workgroup_id_x 1
  .amdhsa_float_denorm_mode_32 3
.end_amdhsa_kernel
'''
    return out


if __name__ == "__main__":
    kw = {}
    for arg in sys.argv[2:]:
        k, v = arg.split("=")
        kw[k] = eval(v)
    open(sys.argv[1], "w").write(gen(**kw))
```

```python
import sys
from asmlib import Asm

KNAME = "sequential_preLN__sliding_block_cached__swiglu_ffn__decode_kernel"
HEADER = open("sequential_preLN__sliding_block_cached__swiglu_ffn__decode.s.ref").read().split("; Override launch")[0]

LOG2E = 0x3FB8AA3B
SCALE = 0x3DB504F3
EPS = 0x3727C5AC

SLOT = 512
MB1 = 0
MB2 = 256 * SLOT
MB3 = MB2 + 2 * 8 * 2048
MBQ = MB2 + 256 * 512
MBM = MBQ + 256 * 1024
EPOCH = MBM + 256 * 128
MB3H = 0xa0000
PROBE = 0x1c0000
STAMP = 1 << 20
WS_SIZE = 2 << 20
PROW = 608
L_BETA = 356
L_QB, L_ST, L_F, L_MODE, L_C, L_H, L_OP, L_P16 = 0, 256, 320, 352, 384, 512, 2048, 2048 + 8192
L_END = L_P16 + 16 * PROW

NT2 = 43
NWAVE = 9
DPPF = "row_mask:0xf bank_mask:0xf"
STAMPS = ["start", "args", "x", "qpub", "qgot", "p", "cbar", "obar", "ready", "got", "pub", "fgot", "exit"]

sH, sSP, sW, sTAG, sBUD = 3, 4, 5, 6, 7
pX, pK, pV, pWQ, pWO, pWG, pWU, pWD, pOUT, pDBG, pWS = 8, 10, 12, 14, 16, 20, 22, 24, 26, 28, 30
sMW, sEP = 18, 19
rK, rV, rQ, rX, rWS, rO, rT = 32, 36, 40, 44, 48, 52, 56
sOFF = 60
sT0, sT1, sT2, sT3 = 76, 77, 78, 79
sROLE, sIDX = 80, 81
sE = 82
sXCC, sU = 84, 85
sST = 86
sUA, sMEM = 90, 91
sPFM = 92
sTG8, sMODE = 94, 95
sNA = 96
vL, vKV = 1, 2
vSEL, vA, vD, vPK, vB = 4, 8, 16, 20, 21
vT = 22
KREG, VREG, XREG = 48, 112, 144
TREG = KREG
vFF, vZERO = 164, 165
vSTAMP = 166
NV = 168


def q4(r): return f"v[{r}:{r+3}]"
def q2(r): return f"v[{r}:{r+1}]"
def srd(r): return f"s[{r}:{r+3}]"


def gen(W=4, stamps=False, budget=1 << 18, gpos=15, cpos=11, local=True, amp=None, only=None, abl=(), trace=False,
        pat="jjjsssj", hprio=1, hsleep=2, pfcode=True, warm=True,
        pfs=4, pfat=(12, 12, 13, 14), pford=(0, 2, 1, 3), e1=(14, 15, 15, 15), e2=(), stages="ABdCD", t2ord="gd",
        un=(6, 6, 6, 5, 5, 5, 5, 5), h2=0, h3=0, fdelay=3, early_poll=True, psleep=0, burst=2, vote=3, nprobe=1, floop=True, pollfirst=False, prio=0, dn=0, lean=13, konly=True, nolo=False, latebr=True, pipe1=0, pipe2=0, mode_early=True, sl1=0, sl2=0, mask2=False):
    nwo = len(pfat)
    assert W == 4 and sum(un) == NT2 and max(un) <= 7 and len(e2) in (0, 8)
    assert not pford or (pford[0] == 0 and sorted(pford) == list(range(nwo)))
    k0, bar0, copies, fpriv, fwait, fpol, outpol, bare = 4, -1, True, True, True, "sc1", "", True
    a = Asm()
    far = []

    def stamp(name):
        i = STAMPS.index(name)
        if stamps:
            if only and name not in only and name not in ("start", "exit"): return
            a(f"s_memrealtime s[{sST}:{sST+1}]"); a("s_waitcnt lgkmcnt(0)"); a(f"v_writelane_b32 v{vSTAMP}, s{sST}, {i}")
        elif amp and name == "start": a(f"s_memrealtime s[{sST}:{sST+1}]")
        elif amp and name == amp[0]: a(f"s_memrealtime s[{sST+2}:{sST+3}]\ns_waitcnt lgkmcnt(0)")

    def diag_store():
        only_wave(2, "L_nodiag")
        a(f"s_lshl_b32 s{sT1}, s2, 2"); a(f"s_add_u32 s{sT1}, s{sT1}, {STAMP}"); a(f"v_mov_b32 v46, s{sST + (0 if amp[0] == 'start' else 2)}"); a("s_mov_b64 exec, 1")
        a(f"buffer_store_dword v46, off, {srd(rWS)}, s{sT1} sc1"); a("s_mov_b64 exec, -1")
        a("L_nodiag:")

    def diag_stat():
        a(f"s_mov_b32 s{sT0}, 0"); a(f"s_cmp_lg_u32 s{sROLE}, 0"); a("s_cbranch_scc1 L_dodelay")
        a("s_mov_b64 exec, -1"); a(f"s_mov_b32 s{sT1}, {STAMP}"); a(f"v_lshlrev_b32 v24, 2, v{vL}")
        for t in range(4): a(f"buffer_load_dword v{28+t}, v24, {srd(rWS)}, s{sT1} offen offset:{256*t} sc1")
        a("s_waitcnt vmcnt(0)")
        for t in range(4): a(f"v_subrev_u32 v{28+t}, s{sST}, v{28+t}"); a(f"v_add_u32 v{28+t}, 0x10000, v{28+t}")
        a("v_min3_u32 v32, v28, v29, v30"); a("v_min_u32 v32, v32, v31"); wave_red("v_min_u32", 32, sT2)
        for t in range(4): a(f"v_subrev_u32 v{28+t}, s{sT2}, v{28+t}")
        kind, par = amp[2], amp[3]
        if kind == "maxabs":
            a("v_max3_u32 v32, v28, v29, v30"); a("v_max_u32 v32, v32, v31"); wave_red("v_max_u32", 32, sT0)
            a(f"s_add_u32 s{sT0}, s{sT0}, s{sT2}"); a(f"s_sub_u32 s{sT0}, s{sT0}, 0x10000")
        elif kind == "meanabs":
            a("v_add3_u32 v32, v28, v29, v30"); a("v_add_u32 v32, v32, v31"); wave_red("v_add_u32", 32, sT0); a(f"s_lshr_b32 s{sT0}, s{sT0}, 8")
            a(f"s_add_u32 s{sT0}, s{sT0}, s{sT2}"); a(f"s_sub_u32 s{sT0}, s{sT0}, 0x10000")
        elif kind == "range":
            a("v_max3_u32 v32, v28, v29, v30"); a("v_max_u32 v32, v32, v31"); wave_red("v_max_u32", 32, sT0)
        elif kind == "mean":
            a("v_add3_u32 v32, v28, v29, v30"); a("v_add_u32 v32, v32, v31"); wave_red("v_add_u32", 32, sT0); a(f"s_lshr_b32 s{sT0}, s{sT0}, 8")
        elif kind == "count":
            for t in range(4):
                a(f"v_cmp_lt_u32 vcc, {par}, v{28+t}"); a(f"s_bcnt1_i32_b64 s{sT1}, vcc"); a(f"s_add_u32 s{sT0}, s{sT0}, s{sT1}")
        elif kind == "groups":
            a("v_max3_u32 v32, v28, v29, v30"); a("v_max_u32 v32, v32, v31"); a(f"v_cmp_lt_u32 vcc, {par}, v32")
            a(f"s_or_b32 s{sT1}, vcc_lo, vcc_hi"); a(f"s_lshr_b32 s{sT2}, s{sT1}, 16"); a(f"s_or_b32 s{sT1}, s{sT1}, s{sT2}")
            a(f"s_lshr_b32 s{sT2}, s{sT1}, 8"); a(f"s_or_b32 s{sT1}, s{sT1}, s{sT2}"); a(f"s_and_b32 s{sT1}, s{sT1}, 0xff"); a(f"s_bcnt1_i32_b32 s{sT0}, s{sT1}")
        elif kind == "digits":
            a(f"s_mov_b32 s{sT0}, 0")
            for g in range(par, par + 3):
                a(f"v_readlane_b32 s{sT1}, v28, {g & 7}"); a(f"s_add_u32 s{sT1}, s{sT1}, 5"); a(f"s_mul_i32 s{sT1}, s{sT1}, 6554"); a(f"s_lshr_b32 s{sT1}, s{sT1}, 16")
                a(f"s_min_u32 s{sT1}, s{sT1}, 15"); a(f"s_lshl4_add_u32 s{sT0}, s{sT0}, s{sT1}")
        elif kind == "argmax":
            a("v_and_b32 v33, 7, v0"); a("v_lshl_add_u32 v32, v28, 3, v33"); wave_red("v_max_u32", 32, sT0); a(f"s_and_b32 s{sT0}, s{sT0}, 7")
        elif kind == "quarter":
            wave_red("v_add_u32", 28 + par, sT0); a(f"s_lshr_b32 s{sT0}, s{sT0}, 6")
        a("L_dodelay:")

    def lat_probe():
        p, off, stride, op, lanes, inv = amp[3]
        a(f"s_mov_b32 s{sT0}, 0"); a(f"s_cmp_lg_u32 s68, 0"); a("s_cbranch_scc1 L_dodelay")
        a("s_mov_b64 exec, -1")
        a(f"v_lshlrev_b32 v24, 7, v{vL}"); a(f"v_add_u32 v24, {off}, v24"); a("v_mov_b32 v25, 0")
        if lanes == 1: a("s_mov_b64 exec, 1")
        a("s_sleep 60"); a("s_waitcnt vmcnt(0)")
        a(f"s_memrealtime s[{sST}:{sST+1}]"); a(f"s_mov_b32 s{sT1}, 32")
        a("L_lat:")
        a(op.replace("P", f"s[{p}:{p+1}]")); a("s_waitcnt vmcnt(0)"); a(f"v_add_u32 v24, {stride}, v24")
        a(f"s_sub_u32 s{sT1}, s{sT1}, 1"); a(f"s_cmp_lg_u32 s{sT1}, 0"); a("s_cbranch_scc1 L_lat")
        a(f"s_memrealtime s[{sST+2}:{sST+3}]"); a("s_waitcnt lgkmcnt(0)")
        a(f"s_sub_u32 s{sT0}, s{sST+2}, s{sST}")
        if inv: a(f"s_sub_u32 s{sT0}, 4000, s{sT0}")
        a("L_dodelay:")

    def tr(i):
        if trace:
            a(f"s_memrealtime s[{sST}:{sST+1}]"); a("s_waitcnt lgkmcnt(0)"); a(f"v_writelane_b32 v{vSTAMP}, s{sST}, {16+i}")

    def mksrd(r, p, size, add=None):
        if add is None:
            a(f"s_mov_b32 s{r}, s{p}"); a(f"s_mov_b32 s{r+1}, s{p+1}")
        else:
            a(f"s_add_u32 s{r}, s{p}, s{add}"); a(f"s_addc_u32 s{r+1}, s{p+1}, 0")
        a(f"s_mov_b32 s{r+2}, {size}"); a(f"s_mov_b32 s{r+3}, 0x20000")

    def bf16r(d, s):
        a(f"v_cvt_pk_bf16_f32 v{d}, v{s}, v{s}"); a(f"v_lshlrev_b32 v{d}, 16, v{d}")

    def unpack(lo, hi, s):
        a(f"v_and_b32 v{hi}, 0xffff0000, v{s}"); a(f"v_lshlrev_b32 v{lo}, 16, v{s}")

    def pkadd(d, x, y): a(f"v_pk_add_f32 {q2(d)}, {q2(x)}, {q2(y)}")

    def wave_red(op, v, s):
        for m in ("quad_perm:[1,0,3,2]", "quad_perm:[2,3,0,1]", "row_half_mirror", "row_mirror"):
            a(f"{op}_dpp v{v}, v{v}, v{v} {m} {DPPF}")
        a(f"{op}_dpp v{v}, v{v}, v{v} row_bcast:15 row_mask:0xa bank_mask:0xf")
        a(f"{op}_dpp v{v}, v{v}, v{v} row_bcast:31 row_mask:0xc bank_mask:0xf")
        a(f"v_readlane_b32 s{s}, v{v}, 63")

    def red8(op, *vs):
        for m in ("quad_perm:[1,0,3,2]", "quad_perm:[2,3,0,1]", "row_half_mirror"):
            for v in vs: a(f"{op}_dpp v{v}, v{v}, v{v} {m} {DPPF}")

    def build_a(j):
        A = vA + 4 * (j & 1)
        a(f"v_mov_b32_dpp v{vB}, v{vPK} row_newbcast:{j} {DPPF}")
        for r in range(4):
            a(f"v_perm_b32 v{A+r}, v{vB}, v{vB}, v{vSEL+r}")

    def mm(d, x, y, first):
        a(f"v_mfma_f32_16x16x32_bf16 {q4(d)}, {q4(x)}, {q4(y)}, {'0' if first else q4(d)}")

    def mfma(j, b, first): mm(vD, vA + 4 * (j & 1), b, first)

    def gemv(n, breg):
        build_a(0)
        for j in range(n):
            if j + 1 < n: build_a(j + 1)
            mfma(j, breg + 4 * j, j == 0)

    def red16(vaddr, v, mid=None, even=False):
        if even:
            for t in range(2): a(f"ds_read2st64_b64 {q4(v+4*t)}, v{vaddr} offset0:{4*t} offset1:{4*t+2}")
            if mid: mid()
            a("s_waitcnt lgkmcnt(1)"); pkadd(v, v, v + 2)
            a("s_waitcnt lgkmcnt(0)"); pkadd(v + 4, v + 4, v + 6)
            pkadd(v + 2, v, v + 4); pkadd(v, v, v + 4)
            a(f"v_permlane32_swap_b32 v{v}, v{v+2}"); a(f"v_permlane32_swap_b32 v{v+1}, v{v+3}")
            pkadd(v, v, v + 2)
            return
        for t in range(4):
            a(f"ds_read2st64_b64 {q4(v+4*t)}, v{vaddr} offset0:{2*t} offset1:{2*t+1}")
        a("s_waitcnt lgkmcnt(2)")
        pkadd(v, v, v + 2); pkadd(v + 4, v + 4, v + 6); pkadd(v, v, v + 4)
        if mid: mid()
        a("s_waitcnt lgkmcnt(0)")
        pkadd(v + 8, v + 8, v + 10); pkadd(v + 12, v + 12, v + 14); pkadd(v + 8, v + 8, v + 12)
        pkadd(v + 2, v, v + 8); pkadd(v, v, v + 8)
        a(f"v_permlane32_swap_b32 v{v}, v{v+2}"); a(f"v_permlane32_swap_b32 v{v+1}, v{v+3}")
        pkadd(v, v, v + 2)

    def vor(tmp, rs):
        rs = list(rs)
        if len(rs) == 2:
            a(f"v_or_b32 v{tmp}, v{rs[0]}, v{rs[1]}"); return
        a(f"v_or3_b32 v{tmp}, v{rs[0]}, v{rs[1]}, v{rs[2]}"); rs = rs[3:]
        while rs:
            if len(rs) >= 2:
                a(f"v_or3_b32 v{tmp}, v{tmp}, v{rs[0]}, v{rs[1]}"); rs = rs[2:]
            else:
                a(f"v_or_b32 v{tmp}, v{tmp}, v{rs[0]}"); rs = rs[1:]

    npoll = [0]

    def spend():
        a(f"s_sub_u32 s{sBUD}, s{sBUD}, 1"); a("s_cbranch_scc1 L_exit")

    def poll(loads, tagged, tmp, entry=None, check=None, tags=None, after=None, sleep=0):
        n = npoll[0]; npoll[0] += 1
        a(f"L_poll{n}:")
        if psleep or sleep: a(f"s_sleep {psleep or sleep}")
        for ld in loads: a(ld)
        spend()
        if entry: a(entry + ":")
        a("s_waitcnt vmcnt(0)")
        if check: a(check + ":")
        for k, r in enumerate(tagged): a(f"v_xor_b32 v{r}, {tags[k] if tags else 's%d' % sTG8}, v{r}")
        vor(tmp, tagged)
        a(f"v_cmp_ne_u32_sdwa vcc, v{tmp}, v{vZERO} src0_sel:BYTE_0 src1_sel:DWORD")
        if after and latebr: after()
        a(f"s_cbranch_vccnz L_poll{n}")
        if after and not latebr: after()

    def poll2(mk, A, B, tmp, combine, gap, entry=None):
        n = npoll[0]; npoll[0] += 1

        def check(r):
            for t in range(4): a(f"v_xor_b32 v{r+2*t+1}, s{sTG8}, v{r+2*t+1}")
            vor(tmp, [r + 2 * t + 1 for t in range(4)])
            a(f"v_cmp_ne_u32_sdwa vcc, v{tmp}, v{vZERO} src0_sel:BYTE_0 src1_sel:DWORD")
            combine(r)
        if entry: a(entry + ":")
        else:
            for ld in mk(A): a(ld)
        a("s_waitcnt vmcnt(0)"); check(A); a(f"s_cbranch_vccz L_pdone{n}")
        for ld in mk(A): a(ld)
        a(f"s_sleep {gap}")
        a(f"L_poll{n}:")
        for ld in mk(B): a(ld)
        spend()
        a("s_waitcnt vmcnt(4)"); check(A); a(f"s_cbranch_vccz L_pdone{n}")
        for ld in mk(A): a(ld)
        a("s_waitcnt vmcnt(4)"); check(B); a(f"s_cbranch_vccnz L_poll{n}")
        a(f"L_pdone{n}:")

    def poll_tag(loads, tmp, slack=0, retry=None, first=None, once=None):
        n = npoll[0]; npoll[0] += 1
        if first:
            for ld in loads: a(ld[0])
            first(); a(f"s_branch L_pwait{n}")
        else:
            for t in range(len(loads)): a(f"s_mov_b64 s[{sOFF+2*t}:{sOFF+2*t+1}], -1")
        a(f"L_poll{n}:")
        for t, ld in enumerate(loads):
            a(f"s_mov_b64 exec, s[{sOFF+2*t}:{sOFF+2*t+1}]"); a(ld[0])
        a("s_mov_b64 exec, -1")
        spend()
        if first: a(f"L_pwait{n}:")
        a("s_waitcnt vmcnt(0)")
        a(f"s_mov_b64 s[{sE}:{sE+1}], 0")
        for t, (_, rs) in enumerate(loads):
            m = f"s[{sOFF+2*t}:{sOFF+2*t+1}]"
            a(f"v_xor_b32 v{tmp}, s{sTAG}, v{rs[0]}"); a(f"v_xor_b32 v{tmp+1}, s{sTAG}, v{rs[1]}"); a(f"v_or_b32 v{tmp}, v{tmp}, v{tmp+1}")
            a(f"v_cmp_lt_u32 {m}, {(1 << slack) - 1}, v{tmp}")
            a(f"s_or_b64 s[{sE}:{sE+1}], s[{sE}:{sE+1}], {m}")
        if once: a(f"s_and_b64 s[{sE}:{sE+1}], s[{sE}:{sE+1}], s[{once}:{once+1}]")
        if retry is None:
            a(f"s_cbranch_scc1 L_poll{n}")
        else:
            a(f"s_cbranch_scc1 L_pagain{n}")

            def again():
                a(f"L_pagain{n}:"); retry(); a(f"s_branch L_poll{n}")
            far.append(again)

    def put_tag(d, s, tag=None):
        a(f"v_bfi_b32 v{d}, v{vFF}, {tag or 's%d' % sTG8}, v{s}")

    nst = [0]

    def mode_store(text):
        if not local:
            a(text + " sc1"); return
        n = nst[0]; nst[0] += 1
        a(f"s_cbranch_scc1 L_stfar{n}")
        a(text)
        a(f"L_stdone{n}:")

        def other():
            a(f"L_stfar{n}:"); a(text + " sc1"); a(f"s_branch L_stdone{n}")
        far.append(other)

    def emit_far():
        for f in list(far): f()
        far.clear()

    def only_wave(w, label):
        a(f"s_cmp_lg_u32 s{sW}, {w}"); a(f"s_cbranch_scc1 {label}")

    def selectors():
        t0, t1, t2 = 32, 33, 34
        a(f"v_and_b32 v{t0}, 8, v0"); a(f"v_mov_b32 v{t1}, 0x0100"); a(f"v_mov_b32 v{t2}, 0x0302")
        a(f"v_cmp_ne_u32 vcc, 0, v{t0}"); a(f"v_cndmask_b32 v{t1}, v{t1}, v{t2}, vcc")
        a(f"v_or_b32 v{t2}, 0x0c0c0000, v{t1}")
        a(f"v_lshlrev_b32 v{t1}, 16, v{t1}"); a(f"v_or_b32 v{t1}, 0x0c0c, v{t1}")
        a(f"v_and_b32 v{t0}, 1, v0"); a(f"v_cmp_ne_u32 vcc, 0, v{t0}"); a(f"v_cndmask_b32 v{t1}, v{t2}, v{t1}, vcc")
        a(f"v_bfe_u32 v{t0}, v0, 1, 2"); a(f"v_mov_b32 v{t2}, 0x0c0c0c0c")
        for r in range(4):
            a(f"v_cmp_eq_u32 vcc, {r}, v{t0}"); a(f"v_cndmask_b32 v{vSEL+r}, v{t2}, v{t1}, vcc")

    def tag_from_epoch():
        a(f"s_add_u32 s{sTG8}, s{sTAG}, 1"); a(f"s_and_b32 s{sTG8}, s{sTG8}, 0xff"); a(f"s_mov_b32 s{sEP}, s{sTG8}")
        for k, m in ((1, 255), (2, 253), (3, 251)):
            a(f"s_bfe_u32 s{sT1}, s{sTAG}, {0x80000 | 8*k:#x}"); a(f"s_add_u32 s{sT1}, s{sT1}, 1")
            a(f"s_cmp_lt_u32 s{sT1}, {m}"); a(f"s_cselect_b32 s{sT1}, s{sT1}, 0")
            a(f"s_lshl_b32 s{sT1}, s{sT1}, {8*k}"); a(f"s_or_b32 s{sEP}, s{sEP}, s{sT1}")
        a(f"s_and_b32 s{sTAG}, s{sEP}, -8")

    def role():
        first = [sum(un[:g]) for g in range(8)]
        a(f"s_and_b32 s{sT1}, s{sH}, 7"); a(f"s_lshl_b32 s{sT3}, s{sT1}, 3")
        a(f"s_mov_b32 s{sT0}, {sum(first[g] << (8 * g) for g in range(4)):#x}"); a(f"s_mov_b32 s{sT1}, {sum(first[g + 4] << (8 * g) for g in range(4)):#x}")
        a(f"s_lshr_b64 s[{sT0}:{sT0+1}], s[{sT0}:{sT0+1}], s{sT3}"); a(f"s_and_b32 s{sUA}, s{sT0}, 0xff")
        a(f"s_lshr_b32 s{sT3}, s{sT3}, 1"); a(f"s_lshr_b32 s{sNA}, {sum(un[g] << (4 * g) for g in range(8)):#x}, s{sT3}"); a(f"s_and_b32 s{sNA}, s{sNA}, 15")
        a(f"s_mov_b32 s{sT2}, s{sNA}")
        a(f"s_lshr_b32 s{sMEM}, s{sH}, 3"); a(f"s_lshl2_add_u32 s{sMEM}, s{sSP}, s{sMEM}")
        a(f"s_sub_u32 s{sT1}, s{sMEM}, 8"); a(f"s_add_u32 s{sT3}, s{sT1}, s{sUA}")
        a(f"s_cmp_lt_u32 s{sT1}, s{sT2}"); a(f"s_cselect_b32 s{sROLE}, s{sT3}, 63")
        a(f"s_add_u32 s{sT3}, s{sMEM}, 64")
        a(f"s_cmp_lt_u32 s{sMEM}, 8"); a(f"s_cselect_b32 s{sROLE}, s{sT3}, s{sROLE}")
        if "role" in abl: a(f"s_mov_b32 s{sROLE}, 63")

    T, MM = 26, 30

    nlds = [0]

    def lds_wait(read, regs_, sleep=0):
        n = nlds[0]; nlds[0] += 1
        a(f"L_lds{n}:")
        a(read)
        a("s_waitcnt lgkmcnt(0)")
        rs = list(regs_)
        if len(rs) == 1: a(f"v_cmp_eq_u32 vcc, -1, v{rs[0]}")
        else:
            if len(rs) == 2: a(f"v_max_u32 v{vB}, v{rs[0]}, v{rs[1]}")
            else: a(f"v_max3_u32 v{vB}, v{rs[0]}, v{rs[1]}, v{rs[2]}"); a(f"v_max_u32 v{vB}, v{vB}, v{rs[3]}")
            a(f"v_cmp_eq_u32 vcc, -1, v{vB}")
        a(f"s_cbranch_vccnz L_ldsagain{n}")

        def again():
            a(f"L_ldsagain{n}:")
            if sleep: a(f"s_sleep {sleep}")
            spend(); a(f"s_branch L_lds{n}")
        far.append(again)

    seq = [("k", j) for j in range(16)] + [("v", j) for j in range(16)]
    pos = {op: i for i, op in enumerate(seq)}
    issued, done = [0], [0]
    def vreg(j): return VREG + 4 * j if j < 8 else KREG + 16 + 4 * (j - 8)

    def issue_to(n):
        while issued[0] < min(n, len(seq)):
            kind, j = seq[issued[0]]
            if kind == "k": a.vmem(f"buffer_load_dwordx4 {q4(KREG+4*j)}, v{vKV}, {srd(rK)}, s{sOFF+j} offen nt", (kind, j))
            else: a.vmem(f"buffer_load_dwordx4 {q4(vreg(j))}, v{vKV}, {srd(rV)}, s{sOFF+j} offen nt", (kind, j))
            issued[0] += 1

    def advance(upto):
        while done[0] <= pos[upto]:
            a.wait_vm(seq[done[0]]); done[0] += 1
            issue_to(done[0] + W)
            tr(done[0] - 1)

    def ids():
        a(f"s_and_b32 s{sH}, s2, 31"); a(f"s_lshr_b32 s{sSP}, s2, 5")

    def ids2():
        a(f"s_mov_b32 s{sBUD}, {budget}"); a(f"s_lshl3_add_u32 s{sIDX}, s{sH}, s{sSP}")
        a(f"s_getreg_b32 s{sXCC}, hwreg(HW_REG_XCC_ID, 0, 3)"); a(f"v_and_b32 v{vL}, 63, v0")

    def scatter(x, ch):
        return sum(((x >> k) & 1) << p for k, p in enumerate(13 + i for i, c in enumerate(pat) if c == ch))
    KVSIZE = scatter(15, "j") + 8192

    def offsets(js):
        for j in js:
            o = scatter(j, "j")
            a(f"s_movk_i32 s{sOFF+j}, {o:#x}" if o < 0x8000 else f"s_mov_b32 s{sOFF+j}, {o:#x}")

    def kv_base():
        ps = [13 + i for i, c in enumerate(pat) if c == "s"]
        a(f"s_lshl3_add_u32 s{sT0}, s{sH}, 7"); a(f"s_lshl_b32 s{sT0}, s{sT0}, 20")
        k = 0
        while k < 3:
            n = 1
            while k + n < 3 and ps[k + n] == ps[k] + n: n += 1
            if n == 3: a(f"s_lshl_b32 s{sT1}, s{sSP}, {ps[0]}")
            else: a(f"s_bfe_u32 s{sT1}, s{sSP}, {(n << 16) | k:#x}"); a(f"s_lshl_b32 s{sT1}, s{sT1}, {ps[k]}")
            a(f"s_add_u32 s{sT0}, s{sT0}, s{sT1}")
            k += n

    a(f"{KNAME}:")
    if stamps or amp: a(f"s_memrealtime s[{sST}:{sST+1}]")
    allargs = "s_load_dwordx16 s[8:23], s[0:1], 0\ns_load_dwordx8 s[24:31], s[0:1], 64"
    a(f"s_load_dwordx2 s[{rK}:{rK+1}], s[0:1], 8" if konly else allargs)
    a("s_cmpk_ge_u32 s2, 256"); a("s_cbranch_scc1 L_end")
    a(f"v_readfirstlane_b32 s{sW}, v0")
    a(f"s_cmpk_lt_u32 s{sW}, 64"); a("s_cbranch_scc1 L_helper00" if konly else "s_cbranch_scc1 L_helper0")
    a("v_subrev_u32 v0, 64, v0")
    if pfcode:
        a(f"s_getpc_b64 s[{sE}:{sE+1}]")
        a("L_pc:")
        a("v_lshlrev_b32 v24, 5, v0"); a("v_min_u32 v24, L_last-L_pc, v24")
        a(f"global_load_dword v3, v24, s[{sE}:{sE+1}]")
    ids()
    a(f"v_lshlrev_b32 v{vKV}, 4, v0")
    kv_base()
    offsets(range(W))
    a(f"s_mov_b32 s{rK+3}, 0x20000"); a(f"s_mov_b32 s{rK+2}, {KVSIZE:#x}")
    a("s_waitcnt lgkmcnt(0)")
    kp = rK if konly else pK
    a(f"s_add_u32 s{rK}, s{kp}, s{sT0}"); a(f"s_addc_u32 s{rK+1}, s{kp+1}, 0")
    issue_to(k0)
    if konly: a(allargs)
    a("s_barrier")
    issue_to(W)
    a("s_branch L_stream")
    if konly: a("L_helper00:"); a(allargs); a("s_branch L_helper0")
    a(".p2align 8")

    a("L_helper0:")
    if hprio: a(f"s_setprio {hprio}")
    vXA, vXO, vQO = 22, 23, 3
    XA, XO = 28, 27
    a("v_lshlrev_b32 v24, 3, v0"); a("v_mov_b32 v30, -1"); a("v_mov_b32 v31, -1")
    a("ds_write_b64 v24, v[30:31]")
    ids()
    a(f"v_lshlrev_b32 v{vXA}, 4, v0")
    a("v_lshrrev_b32 v24, 4, v0"); a("v_and_b32 v25, 15, v0")
    a(f"s_lshl_b32 s{sT1}, s{sSP}, 6"); a(f"v_add_u32 v24, s{sT1}, v24")
    a(f"v_lshl_add_u32 v{vXO}, v25, 2, v24"); a(f"v_lshlrev_b32 v{vXO}, 1, v{vXO}")
    a(f"v_lshlrev_b32 v{vQO}, 13, v24"); a(f"v_lshl_add_u32 v{vQO}, v25, 4, v{vQO}")
    a(f"s_lshl_b32 s{sT0}, s{sH}, 8"); a(f"s_mov_b32 s{sT1}, 0x8000")
    a(f"s_mov_b32 s{rQ+2}, 0x400000"); a(f"s_mov_b32 s{rQ+3}, 0x20000")
    a("s_waitcnt lgkmcnt(0)")
    if bar0 == -1: a("s_barrier")
    a(f"global_load_dwordx4 {q4(XA)}, v{vXA}, s[{pX}:{pX+1}]")
    a(f"global_load_ushort v{XO}, v{vXO}, s[{pX}:{pX+1}]")
    a(f"s_mov_b64 s[{rQ}:{rQ+1}], s[{pWQ}:{pWQ+1}]")
    for j in range(16):
        a(f"buffer_load_dwordx4 {q4(KREG+4*j)}, v{vQO}, {srd(rQ)}, s{sT0} offen nt")
        if j < 15: a(f"s_add_u32 s{sT0}, s{sT0}, s{sT1}")
        if j == (15 if bar0 is True else bar0): a("s_barrier")
    a(f"s_mov_b32 s{sW}, -1")
    a("s_branch L_helper")

    a("L_stream:")
    if stamps: a(f"v_mov_b32 v{vSTAMP}, 0"); a(f"v_writelane_b32 v{vSTAMP}, s{sST}, 0")
    stamp("args")
    offsets(range(W, 16))
    a(f"s_lshr_b32 s{sW}, s{sW}, 6"); a(f"s_sub_u32 s{sW}, s{sW}, 1")
    ids2()
    if konly: a("s_waitcnt lgkmcnt(0)")
    mksrd(rV, pV, KVSIZE, sT0); mksrd(rX, pX, 1024)
    selectors()
    a(f"s_mov_b32 s{sROLE}, 63")
    vG2, vJ, vSH, vOW, vRO, vP8, vPF, vPJ = range(XREG, XREG + 8)
    a(f"v_bfe_u32 v{vG2}, v0, 4, 2"); a(f"v_and_b32 v{vJ}, 7, v0"); a(f"v_bfe_u32 v{vSH}, v0, 3, 1")
    a(f"v_and_b32 v{vT}, 15, v0"); a(f"v_lshlrev_b32 v{vT}, 4, v{vT}")
    a(f"v_lshrrev_b32 v{vOW}, 5, v0"); a(f"v_lshlrev_b32 v{vOW}, 9, v{vOW}"); a(f"v_lshl_add_u32 v{vOW}, v{vT}, 1, v{vOW}")
    a(f"v_and_b32 v32, 1, v{vG2}"); a(f"v_lshl_add_u32 v{vOW}, v32, 4, v{vOW}")
    a(f"v_and_b32 v{vP8}, 31, v0"); a(f"v_lshlrev_b32 v{vP8}, 3, v{vP8}")
    a("v_bfe_u32 v32, v0, 5, 1"); a(f"v_lshl_add_u32 v{vRO}, v32, 12, v{vP8}")
    a(f"s_lshl_b32 s{sT1}, s{sW}, 8"); a(f"s_add_u32 s{sT2}, s{sT1}, {L_OP}"); a(f"v_add_u32 v{vRO}, s{sT2}, v{vRO}")
    a(f"s_lshl_b32 s{sU}, s{sIDX}, 9"); a(f"s_add_u32 s{sU}, s{sU}, s{sT1}")
    a(f"v_mov_b32 v{vFF}, 0xff"); a(f"v_mov_b32 v{vZERO}, 0")
    a(f"v_lshl_add_u32 v{vPJ}, v{vG2}, 3, v{vJ}")
    advance(("k", 3))
    if amp: stamp("qpub")
    a(f"s_load_dword s{sTAG}, s[{pWS}:{pWS+1}], {EPOCH}")
    mksrd(rWS, pWS, WS_SIZE)
    vAD64, vPA = XREG + 18, 44

    def duties():
        role()
        a(f"s_mov_b32 s{sE+1}, 0"); a("v_mov_b32 v33, 0"); a(f"s_mov_b32 s{sE}, 8192")
        a(f"s_sub_u32 s{sT2}, s{sSP}, {pfs}"); a(f"s_cselect_b32 s{sT2}, 0, s{sT2}")
        a(f"s_cselect_b64 s[{sPFM}:{sPFM+1}], 1, -1")
        a(f"s_mul_i32 s{sT2}, s{sT2}, {8192*nwo}"); a(f"s_min_u32 s{sT2}, s{sT2}, {131072 - 8192*nwo}")
        a(f"s_lshl_b32 s{sT1}, s{sH}, 17"); a(f"s_add_u32 s{sT1}, s{sT1}, s{sT2}")
        a(f"v_add_u32 v32, s{sT1}, v{vKV}")
        a(f"v_lshl_add_u64 {q2(vAD64)}, v[32:33], 0, s[{pWO}:{pWO+1}]")
        a(f"s_cmp_lt_u32 s{sROLE}, {NT2}"); a(f"s_cbranch_scc1 L_adT2")
        a(f"s_cmp_lt_u32 s{sROLE}, 64"); a(f"s_cbranch_scc1 L_adPF")
        a(f"v_lshl_add_u32 v32, v{vG2}, 4, v{vSH}")
        a(f"s_and_b32 s{sT1}, s{sH}, 7"); a(f"s_lshl_b32 s{sT1}, s{sT1}, 17")
        a(f"s_lshr_b32 s{sT2}, s{sW}, 1"); a(f"s_lshl_b32 s{sT2}, s{sT2}, 20"); a(f"s_add_u32 s{sT1}, s{sT1}, s{sT2}")
        a(f"s_and_b32 s{sT2}, s{sW}, 1"); a(f"s_lshl_b32 s{sT2}, s{sT2}, 16"); a(f"s_add_u32 s{sT1}, s{sT1}, s{sT2}")
        a(f"s_and_b32 s{sT2}, s{sROLE}, 7"); a(f"s_lshl_b32 s{sT2}, s{sT2}, 7"); a(f"s_add_u32 s{sT1}, s{sT1}, s{sT2}")
        a("v_lshlrev_b32 v32, 10, v32"); a(f"v_lshl_add_u32 v32, v{vJ}, 4, v32"); a(f"v_add_u32 v32, s{sT1}, v32")
        a(f"v_lshl_add_u64 {q2(vPA)}, v[32:33], 0, s[{pWO}:{pWO+1}]")
        a("s_branch L_addone")
        a("L_adT2:")
        a("v_and_b32 v32, 0x1f8, v0"); a("v_mul_u32_u24 v32, 2752, v32")
        a("v_and_b32 v34, 3, v0"); a("v_lshl_add_u32 v32, v34, 4, v32")
        a(f"s_lshl_b32 s{sT1}, s{sROLE}, 6"); a(f"v_add_u32 v32, s{sT1}, v32")
        a(f"v_lshl_add_u64 {q2(vPA)}, v[32:33], 0, s[{pWG}:{pWG+1}]")
        a("s_mov_b32 exec_lo, 0xf0f0f0f0"); a("s_mov_b32 exec_hi, 0xf0f0f0f0")
        a(f"v_lshl_add_u64 {q2(vPA)}, v[32:33], 0, s[{pWU}:{pWU+1}]")
        a("s_mov_b64 exec, -1")
        a("s_branch L_addone")
        a("L_adPF:")
        a(f"s_lshl_b32 s{sT1}, s{sNA}, 6"); a(f"s_sub_u32 s{sT1}, s{sT1}, 4")
        a("v_and_b32 v32, 3, v0"); a("v_lshlrev_b32 v32, 7, v32"); a(f"v_min_u32 v32, s{sT1}, v32")
        a("v_bfe_u32 v34, v0, 3, 2"); a("v_bfe_u32 v35, v0, 5, 1"); a("v_lshl_add_u32 v34, v35, 3, v34")
        a(f"v_mul_u32_u24 v34, 2752, v34"); a("v_add_u32 v32, v32, v34")
        a(f"s_and_b32 s{sT2}, s{sMEM}, 15")
        a(f"s_mul_i32 s{sT1}, s{sT2}, {16*2752}"); a(f"s_lshl_b32 s{sT3}, s{sUA}, 6"); a(f"s_add_u32 s{sT1}, s{sT1}, s{sT3}")
        a(f"v_add_u32 v32, s{sT1}, v32")
        a(f"v_lshl_add_u64 {q2(vPA)}, v[32:33], 0, s[{pWG}:{pWG+1}]")
        a("s_mov_b32 exec_lo, 0xf0f0f0f0"); a("s_mov_b32 exec_hi, 0xf0f0f0f0")
        a(f"v_lshl_add_u64 {q2(vPA)}, v[32:33], 0, s[{pWU}:{pWU+1}]")
        a("s_mov_b64 exec, -1")
        a("L_addone:")
    duties()
    advance(("k", 7 if burst else 8))
    a("s_waitcnt lgkmcnt(0)")
    if amp and len(amp) > 3 and amp[0] in ("start", "args", "qpub"): diag_store()
    tag_from_epoch()

    def kv(n): return ("k", n) if n < 16 else ("v", n - 16)
    cur = [gpos]

    def step():
        if burst: return
        cur[0] += 1; advance(kv(cur[0]))
    advance(kv(gpos))
    QP = 40
    lds_wait(f"ds_read_b128 {q4(QP)}, v{vT} offset:{L_QB}", range(QP, QP + 4))
    stamp("qgot")
    SJ = 24

    def dots(js):
        for i in range(4):
            for j in js:
                a(f"v_dot2_f32_bf16 v{SJ+j}, v{KREG+4*j+i}, v{QP+i}, {'0' if i == 0 else 'v%d' % (SJ+j)}")
    assert gpos >= 11
    assert issued[0] <= pos[("v", 8)]
    dots(range(4, 12))
    step()
    dots(range(4))
    advance(("k", 15)); cur[0] = max(cur[0], 15)
    dots(range(12, 16))
    step()
    for j in range(8):
        a(f"v_add_f32_dpp v{SJ+j}, v{SJ+j}, v{SJ+j} row_ror:8 row_mask:0xf bank_mask:0x3")
    for j in range(8):
        a(f"v_add_f32_dpp v{SJ+j}, v{SJ+j+8}, v{SJ+j+8} row_ror:8 row_mask:0xf bank_mask:0xc")
    for j in range(4):
        a(f"v_add_f32_dpp v{SJ+j}, v{SJ+j}, v{SJ+j} row_half_mirror row_mask:0xf bank_mask:0x5")
    for j in range(4):
        a(f"v_add_f32_dpp v{SJ+j}, v{SJ+j+4}, v{SJ+j+4} row_half_mirror row_mask:0xf bank_mask:0xa")
    for j in range(4):
        a(f"v_add_f32_dpp v{SJ+j}, v{SJ+j}, v{SJ+j} quad_perm:[1,0,3,2] {DPPF}")
    a("s_mov_b32 vcc_lo, 0xaaaaaaaa"); a("s_mov_b32 vcc_hi, 0xaaaaaaaa")
    a(f"v_cndmask_b32 v{SJ}, v{SJ}, v{SJ+1}, vcc"); a(f"v_cndmask_b32 v{SJ+2}, v{SJ+2}, v{SJ+3}, vcc")
    a(f"v_add_f32_dpp v{SJ}, v{SJ}, v{SJ} quad_perm:[2,3,0,1] {DPPF}")
    a(f"v_add_f32_dpp v{SJ+2}, v{SJ+2}, v{SJ+2} quad_perm:[2,3,0,1] {DPPF}")
    a("s_mov_b32 vcc_lo, 0xcccccccc"); a("s_mov_b32 vcc_hi, 0xcccccccc")
    SC = SJ
    a(f"v_cndmask_b32 v{SC}, v{SJ}, v{SJ+2}, vcc")
    bf16r(SC, SC); a(f"v_mul_f32 v{SC}, {SCALE:#x}, v{SC}"); bf16r(SC, SC)
    step()
    a(f"v_mov_b32 v{T}, v{SC}"); wave_red("v_max_f32", T, sMW)
    a(f"v_subrev_f32 v{SC}, s{sMW}, v{SC}"); a(f"v_mul_f32 v{SC}, {LOG2E:#x}, v{SC}"); a(f"v_exp_f32 v{SC}, v{SC}")

    def split_p():
        if nolo:
            a(f"v_cvt_pk_bf16_f32 v{vPK}, v{SC}, 0"); return
        bf16r(T, SC); a(f"v_sub_f32 v{T}, v{SC}, v{T}")
        a(f"v_cvt_pk_bf16_f32 v{vPK}, v{SC}, v{T}")
    split_p()
    a(f"v_mov_b32 v{T}, v{SC}"); wave_red("v_add_f32", T, sT2)
    a(f"v_mov_b32 v{T}, s{sMW}"); a(f"v_mov_b32 v{T+1}, s{sT2}")
    a(f"s_lshl_b32 s{sT1}, s{sW}, 3"); a(f"v_mov_b32 v{T+2}, s{sT1}")
    a("s_mov_b64 exec, 1"); a(f"ds_write_b64 v{T+2}, {q2(T)} offset:{L_ST}"); a("s_mov_b64 exec, -1")
    stamp("p")

    for j in range(16 - W):
        build_a(j)
        if j % 4 == 0 and j + 16 <= cur[0] < 31 - W: step()
        advance(("v", j | 3 if burst == 2 else j))
        mfma(j, vreg(j), j == 0)
        if j == cpos:
            a(f"v_lshrrev_b32 v{T+2}, 1, v{T+2}")
            if local and mode_early:
                lds_wait(f"ds_read_b32 v32, v{T+2} offset:{L_F}\nds_read_b32 v33, v{vZERO} offset:{L_MODE}", [32, 33])
                a(f"v_readfirstlane_b32 s{sMODE}, v33")
            else:
                lds_wait(f"ds_read_b32 v32, v{T+2} offset:{L_F}", [32])
            a(f"v_mul_f32 v{SC}, v{SC}, v32")
            for r in range(4): a(f"v_mul_f32 v{vD+r}, v{vD+r}, v32")
            split_p()
    assert issued[0] == len(seq) and cpos < 16 - W and all(p >= 16 - W for p in pfat)
    stamp("cbar")

    def w1reg(j): return TREG + 4 * j if j < 4 else VREG + 4 * j

    def tload1(j): tload(j, w1reg(j))

    def tload(j, reg=None):
        a(f"global_load_dwordx4 {q4(TREG+4*j if reg is None else reg)}, {q2(vPA)}, off")
        if j < 7: a(f"v_lshl_add_u64 {q2(vPA)}, {q2(vPA)}, 0, s[{sE}:{sE+1}]")

    def pf_load(k):
        a(f"s_mov_b64 exec, s[{sPFM}:{sPFM+1}]")
        a(f"global_load_dwordx4 {q4(KREG+48)}, {q2(vAD64)}, off")
        a("s_mov_b64 exec, -1")
        if k + 1 < nwo:
            d = (pford[k + 1] - pford[k] if pford else 1) * 8192
            a(f"s_mov_b32 s{sT0}, {d & 0xffffffff:#x}"); a(f"s_mov_b32 s{sT1}, {-1 if d < 0 else 0}")
            a(f"v_lshl_add_u64 {q2(vAD64)}, {q2(vAD64)}, 0, s[{sT0}:{sT0+1}]")

    def pv_tail(e, load):
        k = 0
        for j in range(16 - W, 16):
            build_a(j)
            a(f"s_waitcnt vmcnt({15 - j + k})")
            mfma(j, vreg(j), False)
            tr(16 + j)
            for _ in range(e.count(j)):
                load(k); k += 1
    if e1: a(f"s_cmp_ge_u32 s{sROLE}, 64"); a("s_cbranch_scc1 L_pv1")
    if e2:
        a(f"s_lshr_b32 s{sT0}, s{sW}, 2"); a(f"s_lshl_b32 s{sT0}, s{sT0}, 6"); a(f"s_add_u32 s{sT0}, s{sT0}, s{sROLE}")
        a(f"s_cmp_lt_u32 s{sT0}, {NT2}"); a("s_cbranch_scc1 L_pv2")
    pv_tail(pfat, pf_load)
    a("L_pvdone:")
    a(f"ds_write_b128 v{vOW}, {q4(vD)} offset:{L_OP}")
    a(f"s_cmp_ge_u32 s{sW}, 2")
    a("s_waitcnt lgkmcnt(0)"); a("s_barrier")
    stamp("obar")
    if amp and len(amp) > 3 and amp[0] in ("obar", "qgot", "p", "cbar"):
        diag_store(); a(f"s_cmp_ge_u32 s{sW}, 2")
    a("s_cbranch_scc1 L_nopub")
    if local and not mode_early: a(f"ds_read_b32 v40, v{vZERO} offset:{L_MODE}")

    def getmode():
        if not mode_early: a(f"v_readfirstlane_b32 s{sMODE}, v40")
        a(f"s_cmp_lg_u32 s{sMODE}, 0")
    assert mode_early or not nolo
    red16(vRO, 24, mid=getmode if local else None, even=nolo)
    a("s_mov_b32 exec_hi, 0")
    put_tag(25, 25)
    mode_store(f"buffer_store_dwordx2 v[24:25], v{vP8}, {srd(rWS)}, s{sU} offen")
    a("s_mov_b32 exec_hi, -1")
    stamp("x")
    a("L_nopub:")
    a(f"s_cmp_ge_u32 s{sROLE}, 64"); a("s_cbranch_scc1 L_T1")
    a("s_barrier")
    a(f"s_cmp_lt_u32 s{sROLE}, {NT2}"); a("s_cbranch_scc1 L_T2")
    if stages:
        a(f"s_cmp_lt_u32 s{sMEM}, 16"); a("s_cbranch_scc1 L_exit")
        only_wave(2, "L_exit")
        at = 0
        for c in stages:
            if c == "d":
                mksrd(rT, pWD, 1376 * 1024)
                a(f"s_lshl_b32 s{sT0}, s{sNA}, 4"); a(f"s_and_b32 s{sT2}, s{sMEM}, 15"); a(f"s_mul_i32 s{sT2}, s{sT2}, s{sT0}")
                a(f"s_lshl_b32 s{sT3}, s{sUA}, 8"); a(f"s_add_u32 s{sT2}, s{sT2}, s{sT3}"); a(f"s_lshl_b32 s{sT2}, s{sT2}, 7")
                a(f"v_lshlrev_b32 v32, 7, v{vL}"); a(f"buffer_load_dword v3, v32, {srd(rT)}, s{sT2} offen")
                a(f"s_sub_u32 s{sT0}, s{sT0}, 1"); a(f"v_add_u32 v32, 64, v{vL}"); a(f"v_min_u32 v32, s{sT0}, v32"); a("v_lshlrev_b32 v32, 7, v32")
                a(f"buffer_load_dword v3, v32, {srd(rT)}, s{sT2} offen")
            else:
                row = {"A": 0, "B": 4, "C": 256, "D": 260}[c]
                d = (row - at) * 2752; at = row
                if d:
                    a(f"s_mov_b32 s{sT0}, {d & 0xffffffff:#x}"); a(f"s_mov_b32 s{sT1}, {-1 if d < 0 else 0}")
                    a(f"v_lshl_add_u64 {q2(vPA)}, {q2(vPA)}, 0, s[{sT0}:{sT0+1}]")
                a(f"global_load_dword v3, {q2(vPA)}, off")
    a("s_branch L_exit")
    emit_far()

    a("L_helper:")
    if stamps: a(f"v_mov_b32 v{vSTAMP}, 0"); a(f"v_writelane_b32 v{vSTAMP}, s{sST}, 0")
    a(f"s_load_dword s{sTAG}, s[{pWS}:{pWS+1}], {EPOCH}")
    ids2()
    selectors()
    a(f"s_mov_b32 s{sROLE}, 63")
    mksrd(rWS, pWS, WS_SIZE)
    a(f"v_mov_b32 v{vZERO}, 0")
    sPB, sLA, sC0, sC1, sDM = rO, rO + 2, rT, rT + 2, rX

    def probe(r):
        if r == (2 if nprobe == 3 else 0):
            a(f"s_bfe_u32 s{sT1}, s2, 0x10003"); a(f"s_lshl2_add_u32 s{sT1}, s{sSP}, s{sT1}")
            a(f"s_lshl_b32 s{sT1}, s{sT1}, 6"); a(f"s_add_u32 s{sT1}, s{sT1}, s{sH}"); a(f"s_lshl_b32 s{sT1}, s{sT1}, 7"); a(f"s_add_u32 s{sPB}, s{sT1}, {PROBE}")
            a(f"s_xor_b32 s{sPB+1}, s{sPB}, 0x2000"); a(f"s_mov_b32 s{sLA}, 0")
        order = {1: ([0], [1]), 2: ([0, 1], [1, 0]), 3: ([1], [0], [0, 1])}[nprobe][r]
        a(f"s_memtime s[{sC0}:{sC0+1}]"); a("s_waitcnt lgkmcnt(0)")
        for t in order:
            a(f"s_load_dword s{sDM}, s[{pWS}:{pWS+1}], s{sPB+t} offset:{(0, 20480, 4096)[r]}"); a("s_waitcnt lgkmcnt(0)")
            a(f"s_memtime s[{sC1}:{sC1+1}]"); a("s_waitcnt lgkmcnt(0)")
            a(f"s_sub_u32 s{sT1}, s{sC1}, s{sC0}"); a(f"s_mov_b32 s{sC0}, s{sC1}")
            a(f"s_{'sub' if t else 'add'}_u32 s{sLA}, s{sLA}, s{sT1}")
    if vote and nprobe == 3:
        a("s_waitcnt lgkmcnt(0)"); probe(2)
    a(f"s_waitcnt vmcnt(16)")
    stamp("x")
    U = 32
    for i in range(4): unpack(U + 2 * i, U + 2 * i + 1, XA + i)
    S, M_, R_ = 40, 41, 42
    a(f"v_add_f32 v{S}, v{U}, v{U+1}")
    for i in range(2, 8): a(f"v_add_f32 v{S}, v{S}, v{U+i}")
    wave_red("v_add_f32", S, sT1)
    a(f"v_mov_b32 v{M_}, 0x3b000000"); a(f"v_mul_f32 v{M_}, s{sT1}, v{M_}")
    for i in range(8): a(f"v_sub_f32 v{U+i}, v{U+i}, v{M_}")
    a(f"v_mul_f32 v{S}, v{U}, v{U}")
    for i in range(1, 8): a(f"v_fmac_f32 v{S}, v{U+i}, v{U+i}")
    wave_red("v_add_f32", S, sT1)
    a(f"v_mov_b32 v{S}, 0x3b000000"); a(f"v_mul_f32 v{S}, s{sT1}, v{S}")
    bf16r(M_, M_); bf16r(S, S)
    a(f"v_add_f32 v{S}, {EPS:#x}, v{S}"); bf16r(S, S)
    a(f"v_sqrt_f32 v{S}, v{S}"); bf16r(S, S)
    a(f"v_rcp_f32 v{R_}, v{S}")
    a(f"v_lshlrev_b32 v{XO}, 16, v{XO}"); a(f"v_sub_f32 v{XO}, v{XO}, v{M_}"); bf16r(XO, XO)
    a(f"v_mul_f32 v{XO}, v{XO}, v{R_}")
    a(f"v_cvt_pk_bf16_f32 v{vPK}, v{XO}, 0")
    a(f"s_waitcnt lgkmcnt(0)")
    tag_from_epoch()
    for j in range(16):
        build_a(j)
        if j % 4 == 0: a(f"s_waitcnt vmcnt({12 - j})")
        mfma(j, KREG + 4 * j, j == 0)
    a("v_and_b32 v24, 15, v0"); a("v_bfe_u32 v25, v0, 4, 1"); a("v_lshrrev_b32 v26, 5, v0")
    a("v_lshlrev_b32 v24, 6, v24"); a("v_lshl_add_u32 v24, v25, 5, v24"); a("v_lshl_add_u32 v24, v26, 4, v24")
    a(f"s_lshl_b32 s{sT2}, s{sIDX}, 10"); a(f"s_add_u32 s{sT2}, s{sT2}, {MBQ}")
    a(f"s_xor_b32 s{sT3}, s{sTAG}, s{sXCC}")
    a(f"v_permlane32_swap_b32 v{vD}, v{vD+2}"); a(f"v_permlane32_swap_b32 v{vD+1}, v{vD+3}")
    a(f"v_mov_b32 v{vD+2}, v{vD+1}"); a(f"v_mov_b32 v{vD+1}, s{sTAG}"); a(f"v_mov_b32 v{vD+3}, s{sT3}")
    qstore = f"buffer_store_dwordx4 {q4(vD)}, v24, {srd(rWS)}, s{sT2} offen"
    if "hand" in abl: a("s_branch L_samedie")
    qfrac = 2 if "q2" in abl else 4 if "q4" in abl else 1
    if qfrac > 1:
        m = 0x00ff00ff if qfrac == 2 else 0x000f000f
        a(f"s_mov_b32 exec_lo, {m:#x}"); a(f"s_mov_b32 exec_hi, {m:#x}")
    a(qstore + ("" if local else " sc1"))
    if qfrac > 1: a("s_mov_b64 exec, -1"); a(f"v_and_b32 v{vXA}, {1024 // qfrac - 1}, v{vXA}")
    stamp("qpub")
    a(f"s_lshl_b32 s{sT0}, s{sH}, 13"); a(f"s_add_u32 s{sT0}, s{sT0}, {MBQ}"); a(f"s_add_u32 s{sU}, s{sT0}, 4096")
    a(f"s_mov_b32 s{sMODE}, 0")
    GQ = KREG

    def write_through_once(tag):
        a(f"s_cmp_lg_u32 s{sMODE}, 0"); a(f"s_cbranch_scc1 L_wt{tag}")
        a(qstore + " sc1"); a(f"s_mov_b32 s{sMODE}, 1")
        a(f"L_wt{tag}:")

    if vote: probe(0)
    a("s_waitcnt vmcnt(0)")
    poll_tag([(f"buffer_load_dwordx4 {q4(GQ+4*t)}, v{vXA}, {srd(rWS)}, s{sU if t >= 4 else sT0} offen offset:{(t&3)*1024} sc1", [GQ+4*t+1, GQ+4*t+3]) for t in range(8)],
             26, slack=3, retry=(lambda: write_through_once("a")) if local else None, first=(lambda: probe(1)) if vote else None)
    if local:
        for t in range(8): a(f"v_xor_b32 v{GQ+4*t+3}, s{sT3}, v{GQ+4*t+3}")
        vor(26, [GQ + 4 * t + 3 for t in range(8)])
        a("v_cmp_ne_u32 vcc, 0, v26"); a("s_cbranch_vccz L_samedie")
        write_through_once("b")
        a("L_samedie:")
    for st in (16, 8, 4):
        for i in range(0, st, 2): a(f"v_add_f32 v{GQ+i}, v{GQ+i}, v{GQ+i+st}")
    a(f"v_cvt_pk_bf16_f32 v{GQ}, v{GQ}, v{GQ+2}"); a("v_lshlrev_b32 v25, 2, v0")
    a(f"v_min_u32 v{GQ}, -2, v{GQ}")
    a(f"ds_write_b32 v25, v{GQ} offset:{L_QB}")
    stamp("qgot")
    a("v_and_b32 v25, 3, v0"); a(f"v_bfe_u32 v26, v0, 2, 1"); a("v_lshlrev_b32 v25, 16, v25"); a("v_lshl_add_u32 v25, v26, 10, v25")
    a(f"s_and_b32 s{sT0}, s{sH}, 7"); a(f"s_lshl_b32 s{sT1}, s{sT0}, 13"); a(f"s_add_u32 s{sT1}, s{sT1}, {MBQ}")
    a(f"v_and_b32 v{T+2}, 7, v0"); a(f"v_lshlrev_b32 v{T+3}, 2, v{T+2}"); a(f"v_lshlrev_b32 v{T+2}, 3, v{T+2}")
    if warm:
        a("v_and_b32 v41, 3, v0"); a("v_lshlrev_b32 v41, 7, v41"); a(f"s_lshl_b32 s{sT2}, s{sIDX}, 9")
        a(f"buffer_load_dword v43, v41, {srd(rWS)}, s{sT2} offen sc1")
    if local and "hand" not in abl: a(f"buffer_load_dword v40, v25, {srd(rWS)}, s{sT1} offen offset:12 sc1")
    lds_wait(f"ds_read_b64 {q2(T)}, v{T+2} offset:{L_ST}", [T, T + 1], sleep=hsleep)
    a(f"v_mov_b32 v{MM}, v{T}"); red8("v_max_f32", MM)
    a(f"v_sub_f32 v{T}, v{T}, v{MM}"); a(f"v_mul_f32 v{T}, {LOG2E:#x}, v{T}"); a(f"v_exp_f32 v{T}, v{T}")
    a(f"ds_write_b32 v{T+3}, v{T} offset:{L_F}")
    a(f"v_mov_b32 v36, v{MM}"); a(f"v_mov_b32 v37, s{sTAG}"); a(f"v_mul_f32 v38, v{T}, v{T+1}")
    if vote:
        a(f"s_cmp_gt_i32 s{sLA}, 0"); a(f"s_cselect_b32 s{sT1}, 1, 0"); a(f"s_lshr_b32 s{sT2}, s2, 3"); a(f"s_xor_b32 s{sT1}, s{sT1}, s{sT2}")
        a(f"s_lshr_b32 s{sT2}, s{sXCC}, 2"); a(f"s_xor_b32 s{sT1}, s{sT1}, s{sT2}"); a(f"s_and_b32 s{sT1}, s{sT1}, 1"); a(f"s_or_b32 s{sT1}, s{sT1}, s{sTAG}")
        a(f"v_mov_b32 v39, s{sT1}")
        if stamps: a(f"v_writelane_b32 v{vSTAMP}, s{sT1}, 13")
    else:
        a(f"v_mov_b32 v39, s{sTAG}")
    red8("v_add_f32", 38)
    a(f"s_lshl_b32 s{sT1}, s{sIDX}, 7"); a(f"s_add_u32 s{sT1}, s{sT1}, {MBM}")
    if local:
        a(f"s_waitcnt vmcnt(0)")
        a(f"v_cmp_ne_u32 vcc, s{sT3}, v40"); a("s_cmp_lg_u64 vcc, 0"); a(f"s_cselect_b32 s{sMODE}, 1, 0")
        a(f"v_mov_b32 v40, s{sMODE}"); a("v_mov_b32 v41, 0")
    a("s_mov_b64 exec, 1")
    if local: a(f"ds_write_b32 v41, v40 offset:{L_MODE}")
    if "hand" not in abl: mode_store(f"buffer_store_dwordx4 v[36:39], off, {srd(rWS)}, s{sT1}")
    a("s_mov_b64 exec, -1")
    a("s_waitcnt lgkmcnt(0)")
    stamp("p")
    a(f"s_cmp_ge_u32 s{sSP}, {0 if 'role' in abl else 4 if vote else 2}"); a("s_cbranch_scc1 L_exit")
    a("v_bfe_u32 v24, v0, 3, 2"); a("v_and_b32 v25, 7, v0"); a("v_lshlrev_b32 v24, 13, v24"); a("v_lshl_add_u32 v24, v25, 7, v24")
    a(f"s_lshl_b32 s{sT0}, s{sT0}, 10"); a(f"s_add_u32 s{sT0}, s{sT0}, {MBM}")
    a("s_waitcnt vmcnt(0)")
    if vote:
        a(f"s_cmp_lt_u32 s{sSP}, 2"); a(f"s_cselect_b64 s[{sPFM}:{sPFM+1}], -1, 0")
    poll_tag([(f"buffer_load_dwordx4 v[32:35], v24, {srd(rWS)}, s{sT0} offen sc1", [33, 35])], 26, slack=1 if vote else 0, once=sPFM if vote else None)
    if vote:
        a("v_cmp_eq_u32 vcc, 1, v26"); a(f"s_bcnt1_i32_b32 s{sT1}, vcc_lo"); a("v_cmp_eq_u32 vcc, 0, v26"); a(f"s_bcnt1_i32_b32 s{sT2}, vcc_lo")
        a(f"s_cmp_gt_u32 s{sT1}, s{sT2}"); a(f"s_cselect_b32 s{sT1}, 1, 0"); a(f"v_mov_b32 v36, s{sT1}")
        a(f"ds_write_b32 v{vZERO}, v36 offset:{L_BETA}")
        if stamps: a(f"v_writelane_b32 v{vSTAMP}, s{sT1}, 15")
    a("v_mov_b32 v36, v32"); red8("v_max_f32", 36)
    a("v_sub_f32 v32, v32, v36"); a(f"v_mul_f32 v32, {LOG2E:#x}, v32"); a("v_exp_f32 v32, v32")
    a("v_mul_f32 v34, v32, v34"); red8("v_add_f32", 34)
    a("v_rcp_f32 v34, v34"); a("v_and_b32 v24, 31, v0"); a("v_lshlrev_b32 v24, 2, v24")
    a("v_mul_f32 v32, v32, v34")
    a(f"ds_write_b32 v24, v32 offset:{L_C}")
    a("s_waitcnt lgkmcnt(0)")
    stamp("cbar")
    a("s_branch L_exit")
    emit_far()

    RAW, TMP = 40, 3

    def ror8_pair(v):
        for i in range(2): a(f"v_add_f32_dpp v{v+i}, v{v+i}, v{v+i} row_ror:8 {DPPF}")

    CW, vO, vPW, vYS, vCA = VREG, VREG + 4, VREG + 5, VREG + 6, VREG + 7
    sOG, sYS, sPM = 60, 61, 62

    def t1_setup():
        a(f"s_lshr_b32 s{sT1}, s{sW}, 1"); a(f"s_lshl_b32 s{sT0}, s{sT1}, 5"); a(f"v_lshl_add_u32 v{vCA}, v{vSH}, 4, s{sT0}")
        a(f"s_and_b32 s{sT2}, s{sH}, 7"); a(f"s_lshl3_add_u32 s{sT3}, s{sT1}, s{sT2}")
        a(f"s_lshl_b32 s{sT3}, s{sT3}, 12"); a(f"s_and_b32 s{sT1}, s{sW}, 1"); a(f"s_lshl_b32 s{sT1}, s{sT1}, 8"); a(f"s_add_u32 s{sOG}, s{sT1}, s{sT3}")
        a(f"v_lshlrev_b32 v{vO}, 11, v{vSH}"); a(f"v_lshl_add_u32 v{vO}, v{vPJ}, 3, v{vO}")
        a(f"v_and_b32 v{vPW}, 0xfffffeff, v{vOW}")
        a(f"v_bfe_u32 v{vYS}, v0, 5, 1"); a(f"v_lshl_add_u32 v{vYS}, v{vYS}, {14 if h2 is None else 13}, v{vP8}")
        if h2 is not None: a(f"s_and_b32 s{sT3}, s{sT2}, 4"); a(f"s_add_u32 s{sT2}, s{sT2}, s{sT3}")
        a(f"s_lshl_b32 s{sT2}, s{sT2}, 11"); a(f"s_and_b32 s{sT3}, s{sROLE}, 7"); a(f"s_lshl_b32 s{sT3}, s{sT3}, 8")
        a(f"s_add_u32 s{sT2}, s{sT2}, s{sT3}"); a(f"s_add_u32 s{sYS}, s{sT2}, {MB2}")
        a(f"s_mov_b32 s{sPM}, 0x00ff00ff"); a(f"s_mov_b32 s{sPM+1}, 0xff00ff00")
        a(f"s_mov_b32 s{sE}, 2048")
    if e1:
        a("L_pv1:"); t1_setup()
        pv_tail(e1, tload1); a("s_branch L_pvdone")
    a("L_T1:")
    if not e1: t1_setup()
    RAW1 = 32
    oloads = [f"buffer_load_dwordx2 {q2(RAW1+2*t)}, v{vO}, {srd(rWS)}, s{sOG} offen offset:{t*SLOT} sc1" for t in range(4)]
    nlate = 8 - len(e1)
    a(f"ds_read_b128 {q4(CW)}, v{vCA} offset:{L_C}")
    vBE, vBM = VREG + 8, VREG + 9
    if vote & 2:
        a(f"ds_read_b32 v{vBE}, v{vZERO} offset:{L_BETA}")
        a(f"s_and_b32 s{sT0}, s{sH}, 7"); a(f"s_cselect_b32 s{sT0}, 0, 1"); a(f"v_mov_b32 v{vBM}, s{sT0}")
    if nlate: a("s_barrier")
    if pollfirst:
        for ld in oloads: a(ld)
    if "now" not in abl:
        for j in range(len(e1), 8): tload1(j)
    a(f"v_add_u32 v{vRO}, {L_P16 - L_OP}, v{vRO}")
    stamp("ready")
    if pollfirst:
        a(f"s_waitcnt vmcnt({nlate}) lgkmcnt(0)"); a("s_branch L_ocheck")
    else:
        a("s_waitcnt lgkmcnt(0)")
    def ocombine(r=RAW1):
        a(f"v_pk_mul_f32 {q2(RAW1)}, {q2(r)}, {q2(CW)} op_sel_hi:[1,0]")
        a(f"v_pk_fma_f32 {q2(RAW1)}, {q2(r+2)}, {q2(CW)}, {q2(RAW1)} op_sel:[0,1,0]")
        a(f"v_pk_fma_f32 {q2(RAW1)}, {q2(r+4)}, {q2(CW+2)}, {q2(RAW1)} op_sel_hi:[1,0,1]")
        a(f"v_pk_fma_f32 {q2(RAW1)}, {q2(r+6)}, {q2(CW+2)}, {q2(RAW1)} op_sel:[0,1,0]")
    if pipe1:
        poll2(lambda r: [f"buffer_load_dwordx2 {q2(r+2*t)}, v{vO}, {srd(rWS)}, s{sOG} offen offset:{t*SLOT} sc1" for t in range(4)], KREG + 16, KREG + 24, TMP, ocombine, pipe1)
    else:
        poll(oloads, [RAW1 + 2 * t + 1 for t in range(4)], TMP, check="L_ocheck" if pollfirst else None, after=ocombine, sleep=sl1)
    stamp("got")
    ror8_pair(RAW1)
    a(f"v_cvt_pk_bf16_f32 v{vPK}, v{RAW1}, v{RAW1+1}")
    build_a(0)
    for j in range(8):
        if j < 7: build_a(j + 1)
        if pollfirst and j >= len(e1): a(f"s_waitcnt vmcnt({7 - j})")
        mfma(j, w1reg(j), j == 0)
    a(f"s_mov_b64 exec, s[{sPM}:{sPM+1}]")
    a(f"s_cmp_lg_u32 s{sW}, 0")
    a(f"ds_write_b128 v{vPW}, {q4(vD)} offset:{L_P16}")
    a("s_mov_b64 exec, -1")
    a("s_waitcnt lgkmcnt(0)"); a("s_barrier")
    a("s_cbranch_scc1 L_exit")
    red16(vRO, 24)
    if not copies: a("s_mov_b32 exec_hi, 0")
    put_tag(25, 25)
    if vote & 2: a(f"v_bfi_b32 v24, v{vBM}, v{vBE}, v24")
    a(f"buffer_store_dwordx2 v[24:25], v{vYS}, {srd(rWS)}, s{sYS} offen sc1")
    stamp("pub")
    a("s_branch L_exit")

    late = t2ord == "late"
    downfirst = bool(e2) or t2ord == "dg"
    if late: RD, BD, BG, ACC = KREG, VREG, VREG, KREG + 32
    elif downfirst: RD, BD, BG, ACC = VREG, KREG + 32, VREG, KREG
    else: RD, BD, BG, ACC = KREG + 32, KREG, VREG, KREG + 32
    AG = 24
    XP, vHA, vGU, vY2, vSR, vHW, vFA, vFO, vFH, vPW2 = range(XREG + 8, XREG + 18)
    XF = 12

    def gu_loads():
        a(f"s_mov_b32 s{sE}, 2752")
        if "nof" in abl: a("s_mov_b64 exec, 1"); a(f"s_mov_b32 s{sE}, 0")
        for j in range(8): tload(j)
        if "nof" in abl: a("s_mov_b64 exec, -1")
        a(f"s_lshl_b32 s{sT1}, s{sW}, 7")
        a(f"v_lshlrev_b32 v{vHW}, 2, v{vPJ}")
        a(f"buffer_load_dword v{XP}, v{vHW}, {srd(rX)}, s{sT1} offen")
        a(f"v_add_u32 v{vHW}, s{sT1}, v{vHW}")

    sDN = 69
    sWD = 70 if dn else sW
    assert not (dn and e2)

    def down_setup():
        mksrd(rT, pWD, 0 if "nof" in abl else 1376 * 1024)
        a(f"v_lshl_add_u32 v23, v{vG2}, 11, v{vT}")
        a(f"s_lshl_b32 s{sT3}, s{sROLE}, 15"); a(f"s_lshl_b32 s{sDN}, s{sWD}, 8"); a(f"s_add_u32 s{sDN}, s{sT3}, s{sDN}")

    def down_load(k):
        jj, hi = k >> 1, k & 1
        a(f"buffer_load_dwordx4 {q4(RD+4*(jj+4*hi))}, v23, {srd(rT)}, s{sDN} offen offset:{hi*1024}")
        if hi and jj < 3: a(f"s_add_u32 s{sDN}, s{sDN}, 8192")

    def down_loads():
        a(f"s_cmp_ge_u32 s{sWD}, 4"); a("s_cbranch_scc1 L_nodown")
        down_setup()
        for k in range(8): down_load(k)
        a("L_nodown:")
    if e2:
        a("L_pv2:"); down_setup(); pv_tail(e2, down_load); a("s_branch L_pvdone")
    a("L_T2:")
    if dn: a(f"s_xor_b32 s{sWD}, s{sW}, 4")
    if late: gu_loads(); down_setup()
    elif e2: gu_loads()
    elif downfirst: down_loads(); gu_loads()
    else: gu_loads(); down_loads()
    a(f"v_lshlrev_b32 v{vHA}, 3, v{vPJ}"); a(f"v_lshl_add_u32 v{vHA}, v{vSH}, {13 if h2 is None else 14}, v{vHA}")
    a(f"s_lshl_b32 s{sT0}, s{sW}, 8"); a(f"s_add_u32 s{sT0}, s{sT0}, {MB2}")
    if copies:
        a(f"s_lshr_b32 s{sT1}, s{sXCC}, 2")
        if vote & 1:
            a(f"ds_read_b32 v30, v{vZERO} offset:{L_BETA}"); a("s_waitcnt lgkmcnt(0)")
            a(f"v_readfirstlane_b32 s{sT2}, v30"); a(f"s_xor_b32 s{sT1}, s{sT1}, s{sT2}"); a(f"s_and_b32 s{sT1}, s{sT1}, 1")
        elif h2: a(f"s_xor_b32 s{sT1}, s{sT1}, 1")
        a(f"s_lshl_b32 s{sT1}, s{sT1}, {14 if h2 is None else 13}"); a(f"s_add_u32 s{sT0}, s{sT0}, s{sT1}")
    a(f"s_add_u32 s{sT1}, s{sT0}, 4096")
    a(f"s_mul_i32 s{sT2}, s{sW}, {2*PROW}"); a(f"s_add_u32 s{sT2}, s{sT2}, {L_P16}")
    a(f"v_mul_u32_u24 v{vPW2}, {PROW}, v{vSH}"); a(f"v_add_u32 v{vPW2}, s{sT2}, v{vPW2}")
    a("v_bfe_u32 v30, v0, 1, 1"); a(f"v_lshl_add_u32 v{vPW2}, v30, 4, v{vPW2}")
    a("v_bfe_u32 v30, v0, 2, 1"); a(f"v_lshl_add_u32 v{vPW2}, v30, 3, v{vPW2}")
    a("v_and_b32 v30, 1, v0"); a(f"v_lshl_add_u32 v{vPW2}, v30, 2, v{vPW2}")
    a(f"v_and_b32 v30, 1, v{vG2}"); a("v_mul_u32_u24 v30, 320, v30"); a(f"v_add_u32 v{vPW2}, v30, v{vPW2}")
    a("v_bfe_u32 v30, v0, 2, 2"); a(f"v_mul_u32_u24 v{vGU}, {4*PROW}, v30"); a(f"v_lshl_add_u32 v{vGU}, v{vG2}, 6, v{vGU}")
    a(f"v_and_b32 v31, 3, v0"); a(f"v_lshl_add_u32 v{vGU}, v31, 4, v{vGU}")
    a(f"v_mul_u32_u24 v{vSR}, {PROW // 16}, v{vT}"); a(f"v_add_u32 v{vSR}, {L_P16}, v{vSR}")
    a(f"v_lshlrev_b32 v{vY2}, 1, v{vT}"); a(f"v_lshl_add_u32 v{vY2}, v{vG2}, 3, v{vY2}")
    M3 = MB3 if h3 is None else MB3H + (0 if vote & 2 else h3 * 8192)
    R16 = 16 * 2048 * (1 if h3 is None else 2)
    if h3 is None: a(f"s_lshl_b32 s{sT2}, s{sROLE}, 11")
    else: a(f"s_and_b32 s{sT2}, s{sROLE}, -4"); a(f"s_add_u32 s{sT2}, s{sT2}, s{sROLE}"); a(f"s_lshl_b32 s{sT2}, s{sT2}, 11")
    a(f"s_lshl_b32 s{sT3}, s{sWD}, 9"); a(f"s_add_u32 s{sT2}, s{sT2}, s{sT3}"); a(f"s_add_u32 s{sT2}, s{sT2}, {M3}")
    sFU = 68
    if fpriv:
        a(f"s_lshl_b32 s{sFU}, s{sROLE}, 1"); a(f"s_add_u32 s{sFU}, s{sFU}, s{sWD}"); a(f"s_cmp_lt_u32 s{sWD}, 2"); a(f"s_cselect_b32 s{sFU}, s{sFU}, 32")
    else:
        a(f"s_cmp_eq_u32 s{sW}, 0"); a(f"s_cselect_b32 s{sFU}, s{sROLE}, 32")
    a(f"s_min_u32 s{sFU}, s{sFU}, 32")
    a(f"v_lshrrev_b32 v{vFA}, 2, v{vL}")
    if h3 is not None: a(f"v_lshl_add_u32 v{vFA}, v{vG2}, 2, v{vFA}")
    a(f"v_lshlrev_b32 v{vFA}, 11, v{vFA}"); a(f"v_lshl_add_u32 v{vFA}, v31, 4, v{vFA}")
    a(f"v_lshl_add_u32 v{vFO}, v31, 2, v{vG2}"); a(f"s_lshl_b32 s{sT3}, s{sFU}, 4"); a(f"v_add_lshl_u32 v{vFO}, s{sT3}, v{vFO}, 1")
    sF0, sLO, sHI, sNL = 60, 64, 65, 66
    a(f"s_lshl_b32 s{sF0}, s{sFU}, 6"); a(f"s_add_u32 s{sF0}, s{sF0}, {M3}"); a(f"s_add_u32 s{sF0+1}, s{sF0}, {R16}"); a(f"s_add_u32 s{sF0+2}, s{sF0}, {2*R16}")
    mksrd(rO, pOUT, 1024)
    a(f"s_mov_b32 s{sLO}, 0x05040100"); a(f"s_mov_b32 s{sHI}, 0x07060302")
    a(f"s_mov_b32 s{sNL}, {LOG2E ^ 0x80000000:#x}"); a(f"s_mov_b32 s{sNL+1}, {LOG2E ^ 0x80000000:#x}")
    a(f"s_mov_b32 s{sE}, 0xffff00ff"); a(f"s_mov_b32 s{sE+1}, 0x0000ff00")
    vTP, vT0, vT1 = 4, 5, 6
    a(f"v_lshlrev_b32 v{vTP}, 3, v{vG2}"); a(f"v_bfe_u32 v{vTP}, s{sEP}, v{vTP}, 8")
    a(f"v_and_b32 v{vT0}, 1, v0"); a(f"v_lshlrev_b32 v{vT0}, 4, v{vT0}"); a(f"v_add_u32 v{vT1}, 8, v{vT0}")
    a(f"v_bfe_u32 v{vT0}, s{sEP}, v{vT0}, 8"); a(f"v_bfe_u32 v{vT1}, s{sEP}, v{vT1}, 8")
    for r in range(4): a(f"v_mov_b32 v{vA+r}, 0x3f803f80")
    for r in range(16): a(f"v_mov_b32 v{AG+r}, 0")

    def transpose(dst, src):
        for q in range(4):
            for r in range(4):
                a(f"v_perm_b32 v{dst+8*q+r}, v{src+4*(2*r+1)+q}, v{src+4*(2*r)+q}, s{sLO}")
                a(f"v_perm_b32 v{dst+8*q+4+r}, v{src+4*(2*r+1)+q}, v{src+4*(2*r)+q}, s{sHI}")
    def mkh(r): return [f"buffer_load_dwordx2 {q2(r+2*t)}, v{vHA}, {srd(rWS)}, s{sT1 if t >= 2 else sT0} offen offset:{(t&1)*2048} sc1" for t in range(4)]
    hloads = mkh(RAW)
    HS = 14

    def hcombine(r=RAW):
        if vote & 2: a(f"v_readfirstlane_b32 s{sT3}, v{r}"); a(f"v_and_b32 v{r}, -2, v{r}")
        pkadd(r, r, r + 2); pkadd(r + 4, r + 4, r + 6); pkadd(HS, r, r + 4)
    if late:
        a(f"s_cmp_ge_u32 s{sWD}, 4")
        a("s_waitcnt vmcnt(0)")
        for ld in hloads: a(ld)
        transpose(BG, TREG)
        unpack(XF, XF + 1, XP)
        stamp("ready")
        a("s_cbranch_scc1 L_hwait")
        if prio: a(f"s_setprio {prio}")
        for k in range(8): down_load(k)
        a("s_waitcnt vmcnt(8)"); a("s_branch L_hcheck")
        poll(hloads, [RAW + 2 * t + 1 for t in range(4)], TMP, entry="L_hwait", check="L_hcheck", after=hcombine)
    else:
        a(f"s_cmp_ge_u32 s{sWD}, 4"); a("s_cbranch_scc1 L_tr4")
        if downfirst:
            a("s_waitcnt vmcnt(9)")
            transpose(BD, RD)
        else:
            a("s_waitcnt vmcnt(8)")
            transpose(BG, TREG)
            a("s_waitcnt vmcnt(0)")
            if early_poll:
                for ld in hloads: a(ld)
            transpose(BD, RD)
            a("s_branch L_trdone")
        a("L_tr4:")
        a("s_waitcnt vmcnt(0)")
        if early_poll:
            for ld in hloads: a(ld)
        transpose(BG, TREG)
        a("L_trdone:")
        unpack(XF, XF + 1, XP)
        stamp("ready")
        if pipe2:
            poll2(mkh, RAW, XREG, TMP, hcombine, pipe2, entry="L_hwait")
        elif mask2:
            a("s_branch L_hwait")
            a("L_hagain:")
            for t in range(4):
                a(f"v_cmp_ne_u32_sdwa vcc, v{RAW+2*t+1}, v{vZERO} src0_sel:BYTE_0 src1_sel:DWORD")
                a(f"v_xor_b32 v{RAW+2*t+1}, s{sTG8}, v{RAW+2*t+1}")
                a(f"s_cbranch_vccz L_hskip{t}"); a(hloads[t]); a(f"L_hskip{t}:")
            spend()
            a("L_hwait:"); a("s_waitcnt vmcnt(0)")
            for t in range(4): a(f"v_xor_b32 v{RAW+2*t+1}, s{sTG8}, v{RAW+2*t+1}")
            vor(TMP, [RAW + 2 * t + 1 for t in range(4)])
            a(f"v_cmp_ne_u32_sdwa vcc, v{TMP}, v{vZERO} src0_sel:BYTE_0 src1_sel:DWORD")
            if vote & 2: a(f"v_readfirstlane_b32 s{sT3}, v{RAW}"); a(f"v_and_b32 v{vD}, -2, v{RAW}"); a(f"v_mov_b32 v{vD+1}, v{RAW+1}")
            pkadd(HS, RAW + 4, RAW + 6); pkadd(vD, vD if vote & 2 else RAW, RAW + 2); pkadd(HS, vD, HS)
            a("s_cbranch_vccnz L_hagain")
        else:
            if early_poll: a("s_branch L_hwait")
            poll(hloads, [RAW + 2 * t + 1 for t in range(4)], TMP, entry="L_hwait" if early_poll else None, after=hcombine, sleep=sl2)
    stamp("got")
    a(f"s_cmp_ge_u32 s{sWD}, 4")
    ror8_pair(HS)
    if not lean & 1:
        a(f"v_cvt_pk_bf16_f32 v{HS}, v{HS}, v{HS+1}")
        unpack(HS, HS + 1, HS)
    pkadd(HS, HS, XF)
    a(f"v_cvt_pk_bf16_f32 v{vPK}, v{HS}, v{HS+1}")
    a(f"ds_write_b32 v{vHW}, v{vPK} offset:{L_H}")
    for r in range(4): a(f"v_mov_b32_dpp v{vA+r}, v{vPK} row_newbcast:{r} row_mask:0xf bank_mask:0x1")
    for r in range(4): a(f"v_mov_b32_dpp v{vA+r}, v{vPK} row_newbcast:{4+r} row_mask:0xf bank_mask:0x4")
    mm(vD, vA, vA, True)
    for i in range(8): mm(ACC + 4 * i, vA, BG + 4 * i, True)
    a(f"s_mov_b64 exec, s[{sE}:{sE+1}]")
    a(f"ds_write_b32 v{vPW2}, v{vD} offset:256")
    for k in range(4): a(f"ds_write2_b32 v{vPW2}, v{ACC+8*k}, v{ACC+8*k+4} offset0:{16*k} offset1:{16*k+8}")
    a("s_mov_b64 exec, -1")
    if late:
        a("s_cbranch_scc1 L_notr")
        a("s_waitcnt vmcnt(0)")
        transpose(BD, RD)
        a("L_notr:")
        a("s_waitcnt lgkmcnt(0)"); a("s_barrier")
        a("s_cbranch_scc1 L_epoch")
        GU, CS, ST = ACC, ACC + 16, vA
    else:
        a("s_waitcnt lgkmcnt(0)"); a("s_barrier")
        a("s_cbranch_scc1 L_epoch")
        GU, CS, ST = BG, BG + 16, vA
    a(f"ds_read2_b32 {q2(ST)}, v{vSR} offset0:64 offset1:66")
    for t in range(4): a(f"ds_read_b128 {q4(CS+4*t)}, v{vGU} offset:{L_P16 + PROW*t + 320}")
    for t in range(4): a(f"ds_read_b128 {q4(GU+4*t)}, v{vGU} offset:{L_P16 + PROW*t}")
    a(f"ds_read_u16 v{vFH}, v{vFO} offset:{L_H}")
    if vote & 2:
        a(f"s_and_b32 s{sT3}, s{sT3}, 1"); a(f"s_lshl_b32 s{sT3}, s{sT3}, 13"); a(f"s_add_u32 s{sT2}, s{sT2}, s{sT3}")
        for t in range(3): a(f"s_add_u32 s{sF0+t}, s{sF0+t}, s{sT3}")
    a("s_waitcnt lgkmcnt(9)")
    steps = ("quad_perm:[1,0,3,2]", "quad_perm:[2,3,0,1]", "row_half_mirror", "row_mirror")

    def st_step(k):
        for i in range(2): a(f"v_add_f32_dpp v{ST+i}, v{ST+i}, v{ST+i} {steps[k]} {DPPF}")
    st_step(0); a("s_waitcnt lgkmcnt(7)"); pkadd(CS, CS, CS + 4)
    st_step(1); pkadd(CS + 2, CS + 2, CS + 6); a("s_waitcnt lgkmcnt(5)")
    st_step(2); pkadd(CS + 8, CS + 8, CS + 12)
    st_step(3); pkadd(CS + 10, CS + 10, CS + 14)
    MU, VAR = ST + 2, ST
    a(f"v_mul_f32 v{MU}, 0x3b000000, v{ST+1}"); a(f"v_mul_f32 v{VAR}, 0x3b000000, v{ST}")
    pkadd(CS, CS, CS + 8); pkadd(CS + 2, CS + 2, CS + 10)
    a(f"v_fma_f32 v{VAR}, -v{MU}, v{MU}, v{VAR}"); a(f"v_max_f32 v{VAR}, 0, v{VAR}")
    if not lean & 2: a(f"v_cvt_pk_bf16_f32 v{VAR}, v{VAR}, v{MU}")
    a("s_waitcnt lgkmcnt(3)")
    pkadd(GU, GU, GU + 4); pkadd(GU + 2, GU + 2, GU + 6)
    if not lean & 2: unpack(VAR, MU, VAR)
    a(f"v_add_f32 v{VAR}, {EPS:#x}, v{VAR}")
    if lean & 2: a(f"v_rsq_f32 v{VAR}, v{VAR}")
    else: bf16r(VAR, VAR); a(f"v_sqrt_f32 v{VAR}, v{VAR}")
    a("s_waitcnt lgkmcnt(1)")
    pkadd(GU + 8, GU + 8, GU + 12); pkadd(GU + 10, GU + 10, GU + 14)
    for i in (0, 2): a(f"v_pk_fma_f32 {q2(GU+i)}, {q2(CS+i)}, {q2(MU)}, {q2(GU+i)} op_sel_hi:[1,0,1] neg_lo:[0,1,0] neg_hi:[0,1,0]")
    pkadd(GU, GU, GU + 8); pkadd(GU + 2, GU + 2, GU + 10)
    if not lean & 2: bf16r(VAR, VAR)
    for i in range(4): a(f"v_add_f32_dpp v{GU+i}, v{GU+i}, v{GU+i} row_ror:4 {DPPF}")
    if not lean & 2: a(f"v_rcp_f32 v{VAR}, v{VAR}")
    for i in range(4): a(f"v_add_f32_dpp v{GU+i}, v{GU+i}, v{GU+i} row_ror:8 {DPPF}")
    for i in (0, 2): a(f"v_pk_mul_f32 {q2(GU+i)}, {q2(GU+i)}, {q2(VAR)} op_sel_hi:[1,0]")
    if lean & 4:
        a(f"v_pk_mul_f32 {q2(GU+4)}, {q2(GU)}, s[{sNL}:{sNL+1}]")
        for i in range(2): a(f"v_exp_f32 v{GU+4+i}, v{GU+4+i}")
        a(f"v_pk_mul_f32 {q2(GU)}, {q2(GU)}, {q2(GU+2)}")
        a(f"v_pk_add_f32 {q2(GU+4)}, {q2(GU+4)}, 1.0 op_sel_hi:[1,0]")
        for i in range(2): a(f"v_rcp_f32 v{GU+4+i}, v{GU+4+i}")
        a(f"v_pk_mul_f32 {q2(GU)}, {q2(GU)}, {q2(GU+4)}")
    else:
        a(f"v_cvt_pk_bf16_f32 v{GU}, v{GU}, v{GU+1}")
        unpack(GU, GU + 1, GU)
        a(f"v_pk_mul_f32 {q2(GU+4)}, {q2(GU)}, s[{sNL}:{sNL+1}]")
        for i in range(2): a(f"v_exp_f32 v{GU+4+i}, v{GU+4+i}")
        a(f"v_cvt_pk_bf16_f32 v{GU+2}, v{GU+2}, v{GU+3}")
        a(f"v_pk_add_f32 {q2(GU+4)}, {q2(GU+4)}, 1.0 op_sel_hi:[1,0]")
        for i in range(2): a(f"v_rcp_f32 v{GU+4+i}, v{GU+4+i}")
        unpack(GU + 2, GU + 3, GU + 2)
        a(f"v_pk_mul_f32 {q2(GU)}, {q2(GU)}, {q2(GU+4)}")
        a(f"v_cvt_pk_bf16_f32 v{GU}, v{GU}, v{GU+1}")
        unpack(GU, GU + 1, GU)
        a(f"v_pk_mul_f32 {q2(GU)}, {q2(GU)}, {q2(GU+2)}")
    a(f"v_cvt_pk_bf16_f32 v{vPK}, v{GU}, v{GU+1}")
    DE, DO = vD, vA + 4

    def ag(G, rs=range(4)):
        for r in rs: a(f"v_mov_b32_dpp v{AG+4*G+r}, v{vPK} row_newbcast:{r} row_mask:0xf bank_mask:{1 << G:#x}")
    ag(0); ag(1, (0, 1))
    for G in range(4):
        mm(DE, AG + 4 * G, BD + 8 * G, G == 0)
        if G < 3: ag(G + 1, (2, 3))
        mm(DO, AG + 4 * G, BD + 8 * G + 4, G == 0)
        if G < 2: ag(G + 2, (0, 1))
    FR = KREG if late else ACC
    a(f"s_cmp_ge_u32 s{sFU}, 32")
    put_tag(DE + 1, DO, f"v{vTP}")
    a(f"buffer_store_dwordx2 {q2(DE)}, v{vY2}, {srd(rWS)}, s{sT2} offen sc1")
    stamp("pub")
    a("s_cbranch_scc1 L_exit")
    a(f"v_mov_b32 v{FR+8}, 0"); a(f"v_mov_b32 v{FR+10}, 0")
    a("s_waitcnt lgkmcnt(0)")
    a(f"v_lshlrev_b32 v{vFH}, 16, v{vFH}")
    if fwait: a("s_waitcnt vmcnt(0)")
    def fcombine():
        for i in (0, 2): pkadd(FR + i, FR + i, FR + 4 + i)
        for i in (0, 2): pkadd(FR + i, FR + i, FR + 8 + i)
    if fdelay and not floop: a(f"s_sleep {fdelay}")
    poll(([f"s_sleep {fdelay}"] if fdelay and floop else []) + [f"buffer_load_dwordx4 {q4(FR)}, v{vFA}, {srd(rWS)}, s{sF0} offen {fpol}",
          f"buffer_load_dwordx4 {q4(FR+4)}, v{vFA}, {srd(rWS)}, s{sF0+1} offen {fpol}",
          f"v_mov_b32 v{FR+9}, v{vT0}", f"v_mov_b32 v{FR+11}, v{vT1}",
          "s_mov_b32 exec_hi, 0xfff",
          f"buffer_load_dwordx4 {q4(FR+8)}, v{vFA}, {srd(rWS)}, s{sF0+2} offen {fpol}",
          "s_mov_b32 exec_hi, -1"], [FR + 2 * t + 1 for t in range(6)], TMP, tags=[f"v{vT0}", f"v{vT1}"] * 3, after=fcombine)
    stamp("fgot")
    a(f"v_permlane32_swap_b32 v{FR}, v{FR+2}"); a(f"v_permlane32_swap_b32 v{FR+1}, v{FR+3}")
    pkadd(FR, FR, FR + 2)
    a(f"v_permlane16_swap_b32 v{FR}, v{FR+1}")
    a(f"v_add_f32 v{FR}, v{FR}, v{FR+1}")
    for m in ("row_ror:4", "row_ror:8"): a(f"v_add_f32_dpp v{FR}, v{FR}, v{FR} {m} {DPPF}")
    a("s_mov_b32 exec_lo, 0x000f000f"); a("s_mov_b32 exec_hi, 0x000f000f")
    if not lean & 8: bf16r(FR, FR)
    a(f"v_add_f32 v{FR}, v{FR}, v{vFH}")
    a(f"v_cvt_pk_bf16_f32 v{FR}, v{FR}, v{FR}")
    a(f"buffer_store_short v{FR}, v{vFO}, {srd(rO)}, 0 offen {outpol}")
    if amp:
        a(f"s_memrealtime s[{sE}:{sE+1}]"); a("s_waitcnt lgkmcnt(0)")
        a(f"s_sub_u32 s{sT0}, s{sST+2}, s{sST}")
        if len(amp) > 2 and amp[2] == "inv": a(f"s_sub_u32 s{sT0}, 2500, s{sT0}")
        if len(amp) > 2 and amp[2] == "fix": a(f"s_mov_b32 s{sT0}, 100")
        if len(amp) > 3 and amp[2] == "lat": lat_probe()
        elif len(amp) > 3: diag_stat()
        a(f"s_mul_i32 s{sT0}, s{sT0}, {amp[1]}")
        a(f"s_min_u32 s{sT0}, s{sT0}, 200000"); a(f"s_mov_b32 s{sT1}, s{sE}")
        a("L_amp:"); a(f"s_memrealtime s[{sE}:{sE+1}]"); a("s_waitcnt lgkmcnt(0)")
        a(f"s_sub_u32 s{sT2}, s{sE}, s{sT1}"); a(f"s_cmp_lt_u32 s{sT2}, s{sT0}"); a("s_cbranch_scc1 L_amp")
    a("L_exit:")
    if stamps:
        a("s_mov_b64 exec, -1")
        stamp("exit")
        a(f"v_writelane_b32 v{vSTAMP}, s{sROLE}, 14")
        a(f"s_mul_i32 s{sT0}, s2, {NWAVE}"); a(f"s_add_u32 s{sT0}, s{sT0}, s{sW}"); a(f"s_add_u32 s{sT0}, s{sT0}, 1")
        a(f"s_lshl_b32 s{sT0}, s{sT0}, {8 if trace else 6}"); a(f"s_add_u32 s{sT0}, s{sT0}, {STAMP}")
        a(f"v_lshlrev_b32 v{vSTAMP+1}, 2, v{vL}")
        if not trace: a("s_mov_b64 exec, 0xffff")
        a(f"buffer_store_dword v{vSTAMP}, v{vSTAMP+1}, {srd(rWS)}, s{sT0} offen")
    a("L_end:")
    a("s_endpgm")
    a("L_epoch:")
    a(f"s_lshl_b32 s{sT0}, s{sROLE}, 3"); a(f"s_add_u32 s{sT0}, s{sT0}, s{sWD}"); a(f"s_cmp_lg_u32 s{sT0}, 4"); a("s_cbranch_scc1 L_exit")
    a(f"s_mov_b32 s{sT0}, {EPOCH}"); a(f"v_mov_b32 v3, s{sEP}"); a("s_mov_b64 exec, 1")
    a(f"buffer_store_dword v3, off, {srd(rWS)}, s{sT0} sc1")
    a("L_last:")
    a("s_branch L_exit")
    assert not far

    out = HEADER + f"; @launch grid=(256,1,1) block=({64*NWAVE},1,1) lds={L_END}\n"
    out += f'.amdgcn_target "amdgcn-amd-amdhsa--gfx950"\n.text\n.globl {KNAME}\n.p2align 8\n.type {KNAME},@function\n'
    out += a.render()
    out += f'''.section .rodata,"a"
.p2align 6
.amdhsa_kernel {KNAME}
  .amdhsa_next_free_vgpr {NV}
  .amdhsa_next_free_sgpr 97
  .amdhsa_accum_offset {NV}
  .amdhsa_group_segment_fixed_size 0
  .amdhsa_kernarg_size 96
  .amdhsa_user_sgpr_count 2
  .amdhsa_user_sgpr_kernarg_segment_ptr 1
  .amdhsa_system_sgpr_workgroup_id_x 1
  .amdhsa_float_denorm_mode_32 3
.end_amdhsa_kernel
'''
    return out


if __name__ == "__main__":
    kw = {}
    for arg in sys.argv[2:]:
        k, v = arg.split("=")
        kw[k] = eval(v)
    open(sys.argv[1], "w").write(gen(**kw))
```

```python
import sys
from asmlib import Asm

KNAME = "sequential_preLN__sliding_block_cached__swiglu_ffn__decode_kernel"
HEADER = open("sequential_preLN__sliding_block_cached__swiglu_ffn__decode.s.ref").read().split("; Override launch")[0]

LOG2E = 0x3FB8AA3B
SCALE = 0x3DB504F3
EPS = 0x3727C5AC

SLOT = 512
MB1 = 0
MB2 = 0x20000
MBQ = 0x40000
MBM = 0x80000
EPOCH = 0x88000
MB3 = 0xa0000
STAMP = 1 << 20
WS_SIZE = 2 << 20
PROW = 608
L_QB, L_ST, L_F, L_MODE, L_C, L_H, L_OP, L_P16 = 0, 256, 320, 352, 384, 512, 2048, 2048 + 8192
L_END = L_P16 + 16 * PROW

NT2 = 43
NWAVE = 9
W = 4
DPPF = "row_mask:0xf bank_mask:0xf"
STAMPS = ["start", "args", "x", "qpub", "qgot", "p", "cbar", "obar", "ready", "got", "pub", "fgot", "exit"]

sH, sSP, sW, sTAG, sBUD = 3, 4, 5, 6, 7
pX, pK, pV, pWQ, pWO, pWG, pWU, pWD, pOUT, pWS = 8, 10, 12, 14, 16, 20, 22, 24, 26, 30
sMW, sEP = 18, 19
rK, rV, rQ, rX, rWS, rO, rT = 32, 36, 40, 44, 48, 52, 56
sOFF = 60
sT0, sT1, sT2, sT3 = 76, 77, 78, 79
sROLE, sIDX = 80, 81
sE = 82
sXCC, sU = 84, 85
sST = 86
sUA, sMEM = 88, 89
sPFM = 90
sTG8, sMODE, sNA = 92, 93, 94
NS = 95
vL, vKV = 1, 2
vSEL, vA, vD, vPK, vB = 4, 8, 16, 20, 21
vT = 22
KREG, VREG, XREG = 48, 112, 144
vFF, vZERO = 164, 165
vSTAMP = 166
NV = 168

OVERVIEW = """\
; ------------------------------------------------------------------------------------------------
; ------------------------------------------------------------------------------------------------
"""


def q4(r): return f"v[{r}:{r+3}]"
def q2(r): return f"v[{r}:{r+1}]"
def srd(r): return f"s[{r}:{r+3}]"


def gen(stamps=False, only=None, budget=1 << 20, pat="jjsjssj", wx=3, wsx=(7, 0xc00), pfat=(12, 12, 13, 14), pford=(0, 2, 1, 3),
        e1=(14, 15, 15, 15), stages="ABdCD", un=(6, 6, 6, 5, 5, 5, 5, 5), h2=0, h3=0, fsleep=3, hsleep=2, wtafter=4):
    a = Asm()
    far = []

    def cm(text): a("; " + text)

    def stamp(name):
        if stamps and (not only or name in only or name == "exit"):
            a(f"s_memrealtime s[{sST}:{sST+1}]"); a("s_waitcnt lgkmcnt(0)"); a(f"v_writelane_b32 v{vSTAMP}, s{sST}, {STAMPS.index(name)}")

    def mksrd(r, p, size, add=None):
        if add is None:
            a(f"s_mov_b32 s{r}, s{p}"); a(f"s_mov_b32 s{r+1}, s{p+1}")
        else:
            a(f"s_add_u32 s{r}, s{p}, s{add}"); a(f"s_addc_u32 s{r+1}, s{p+1}, 0")
        a(f"s_mov_b32 s{r+2}, {size}"); a(f"s_mov_b32 s{r+3}, 0x20000")

    def bf16r(d, s):
        a(f"v_cvt_pk_bf16_f32 v{d}, v{s}, v{s}"); a(f"v_lshlrev_b32 v{d}, 16, v{d}")

    def unpack(lo, hi, s):
        a(f"v_and_b32 v{hi}, 0xffff0000, v{s}"); a(f"v_lshlrev_b32 v{lo}, 16, v{s}")

    def pkadd(d, x, y): a(f"v_pk_add_f32 {q2(d)}, {q2(x)}, {q2(y)}")

    def add64(v, d):
        a(f"s_mov_b32 s{sT0}, {d & 0xffffffff:#x}"); a(f"s_mov_b32 s{sT1}, {-1 if d < 0 else 0}")
        a(f"v_lshl_add_u64 {q2(v)}, {q2(v)}, 0, s[{sT0}:{sT0+1}]")

    def wave_red(op, v, s):
        for m in ("quad_perm:[1,0,3,2]", "quad_perm:[2,3,0,1]", "row_half_mirror", "row_mirror"):
            a(f"{op}_dpp v{v}, v{v}, v{v} {m} {DPPF}")
        a(f"{op}_dpp v{v}, v{v}, v{v} row_bcast:15 row_mask:0xa bank_mask:0xf")
        a(f"{op}_dpp v{v}, v{v}, v{v} row_bcast:31 row_mask:0xc bank_mask:0xf")
        a(f"v_readlane_b32 s{s}, v{v}, 63")

    def red8(op, v):
        for m in ("quad_perm:[1,0,3,2]", "quad_perm:[2,3,0,1]", "row_half_mirror"):
            a(f"{op}_dpp v{v}, v{v}, v{v} {m} {DPPF}")

    def ror8_pair(v):
        for i in range(2): a(f"v_add_f32_dpp v{v+i}, v{v+i}, v{v+i} row_ror:8 {DPPF}")

    def build_a(j):
        A = vA + 4 * (j & 1)
        a(f"v_mov_b32_dpp v{vB}, v{vPK} row_newbcast:{j} {DPPF}")
        for r in range(4):
            a(f"v_perm_b32 v{A+r}, v{vB}, v{vB}, v{vSEL+r}")

    def mm(d, x, y, first):
        a(f"v_mfma_f32_16x16x32_bf16 {q4(d)}, {q4(x)}, {q4(y)}, {'0' if first else q4(d)}")

    def mfma(j, b, first): mm(vD, vA + 4 * (j & 1), b, first)

    def red16(vaddr, v, mid=None):
        for t in range(4):
            a(f"ds_read2st64_b64 {q4(v+4*t)}, v{vaddr} offset0:{2*t} offset1:{2*t+1}")
        if mid: mid()
        a("s_waitcnt lgkmcnt(2)")
        pkadd(v, v, v + 2); pkadd(v + 4, v + 4, v + 6); pkadd(v, v, v + 4)
        a("s_waitcnt lgkmcnt(0)")
        pkadd(v + 8, v + 8, v + 10); pkadd(v + 12, v + 12, v + 14); pkadd(v + 8, v + 8, v + 12)
        pkadd(v + 2, v, v + 8); pkadd(v, v, v + 8)
        a(f"v_permlane32_swap_b32 v{v}, v{v+2}"); a(f"v_permlane32_swap_b32 v{v+1}, v{v+3}")
        pkadd(v, v, v + 2)

    def vor(tmp, rs):
        rs = list(rs)
        a(f"v_or3_b32 v{tmp}, v{rs[0]}, v{rs[1]}, v{rs[2]}"); rs = rs[3:]
        while rs:
            if len(rs) >= 2:
                a(f"v_or3_b32 v{tmp}, v{tmp}, v{rs[0]}, v{rs[1]}"); rs = rs[2:]
            else:
                a(f"v_or_b32 v{tmp}, v{tmp}, v{rs[0]}"); rs = rs[1:]

    def spend():
        a(f"s_sub_u32 s{sBUD}, s{sBUD}, 1"); a("s_cbranch_scc1 L_exit")

    def poll(name, loads, tagged, tmp, after, entry=None):
        a(f"L_{name}:")
        for ld in loads: a(ld)
        spend()
        if entry: a(entry + ":")
        a("s_waitcnt vmcnt(0)")
        for r in tagged: a(f"v_xor_b32 v{r}, s{sTG8}, v{r}")
        vor(tmp, tagged)
        a(f"v_cmp_ne_u32_sdwa vcc, v{tmp}, v{vZERO} src0_sel:BYTE_0 src1_sel:DWORD")
        after()
        a(f"s_cbranch_vccnz L_{name}")

    def poll_tag(name, loads, tmp, slack=0, retry=None):
        for t in range(len(loads)): a(f"s_mov_b64 s[{sOFF+2*t}:{sOFF+2*t+1}], -1")
        a(f"L_{name}:")
        for t, ld in enumerate(loads):
            a(f"s_mov_b64 exec, s[{sOFF+2*t}:{sOFF+2*t+1}]"); a(ld[0])
        a("s_mov_b64 exec, -1")
        spend()
        a("s_waitcnt vmcnt(0)")
        a(f"s_mov_b64 s[{sE}:{sE+1}], 0")
        for t, (_, rs) in enumerate(loads):
            m = f"s[{sOFF+2*t}:{sOFF+2*t+1}]"
            a(f"v_xor_b32 v{tmp}, s{sTAG}, v{rs[0]}"); a(f"v_xor_b32 v{tmp+1}, s{sTAG}, v{rs[1]}"); a(f"v_or_b32 v{tmp}, v{tmp}, v{tmp+1}")
            a(f"v_cmp_lt_u32 {m}, {(1 << slack) - 1}, v{tmp}")
            a(f"s_or_b64 s[{sE}:{sE+1}], s[{sE}:{sE+1}], {m}")
        if retry is None:
            a(f"s_cbranch_scc1 L_{name}")
        else:
            a(f"s_cbranch_scc1 L_{name}_again")

            def again():
                a(f"L_{name}_again:"); retry(); a(f"s_branch L_{name}")
            far.append(again)

    def lds_wait(name, read, rs, sleep=0):
        a(f"L_{name}:")
        a(read)
        a("s_waitcnt lgkmcnt(0)")
        if len(rs) == 2: a(f"v_max_u32 v{vB}, v{rs[0]}, v{rs[1]}")
        else: a(f"v_max3_u32 v{vB}, v{rs[0]}, v{rs[1]}, v{rs[2]}"); a(f"v_max_u32 v{vB}, v{vB}, v{rs[3]}")
        a(f"v_cmp_eq_u32 vcc, -1, v{vB}")
        a(f"s_cbranch_vccnz L_{name}_again")

        def again():
            a(f"L_{name}_again:")
            if sleep: a(f"s_sleep {sleep}")
            spend(); a(f"s_branch L_{name}")
        far.append(again)

    def put_tag(d, s):
        a(f"v_bfi_b32 v{d}, v{vFF}, s{sTG8}, v{s}")

    def mode_store(name, text):
        a(f"s_cbranch_scc1 L_{name}_through")
        a(text)
        a(f"L_{name}_done:")

        def other():
            a(f"L_{name}_through:"); a(text + " sc1"); a(f"s_branch L_{name}_done")
        far.append(other)

    def emit_far():
        for f in list(far): f()
        far.clear()

    def selectors():
        cm("byte selectors that place one bf16 of a broadcast pair at this lane's k position")
        t0, t1, t2 = 32, 33, 34
        a(f"v_and_b32 v{t0}, 8, v0"); a(f"v_mov_b32 v{t1}, 0x0100"); a(f"v_mov_b32 v{t2}, 0x0302")
        a(f"v_cmp_ne_u32 vcc, 0, v{t0}"); a(f"v_cndmask_b32 v{t1}, v{t1}, v{t2}, vcc")
        a(f"v_or_b32 v{t2}, 0x0c0c0000, v{t1}")
        a(f"v_lshlrev_b32 v{t1}, 16, v{t1}"); a(f"v_or_b32 v{t1}, 0x0c0c, v{t1}")
        a(f"v_and_b32 v{t0}, 1, v0"); a(f"v_cmp_ne_u32 vcc, 0, v{t0}"); a(f"v_cndmask_b32 v{t1}, v{t2}, v{t1}, vcc")
        a(f"v_bfe_u32 v{t0}, v0, 1, 2"); a(f"v_mov_b32 v{t2}, 0x0c0c0c0c")
        for r in range(4):
            a(f"v_cmp_eq_u32 vcc, {r}, v{t0}"); a(f"v_cndmask_b32 v{vSEL+r}, v{t2}, v{t1}, vcc")

    def tag_from_epoch():
        cm("launch tag: four byte counters with co-prime periods, each one step past the word found on entry")
        a(f"s_add_u32 s{sTG8}, s{sTAG}, 1"); a(f"s_and_b32 s{sTG8}, s{sTG8}, 0xff"); a(f"s_mov_b32 s{sEP}, s{sTG8}")
        for k, m in ((1, 255), (2, 253), (3, 251)):
            a(f"s_bfe_u32 s{sT1}, s{sTAG}, {0x80000 | 8*k:#x}"); a(f"s_add_u32 s{sT1}, s{sT1}, 1")
            a(f"s_cmp_lt_u32 s{sT1}, {m}"); a(f"s_cselect_b32 s{sT1}, s{sT1}, 0")
            a(f"s_lshl_b32 s{sT1}, s{sT1}, {8*k}"); a(f"s_or_b32 s{sEP}, s{sEP}, s{sT1}")
        a(f"s_and_b32 s{sTAG}, s{sEP}, -8")

    seq = [("k", j) for j in range(16)] + [("v", j) for j in range(16)]
    issued, done = [0], [0]
    def vreg(j): return VREG + 4 * j if j < 8 else KREG + 16 + 4 * (j - 8)

    def issue_to(n):
        while issued[0] < min(n, len(seq)):
            kind, j = seq[issued[0]]
            if kind == "k": a.vmem(f"buffer_load_dwordx4 {q4(KREG+4*j)}, v{vKV}, {srd(rK)}, s{sOFF+j} offen nt", (kind, j))
            else: a.vmem(f"buffer_load_dwordx4 {q4(vreg(j))}, v{vKV}, {srd(rV)}, s{sOFF+j} offen nt", (kind, j))
            issued[0] += 1

    def advance(upto):
        while done[0] <= seq.index(upto):
            a.wait_vm(seq[done[0]]); done[0] += 1
            issue_to(done[0] + W)

    def scatter(x, ch):
        return sum(((x >> k) & 1) << p for k, p in enumerate(13 + i for i, c in enumerate(pat) if c == ch))
    KVSIZE = scatter(15, "j") + 8192
    assert pat.startswith("j" * wx.bit_length())

    def offsets(js):
        for j in js:
            if j: a(f"s_xor_b32 s{sOFF+j}, s{sOFF}, {scatter(j, 'j'):#x}")
            else: a(f"s_lshl_b32 s{sOFF}, s{sW}, 7"); a(f"s_and_b32 s{sOFF}, s{sOFF}, {wx << 13:#x}")

    def kv_base():
        ps = [13 + i for i, c in enumerate(pat) if c == "s"]
        a(f"s_lshl3_add_u32 s{sT0}, s{sH}, 7"); a(f"s_lshl_b32 s{sT0}, s{sT0}, 20")
        k = 0
        while k < 3:
            n = 1
            while k + n < 3 and ps[k + n] == ps[k] + n: n += 1
            if n == 3: a(f"s_lshl_b32 s{sT1}, s{sSP}, {ps[0]}")
            elif k == 0: a(f"s_and_b32 s{sT1}, s{sSP}, {(1 << n) - 1}"); a(f"s_lshl_b32 s{sT1}, s{sT1}, {ps[k]}")
            elif k + n == 3: a(f"s_lshr_b32 s{sT1}, s{sSP}, {k}"); a(f"s_lshl_b32 s{sT1}, s{sT1}, {ps[k]}")
            else: a(f"s_bfe_u32 s{sT1}, s{sSP}, {(n << 16) | k:#x}"); a(f"s_lshl_b32 s{sT1}, s{sT1}, {ps[k]}")
            a(f"s_add_u32 s{sT0}, s{sT0}, s{sT1}")
            k += n

    def ids():
        a(f"s_and_b32 s{sH}, s2, 31"); a(f"s_lshr_b32 s{sSP}, s2, 5")

    def ids2():
        a(f"s_mov_b32 s{sBUD}, {budget}"); a(f"s_lshl3_add_u32 s{sIDX}, s{sH}, s{sSP}")
        a(f"s_getreg_b32 s{sXCC}, hwreg(HW_REG_XCC_ID, 0, 3)"); a(f"v_and_b32 v{vL}, 63, v0")

    T, MM = 26, 30
    allargs = "s_load_dwordx16 s[8:23], s[0:1], 0\ns_load_dwordx8 s[24:31], s[0:1], 64"

    a(f"{KNAME}:")
    cm("the first 256 bytes reach the first K loads")
    if stamps: a(f"s_memrealtime s[{sST}:{sST+1}]")
    a(f"s_load_dwordx2 s[{rK}:{rK+1}], s[0:1], 8")
    a("s_cmpk_ge_u32 s2, 256"); a("s_cbranch_scc1 L_end")
    a(f"v_readfirstlane_b32 s{sW}, v0")
    a(f"s_cmpk_lt_u32 s{sW}, 64"); a("s_cbranch_scc1 L_helper_args")
    a("v_subrev_u32 v0, 64, v0")
    cm("pull the code into L2 while the kernel argument is in flight")
    a(f"s_getpc_b64 s[{sE}:{sE+1}]")
    a("L_pc:")
    a("v_lshlrev_b32 v24, 5, v0"); a("v_min_u32 v24, L_last-L_pc, v24")
    a(f"global_load_dword v3, v24, s[{sE}:{sE+1}]")
    ids()
    cm("key order: any bijection serves; this one spreads concurrent requests over channels and memory stacks")
    a(f"v_lshlrev_b32 v{vKV}, 4, v0")
    a(f"s_lshl_b32 s{sT1}, s2, {wsx[0]}"); a(f"s_and_b32 s{sT1}, s{sT1}, {wsx[1]:#x}"); a(f"v_xor_b32 v{vKV}, s{sT1}, v{vKV}")
    kv_base()
    offsets(range(W))
    a(f"s_mov_b32 s{rK+3}, 0x20000"); a(f"s_mov_b32 s{rK+2}, {KVSIZE:#x}")
    a("s_waitcnt lgkmcnt(0)")
    a(f"s_add_u32 s{rK}, s{rK}, s{sT0}"); a(f"s_addc_u32 s{rK+1}, s{rK+1}, 0")
    issue_to(W)
    a("s_branch L_stream")
    a("L_helper_args:"); a(allargs); a("s_branch L_helper0")
    a(".p2align 8")

    a("L_helper0:")
    a("s_setprio 1")
    vXA, vXO, vQO = 22, 23, 3
    XA, XO = 28, 27
    cm("clear the LDS words that waves wait on (q, statistics, rescale factors, store mode)")
    a("v_lshlrev_b32 v24, 3, v0"); a("v_mov_b32 v30, -1"); a("v_mov_b32 v31, -1")
    a("ds_write_b64 v24, v[30:31]")
    ids()
    cm("x, and rows 64 s + 4 j + g of this head's 128 columns of wq")
    a(f"v_lshlrev_b32 v{vXA}, 4, v0")
    a("v_lshrrev_b32 v24, 4, v0"); a("v_and_b32 v25, 15, v0")
    a(f"s_lshl_b32 s{sT1}, s{sSP}, 6"); a(f"v_add_u32 v24, s{sT1}, v24")
    a(f"v_lshl_add_u32 v{vXO}, v25, 2, v24"); a(f"v_lshlrev_b32 v{vXO}, 1, v{vXO}")
    a(f"v_lshlrev_b32 v{vQO}, 13, v24"); a(f"v_lshl_add_u32 v{vQO}, v25, 4, v{vQO}")
    a(f"s_lshl_b32 s{sT0}, s{sH}, 8"); a(f"s_mov_b32 s{sT1}, 0x8000")
    a(f"s_mov_b32 s{rQ+2}, 0x400000"); a(f"s_mov_b32 s{rQ+3}, 0x20000")
    a("s_waitcnt lgkmcnt(0)")
    a("s_barrier")
    a(f"global_load_dwordx4 {q4(XA)}, v{vXA}, s[{pX}:{pX+1}]")
    a(f"global_load_ushort v{XO}, v{vXO}, s[{pX}:{pX+1}]")
    a(f"s_mov_b64 s[{rQ}:{rQ+1}], s[{pWQ}:{pWQ+1}]")
    for j in range(16):
        a(f"buffer_load_dwordx4 {q4(KREG+4*j)}, v{vQO}, {srd(rQ)}, s{sT0} offen nt")
        if j < 15: a(f"s_add_u32 s{sT0}, s{sT0}, s{sT1}")
    a(f"s_mov_b32 s{sW}, -1")
    a("s_branch L_helper")

    a("L_stream:")
    a(allargs)
    a("s_barrier")
    if stamps: a(f"v_mov_b32 v{vSTAMP}, 0"); a(f"v_writelane_b32 v{vSTAMP}, s{sST}, 0")
    stamp("args")
    offsets(range(W, 16))
    a(f"s_lshr_b32 s{sW}, s{sW}, 6"); a(f"s_sub_u32 s{sW}, s{sW}, 1")
    ids2()
    a("s_waitcnt lgkmcnt(0)")
    mksrd(rV, pV, KVSIZE, sT0); mksrd(rX, pX, 1024)
    selectors()
    cm("lane fields (lane = 16 g + 8 sh + j) and epilogue addresses")
    vG2, vJ, vSH, vOW, vRO, vP8, _, vPJ = range(XREG, XREG + 8)
    a(f"v_bfe_u32 v{vG2}, v0, 4, 2"); a(f"v_and_b32 v{vJ}, 7, v0"); a(f"v_bfe_u32 v{vSH}, v0, 3, 1")
    a(f"v_and_b32 v{vT}, 15, v0"); a(f"v_lshlrev_b32 v{vT}, 4, v{vT}")
    a(f"v_lshrrev_b32 v{vOW}, 5, v0"); a(f"v_lshlrev_b32 v{vOW}, 9, v{vOW}"); a(f"v_lshl_add_u32 v{vOW}, v{vT}, 1, v{vOW}")
    a(f"v_and_b32 v32, 1, v{vG2}"); a(f"v_lshl_add_u32 v{vOW}, v32, 4, v{vOW}")
    a(f"v_and_b32 v{vP8}, 31, v0"); a(f"v_lshlrev_b32 v{vP8}, 3, v{vP8}")
    a("v_bfe_u32 v32, v0, 5, 1"); a(f"v_lshl_add_u32 v{vRO}, v32, 12, v{vP8}")
    a(f"s_lshl_b32 s{sT1}, s{sW}, 8"); a(f"s_add_u32 s{sT2}, s{sT1}, {L_OP}"); a(f"v_add_u32 v{vRO}, s{sT2}, v{vRO}")
    a(f"s_lshl_b32 s{sU}, s{sIDX}, 9"); a(f"s_add_u32 s{sU}, s{sU}, s{sT1}")
    a(f"v_mov_b32 v{vFF}, 0xff"); a(f"v_mov_b32 v{vZERO}, 0")
    a(f"v_lshl_add_u32 v{vPJ}, v{vG2}, 3, v{vJ}")
    advance(("k", 3))
    a(f"s_load_dword s{sTAG}, s[{pWS}:{pWS+1}], {EPOCH}")
    mksrd(rWS, pWS, WS_SIZE)
    cm("tail role: 64 + i for a wo unit, the FFN unit number, or 63")
    first = [sum(un[:g]) for g in range(8)]
    assert sum(un) == NT2 and max(un) <= 7
    a(f"s_and_b32 s{sT1}, s{sH}, 7"); a(f"s_lshl_b32 s{sT3}, s{sT1}, 3")
    a(f"s_mov_b32 s{sT0}, {sum(first[g] << (8 * g) for g in range(4)):#x}"); a(f"s_mov_b32 s{sT1}, {sum(first[g + 4] << (8 * g) for g in range(4)):#x}")
    a(f"s_lshr_b64 s[{sT0}:{sT0+1}], s[{sT0}:{sT0+1}], s{sT3}"); a(f"s_and_b32 s{sUA}, s{sT0}, 0xff")
    a(f"s_lshr_b32 s{sT3}, s{sT3}, 1"); a(f"s_lshr_b32 s{sNA}, {sum(un[g] << (4 * g) for g in range(8)):#x}, s{sT3}"); a(f"s_and_b32 s{sNA}, s{sNA}, 15")
    a(f"s_lshr_b32 s{sMEM}, s2, 3")
    a(f"s_sub_u32 s{sT1}, s{sMEM}, 8"); a(f"s_add_u32 s{sT3}, s{sT1}, s{sUA}")
    a(f"s_cmp_lt_u32 s{sT1}, s{sNA}"); a(f"s_cselect_b32 s{sROLE}, s{sT3}, 63")
    a(f"s_add_u32 s{sT3}, s{sMEM}, 64")
    a(f"s_cmp_lt_u32 s{sMEM}, 8"); a(f"s_cselect_b32 s{sROLE}, s{sT3}, s{sROLE}")
    vAD64, vPA = XREG + 18, 44
    cm("splits 4..7 fetch 32 rows each of their head's part of wo behind their last V loads")
    a(f"s_mov_b32 s{sE+1}, 0"); a("v_mov_b32 v33, 0")
    a(f"s_cmp_lt_u32 s{sSP}, 4"); a(f"s_cselect_b64 s[{sPFM}:{sPFM+1}], 1, -1")
    a(f"s_and_b32 s{sT2}, s{sSP}, 3"); a(f"s_lshl2_add_u32 s{sT1}, s{sH}, s{sT2}"); a(f"s_lshl_b32 s{sT1}, s{sT1}, 15")
    a(f"v_add_u32 v32, s{sT1}, v{vKV}")
    a(f"v_lshl_add_u64 {q2(vAD64)}, v[32:33], 0, s[{pWO}:{pWO+1}]")
    a(f"s_cmp_lt_u32 s{sROLE}, {NT2}"); a("s_cbranch_scc1 L_addr_ffn")
    a(f"s_cmp_lt_u32 s{sROLE}, 64"); a("s_cbranch_scc1 L_addr_fetch")
    cm("wo block: rows (a + 8 (w >> 1)) * 128 + 64 (w & 1) + 16 g + sh + 2 t, columns 64 i + 8 j")
    a(f"v_lshl_add_u32 v32, v{vG2}, 4, v{vSH}")
    a(f"s_and_b32 s{sT1}, s{sH}, 7"); a(f"s_lshl_b32 s{sT1}, s{sT1}, 17")
    a(f"s_lshr_b32 s{sT2}, s{sW}, 1"); a(f"s_lshl_b32 s{sT2}, s{sT2}, 20"); a(f"s_add_u32 s{sT1}, s{sT1}, s{sT2}")
    a(f"s_and_b32 s{sT2}, s{sW}, 1"); a(f"s_lshl_b32 s{sT2}, s{sT2}, 16"); a(f"s_add_u32 s{sT1}, s{sT1}, s{sT2}")
    a(f"s_and_b32 s{sT2}, s{sROLE}, 7"); a(f"s_lshl_b32 s{sT2}, s{sT2}, 7"); a(f"s_add_u32 s{sT1}, s{sT1}, s{sT2}")
    a("v_lshlrev_b32 v32, 10, v32"); a(f"v_lshl_add_u32 v32, v{vJ}, 4, v32"); a(f"v_add_u32 v32, s{sT1}, v32")
    a(f"v_lshl_add_u64 {q2(vPA)}, v[32:33], 0, s[{pWO}:{pWO+1}]")
    a(f"s_mov_b32 s{sE}, 2048")
    a("s_branch L_addr_done")
    a("L_addr_ffn:")
    cm("gate | up block: rows 64 w + 16 g + 8 sh + t, columns 32 u + 8 (lane & 3), matrix = lane bit 2")
    a("v_and_b32 v32, 0x1f8, v0"); a("v_mul_u32_u24 v32, 2752, v32")
    a("v_and_b32 v34, 3, v0"); a("v_lshl_add_u32 v32, v34, 4, v32")
    a(f"s_lshl_b32 s{sT1}, s{sROLE}, 6")
    a("s_branch L_addr_gu")
    a("L_addr_fetch:")
    cm("one line per lane: rows 16 m + 8 hi + lo of the group's gate / up columns (lane = hi, lo, matrix, line)")
    a(f"s_lshl_b32 s{sT1}, s{sNA}, 6"); a(f"s_sub_u32 s{sT1}, s{sT1}, 4")
    a("v_and_b32 v32, 3, v0"); a("v_lshlrev_b32 v32, 7, v32"); a(f"v_min_u32 v32, s{sT1}, v32")
    a("v_bfe_u32 v34, v0, 3, 2"); a("v_bfe_u32 v35, v0, 5, 1"); a("v_lshl_add_u32 v34, v35, 3, v34")
    a("v_mul_u32_u24 v34, 2752, v34"); a("v_add_u32 v32, v32, v34")
    a(f"s_and_b32 s{sT2}, s{sMEM}, 15")
    a(f"s_mul_i32 s{sT1}, s{sT2}, {16*2752}"); a(f"s_lshl_b32 s{sT3}, s{sUA}, 6"); a(f"s_add_u32 s{sT1}, s{sT1}, s{sT3}")
    a("L_addr_gu:")
    a(f"v_add_u32 v32, s{sT1}, v32")
    a(f"v_lshl_add_u64 {q2(vPA)}, v[32:33], 0, s[{pWG}:{pWG+1}]")
    a("s_mov_b32 exec_lo, 0xf0f0f0f0"); a("s_mov_b32 exec_hi, 0xf0f0f0f0")
    a(f"v_lshl_add_u64 {q2(vPA)}, v[32:33], 0, s[{pWU}:{pWU+1}]")
    a("s_mov_b64 exec, -1")
    a(f"s_mov_b32 s{sE}, 2752")
    a("L_addr_done:")
    advance(("k", 7))
    a("s_waitcnt lgkmcnt(0)")
    tag_from_epoch()
    advance(("k", 15))

    cm("---- scores: lane (g, c) ends with the score of key g of load c")
    QP, SJ = 40, 24
    lds_wait("wait_q", f"ds_read_b128 {q4(QP)}, v{vT} offset:{L_QB}", list(range(QP, QP + 4)))
    stamp("qgot")
    for i in range(4):
        for j in range(16):
            a(f"v_dot2_f32_bf16 v{SJ+j}, v{KREG+4*j+i}, v{QP+i}, {'0' if i == 0 else 'v%d' % (SJ+j)}")
    for j in range(8):
        a(f"v_add_f32_dpp v{SJ+j}, v{SJ+j}, v{SJ+j} row_ror:8 row_mask:0xf bank_mask:0x3")
    for j in range(8):
        a(f"v_add_f32_dpp v{SJ+j}, v{SJ+j+8}, v{SJ+j+8} row_ror:8 row_mask:0xf bank_mask:0xc")
    for j in range(4):
        a(f"v_add_f32_dpp v{SJ+j}, v{SJ+j}, v{SJ+j} row_half_mirror row_mask:0xf bank_mask:0x5")
    for j in range(4):
        a(f"v_add_f32_dpp v{SJ+j}, v{SJ+j+4}, v{SJ+j+4} row_half_mirror row_mask:0xf bank_mask:0xa")
    for j in range(4):
        a(f"v_add_f32_dpp v{SJ+j}, v{SJ+j}, v{SJ+j} quad_perm:[1,0,3,2] {DPPF}")
    a("s_mov_b32 vcc_lo, 0xaaaaaaaa"); a("s_mov_b32 vcc_hi, 0xaaaaaaaa")
    a(f"v_cndmask_b32 v{SJ}, v{SJ}, v{SJ+1}, vcc"); a(f"v_cndmask_b32 v{SJ+2}, v{SJ+2}, v{SJ+3}, vcc")
    a(f"v_add_f32_dpp v{SJ}, v{SJ}, v{SJ} quad_perm:[2,3,0,1] {DPPF}")
    a(f"v_add_f32_dpp v{SJ+2}, v{SJ+2}, v{SJ+2} quad_perm:[2,3,0,1] {DPPF}")
    a("s_mov_b32 vcc_lo, 0xcccccccc"); a("s_mov_b32 vcc_hi, 0xcccccccc")
    SC = SJ
    a(f"v_cndmask_b32 v{SC}, v{SJ}, v{SJ+2}, vcc")
    bf16r(SC, SC); a(f"v_mul_f32 v{SC}, {SCALE:#x}, v{SC}"); bf16r(SC, SC)
    cm("p = exp(score - wave max), kept as a bf16 high and low part; (max, sum) go to LDS")
    a(f"v_mov_b32 v{T}, v{SC}"); wave_red("v_max_f32", T, sMW)
    a(f"v_subrev_f32 v{SC}, s{sMW}, v{SC}"); a(f"v_mul_f32 v{SC}, {LOG2E:#x}, v{SC}"); a(f"v_exp_f32 v{SC}, v{SC}")

    def split_p():
        bf16r(T, SC); a(f"v_sub_f32 v{T}, v{SC}, v{T}")
        a(f"v_cvt_pk_bf16_f32 v{vPK}, v{SC}, v{T}")
    split_p()
    a(f"v_mov_b32 v{T}, v{SC}"); wave_red("v_add_f32", T, sT2)
    a(f"v_mov_b32 v{T}, s{sMW}"); a(f"v_mov_b32 v{T+1}, s{sT2}")
    a(f"s_lshl_b32 s{sT1}, s{sW}, 3"); a(f"v_mov_b32 v{T+2}, s{sT1}")
    a("s_mov_b64 exec, 1"); a(f"ds_write_b64 v{T+2}, {q2(T)} offset:{L_ST}"); a("s_mov_b64 exec, -1")
    stamp("p")

    cm("---- o = p @ V")
    for j in range(12):
        build_a(j)
        advance(("v", j | 3))
        mfma(j, vreg(j), j == 0)
    assert issued[0] == len(seq)
    cm("move to the workgroup max: factor exp(wave max - workgroup max) from the helper wave")
    a(f"v_lshrrev_b32 v{T+2}, 1, v{T+2}")
    lds_wait("wait_f", f"ds_read_b32 v32, v{T+2} offset:{L_F}\nds_read_b32 v33, v{vZERO} offset:{L_MODE}", [32, 33])
    a(f"v_readfirstlane_b32 s{sMODE}, v33")
    a(f"v_mul_f32 v{SC}, v{SC}, v32")
    for r in range(4): a(f"v_mul_f32 v{vD+r}, v{vD+r}, v32")
    split_p()
    stamp("cbar")

    def w1reg(j): return KREG + 4 * j if j < 4 else VREG + 4 * j

    def tload(j, reg):
        a(f"global_load_dwordx4 {q4(reg)}, {q2(vPA)}, off")
        if j < 7: a(f"v_lshl_add_u64 {q2(vPA)}, {q2(vPA)}, 0, s[{sE}:{sE+1}]")

    def pf_load(k):
        a(f"s_mov_b64 exec, s[{sPFM}:{sPFM+1}]")
        a(f"global_load_dwordx4 {q4(KREG+48)}, {q2(vAD64)}, off")
        a("s_mov_b64 exec, -1")
        if k < 3: add64(vAD64, (pford[k + 1] - pford[k]) * 8192)

    def pv_tail(e, load):
        k = 0
        for j in range(12, 16):
            build_a(j)
            a(f"s_waitcnt vmcnt({15 - j + k})")
            mfma(j, vreg(j), False)
            for _ in range(e.count(j)):
                load(k); k += 1
    assert len(pfat) == 4 and sorted(pford) == [0, 1, 2, 3] and pford[0] == 0
    a(f"s_cmp_ge_u32 s{sROLE}, 64"); a("s_cbranch_scc1 L_pv_wo")
    pv_tail(pfat, pf_load)
    a("L_pv_done:")
    a(f"ds_write_b128 v{vOW}, {q4(vD)} offset:{L_OP}")
    a(f"s_cmp_ge_u32 s{sW}, 2")
    cm("the helper wave has ended when this barrier opens")
    a("s_waitcnt lgkmcnt(0)"); a("s_barrier")
    stamp("obar")
    a("s_cbranch_scc1 L_published")
    cm("waves 0, 1: add the 16 partial rows and publish 64 columns of o each")
    red16(vRO, 24, mid=lambda: a(f"s_cmp_lg_u32 s{sMODE}, 0"))
    a("s_mov_b32 exec_hi, 0")
    put_tag(25, 25)
    mode_store("ost", f"buffer_store_dwordx2 v[24:25], v{vP8}, {srd(rWS)}, s{sU} offen")
    a("s_mov_b32 exec_hi, -1")
    stamp("x")
    a("L_published:")
    a(f"s_cmp_ge_u32 s{sROLE}, 64"); a("s_cbranch_scc1 L_wo")
    a("s_barrier")
    a(f"s_cmp_lt_u32 s{sROLE}, {NT2}"); a("s_cbranch_scc1 L_ffn")
    cm("members 16..31: FFN lines into L2 in the order the FFN units ask for them")
    a(f"s_cmp_lt_u32 s{sMEM}, 16"); a("s_cbranch_scc1 L_exit")
    a(f"s_cmp_lg_u32 s{sW}, 2"); a("s_cbranch_scc1 L_exit")
    at = 0
    for c in stages:
        if c == "d":
            mksrd(rT, pWD, 1376 * 1024)
            a(f"s_lshl_b32 s{sT0}, s{sNA}, 4"); a(f"s_and_b32 s{sT2}, s{sMEM}, 15"); a(f"s_mul_i32 s{sT2}, s{sT2}, s{sT0}")
            a(f"s_lshl_b32 s{sT3}, s{sUA}, 8"); a(f"s_add_u32 s{sT2}, s{sT2}, s{sT3}"); a(f"s_lshl_b32 s{sT2}, s{sT2}, 7")
            a(f"v_lshlrev_b32 v32, 7, v{vL}"); a(f"buffer_load_dword v3, v32, {srd(rT)}, s{sT2} offen")
            a(f"s_sub_u32 s{sT0}, s{sT0}, 1"); a(f"v_add_u32 v32, 64, v{vL}"); a(f"v_min_u32 v32, s{sT0}, v32"); a("v_lshlrev_b32 v32, 7, v32")
            a(f"buffer_load_dword v3, v32, {srd(rT)}, s{sT2} offen")
        else:
            row = {"A": 0, "B": 4, "C": 256, "D": 260}[c]
            if row != at: add64(vPA, (row - at) * 2752)
            at = row
            a(f"global_load_dword v3, {q2(vPA)}, off")
    a("s_branch L_exit")
    emit_far()

    a("L_helper:")
    if stamps: a(f"v_mov_b32 v{vSTAMP}, 0"); a(f"v_writelane_b32 v{vSTAMP}, s{sST}, 0"); a(f"s_mov_b32 s{sROLE}, 63")
    a(f"s_load_dword s{sTAG}, s[{pWS}:{pWS+1}], {EPOCH}")
    ids2()
    selectors()
    mksrd(rWS, pWS, WS_SIZE)
    a("s_waitcnt vmcnt(16)")
    stamp("x")
    cm("LN(x), two passes, rounded like the reference")
    U = 32
    for i in range(4): unpack(U + 2 * i, U + 2 * i + 1, XA + i)
    S, M_, R_ = 40, 41, 42
    a(f"v_add_f32 v{S}, v{U}, v{U+1}")
    for i in range(2, 8): a(f"v_add_f32 v{S}, v{S}, v{U+i}")
    wave_red("v_add_f32", S, sT1)
    a(f"v_mov_b32 v{M_}, 0x3b000000"); a(f"v_mul_f32 v{M_}, s{sT1}, v{M_}")
    for i in range(8): a(f"v_sub_f32 v{U+i}, v{U+i}, v{M_}")
    a(f"v_mul_f32 v{S}, v{U}, v{U}")
    for i in range(1, 8): a(f"v_fmac_f32 v{S}, v{U+i}, v{U+i}")
    wave_red("v_add_f32", S, sT1)
    a(f"v_mov_b32 v{S}, 0x3b000000"); a(f"v_mul_f32 v{S}, s{sT1}, v{S}")
    bf16r(M_, M_); bf16r(S, S)
    a(f"v_add_f32 v{S}, {EPS:#x}, v{S}"); bf16r(S, S)
    a(f"v_sqrt_f32 v{S}, v{S}"); bf16r(S, S)
    a(f"v_rcp_f32 v{R_}, v{S}")
    a(f"v_lshlrev_b32 v{XO}, 16, v{XO}"); a(f"v_sub_f32 v{XO}, v{XO}, v{M_}"); bf16r(XO, XO)
    a(f"v_mul_f32 v{XO}, v{XO}, v{R_}")
    a(f"v_cvt_pk_bf16_f32 v{vPK}, v{XO}, 0")
    a("s_waitcnt lgkmcnt(0)")
    tag_from_epoch()
    cm("partial q over 64 rows")
    for j in range(16):
        build_a(j)
        if j % 4 == 0: a(f"s_waitcnt vmcnt({12 - j})")
        mfma(j, KREG + 4 * j, j == 0)
    cm("publish 128 x (value, tag); every second tag also names this die")
    a("v_and_b32 v24, 15, v0"); a("v_bfe_u32 v25, v0, 4, 1"); a("v_lshrrev_b32 v26, 5, v0")
    a("v_lshlrev_b32 v24, 6, v24"); a("v_lshl_add_u32 v24, v25, 5, v24"); a("v_lshl_add_u32 v24, v26, 4, v24")
    a(f"s_lshl_b32 s{sT2}, s{sIDX}, 10"); a(f"s_add_u32 s{sT2}, s{sT2}, {MBQ}")
    a(f"s_xor_b32 s{sT3}, s{sTAG}, s{sXCC}")
    a(f"v_permlane32_swap_b32 v{vD}, v{vD+2}"); a(f"v_permlane32_swap_b32 v{vD+1}, v{vD+3}")
    a(f"v_mov_b32 v{vD+2}, v{vD+1}"); a(f"v_mov_b32 v{vD+1}, s{sTAG}"); a(f"v_mov_b32 v{vD+3}, s{sT3}")
    qstore = f"buffer_store_dwordx4 {q4(vD)}, v24, {srd(rWS)}, s{sT2} offen"
    a(qstore)
    stamp("qpub")
    a(f"s_lshl_b32 s{sT0}, s{sH}, 13"); a(f"s_add_u32 s{sT0}, s{sT0}, {MBQ}"); a(f"s_add_u32 s{sU}, s{sT0}, 4096")
    a(f"s_mov_b32 s{sT1}, 0")
    GQ = KREG

    def q_retry():
        cm("a sibling that stays invisible may be on another die and cannot see the plain store either: write through")
        a(f"s_add_u32 s{sT1}, s{sT1}, 1"); a(f"s_cmp_lg_u32 s{sT1}, {wtafter}"); a("s_cbranch_scc1 L_gather_q")
        a(qstore + " sc1")
    a("s_waitcnt vmcnt(0)")
    poll_tag("gather_q", [(f"buffer_load_dwordx4 {q4(GQ+4*t)}, v{vXA}, {srd(rWS)}, s{sU if t >= 4 else sT0} offen offset:{(t&3)*1024} sc1", [GQ+4*t+1, GQ+4*t+3]) for t in range(8)],
             26, slack=3, retry=q_retry)
    cm("a sibling that names another die needs the written-through copy")
    for t in range(8): a(f"v_xor_b32 v{GQ+4*t+3}, s{sT3}, v{GQ+4*t+3}")
    vor(26, [GQ + 4 * t + 3 for t in range(8)])
    a("v_cmp_ne_u32 vcc, 0, v26"); a("s_cbranch_vccz L_same_die")
    a(qstore + " sc1")
    a("L_same_die:")
    for st in (16, 8, 4):
        for i in range(0, st, 2): a(f"v_add_f32 v{GQ+i}, v{GQ+i}, v{GQ+i+st}")
    a(f"v_cvt_pk_bf16_f32 v{GQ}, v{GQ}, v{GQ+2}"); a("v_lshlrev_b32 v25, 2, v0")
    cm("a NaN pair must not look like the cleared pattern")
    a(f"v_min_u32 v{GQ}, -2, v{GQ}")
    a(f"ds_write_b32 v25, v{GQ} offset:{L_QB}")
    stamp("qgot")
    cm("this workgroup's o slot comes into L2 now; die words of the group's eight wo units (head a + 8 (i & 3), split i >> 2)")
    a("v_and_b32 v25, 3, v0"); a("v_lshlrev_b32 v41, 7, v25"); a(f"s_lshl_b32 s{sT2}, s{sIDX}, 9")
    a(f"buffer_load_dword v43, v41, {srd(rWS)}, s{sT2} offen sc1")
    a("v_bfe_u32 v26, v0, 2, 1"); a("v_lshlrev_b32 v25, 16, v25"); a("v_lshl_add_u32 v25, v26, 10, v25")
    a(f"s_and_b32 s{sT0}, s{sH}, 7"); a(f"s_lshl_b32 s{sT1}, s{sT0}, 13"); a(f"s_add_u32 s{sT1}, s{sT1}, {MBQ}")
    a(f"buffer_load_dword v40, v25, {srd(rWS)}, s{sT1} offen offset:12 sc1")
    cm("workgroup max and sum from the eight waves' statistics")
    a(f"v_and_b32 v{T+2}, 7, v0"); a(f"v_lshlrev_b32 v{T+3}, 2, v{T+2}"); a(f"v_lshlrev_b32 v{T+2}, 3, v{T+2}")
    lds_wait("wait_stats", f"ds_read_b64 {q2(T)}, v{T+2} offset:{L_ST}", [T, T + 1], sleep=hsleep)
    a(f"v_mov_b32 v{MM}, v{T}"); red8("v_max_f32", MM)
    a(f"v_sub_f32 v{T}, v{T}, v{MM}"); a(f"v_mul_f32 v{T}, {LOG2E:#x}, v{T}"); a(f"v_exp_f32 v{T}, v{T}")
    a(f"ds_write_b32 v{T+3}, v{T} offset:{L_F}")
    a(f"v_mov_b32 v36, v{MM}"); a(f"v_mov_b32 v37, s{sTAG}"); a(f"v_mul_f32 v38, v{T}, v{T+1}"); a(f"v_mov_b32 v39, s{sTAG}")
    red8("v_add_f32", 38)
    a(f"s_lshl_b32 s{sT1}, s{sIDX}, 7"); a(f"s_add_u32 s{sT1}, s{sT1}, {MBM}")
    a("s_waitcnt vmcnt(0)")
    a(f"v_cmp_ne_u32 vcc, s{sT3}, v40"); a("s_cmp_lg_u64 vcc, 0"); a(f"s_cselect_b32 s{sMODE}, 1, 0")
    a(f"v_mov_b32 v40, s{sMODE}"); a("v_mov_b32 v41, 0")
    a("s_mov_b64 exec, 1")
    a(f"ds_write_b32 v41, v40 offset:{L_MODE}")
    mode_store("mst", f"buffer_store_dwordx4 v[36:39], off, {srd(rWS)}, s{sT1}")
    a("s_mov_b64 exec, -1")
    a("s_waitcnt lgkmcnt(0)")
    stamp("p")
    a(f"s_cmp_ge_u32 s{sSP}, 2"); a("s_cbranch_scc1 L_exit")
    cm("wo unit: weights exp(M - head max) / head sum of the group's 32 members (lane = 8 i + split, head a + 8 i)")
    a("v_bfe_u32 v24, v0, 3, 2"); a("v_and_b32 v25, 7, v0"); a("v_lshlrev_b32 v24, 13, v24"); a("v_lshl_add_u32 v24, v25, 7, v24")
    a(f"s_lshl_b32 s{sT0}, s{sT0}, 10"); a(f"s_add_u32 s{sT0}, s{sT0}, {MBM}")
    a("s_waitcnt vmcnt(0)")
    poll_tag("gather_m", [(f"buffer_load_dwordx4 v[32:35], v24, {srd(rWS)}, s{sT0} offen sc1", [33, 35])], 26)
    a("v_mov_b32 v36, v32"); red8("v_max_f32", 36)
    a("v_sub_f32 v32, v32, v36"); a(f"v_mul_f32 v32, {LOG2E:#x}, v32"); a("v_exp_f32 v32, v32")
    a("v_mul_f32 v34, v32, v34"); red8("v_add_f32", 34)
    a("v_rcp_f32 v34, v34"); a("v_and_b32 v24, 31, v0"); a("v_lshlrev_b32 v24, 2, v24")
    a("v_mul_f32 v32, v32, v34")
    a(f"ds_write_b32 v24, v32 offset:{L_C}")
    a("s_waitcnt lgkmcnt(0)")
    stamp("cbar")
    a("s_branch L_exit")
    emit_far()

    TMP = 3
    CW, vO, vPW, vYS, vCA = VREG, VREG + 4, VREG + 5, VREG + 6, VREG + 7
    sOG, sYS, sPM = 60, 61, 62
    a("L_pv_wo:")
    cm("wave w takes half (w & 1) of head a + 8 (w >> 1); y row a has one copy on each value of address bit 13")
    a(f"s_lshr_b32 s{sT1}, s{sW}, 1"); a(f"s_lshl_b32 s{sT0}, s{sT1}, 5"); a(f"v_lshl_add_u32 v{vCA}, v{vSH}, 4, s{sT0}")
    a(f"s_and_b32 s{sT2}, s{sH}, 7"); a(f"s_lshl3_add_u32 s{sT3}, s{sT1}, s{sT2}")
    a(f"s_lshl_b32 s{sT3}, s{sT3}, 12"); a(f"s_and_b32 s{sT1}, s{sW}, 1"); a(f"s_lshl_b32 s{sT1}, s{sT1}, 8"); a(f"s_add_u32 s{sOG}, s{sT1}, s{sT3}")
    a(f"v_lshlrev_b32 v{vO}, 11, v{vSH}"); a(f"v_lshl_add_u32 v{vO}, v{vPJ}, 3, v{vO}")
    a(f"v_and_b32 v{vPW}, 0xfffffeff, v{vOW}")
    a(f"v_bfe_u32 v{vYS}, v0, 5, 1"); a(f"v_lshl_add_u32 v{vYS}, v{vYS}, 13, v{vP8}")
    a(f"s_and_b32 s{sT3}, s{sT2}, 4"); a(f"s_add_u32 s{sT2}, s{sT2}, s{sT3}")
    a(f"s_lshl_b32 s{sT2}, s{sT2}, 11"); a(f"s_and_b32 s{sT3}, s{sROLE}, 7"); a(f"s_lshl_b32 s{sT3}, s{sT3}, 8")
    a(f"s_add_u32 s{sT2}, s{sT2}, s{sT3}"); a(f"s_add_u32 s{sYS}, s{sT2}, {MB2}")
    a(f"s_mov_b32 s{sPM}, 0x00ff00ff"); a(f"s_mov_b32 s{sPM+1}, 0xff00ff00")
    pv_tail(e1, lambda j: tload(j, w1reg(j)))
    a("s_branch L_pv_done")
    a("L_wo:")
    R1 = 32
    a(f"ds_read_b128 {q4(CW)}, v{vCA} offset:{L_C}")
    a("s_barrier")
    for j in range(len(e1), 8): tload(j, w1reg(j))
    a(f"v_add_u32 v{vRO}, {L_P16 - L_OP}, v{vRO}")
    stamp("ready")
    a("s_waitcnt lgkmcnt(0)")

    def ocombine():
        a(f"v_pk_mul_f32 {q2(R1)}, {q2(R1)}, {q2(CW)} op_sel_hi:[1,0]")
        a(f"v_pk_fma_f32 {q2(R1)}, {q2(R1+2)}, {q2(CW)}, {q2(R1)} op_sel:[0,1,0]")
        a(f"v_pk_fma_f32 {q2(R1)}, {q2(R1+4)}, {q2(CW+2)}, {q2(R1)} op_sel_hi:[1,0,1]")
        a(f"v_pk_fma_f32 {q2(R1)}, {q2(R1+6)}, {q2(CW+2)}, {q2(R1)} op_sel:[0,1,0]")
    cm("o pair (16 g + 2 j) of splits 4 sh .. 4 sh + 3, weighted and summed over the eight splits")
    poll("poll_o", [f"buffer_load_dwordx2 {q2(R1+2*t)}, v{vO}, {srd(rWS)}, s{sOG} offen offset:{t*SLOT} sc1" for t in range(4)],
         [R1 + 2 * t + 1 for t in range(4)], TMP, ocombine)
    stamp("got")
    ror8_pair(R1)
    a(f"v_cvt_pk_bf16_f32 v{vPK}, v{R1}, v{R1+1}")
    build_a(0)
    for j in range(8):
        if j < 7: build_a(j + 1)
        mfma(j, w1reg(j), j == 0)
    a(f"s_mov_b64 exec, s[{sPM}:{sPM+1}]")
    a(f"s_cmp_lg_u32 s{sW}, 0")
    a(f"ds_write_b128 v{vPW}, {q4(vD)} offset:{L_P16}")
    a("s_mov_b64 exec, -1")
    a("s_waitcnt lgkmcnt(0)"); a("s_barrier")
    a("s_cbranch_scc1 L_exit")
    red16(vRO, 24)
    put_tag(25, 25)
    a(f"buffer_store_dwordx2 v[24:25], v{vYS}, {srd(rWS)}, s{sYS} offen sc1")
    stamp("pub")
    a("s_branch L_exit")

    RD, BD, BG, ACC, AG, RAW, XF, HS = KREG + 32, KREG, VREG, KREG + 32, 24, 40, 12, 14
    XP, vHA, vGU, vY2, vSR, vHW, vFA, vFO, vFH, vPW2 = range(XREG + 8, XREG + 18)
    sF0, sLO, sHI, sNL, sFU = 60, 64, 65, 66, 68
    a("L_ffn:")
    for j in range(8): tload(j, KREG + 4 * j)
    a(f"s_lshl_b32 s{sT1}, s{sW}, 7")
    a(f"v_lshlrev_b32 v{vHW}, 2, v{vPJ}")
    a(f"buffer_load_dword v{XP}, v{vHW}, {srd(rX)}, s{sT1} offen")
    a(f"v_add_u32 v{vHW}, s{sT1}, v{vHW}")
    a(f"s_cmp_ge_u32 s{sW}, 4"); a("s_cbranch_scc1 L_no_down")
    cm("waves 0..3: rows 32 u + 2 g + 16 ((t >> 1) & 1) + 8 (t & 1) + (t >> 2) of w_down, columns 128 w + 8 c")
    mksrd(rT, pWD, 1376 * 1024)
    a(f"v_lshl_add_u32 v23, v{vG2}, 11, v{vT}")
    a(f"s_lshl_b32 s{sT3}, s{sROLE}, 15"); a(f"s_lshl_b32 s{sT2}, s{sW}, 8"); a(f"s_add_u32 s{sT3}, s{sT3}, s{sT2}")
    for jj in range(4):
        for hi in range(2):
            a(f"buffer_load_dwordx4 {q4(RD+4*(jj+4*hi))}, v23, {srd(rT)}, s{sT3} offen offset:{hi*1024}")
        if jj < 3: a(f"s_add_u32 s{sT3}, s{sT3}, 8192")
    a("L_no_down:")
    cm("either copy of y is valid; dies 0..3 and 4..7 read different ones")
    a(f"v_lshlrev_b32 v{vHA}, 3, v{vPJ}"); a(f"v_lshl_add_u32 v{vHA}, v{vSH}, 14, v{vHA}")
    a(f"s_lshl_b32 s{sT0}, s{sW}, 8"); a(f"s_add_u32 s{sT0}, s{sT0}, {MB2}")
    a(f"s_lshr_b32 s{sT1}, s{sXCC}, 2")
    if h2: a(f"s_xor_b32 s{sT1}, s{sT1}, 1")
    a(f"s_lshl_b32 s{sT1}, s{sT1}, 13"); a(f"s_add_u32 s{sT0}, s{sT0}, s{sT1}")
    a(f"s_add_u32 s{sT1}, s{sT0}, 4096")
    cm("partial-row write address: row 2 w + sh, float 4 (c2 >> 1) + 2 matrix + (c2 & 1), + 80 for the column-sum lanes (g = 1)")
    a(f"s_mul_i32 s{sT2}, s{sW}, {2*PROW}"); a(f"s_add_u32 s{sT2}, s{sT2}, {L_P16}")
    a(f"v_mul_u32_u24 v{vPW2}, {PROW}, v{vSH}"); a(f"v_add_u32 v{vPW2}, s{sT2}, v{vPW2}")
    a("v_bfe_u32 v30, v0, 1, 1"); a(f"v_lshl_add_u32 v{vPW2}, v30, 4, v{vPW2}")
    a("v_bfe_u32 v30, v0, 2, 1"); a(f"v_lshl_add_u32 v{vPW2}, v30, 3, v{vPW2}")
    a("v_and_b32 v30, 1, v0"); a(f"v_lshl_add_u32 v{vPW2}, v30, 2, v{vPW2}")
    a(f"v_and_b32 v30, 1, v{vG2}"); a("v_mul_u32_u24 v30, 320, v30"); a(f"v_add_u32 v{vPW2}, v30, v{vPW2}")
    cm("readers: lane (g, qd, j2) sums rows 4 qd .. 4 qd + 3 at float 16 g + 4 j2; statistics of row lane & 15")
    a("v_bfe_u32 v30, v0, 2, 2"); a(f"v_mul_u32_u24 v{vGU}, {4*PROW}, v30"); a(f"v_lshl_add_u32 v{vGU}, v{vG2}, 6, v{vGU}")
    a("v_and_b32 v31, 3, v0"); a(f"v_lshl_add_u32 v{vGU}, v31, 4, v{vGU}")
    a(f"v_mul_u32_u24 v{vSR}, {PROW // 16}, v{vT}"); a(f"v_add_u32 v{vSR}, {L_P16}, v{vSR}")
    a(f"v_lshlrev_b32 v{vY2}, 1, v{vT}"); a(f"v_lshl_add_u32 v{vY2}, v{vG2}, 3, v{vY2}")
    M3 = MB3 + h3 * 8192
    a(f"s_and_b32 s{sT2}, s{sROLE}, -4"); a(f"s_add_u32 s{sT2}, s{sT2}, s{sROLE}"); a(f"s_lshl_b32 s{sT2}, s{sT2}, 11")
    a(f"s_lshl_b32 s{sT3}, s{sW}, 9"); a(f"s_add_u32 s{sT2}, s{sT2}, s{sT3}"); a(f"s_add_u32 s{sT2}, s{sT2}, {M3}")
    cm("final sum: waves 0, 1 of units 0..15 take 16 columns each; lane >> 2 (+ 16 t) is the partial")
    a(f"s_lshl1_add_u32 s{sFU}, s{sROLE}, s{sW}"); a(f"s_cmp_lt_u32 s{sW}, 2"); a(f"s_cselect_b32 s{sFU}, s{sFU}, 32")
    a(f"s_min_u32 s{sFU}, s{sFU}, 32")
    a(f"v_lshrrev_b32 v{vFA}, 2, v{vL}"); a(f"v_lshl_add_u32 v{vFA}, v{vG2}, 2, v{vFA}")
    a(f"v_lshlrev_b32 v{vFA}, 11, v{vFA}"); a(f"v_lshl_add_u32 v{vFA}, v31, 4, v{vFA}")
    a(f"v_lshl_add_u32 v{vFO}, v31, 2, v{vG2}"); a(f"s_lshl_b32 s{sT3}, s{sFU}, 4"); a(f"v_add_lshl_u32 v{vFO}, s{sT3}, v{vFO}, 1")
    a(f"s_lshl_b32 s{sF0}, s{sFU}, 6"); a(f"s_add_u32 s{sF0}, s{sF0}, {M3}"); a(f"s_add_u32 s{sF0+1}, s{sF0}, 0x10000"); a(f"s_add_u32 s{sF0+2}, s{sF0}, 0x20000")
    mksrd(rO, pOUT, 1024)
    a(f"s_mov_b32 s{sLO}, 0x05040100"); a(f"s_mov_b32 s{sHI}, 0x07060302")
    a(f"s_mov_b32 s{sNL}, {LOG2E ^ 0x80000000:#x}"); a(f"s_mov_b32 s{sNL+1}, {LOG2E ^ 0x80000000:#x}")
    a(f"s_mov_b32 s{sE}, 0xffff00ff"); a(f"s_mov_b32 s{sE+1}, 0x0000ff00")
    for r in range(4): a(f"v_mov_b32 v{vA+r}, 0x3f803f80")
    for r in range(16): a(f"v_mov_b32 v{AG+r}, 0")

    def transpose(dst, src):
        for q in range(4):
            for r in range(4):
                a(f"v_perm_b32 v{dst+8*q+r}, v{src+4*(2*r+1)+q}, v{src+4*(2*r)+q}, s{sLO}")
                a(f"v_perm_b32 v{dst+8*q+4+r}, v{src+4*(2*r+1)+q}, v{src+4*(2*r)+q}, s{sHI}")
    hloads = [f"buffer_load_dwordx2 {q2(RAW+2*t)}, v{vHA}, {srd(rWS)}, s{sT1 if t >= 2 else sT0} offen offset:{(t&1)*2048} sc1" for t in range(4)]
    cm("8 x 8 transposes make the row index the in-lane k index of the B operands")
    a(f"s_cmp_ge_u32 s{sW}, 4"); a("s_cbranch_scc1 L_tr_gu")
    a("s_waitcnt vmcnt(8)")
    transpose(BG, KREG)
    a("s_waitcnt vmcnt(0)")
    for ld in hloads: a(ld)
    transpose(BD, RD)
    a("s_branch L_tr_done")
    a("L_tr_gu:")
    a("s_waitcnt vmcnt(0)")
    for ld in hloads: a(ld)
    transpose(BG, KREG)
    a("L_tr_done:")
    unpack(XF, XF + 1, XP)
    stamp("ready")
    a("s_branch L_wait_y")

    def hcombine():
        pkadd(RAW, RAW, RAW + 2); pkadd(RAW + 4, RAW + 4, RAW + 6); pkadd(HS, RAW, RAW + 4)
    poll("poll_y", hloads, [RAW + 2 * t + 1 for t in range(4)], TMP, hcombine, entry="L_wait_y")
    stamp("got")
    cm("h pair; A rows 0-3 / 8-11 hold h (rows sh = 0 / 1), rows 4-7 / 12-15 ones: h @ W, column sums of W, sum h, sum h^2")
    a(f"s_cmp_ge_u32 s{sW}, 4")
    ror8_pair(HS)
    pkadd(HS, HS, XF)
    a(f"v_cvt_pk_bf16_f32 v{vPK}, v{HS}, v{HS+1}")
    a(f"ds_write_b32 v{vHW}, v{vPK} offset:{L_H}")
    for r in range(4): a(f"v_mov_b32_dpp v{vA+r}, v{vPK} row_newbcast:{r} row_mask:0xf bank_mask:0x1")
    for r in range(4): a(f"v_mov_b32_dpp v{vA+r}, v{vPK} row_newbcast:{4+r} row_mask:0xf bank_mask:0x4")
    mm(vD, vA, vA, True)
    for i in range(8): mm(ACC + 4 * i, vA, BG + 4 * i, True)
    a(f"s_mov_b64 exec, s[{sE}:{sE+1}]")
    a(f"ds_write_b32 v{vPW2}, v{vD} offset:256")
    for k in range(4): a(f"ds_write2_b32 v{vPW2}, v{ACC+8*k}, v{ACC+8*k+4} offset0:{16*k} offset1:{16*k+8}")
    a("s_mov_b64 exec, -1")
    a("s_waitcnt lgkmcnt(0)"); a("s_barrier")
    a("s_cbranch_scc1 L_epoch")
    cm("LN(h) @ W = (h @ W - mean * column sum) / sqrt(var + eps); act = g * sigmoid(g) * u")
    GU, CS, ST = BG, BG + 16, vA
    a(f"ds_read2_b32 {q2(ST)}, v{vSR} offset0:64 offset1:66")
    for t in range(4): a(f"ds_read_b128 {q4(CS+4*t)}, v{vGU} offset:{L_P16 + PROW*t + 320}")
    for t in range(4): a(f"ds_read_b128 {q4(GU+4*t)}, v{vGU} offset:{L_P16 + PROW*t}")
    a(f"ds_read_u16 v{vFH}, v{vFO} offset:{L_H}")
    a("s_waitcnt lgkmcnt(9)")
    steps = ("quad_perm:[1,0,3,2]", "quad_perm:[2,3,0,1]", "row_half_mirror", "row_mirror")

    def st_step(k):
        for i in range(2): a(f"v_add_f32_dpp v{ST+i}, v{ST+i}, v{ST+i} {steps[k]} {DPPF}")
    st_step(0); a("s_waitcnt lgkmcnt(7)"); pkadd(CS, CS, CS + 4)
    st_step(1); pkadd(CS + 2, CS + 2, CS + 6); a("s_waitcnt lgkmcnt(5)")
    st_step(2); pkadd(CS + 8, CS + 8, CS + 12)
    st_step(3); pkadd(CS + 10, CS + 10, CS + 14)
    MU, VAR = ST + 2, ST
    a(f"v_mul_f32 v{MU}, 0x3b000000, v{ST+1}"); a(f"v_mul_f32 v{VAR}, 0x3b000000, v{ST}")
    pkadd(CS, CS, CS + 8); pkadd(CS + 2, CS + 2, CS + 10)
    a(f"v_fma_f32 v{VAR}, -v{MU}, v{MU}, v{VAR}"); a(f"v_max_f32 v{VAR}, 0, v{VAR}")
    a(f"v_cvt_pk_bf16_f32 v{VAR}, v{VAR}, v{MU}")
    a("s_waitcnt lgkmcnt(3)")
    pkadd(GU, GU, GU + 4); pkadd(GU + 2, GU + 2, GU + 6)
    unpack(VAR, MU, VAR)
    a(f"v_add_f32 v{VAR}, {EPS:#x}, v{VAR}"); bf16r(VAR, VAR)
    a(f"v_sqrt_f32 v{VAR}, v{VAR}")
    a("s_waitcnt lgkmcnt(1)")
    pkadd(GU + 8, GU + 8, GU + 12); pkadd(GU + 10, GU + 10, GU + 14)
    for i in (0, 2): a(f"v_pk_fma_f32 {q2(GU+i)}, {q2(CS+i)}, {q2(MU)}, {q2(GU+i)} op_sel_hi:[1,0,1] neg_lo:[0,1,0] neg_hi:[0,1,0]")
    pkadd(GU, GU, GU + 8); pkadd(GU + 2, GU + 2, GU + 10)
    bf16r(VAR, VAR)
    for i in range(4): a(f"v_add_f32_dpp v{GU+i}, v{GU+i}, v{GU+i} row_ror:4 {DPPF}")
    a(f"v_rcp_f32 v{VAR}, v{VAR}")
    for i in range(4): a(f"v_add_f32_dpp v{GU+i}, v{GU+i}, v{GU+i} row_ror:8 {DPPF}")
    for i in (0, 2): a(f"v_pk_mul_f32 {q2(GU+i)}, {q2(GU+i)}, {q2(VAR)} op_sel_hi:[1,0]")
    a(f"v_pk_mul_f32 {q2(GU+4)}, {q2(GU)}, s[{sNL}:{sNL+1}]")
    for i in range(2): a(f"v_exp_f32 v{GU+4+i}, v{GU+4+i}")
    a(f"v_pk_mul_f32 {q2(GU)}, {q2(GU)}, {q2(GU+2)}")
    a(f"v_pk_add_f32 {q2(GU+4)}, {q2(GU+4)}, 1.0 op_sel_hi:[1,0]")
    for i in range(2): a(f"v_rcp_f32 v{GU+4+i}, v{GU+4+i}")
    a(f"v_pk_mul_f32 {q2(GU)}, {q2(GU)}, {q2(GU+4)}")
    a(f"v_cvt_pk_bf16_f32 v{vPK}, v{GU}, v{GU+1}")
    cm("act @ w_down rows: A operand G holds act in rows 4 G .. 4 G + 3 only, so lane (G, n) collects columns 8 n + 2 G, + 1")
    DE, DO = vD, vA + 4

    def ag(G, rs=range(4)):
        for r in rs: a(f"v_mov_b32_dpp v{AG+4*G+r}, v{vPK} row_newbcast:{r} row_mask:0xf bank_mask:{1 << G:#x}")
    ag(0); ag(1, (0, 1))
    for G in range(4):
        mm(DE, AG + 4 * G, BD + 8 * G, G == 0)
        if G < 3: ag(G + 1, (2, 3))
        mm(DO, AG + 4 * G, BD + 8 * G + 4, G == 0)
        if G < 2: ag(G + 2, (0, 1))
    FR = ACC
    a(f"s_cmp_ge_u32 s{sFU}, 32")
    put_tag(DE + 1, DO)
    a(f"buffer_store_dwordx2 {q2(DE)}, v{vY2}, {srd(rWS)}, s{sT2} offen sc1")
    stamp("pub")
    a("s_cbranch_scc1 L_exit")
    cm("out = h + sum of the 43 partials; a line read before its writer's store lands costs an extra round trip, hence the back-off")
    a(f"v_mov_b32 v{FR+8}, 0"); a(f"v_mov_b32 v{FR+10}, 0")
    a("s_waitcnt lgkmcnt(0)")
    a(f"v_lshlrev_b32 v{vFH}, 16, v{vFH}")
    a("s_waitcnt vmcnt(0)")

    def fcombine():
        for i in (0, 2): pkadd(FR + i, FR + i, FR + 4 + i)
        for i in (0, 2): pkadd(FR + i, FR + i, FR + 8 + i)
    poll("poll_d", ([f"s_sleep {fsleep}"] if fsleep else []) + [
        f"buffer_load_dwordx4 {q4(FR)}, v{vFA}, {srd(rWS)}, s{sF0} offen sc1",
        f"buffer_load_dwordx4 {q4(FR+4)}, v{vFA}, {srd(rWS)}, s{sF0+1} offen sc1",
        f"v_mov_b32 v{FR+9}, s{sTG8}", f"v_mov_b32 v{FR+11}, s{sTG8}",
        "s_mov_b32 exec_hi, 0xfff",
        f"buffer_load_dwordx4 {q4(FR+8)}, v{vFA}, {srd(rWS)}, s{sF0+2} offen sc1",
        "s_mov_b32 exec_hi, -1"], [FR + 2 * t + 1 for t in range(6)], TMP, fcombine)
    stamp("fgot")
    a(f"v_permlane32_swap_b32 v{FR}, v{FR+2}"); a(f"v_permlane32_swap_b32 v{FR+1}, v{FR+3}")
    pkadd(FR, FR, FR + 2)
    a(f"v_permlane16_swap_b32 v{FR}, v{FR+1}")
    a(f"v_add_f32 v{FR}, v{FR}, v{FR+1}")
    for m in ("row_ror:4", "row_ror:8"): a(f"v_add_f32_dpp v{FR}, v{FR}, v{FR} {m} {DPPF}")
    a("s_mov_b32 exec_lo, 0x000f000f"); a("s_mov_b32 exec_hi, 0x000f000f")
    a(f"v_add_f32 v{FR}, v{FR}, v{vFH}")
    a(f"v_cvt_pk_bf16_f32 v{FR}, v{FR}, v{FR}")
    a(f"buffer_store_short v{FR}, v{vFO}, {srd(rO)}, 0 offen")
    a("L_exit:")
    if stamps:
        a("s_mov_b64 exec, -1")
        stamp("exit")
        a(f"v_writelane_b32 v{vSTAMP}, s{sROLE}, 14")
        a(f"s_mul_i32 s{sT0}, s2, {NWAVE}"); a(f"s_add_u32 s{sT0}, s{sT0}, s{sW}"); a(f"s_add_u32 s{sT0}, s{sT0}, 1")
        a(f"s_lshl_b32 s{sT0}, s{sT0}, 6"); a(f"s_add_u32 s{sT0}, s{sT0}, {STAMP}")
        a(f"v_lshlrev_b32 v{vSTAMP+1}, 2, v{vL}")
        a("s_mov_b64 exec, 0xffff")
        a(f"buffer_store_dword v{vSTAMP}, v{vSTAMP+1}, {srd(rWS)}, s{sT0} offen")
    a("L_end:")
    a("s_endpgm")
    a("L_epoch:")
    cm("h is complete, so every workgroup has read the old word: one idle wave leaves this launch's tag")
    a(f"s_lshl3_add_u32 s{sT0}, s{sROLE}, s{sW}"); a(f"s_cmp_lg_u32 s{sT0}, 4"); a("s_cbranch_scc1 L_exit")
    a(f"s_mov_b32 s{sT0}, {EPOCH}"); a(f"v_mov_b32 v3, s{sEP}"); a("s_mov_b64 exec, 1")
    a(f"buffer_store_dword v3, off, {srd(rWS)}, s{sT0} sc1")
    a("L_last:")
    a("s_branch L_exit")
    assert not far

    out = HEADER + f"; @launch grid=(256,1,1) block=({64*NWAVE},1,1) lds={L_END}\n" + OVERVIEW
    out += f'.amdgcn_target "amdgcn-amd-amdhsa--gfx950"\n.text\n.globl {KNAME}\n.p2align 8\n.type {KNAME},@function\n'
    out += a.render()
    out += f'''.section .rodata,"a"
.p2align 6
.amdhsa_kernel {KNAME}
  .amdhsa_next_free_vgpr {NV}
  .amdhsa_next_free_sgpr {NS}
  .amdhsa_accum_offset {NV}
  .amdhsa_group_segment_fixed_size 0
  .amdhsa_kernarg_size 96
  .amdhsa_user_sgpr_count 2
  .amdhsa_user_sgpr_kernarg_segment_ptr 1
  .amdhsa_system_sgpr_workgroup_id_x 1
  .amdhsa_float_denorm_mode_32 3
.end_amdhsa_kernel
'''
    return out


if __name__ == "__main__":
    kw = {}
    for arg in sys.argv[2:]:
        k, v = arg.split("=")
        kw[k] = eval(v)
    open(sys.argv[1], "w").write(gen(**kw))
```

```python
import sys
from asmlib import Asm

KNAME = "sequential_preLN__sliding_block_cached__swiglu_ffn__decode_kernel"
HEADER = open("sequential_preLN__sliding_block_cached__swiglu_ffn__decode.s.ref").read().split("; Override launch")[0]

LOG2E = 0x3FB8AA3B
SCALE = 0x3DB504F3
EPS = 0x3727C5AC

SLOT = 512
MB1 = 0
MB2 = 0x20000
MBQ = 0x40000
MBM = 0x80000
EPOCH = 0x88004
MB3 = 0xa0000
STAMP = 1 << 20
WS_SIZE = 2 << 20
PROW = 608
L_QB, L_ST, L_F, L_MODE, L_C, L_H, L_OP, L_P16 = 0, 256, 320, 352, 384, 512, 2048, 2048 + 8192
L_END = L_P16 + 16 * PROW

NT2 = 43
NWAVE = 9
W = 4
DPPF = "row_mask:0xf bank_mask:0xf"
STAMPS = ["start", "args", "x", "qpub", "qgot", "p", "cbar", "obar", "ready", "got", "pub", "fgot", "exit"]

sH, sSP, sW, sTAG, sBUD = 3, 4, 5, 6, 7
pX, pK, pV, pWQ, pWO, pWG, pWU, pWD, pOUT, pWS = 8, 10, 12, 14, 16, 20, 22, 24, 26, 30
sMW, sEP = 18, 19
rK, rV, rQ, rX, rWS, rO, rT = 32, 36, 40, 44, 48, 52, 56
sOFF = 60
sT0, sT1, sT2, sT3 = 76, 77, 78, 79
sROLE, sIDX = 80, 81
sE = 82
sXCC, sU = 84, 85
sST = 86
sUA, sMEM = 88, 89
sPFM = 90
sTG8, sMODE, sNA = 92, 93, 94
NS = 95
vL, vKV = 1, 2
vSEL, vA, vD, vPK, vB = 4, 8, 16, 20, 21
vT = 22
KREG, VREG, XREG = 48, 112, 144
vFF, vZERO = 164, 165
vSTAMP = 166
NV = 168

OVERVIEW = """\
; ------------------------------------------------------------------------------------------------
; ------------------------------------------------------------------------------------------------
"""


def q4(r): return f"v[{r}:{r+3}]"
def q2(r): return f"v[{r}:{r+1}]"
def srd(r): return f"s[{r}:{r+3}]"


def gen(stamps=False, only=None, budget=1 << 20, pat="jjsjssj", wx=3, wsx=(7, 0xc00), pfat=(12, 12, 13, 14), pford=(0, 2, 1, 3),
        e1=(14, 15, 15, 15), stages="ABdCD", un=(6, 6, 6, 5, 5, 5, 5, 5), h2=0, h3=0, fsleep=3, hsleep=2, wtafter=4):
    a = Asm()
    far = []

    def cm(text): a("; " + text)

    def stamp(name):
        if stamps and (not only or name in only or name == "exit"):
            a(f"s_memrealtime s[{sST}:{sST+1}]"); a("s_waitcnt lgkmcnt(0)"); a(f"v_writelane_b32 v{vSTAMP}, s{sST}, {STAMPS.index(name)}")

    def mksrd(r, p, size, add=None):
        if add is None:
            a(f"s_mov_b32 s{r}, s{p}"); a(f"s_mov_b32 s{r+1}, s{p+1}")
        else:
            a(f"s_add_u32 s{r}, s{p}, s{add}"); a(f"s_addc_u32 s{r+1}, s{p+1}, 0")
        a(f"s_mov_b32 s{r+2}, {size}"); a(f"s_mov_b32 s{r+3}, 0x20000")

    def bf16r(d, s):
        a(f"v_cvt_pk_bf16_f32 v{d}, v{s}, v{s}"); a(f"v_lshlrev_b32 v{d}, 16, v{d}")

    def unpack(lo, hi, s):
        a(f"v_and_b32 v{hi}, 0xffff0000, v{s}"); a(f"v_lshlrev_b32 v{lo}, 16, v{s}")

    def pkadd(d, x, y): a(f"v_pk_add_f32 {q2(d)}, {q2(x)}, {q2(y)}")

    def add64(v, d):
        a(f"s_mov_b32 s{sT0}, {d & 0xffffffff:#x}"); a(f"s_mov_b32 s{sT1}, {-1 if d < 0 else 0}")
        a(f"v_lshl_add_u64 {q2(v)}, {q2(v)}, 0, s[{sT0}:{sT0+1}]")

    def wave_red(op, v, s):
        for m in ("quad_perm:[1,0,3,2]", "quad_perm:[2,3,0,1]", "row_half_mirror", "row_mirror"):
            a(f"{op}_dpp v{v}, v{v}, v{v} {m} {DPPF}")
        a(f"{op}_dpp v{v}, v{v}, v{v} row_bcast:15 row_mask:0xa bank_mask:0xf")
        a(f"{op}_dpp v{v}, v{v}, v{v} row_bcast:31 row_mask:0xc bank_mask:0xf")
        a(f"v_readlane_b32 s{s}, v{v}, 63")

    def red8(op, v):
        for m in ("quad_perm:[1,0,3,2]", "quad_perm:[2,3,0,1]", "row_half_mirror"):
            a(f"{op}_dpp v{v}, v{v}, v{v} {m} {DPPF}")

    def ror8_pair(v):
        for i in range(2): a(f"v_add_f32_dpp v{v+i}, v{v+i}, v{v+i} row_ror:8 {DPPF}")

    def build_a(j):
        A = vA + 4 * (j & 1)
        a(f"v_mov_b32_dpp v{vB}, v{vPK} row_newbcast:{j} {DPPF}")
        for r in range(4):
            a(f"v_perm_b32 v{A+r}, v{vB}, v{vB}, v{vSEL+r}")

    def mm(d, x, y, first):
        a(f"v_mfma_f32_16x16x32_bf16 {q4(d)}, {q4(x)}, {q4(y)}, {'0' if first else q4(d)}")

    def mfma(j, b, first): mm(vD, vA + 4 * (j & 1), b, first)

    def red16(vaddr, v, mid=None):
        for t in range(4):
            a(f"ds_read2st64_b64 {q4(v+4*t)}, v{vaddr} offset0:{2*t} offset1:{2*t+1}")
        if mid: mid()
        a("s_waitcnt lgkmcnt(2)")
        pkadd(v, v, v + 2); pkadd(v + 4, v + 4, v + 6); pkadd(v, v, v + 4)
        a("s_waitcnt lgkmcnt(0)")
        pkadd(v + 8, v + 8, v + 10); pkadd(v + 12, v + 12, v + 14); pkadd(v + 8, v + 8, v + 12)
        pkadd(v + 2, v, v + 8); pkadd(v, v, v + 8)
        a(f"v_permlane32_swap_b32 v{v}, v{v+2}"); a(f"v_permlane32_swap_b32 v{v+1}, v{v+3}")
        pkadd(v, v, v + 2)

    def vor(tmp, rs):
        rs = list(rs)
        a(f"v_or3_b32 v{tmp}, v{rs[0]}, v{rs[1]}, v{rs[2]}"); rs = rs[3:]
        while rs:
            if len(rs) >= 2:
                a(f"v_or3_b32 v{tmp}, v{tmp}, v{rs[0]}, v{rs[1]}"); rs = rs[2:]
            else:
                a(f"v_or_b32 v{tmp}, v{tmp}, v{rs[0]}"); rs = rs[1:]

    def spend():
        a(f"s_sub_u32 s{sBUD}, s{sBUD}, 1"); a("s_cbranch_scc1 L_exit")

    def poll(name, loads, tagged, tmp, after):
        a(f"L_{name}:")
        for ld in loads: a(ld)
        spend()
        a("s_waitcnt vmcnt(0)")
        for r in tagged: a(f"v_xor_b32 v{r}, s{sTG8}, v{r}")
        vor(tmp, tagged)
        a(f"v_cmp_ne_u32_sdwa vcc, v{tmp}, v{vZERO} src0_sel:BYTE_0 src1_sel:DWORD")
        after()
        a(f"s_cbranch_vccnz L_{name}")

    def poll_tag(name, loads, tmp, slack=0, retry=None):
        for t in range(len(loads)): a(f"s_mov_b64 s[{sOFF+2*t}:{sOFF+2*t+1}], -1")
        a(f"L_{name}:")
        for t, ld in enumerate(loads):
            a(f"s_mov_b64 exec, s[{sOFF+2*t}:{sOFF+2*t+1}]"); a(ld[0])
        a("s_mov_b64 exec, -1")
        spend()
        a("s_waitcnt vmcnt(0)")
        a(f"s_mov_b64 s[{sE}:{sE+1}], 0")
        for t, (_, rs) in enumerate(loads):
            m = f"s[{sOFF+2*t}:{sOFF+2*t+1}]"
            a(f"v_xor_b32 v{tmp}, s{sTAG}, v{rs[0]}"); a(f"v_xor_b32 v{tmp+1}, s{sTAG}, v{rs[1]}"); a(f"v_or_b32 v{tmp}, v{tmp}, v{tmp+1}")
            a(f"v_cmp_lt_u32 {m}, {(1 << slack) - 1}, v{tmp}")
            a(f"s_or_b64 s[{sE}:{sE+1}], s[{sE}:{sE+1}], {m}")
        if retry is None:
            a(f"s_cbranch_scc1 L_{name}")
        else:
            a(f"s_cbranch_scc1 L_{name}_again")

            def again():
                a(f"L_{name}_again:"); retry(); a(f"s_branch L_{name}")
            far.append(again)

    def lds_wait(name, read, rs, sleep=0):
        a(f"L_{name}:")
        a(read)
        a("s_waitcnt lgkmcnt(0)")
        if len(rs) == 2: a(f"v_max_u32 v{vB}, v{rs[0]}, v{rs[1]}")
        else: a(f"v_max3_u32 v{vB}, v{rs[0]}, v{rs[1]}, v{rs[2]}"); a(f"v_max_u32 v{vB}, v{vB}, v{rs[3]}")
        a(f"v_cmp_eq_u32 vcc, -1, v{vB}")
        a(f"s_cbranch_vccnz L_{name}_again")

        def again():
            a(f"L_{name}_again:")
            if sleep: a(f"s_sleep {sleep}")
            spend(); a(f"s_branch L_{name}")
        far.append(again)

    def put_tag(d, s):
        a(f"v_bfi_b32 v{d}, v{vFF}, s{sTG8}, v{s}")

    def mode_store(name, text):
        a(f"s_cbranch_scc1 L_{name}_through")
        a(text)
        a(f"L_{name}_done:")

        def other():
            a(f"L_{name}_through:"); a(text + " sc1"); a(f"s_branch L_{name}_done")
        far.append(other)

    def emit_far():
        for f in list(far): f()
        far.clear()

    def selectors():
        cm("byte selectors that place one bf16 of a broadcast pair at this lane's k position")
        t0, t1, t2 = 32, 33, 34
        a(f"v_and_b32 v{t0}, 8, v0"); a(f"v_mov_b32 v{t1}, 0x0100"); a(f"v_mov_b32 v{t2}, 0x0302")
        a(f"v_cmp_ne_u32 vcc, 0, v{t0}"); a(f"v_cndmask_b32 v{t1}, v{t1}, v{t2}, vcc")
        a(f"v_or_b32 v{t2}, 0x0c0c0000, v{t1}")
        a(f"v_lshlrev_b32 v{t1}, 16, v{t1}"); a(f"v_or_b32 v{t1}, 0x0c0c, v{t1}")
        a(f"v_and_b32 v{t0}, 1, v0"); a(f"v_cmp_ne_u32 vcc, 0, v{t0}"); a(f"v_cndmask_b32 v{t1}, v{t2}, v{t1}, vcc")
        a(f"v_bfe_u32 v{t0}, v0, 1, 2"); a(f"v_mov_b32 v{t2}, 0x0c0c0c0c")
        for r in range(4):
            a(f"v_cmp_eq_u32 vcc, {r}, v{t0}"); a(f"v_cndmask_b32 v{vSEL+r}, v{t2}, v{t1}, vcc")

    def tag_from_epoch():
        cm("launch tag: four byte counters with co-prime periods, each one step past the word found on entry")
        a(f"s_add_u32 s{sTG8}, s{sTAG}, 1"); a(f"s_and_b32 s{sTG8}, s{sTG8}, 0xff"); a(f"s_mov_b32 s{sEP}, s{sTG8}")
        for k, m in ((1, 255), (2, 253), (3, 251)):
            a(f"s_bfe_u32 s{sT1}, s{sTAG}, {0x80000 | 8*k:#x}"); a(f"s_add_u32 s{sT1}, s{sT1}, 1")
            a(f"s_cmp_lt_u32 s{sT1}, {m}"); a(f"s_cselect_b32 s{sT1}, s{sT1}, 0")
            a(f"s_lshl_b32 s{sT1}, s{sT1}, {8*k}"); a(f"s_or_b32 s{sEP}, s{sEP}, s{sT1}")
        a(f"s_and_b32 s{sTAG}, s{sEP}, -8")

    seq = [("k", j) for j in range(16)] + [("v", j) for j in range(16)]
    issued, done = [0], [0]
    def vreg(j): return VREG + 4 * j if j < 8 else KREG + 16 + 4 * (j - 8)

    def issue_to(n):
        while issued[0] < min(n, len(seq)):
            kind, j = seq[issued[0]]
            if kind == "k": a.vmem(f"buffer_load_dwordx4 {q4(KREG+4*j)}, v{vKV}, {srd(rK)}, s{sOFF+j} offen nt", (kind, j))
            else: a.vmem(f"buffer_load_dwordx4 {q4(vreg(j))}, v{vKV}, {srd(rV)}, s{sOFF+j} offen nt", (kind, j))
            issued[0] += 1

    def advance(upto):
        while done[0] <= seq.index(upto):
            a.wait_vm(seq[done[0]]); done[0] += 1
            issue_to(done[0] + W)

    def scatter(x, ch):
        return sum(((x >> k) & 1) << p for k, p in enumerate(13 + i for i, c in enumerate(pat) if c == ch))
    KVSIZE = scatter(15, "j") + 8192
    assert pat.startswith("j" * wx.bit_length())

    def offsets(js):
        for j in js:
            if j: a(f"s_xor_b32 s{sOFF+j}, s{sOFF}, {scatter(j, 'j'):#x}")
            else: a(f"s_lshl_b32 s{sOFF}, s{sW}, 7"); a(f"s_and_b32 s{sOFF}, s{sOFF}, {wx << 13:#x}")

    def kv_base():
        ps = [13 + i for i, c in enumerate(pat) if c == "s"]
        a(f"s_lshl3_add_u32 s{sT0}, s{sH}, 7"); a(f"s_lshl_b32 s{sT0}, s{sT0}, 20")
        k = 0
        while k < 3:
            n = 1
            while k + n < 3 and ps[k + n] == ps[k] + n: n += 1
            if n == 3: a(f"s_lshl_b32 s{sT1}, s{sSP}, {ps[0]}")
            elif k == 0: a(f"s_and_b32 s{sT1}, s{sSP}, {(1 << n) - 1}"); a(f"s_lshl_b32 s{sT1}, s{sT1}, {ps[k]}")
            elif k + n == 3: a(f"s_lshr_b32 s{sT1}, s{sSP}, {k}"); a(f"s_lshl_b32 s{sT1}, s{sT1}, {ps[k]}")
            else: a(f"s_bfe_u32 s{sT1}, s{sSP}, {(n << 16) | k:#x}"); a(f"s_lshl_b32 s{sT1}, s{sT1}, {ps[k]}")
            a(f"s_add_u32 s{sT0}, s{sT0}, s{sT1}")
            k += n

    def ids():
        a(f"s_and_b32 s{sH}, s2, 31"); a(f"s_lshr_b32 s{sSP}, s2, 5")

    def ids2():
        a(f"s_mov_b32 s{sBUD}, {budget}"); a(f"s_lshl3_add_u32 s{sIDX}, s{sH}, s{sSP}")
        a(f"s_getreg_b32 s{sXCC}, hwreg(HW_REG_XCC_ID, 0, 3)"); a(f"v_and_b32 v{vL}, 63, v0")

    T, MM = 26, 30
    allargs = "s_load_dwordx16 s[8:23], s[0:1], 0\ns_load_dwordx8 s[24:31], s[0:1], 64"

    a(f"{KNAME}:")
    cm("the first 256 bytes reach the first K loads")
    if stamps: a(f"s_memrealtime s[{sST}:{sST+1}]")
    a(f"s_load_dwordx2 s[{rK}:{rK+1}], s[0:1], 8")
    a("s_cmpk_ge_u32 s2, 256"); a("s_cbranch_scc1 L_end")
    a(f"v_readfirstlane_b32 s{sW}, v0")
    a(f"s_cmpk_lt_u32 s{sW}, 64"); a("s_cbranch_scc1 L_helper_args")
    a("v_subrev_u32 v0, 64, v0")
    cm("pull the code into L2 while the kernel argument is in flight")
    a(f"s_getpc_b64 s[{sE}:{sE+1}]")
    a("L_pc:")
    a("v_lshlrev_b32 v24, 5, v0"); a("v_min_u32 v24, L_last-L_pc, v24")
    a(f"global_load_dword v3, v24, s[{sE}:{sE+1}]")
    ids()
    cm("key order: any bijection serves; this one spreads concurrent requests over channels and memory stacks")
    a(f"v_lshlrev_b32 v{vKV}, 4, v0")
    a(f"s_lshl_b32 s{sT1}, s2, {wsx[0]}"); a(f"s_and_b32 s{sT1}, s{sT1}, {wsx[1]:#x}"); a(f"v_xor_b32 v{vKV}, s{sT1}, v{vKV}")
    kv_base()
    offsets(range(W))
    a(f"s_mov_b32 s{rK+3}, 0x20000"); a(f"s_mov_b32 s{rK+2}, {KVSIZE:#x}")
    a("s_waitcnt lgkmcnt(0)")
    a(f"s_add_u32 s{rK}, s{rK}, s{sT0}"); a(f"s_addc_u32 s{rK+1}, s{rK+1}, 0")
    issue_to(W)
    a("s_branch L_stream")
    a("L_helper_args:"); a(allargs); a("s_branch L_helper0")
    a(".p2align 8")

    a("L_helper0:")
    a("s_setprio 1")
    vXA, vXO, vQO = 22, 23, 3
    XA, XO = 28, 27
    cm("clear the LDS words that waves wait on (q, statistics, rescale factors, store mode)")
    a("v_lshlrev_b32 v24, 3, v0"); a("v_mov_b32 v30, -1"); a("v_mov_b32 v31, -1")
    a("ds_write_b64 v24, v[30:31]")
    ids()
    cm("x, and rows 64 s + 4 j + g of this head's 128 columns of wq")
    a(f"v_lshlrev_b32 v{vXA}, 4, v0")
    a("v_lshrrev_b32 v24, 4, v0"); a("v_and_b32 v25, 15, v0")
    a(f"s_lshl_b32 s{sT1}, s{sSP}, 6"); a(f"v_add_u32 v24, s{sT1}, v24")
    a(f"v_lshl_add_u32 v{vXO}, v25, 2, v24"); a(f"v_lshlrev_b32 v{vXO}, 1, v{vXO}")
    a(f"v_lshlrev_b32 v{vQO}, 13, v24"); a(f"v_lshl_add_u32 v{vQO}, v25, 4, v{vQO}")
    a(f"s_lshl_b32 s{sT0}, s{sH}, 8"); a(f"s_mov_b32 s{sT1}, 0x8000")
    a(f"s_mov_b32 s{rQ+2}, 0x400000"); a(f"s_mov_b32 s{rQ+3}, 0x20000")
    a("s_waitcnt lgkmcnt(0)")
    a("s_barrier")
    a(f"global_load_dwordx4 {q4(XA)}, v{vXA}, s[{pX}:{pX+1}]")
    a(f"global_load_ushort v{XO}, v{vXO}, s[{pX}:{pX+1}]")
    a(f"s_mov_b64 s[{rQ}:{rQ+1}], s[{pWQ}:{pWQ+1}]")
    for j in range(16):
        a(f"buffer_load_dwordx4 {q4(KREG+4*j)}, v{vQO}, {srd(rQ)}, s{sT0} offen nt")
        if j < 15: a(f"s_add_u32 s{sT0}, s{sT0}, s{sT1}")
    a(f"s_mov_b32 s{sW}, -1")
    a("s_branch L_helper")

    a("L_stream:")
    a(allargs)
    a("s_barrier")
    if stamps: a(f"v_mov_b32 v{vSTAMP}, 0"); a(f"v_writelane_b32 v{vSTAMP}, s{sST}, 0")
    stamp("args")
    offsets(range(W, 16))
    a(f"s_lshr_b32 s{sW}, s{sW}, 6"); a(f"s_sub_u32 s{sW}, s{sW}, 1")
    ids2()
    a("s_waitcnt lgkmcnt(0)")
    mksrd(rV, pV, KVSIZE, sT0); mksrd(rX, pX, 1024)
    selectors()
    cm("lane fields (lane = 16 g + 8 sh + j) and epilogue addresses")
    vG2, vJ, vSH, vOW, vRO, vP8, _, vPJ = range(XREG, XREG + 8)
    a(f"v_bfe_u32 v{vG2}, v0, 4, 2"); a(f"v_and_b32 v{vJ}, 7, v0"); a(f"v_bfe_u32 v{vSH}, v0, 3, 1")
    a(f"v_and_b32 v{vT}, 15, v0"); a(f"v_lshlrev_b32 v{vT}, 4, v{vT}")
    a(f"v_lshrrev_b32 v{vOW}, 5, v0"); a(f"v_lshlrev_b32 v{vOW}, 9, v{vOW}"); a(f"v_lshl_add_u32 v{vOW}, v{vT}, 1, v{vOW}")
    a(f"v_and_b32 v32, 1, v{vG2}"); a(f"v_lshl_add_u32 v{vOW}, v32, 4, v{vOW}")
    a(f"v_and_b32 v{vP8}, 31, v0"); a(f"v_lshlrev_b32 v{vP8}, 3, v{vP8}")
    a("v_bfe_u32 v32, v0, 5, 1"); a(f"v_lshl_add_u32 v{vRO}, v32, 12, v{vP8}")
    a(f"s_lshl_b32 s{sT1}, s{sW}, 8"); a(f"s_add_u32 s{sT2}, s{sT1}, {L_OP}"); a(f"v_add_u32 v{vRO}, s{sT2}, v{vRO}")
    a(f"s_lshl_b32 s{sU}, s{sIDX}, 9"); a(f"s_add_u32 s{sU}, s{sU}, s{sT1}")
    a(f"v_mov_b32 v{vFF}, 0xff"); a(f"v_mov_b32 v{vZERO}, 0")
    a(f"v_lshl_add_u32 v{vPJ}, v{vG2}, 3, v{vJ}")
    advance(("k", 3))
    a(f"s_load_dword s{sTAG}, s[{pWS}:{pWS+1}], {EPOCH}")
    mksrd(rWS, pWS, WS_SIZE)
    cm("tail role: 64 + i for a wo unit, the FFN unit number, or 63")
    first = [sum(un[:g]) for g in range(8)]
    assert sum(un) == NT2 and max(un) <= 6
    a(f"s_and_b32 s{sT1}, s{sH}, 7"); a(f"s_lshl_b32 s{sT3}, s{sT1}, 3")
    a(f"s_mov_b32 s{sT0}, {sum(first[g] << (8 * g) for g in range(4)):#x}"); a(f"s_mov_b32 s{sT1}, {sum(first[g + 4] << (8 * g) for g in range(4)):#x}")
    a(f"s_lshr_b64 s[{sT0}:{sT0+1}], s[{sT0}:{sT0+1}], s{sT3}"); a(f"s_and_b32 s{sUA}, s{sT0}, 0xff")
    a(f"s_lshr_b32 s{sT3}, s{sT3}, 1"); a(f"s_lshr_b32 s{sNA}, {sum(un[g] << (4 * g) for g in range(8)):#x}, s{sT3}"); a(f"s_and_b32 s{sNA}, s{sNA}, 15")
    a(f"s_lshr_b32 s{sMEM}, s2, 3")
    a(f"s_sub_u32 s{sT1}, s{sMEM}, 8"); a(f"s_add_u32 s{sT3}, s{sT1}, s{sUA}")
    a(f"s_cmp_lt_u32 s{sT1}, s{sNA}"); a(f"s_cselect_b32 s{sROLE}, s{sT3}, 63")
    a(f"s_add_u32 s{sT3}, s{sMEM}, 64")
    a(f"s_cmp_lt_u32 s{sMEM}, 8"); a(f"s_cselect_b32 s{sROLE}, s{sT3}, s{sROLE}")
    vAD64, vPA = XREG + 18, 44
    cm("splits 4..7 fetch 32 rows each of their head's part of wo behind their last V loads (one word per line)")
    a(f"s_mov_b32 s{sE+1}, 0"); a("v_mov_b32 v33, 0")
    a(f"s_cmp_lt_u32 s{sSP}, 4"); a(f"s_cselect_b32 s{sPFM}, 1, 0x01010101"); a(f"s_cselect_b32 s{sPFM+1}, 0, 0x01010101")
    a(f"s_and_b32 s{sT2}, s{sSP}, 3"); a(f"s_lshl2_add_u32 s{sT1}, s{sH}, s{sT2}"); a(f"s_lshl_b32 s{sT1}, s{sT1}, 15")
    a(f"v_add_u32 v32, s{sT1}, v{vKV}")
    a(f"v_lshl_add_u64 {q2(vAD64)}, v[32:33], 0, s[{pWO}:{pWO+1}]")
    a(f"s_cmp_lt_u32 s{sROLE}, {NT2}"); a("s_cbranch_scc1 L_addr_ffn")
    a(f"s_cmp_lt_u32 s{sROLE}, 64"); a("s_cbranch_scc1 L_addr_fetch")
    cm("wo block: rows (a + 8 (w >> 1)) * 128 + 64 (w & 1) + 16 g + sh + 2 t, columns 64 i + 8 j")
    a(f"v_lshl_add_u32 v32, v{vG2}, 4, v{vSH}")
    a(f"s_and_b32 s{sT1}, s{sH}, 7"); a(f"s_lshl_b32 s{sT1}, s{sT1}, 17")
    a(f"s_lshr_b32 s{sT2}, s{sW}, 1"); a(f"s_lshl_b32 s{sT2}, s{sT2}, 20"); a(f"s_add_u32 s{sT1}, s{sT1}, s{sT2}")
    a(f"s_and_b32 s{sT2}, s{sW}, 1"); a(f"s_lshl_b32 s{sT2}, s{sT2}, 16"); a(f"s_add_u32 s{sT1}, s{sT1}, s{sT2}")
    a(f"s_and_b32 s{sT2}, s{sROLE}, 7"); a(f"s_lshl_b32 s{sT2}, s{sT2}, 7"); a(f"s_add_u32 s{sT1}, s{sT1}, s{sT2}")
    a("v_lshlrev_b32 v32, 10, v32"); a(f"v_lshl_add_u32 v32, v{vJ}, 4, v32"); a(f"v_add_u32 v32, s{sT1}, v32")
    a(f"v_lshl_add_u64 {q2(vPA)}, v[32:33], 0, s[{pWO}:{pWO+1}]")
    a(f"s_mov_b32 s{sE}, 2048")
    a("s_branch L_addr_done")
    a("L_addr_ffn:")
    cm("gate | up block: rows 64 w + 16 g + 8 sh + t, columns 32 u + 8 (lane & 3), matrix = lane bit 2")
    a("v_and_b32 v32, 0x1f8, v0"); a("v_mul_u32_u24 v32, 2752, v32")
    a("v_and_b32 v34, 3, v0"); a("v_lshl_add_u32 v32, v34, 4, v32")
    a(f"s_lshl_b32 s{sT1}, s{sROLE}, 6")
    a("s_branch L_addr_gu")
    a("L_addr_fetch:")
    cm("one line per lane: rows 16 m + 8 hi + lo of the group's gate / up columns (lane = hi, lo, matrix, line)")
    a(f"s_lshl_b32 s{sT1}, s{sNA}, 6"); a(f"s_sub_u32 s{sT1}, s{sT1}, 4")
    a("v_and_b32 v32, 3, v0"); a("v_lshlrev_b32 v32, 7, v32"); a(f"v_min_u32 v32, s{sT1}, v32")
    a("v_bfe_u32 v34, v0, 3, 2"); a("v_bfe_u32 v35, v0, 5, 1"); a("v_lshl_add_u32 v34, v35, 3, v34")
    a("v_mul_u32_u24 v34, 2752, v34"); a("v_add_u32 v32, v32, v34")
    a(f"s_and_b32 s{sT2}, s{sMEM}, 15")
    a(f"s_mul_i32 s{sT1}, s{sT2}, {16*2752}"); a(f"s_lshl_b32 s{sT3}, s{sUA}, 6"); a(f"s_add_u32 s{sT1}, s{sT1}, s{sT3}")
    a("L_addr_gu:")
    a(f"v_add_u32 v32, s{sT1}, v32")
    a(f"v_lshl_add_u64 {q2(vPA)}, v[32:33], 0, s[{pWG}:{pWG+1}]")
    a("s_mov_b32 exec_lo, 0xf0f0f0f0"); a("s_mov_b32 exec_hi, 0xf0f0f0f0")
    a(f"v_lshl_add_u64 {q2(vPA)}, v[32:33], 0, s[{pWU}:{pWU+1}]")
    a("s_mov_b64 exec, -1")
    a(f"s_mov_b32 s{sE}, 2752")
    a("L_addr_done:")
    advance(("k", 7))
    a("s_waitcnt lgkmcnt(0)")
    tag_from_epoch()
    advance(("k", 15))

    cm("---- scores: lane (g, c) ends with the score of key g of load c")
    QP, SJ = 40, 24
    lds_wait("wait_q", f"ds_read_b128 {q4(QP)}, v{vT} offset:{L_QB}", list(range(QP, QP + 4)))
    stamp("qgot")
    for i in range(4):
        for j in range(16):
            a(f"v_dot2_f32_bf16 v{SJ+j}, v{KREG+4*j+i}, v{QP+i}, {'0' if i == 0 else 'v%d' % (SJ+j)}")
    for j in range(8):
        a(f"v_add_f32_dpp v{SJ+j}, v{SJ+j}, v{SJ+j} row_ror:8 row_mask:0xf bank_mask:0x3")
    for j in range(8):
        a(f"v_add_f32_dpp v{SJ+j}, v{SJ+j+8}, v{SJ+j+8} row_ror:8 row_mask:0xf bank_mask:0xc")
    for j in range(4):
        a(f"v_add_f32_dpp v{SJ+j}, v{SJ+j}, v{SJ+j} row_half_mirror row_mask:0xf bank_mask:0x5")
    for j in range(4):
        a(f"v_add_f32_dpp v{SJ+j}, v{SJ+j+4}, v{SJ+j+4} row_half_mirror row_mask:0xf bank_mask:0xa")
    for j in range(4):
        a(f"v_add_f32_dpp v{SJ+j}, v{SJ+j}, v{SJ+j} quad_perm:[1,0,3,2] {DPPF}")
    a("s_mov_b32 vcc_lo, 0xaaaaaaaa"); a("s_mov_b32 vcc_hi, 0xaaaaaaaa")
    a(f"v_cndmask_b32 v{SJ}, v{SJ}, v{SJ+1}, vcc"); a(f"v_cndmask_b32 v{SJ+2}, v{SJ+2}, v{SJ+3}, vcc")
    a(f"v_add_f32_dpp v{SJ}, v{SJ}, v{SJ} quad_perm:[2,3,0,1] {DPPF}")
    a(f"v_add_f32_dpp v{SJ+2}, v{SJ+2}, v{SJ+2} quad_perm:[2,3,0,1] {DPPF}")
    a("s_mov_b32 vcc_lo, 0xcccccccc"); a("s_mov_b32 vcc_hi, 0xcccccccc")
    SC = SJ
    a(f"v_cndmask_b32 v{SC}, v{SJ}, v{SJ+2}, vcc")
    bf16r(SC, SC); a(f"v_mul_f32 v{SC}, {SCALE:#x}, v{SC}"); bf16r(SC, SC)
    cm("p = exp(score - wave max), kept as a bf16 high and low part; (max, sum) go to LDS")
    a(f"v_mov_b32 v{T}, v{SC}"); wave_red("v_max_f32", T, sMW)
    a(f"v_subrev_f32 v{SC}, s{sMW}, v{SC}"); a(f"v_mul_f32 v{SC}, {LOG2E:#x}, v{SC}"); a(f"v_exp_f32 v{SC}, v{SC}")

    def split_p():
        bf16r(T, SC); a(f"v_sub_f32 v{T}, v{SC}, v{T}")
        a(f"v_cvt_pk_bf16_f32 v{vPK}, v{SC}, v{T}")
    split_p()
    a(f"v_mov_b32 v{T}, v{SC}"); wave_red("v_add_f32", T, sT2)
    a(f"v_mov_b32 v{T}, s{sMW}"); a(f"v_mov_b32 v{T+1}, s{sT2}")
    a(f"s_lshl_b32 s{sT1}, s{sW}, 3"); a(f"v_mov_b32 v{T+2}, s{sT1}")
    a("s_mov_b64 exec, 1"); a(f"ds_write_b64 v{T+2}, {q2(T)} offset:{L_ST}"); a("s_mov_b64 exec, -1")
    stamp("p")

    cm("---- o = p @ V")
    for j in range(12):
        build_a(j)
        advance(("v", j | 3))
        mfma(j, vreg(j), j == 0)
    assert issued[0] == len(seq)
    cm("move to the workgroup max: factor exp(wave max - workgroup max) from the helper wave")
    a(f"v_lshrrev_b32 v{T+2}, 1, v{T+2}")
    lds_wait("wait_f", f"ds_read_b32 v32, v{T+2} offset:{L_F}\nds_read_b32 v33, v{vZERO} offset:{L_MODE}", [32, 33])
    a(f"v_readfirstlane_b32 s{sMODE}, v33")
    a(f"v_mul_f32 v{SC}, v{SC}, v32")
    for r in range(4): a(f"v_mul_f32 v{vD+r}, v{vD+r}, v32")
    split_p()
    stamp("cbar")

    def w1reg(j): return KREG + 4 * j if j < 4 else VREG + 4 * j

    def tload(j, reg, pol):
        a(f"global_load_dwordx4 {q4(reg)}, {q2(vPA)}, off{pol}")
        if j < 7: a(f"v_lshl_add_u64 {q2(vPA)}, {q2(vPA)}, 0, s[{sE}:{sE+1}]")

    def pf_load(k):
        a(f"s_mov_b64 exec, s[{sPFM}:{sPFM+1}]")
        a(f"global_load_dword v3, {q2(vAD64)}, off")
        a("s_mov_b64 exec, -1")
        if k < 3: add64(vAD64, (pford[k + 1] - pford[k]) * 8192)

    def pv_tail(e, load):
        k = 0
        for j in range(12, 16):
            build_a(j)
            a(f"s_waitcnt vmcnt({15 - j + k})")
            mfma(j, vreg(j), False)
            for _ in range(e.count(j)):
                load(k); k += 1
    assert len(pfat) == 4 and sorted(pford) == [0, 1, 2, 3] and pford[0] == 0
    a(f"s_cmp_ge_u32 s{sROLE}, 64"); a("s_cbranch_scc1 L_pv_wo")
    pv_tail(pfat, pf_load)
    a("L_pv_done:")
    a(f"ds_write_b128 v{vOW}, {q4(vD)} offset:{L_OP}")
    a(f"s_cmp_ge_u32 s{sW}, 2")
    cm("the helper wave has ended when this barrier opens")
    a("s_waitcnt lgkmcnt(0)"); a("s_barrier")
    stamp("obar")
    a("s_cbranch_scc1 L_published")
    cm("waves 0, 1: add the 16 partial rows and publish 64 columns of o each")
    red16(vRO, 24, mid=lambda: a(f"s_cmp_lg_u32 s{sMODE}, 0"))
    a("s_mov_b32 exec_hi, 0")
    put_tag(25, 25)
    mode_store("ost", f"buffer_store_dwordx2 v[24:25], v{vP8}, {srd(rWS)}, s{sU} offen")
    a("s_mov_b32 exec_hi, -1")
    stamp("x")
    a("L_published:")
    a(f"s_cmp_ge_u32 s{sROLE}, 64"); a("s_cbranch_scc1 L_wo")
    a("s_barrier")
    a(f"s_cmp_lt_u32 s{sROLE}, {NT2}"); a("s_cbranch_scc1 L_ffn")
    cm("members 16..31: FFN lines into L2 in the order the FFN units ask for them")
    a(f"s_cmp_lg_u32 s{sW}, 2"); a("s_cbranch_scc1 L_exit")
    a(f"s_cmp_lt_u32 s{sMEM}, 16"); a("s_cbranch_scc1 L_refresh")
    at = 0
    for c in stages:
        if c == "d":
            mksrd(rT, pWD, 1376 * 1024)
            a(f"s_lshl_b32 s{sT0}, s{sNA}, 4"); a(f"s_and_b32 s{sT2}, s{sMEM}, 15"); a(f"s_mul_i32 s{sT2}, s{sT2}, s{sT0}")
            a(f"s_lshl_b32 s{sT3}, s{sUA}, 8"); a(f"s_add_u32 s{sT2}, s{sT2}, s{sT3}"); a(f"s_lshl_b32 s{sT2}, s{sT2}, 7")
            a(f"v_lshlrev_b32 v32, 7, v{vL}"); a(f"buffer_load_dword v3, v32, {srd(rT)}, s{sT2} offen")
            a(f"s_sub_u32 s{sT0}, s{sT0}, 1"); a(f"v_add_u32 v32, 64, v{vL}"); a(f"v_min_u32 v32, s{sT0}, v32"); a("v_lshlrev_b32 v32, 7, v32")
            a(f"buffer_load_dword v3, v32, {srd(rT)}, s{sT2} offen")
        else:
            row = {"A": 0, "B": 4, "C": 256, "D": 260}[c]
            if row != at: add64(vPA, (row - at) * 2752)
            at = row
            a(f"global_load_dword v3, {q2(vPA)}, off")
    a("s_branch L_exit")
    a("L_refresh:")
    cm("members 14, 15 keep the y lines this die reads in L2 until all are written, so the FFN units find them there")
    a(f"s_cmp_lt_u32 s{sMEM}, 14"); a("s_cbranch_scc1 L_exit")
    a(f"s_lshr_b32 s{sT1}, s{sXCC}, 2")
    if h2: a(f"s_xor_b32 s{sT1}, s{sT1}, 1")
    a(f"s_and_b32 s{sT0}, s{sMEM}, 1"); a(f"s_lshl1_add_u32 s{sT0}, s{sT0}, s{sT1}"); a(f"s_lshl_b32 s{sT0}, s{sT0}, 13"); a(f"s_add_u32 s{sT0}, s{sT0}, {MB2}")
    a(f"v_lshlrev_b32 v32, 7, v{vL}")
    a("L_refresh_loop:")
    a(f"buffer_load_ubyte v24, v32, {srd(rWS)}, s{sT0} offen offset:4 sc1")
    spend()
    a("s_waitcnt vmcnt(0)")
    a(f"v_cmp_ne_u32 vcc, s{sTG8}, v24")
    a("s_cbranch_vccnz L_refresh_loop")
    a("s_branch L_exit")
    emit_far()

    a("L_helper:")
    if stamps: a(f"v_mov_b32 v{vSTAMP}, 0"); a(f"v_writelane_b32 v{vSTAMP}, s{sST}, 0"); a(f"s_mov_b32 s{sROLE}, 63")
    a(f"s_load_dword s{sTAG}, s[{pWS}:{pWS+1}], {EPOCH}")
    ids2()
    selectors()
    mksrd(rWS, pWS, WS_SIZE)
    a("s_waitcnt vmcnt(16)")
    stamp("x")
    cm("LN(x), two passes, rounded like the reference")
    U = 32
    for i in range(4): unpack(U + 2 * i, U + 2 * i + 1, XA + i)
    S, M_, R_ = 40, 41, 42
    a(f"v_add_f32 v{S}, v{U}, v{U+1}")
    for i in range(2, 8): a(f"v_add_f32 v{S}, v{S}, v{U+i}")
    wave_red("v_add_f32", S, sT1)
    a(f"v_mov_b32 v{M_}, 0x3b000000"); a(f"v_mul_f32 v{M_}, s{sT1}, v{M_}")
    for i in range(8): a(f"v_sub_f32 v{U+i}, v{U+i}, v{M_}")
    a(f"v_mul_f32 v{S}, v{U}, v{U}")
    for i in range(1, 8): a(f"v_fmac_f32 v{S}, v{U+i}, v{U+i}")
    wave_red("v_add_f32", S, sT1)
    a(f"v_mov_b32 v{S}, 0x3b000000"); a(f"v_mul_f32 v{S}, s{sT1}, v{S}")
    bf16r(M_, M_); bf16r(S, S)
    a(f"v_add_f32 v{S}, {EPS:#x}, v{S}"); bf16r(S, S)
    a(f"v_sqrt_f32 v{S}, v{S}"); bf16r(S, S)
    a(f"v_rcp_f32 v{R_}, v{S}")
    a(f"v_lshlrev_b32 v{XO}, 16, v{XO}"); a(f"v_sub_f32 v{XO}, v{XO}, v{M_}"); bf16r(XO, XO)
    a(f"v_mul_f32 v{XO}, v{XO}, v{R_}")
    a(f"v_cvt_pk_bf16_f32 v{vPK}, v{XO}, 0")
    a("s_waitcnt lgkmcnt(0)")
    tag_from_epoch()
    cm("partial q over 64 rows")
    for j in range(16):
        build_a(j)
        if j % 4 == 0: a(f"s_waitcnt vmcnt({12 - j})")
        mfma(j, KREG + 4 * j, j == 0)
    cm("publish 128 x (value, tag); every second tag also names this die")
    a("v_and_b32 v24, 15, v0"); a("v_bfe_u32 v25, v0, 4, 1"); a("v_lshrrev_b32 v26, 5, v0")
    a("v_lshlrev_b32 v24, 6, v24"); a("v_lshl_add_u32 v24, v25, 5, v24"); a("v_lshl_add_u32 v24, v26, 4, v24")
    a(f"s_lshl_b32 s{sT2}, s{sIDX}, 10"); a(f"s_add_u32 s{sT2}, s{sT2}, {MBQ}")
    a(f"s_xor_b32 s{sT3}, s{sTAG}, s{sXCC}")
    a(f"v_permlane32_swap_b32 v{vD}, v{vD+2}"); a(f"v_permlane32_swap_b32 v{vD+1}, v{vD+3}")
    a(f"v_mov_b32 v{vD+2}, v{vD+1}"); a(f"v_mov_b32 v{vD+1}, s{sTAG}"); a(f"v_mov_b32 v{vD+3}, s{sT3}")
    qstore = f"buffer_store_dwordx4 {q4(vD)}, v24, {srd(rWS)}, s{sT2} offen"
    a(qstore)
    stamp("qpub")
    a(f"s_lshl_b32 s{sT0}, s{sH}, 13"); a(f"s_add_u32 s{sT0}, s{sT0}, {MBQ}"); a(f"s_add_u32 s{sU}, s{sT0}, 4096")
    a(f"s_mov_b32 s{sT1}, 0")
    GQ = KREG

    def q_retry():
        cm("a sibling that stays invisible may be on another die and cannot see the plain store either: write through")
        a(f"s_add_u32 s{sT1}, s{sT1}, 1"); a(f"s_cmp_lg_u32 s{sT1}, {wtafter}"); a("s_cbranch_scc1 L_gather_q")
        a(qstore + " sc1")
    a("s_waitcnt vmcnt(0)")
    poll_tag("gather_q", [(f"buffer_load_dwordx4 {q4(GQ+4*t)}, v{vXA}, {srd(rWS)}, s{sU if t >= 4 else sT0} offen offset:{(t&3)*1024} sc1", [GQ+4*t+1, GQ+4*t+3]) for t in range(8)],
             26, slack=3, retry=q_retry)
    cm("a sibling that names another die needs the written-through copy")
    for t in range(8): a(f"v_xor_b32 v{GQ+4*t+3}, s{sT3}, v{GQ+4*t+3}")
    vor(26, [GQ + 4 * t + 3 for t in range(8)])
    a("v_cmp_ne_u32 vcc, 0, v26"); a("s_cbranch_vccz L_same_die")
    a(qstore + " sc1")
    a("L_same_die:")
    for st in (16, 8, 4):
        for i in range(0, st, 2): a(f"v_add_f32 v{GQ+i}, v{GQ+i}, v{GQ+i+st}")
    a(f"v_cvt_pk_bf16_f32 v{GQ}, v{GQ}, v{GQ+2}"); a("v_lshlrev_b32 v25, 2, v0")
    cm("a NaN pair must not look like the cleared pattern")
    a(f"v_min_u32 v{GQ}, -2, v{GQ}")
    a(f"ds_write_b32 v25, v{GQ} offset:{L_QB}")
    stamp("qgot")
    cm("this workgroup's o slot comes into L2 now; die words of the group's eight wo units (head a + 8 (i & 3), split i >> 2)")
    a("v_and_b32 v25, 3, v0"); a("v_lshlrev_b32 v41, 7, v25"); a(f"s_lshl_b32 s{sT2}, s{sIDX}, 9")
    a(f"buffer_load_dword v43, v41, {srd(rWS)}, s{sT2} offen sc1")
    a("v_bfe_u32 v26, v0, 2, 1"); a("v_lshlrev_b32 v25, 16, v25"); a("v_lshl_add_u32 v25, v26, 10, v25")
    a(f"s_and_b32 s{sT0}, s{sH}, 7"); a(f"s_lshl_b32 s{sT1}, s{sT0}, 13"); a(f"s_add_u32 s{sT1}, s{sT1}, {MBQ}")
    a(f"buffer_load_dword v40, v25, {srd(rWS)}, s{sT1} offen offset:12 sc1")
    cm("workgroup max and sum from the eight waves' statistics")
    a(f"v_and_b32 v{T+2}, 7, v0"); a(f"v_lshlrev_b32 v{T+3}, 2, v{T+2}"); a(f"v_lshlrev_b32 v{T+2}, 3, v{T+2}")
    lds_wait("wait_stats", f"ds_read_b64 {q2(T)}, v{T+2} offset:{L_ST}", [T, T + 1], sleep=hsleep)
    a(f"v_mov_b32 v{MM}, v{T}"); red8("v_max_f32", MM)
    a(f"v_sub_f32 v{T}, v{T}, v{MM}"); a(f"v_mul_f32 v{T}, {LOG2E:#x}, v{T}"); a(f"v_exp_f32 v{T}, v{T}")
    a(f"ds_write_b32 v{T+3}, v{T} offset:{L_F}")
    a(f"v_mov_b32 v36, v{MM}"); a(f"v_mov_b32 v37, s{sTAG}"); a(f"v_mul_f32 v38, v{T}, v{T+1}"); a(f"v_mov_b32 v39, s{sTAG}")
    red8("v_add_f32", 38)
    a(f"s_lshl_b32 s{sT1}, s{sIDX}, 7"); a(f"s_add_u32 s{sT1}, s{sT1}, {MBM}")
    a("s_waitcnt vmcnt(0)")
    a(f"v_cmp_ne_u32 vcc, s{sT3}, v40"); a("s_cmp_lg_u64 vcc, 0"); a(f"s_cselect_b32 s{sMODE}, 1, 0")
    a(f"v_mov_b32 v40, s{sMODE}"); a("v_mov_b32 v41, 0")
    a("s_mov_b64 exec, 1")
    a(f"ds_write_b32 v41, v40 offset:{L_MODE}")
    mode_store("mst", f"buffer_store_dwordx4 v[36:39], off, {srd(rWS)}, s{sT1}")
    a("s_mov_b64 exec, -1")
    a("s_waitcnt lgkmcnt(0)")
    stamp("p")
    a(f"s_cmp_ge_u32 s{sSP}, 2"); a("s_cbranch_scc1 L_exit")
    cm("wo unit: weights exp(M - head max) / head sum of the group's 32 members (lane = 8 i + split, head a + 8 i)")
    a("v_bfe_u32 v24, v0, 3, 2"); a("v_and_b32 v25, 7, v0"); a("v_lshlrev_b32 v24, 13, v24"); a("v_lshl_add_u32 v24, v25, 7, v24")
    a(f"s_lshl_b32 s{sT0}, s{sT0}, 10"); a(f"s_add_u32 s{sT0}, s{sT0}, {MBM}")
    a("s_waitcnt vmcnt(0)")
    poll_tag("gather_m", [(f"buffer_load_dwordx4 v[32:35], v24, {srd(rWS)}, s{sT0} offen sc1", [33, 35])], 26)
    a("v_mov_b32 v36, v32"); red8("v_max_f32", 36)
    a("v_sub_f32 v32, v32, v36"); a(f"v_mul_f32 v32, {LOG2E:#x}, v32"); a("v_exp_f32 v32, v32")
    a("v_mul_f32 v34, v32, v34"); red8("v_add_f32", 34)
    a("v_rcp_f32 v34, v34"); a("v_and_b32 v24, 31, v0"); a("v_lshlrev_b32 v24, 2, v24")
    a("v_mul_f32 v32, v32, v34")
    a(f"ds_write_b32 v24, v32 offset:{L_C}")
    a("s_waitcnt lgkmcnt(0)")
    stamp("cbar")
    a("s_branch L_exit")
    emit_far()

    TMP = 3
    CW, vO, vPW, vYS, vCA = VREG, VREG + 4, VREG + 5, VREG + 6, VREG + 7
    sOG, sYS, sPM = 60, 61, 62
    a("L_pv_wo:")
    cm("wave w takes half (w & 1) of head a + 8 (w >> 1); y row a has one copy on each value of address bit 13")
    a(f"s_lshr_b32 s{sT1}, s{sW}, 1"); a(f"s_lshl_b32 s{sT0}, s{sT1}, 5"); a(f"v_lshl_add_u32 v{vCA}, v{vSH}, 4, s{sT0}")
    a(f"s_and_b32 s{sT2}, s{sH}, 7"); a(f"s_lshl3_add_u32 s{sT3}, s{sT1}, s{sT2}")
    a(f"s_lshl_b32 s{sT3}, s{sT3}, 12"); a(f"s_and_b32 s{sT1}, s{sW}, 1"); a(f"s_lshl_b32 s{sT1}, s{sT1}, 8"); a(f"s_add_u32 s{sOG}, s{sT1}, s{sT3}")
    a(f"v_lshlrev_b32 v{vO}, 11, v{vSH}"); a(f"v_lshl_add_u32 v{vO}, v{vPJ}, 3, v{vO}")
    a(f"v_and_b32 v{vPW}, 0xfffffeff, v{vOW}")
    a(f"v_bfe_u32 v{vYS}, v0, 5, 1"); a(f"v_lshl_add_u32 v{vYS}, v{vYS}, 13, v{vP8}")
    a(f"s_and_b32 s{sT3}, s{sT2}, 4"); a(f"s_add_u32 s{sT2}, s{sT2}, s{sT3}")
    a(f"s_lshl_b32 s{sT2}, s{sT2}, 11"); a(f"s_and_b32 s{sT3}, s{sROLE}, 7"); a(f"s_lshl_b32 s{sT3}, s{sT3}, 8")
    a(f"s_add_u32 s{sT2}, s{sT2}, s{sT3}"); a(f"s_add_u32 s{sYS}, s{sT2}, {MB2}")
    a(f"s_mov_b32 s{sPM}, 0x00ff00ff"); a(f"s_mov_b32 s{sPM+1}, 0xff00ff00")
    pv_tail(e1, lambda j: tload(j, w1reg(j), " nt"))
    a("s_branch L_pv_done")
    a("L_wo:")
    R1 = 32
    a(f"ds_read_b128 {q4(CW)}, v{vCA} offset:{L_C}")
    a("s_barrier")
    for j in range(len(e1), 8): tload(j, w1reg(j), " nt")
    a(f"v_add_u32 v{vRO}, {L_P16 - L_OP}, v{vRO}")
    stamp("ready")
    a("s_waitcnt lgkmcnt(0)")

    def ocombine():
        a(f"v_pk_mul_f32 {q2(R1)}, {q2(R1)}, {q2(CW)} op_sel_hi:[1,0]")
        a(f"v_pk_fma_f32 {q2(R1)}, {q2(R1+2)}, {q2(CW)}, {q2(R1)} op_sel:[0,1,0]")
        a(f"v_pk_fma_f32 {q2(R1)}, {q2(R1+4)}, {q2(CW+2)}, {q2(R1)} op_sel_hi:[1,0,1]")
        a(f"v_pk_fma_f32 {q2(R1)}, {q2(R1+6)}, {q2(CW+2)}, {q2(R1)} op_sel:[0,1,0]")
    cm("o pair (16 g + 2 j) of splits 4 sh .. 4 sh + 3, weighted and summed over the eight splits")
    poll("poll_o", [f"buffer_load_dwordx2 {q2(R1+2*t)}, v{vO}, {srd(rWS)}, s{sOG} offen offset:{t*SLOT} sc1" for t in range(4)],
         [R1 + 2 * t + 1 for t in range(4)], TMP, ocombine)
    stamp("got")
    ror8_pair(R1)
    a(f"v_cvt_pk_bf16_f32 v{vPK}, v{R1}, v{R1+1}")
    build_a(0)
    for j in range(8):
        if j < 7: build_a(j + 1)
        mfma(j, w1reg(j), j == 0)
    a(f"s_mov_b64 exec, s[{sPM}:{sPM+1}]")
    a(f"s_cmp_lg_u32 s{sW}, 0")
    a(f"ds_write_b128 v{vPW}, {q4(vD)} offset:{L_P16}")
    a("s_mov_b64 exec, -1")
    a("s_waitcnt lgkmcnt(0)"); a("s_barrier")
    a("s_cbranch_scc1 L_exit")
    red16(vRO, 24)
    put_tag(25, 25)
    a(f"buffer_store_dwordx2 v[24:25], v{vYS}, {srd(rWS)}, s{sYS} offen sc1")
    stamp("pub")
    a("s_branch L_exit")

    RD, BD, BG, ACC, AG, RAW, XF, HS = KREG + 32, KREG, VREG, KREG + 32, 24, 40, 12, 14
    XP, vHA, vGU, vY2, vSR, vHW, vFA, vFO, vFH, vPW2 = range(XREG + 8, XREG + 18)
    sF0, sLO, sHI, sNL, sFU = 60, 64, 65, 66, 68
    a("L_ffn:")
    for j in range(8): tload(j, KREG + 4 * j, "")
    a(f"s_lshl_b32 s{sT1}, s{sW}, 7")
    a(f"v_lshlrev_b32 v{vHW}, 2, v{vPJ}")
    a(f"buffer_load_dword v{XP}, v{vHW}, {srd(rX)}, s{sT1} offen")
    a(f"v_add_u32 v{vHW}, s{sT1}, v{vHW}")
    a(f"s_cmp_ge_u32 s{sW}, 4"); a("s_cbranch_scc1 L_no_down")
    cm("waves 0..3: rows 32 u + 2 g + 16 ((t >> 1) & 1) + 8 (t & 1) + (t >> 2) of w_down, columns 128 w + 8 c")
    mksrd(rT, pWD, 1376 * 1024)
    a(f"v_lshl_add_u32 v23, v{vG2}, 11, v{vT}")
    a(f"s_lshl_b32 s{sT3}, s{sROLE}, 15"); a(f"s_lshl_b32 s{sT2}, s{sW}, 8"); a(f"s_add_u32 s{sT3}, s{sT3}, s{sT2}")
    for jj in range(4):
        for hi in range(2):
            a(f"buffer_load_dwordx4 {q4(RD+4*(jj+4*hi))}, v23, {srd(rT)}, s{sT3} offen offset:{hi*1024} nt")
        if jj < 3: a(f"s_add_u32 s{sT3}, s{sT3}, 8192")
    a("L_no_down:")
    cm("either copy of y is valid; dies 0..3 and 4..7 read different ones")
    a(f"v_lshlrev_b32 v{vHA}, 3, v{vPJ}"); a(f"v_lshl_add_u32 v{vHA}, v{vSH}, 14, v{vHA}")
    a(f"s_lshl_b32 s{sT0}, s{sW}, 8"); a(f"s_add_u32 s{sT0}, s{sT0}, {MB2}")
    a(f"s_lshr_b32 s{sT1}, s{sXCC}, 2")
    if h2: a(f"s_xor_b32 s{sT1}, s{sT1}, 1")
    a(f"s_lshl_b32 s{sT1}, s{sT1}, 13"); a(f"s_add_u32 s{sT0}, s{sT0}, s{sT1}")
    a(f"s_add_u32 s{sT1}, s{sT0}, 4096")
    cm("partial-row write address: row 2 w + sh, float 4 (c2 >> 1) + 2 matrix + (c2 & 1), + 80 for the column-sum lanes (g = 1)")
    a(f"s_mul_i32 s{sT2}, s{sW}, {2*PROW}"); a(f"s_add_u32 s{sT2}, s{sT2}, {L_P16}")
    a(f"v_mul_u32_u24 v{vPW2}, {PROW}, v{vSH}"); a(f"v_add_u32 v{vPW2}, s{sT2}, v{vPW2}")
    a("v_bfe_u32 v30, v0, 1, 1"); a(f"v_lshl_add_u32 v{vPW2}, v30, 4, v{vPW2}")
    a("v_bfe_u32 v30, v0, 2, 1"); a(f"v_lshl_add_u32 v{vPW2}, v30, 3, v{vPW2}")
    a("v_and_b32 v30, 1, v0"); a(f"v_lshl_add_u32 v{vPW2}, v30, 2, v{vPW2}")
    a(f"v_and_b32 v30, 1, v{vG2}"); a("v_mul_u32_u24 v30, 320, v30"); a(f"v_add_u32 v{vPW2}, v30, v{vPW2}")
    cm("readers: lane (g, qd, j2) sums rows 4 qd .. 4 qd + 3 at float 16 g + 4 j2; statistics of row lane & 15")
    a("v_bfe_u32 v30, v0, 2, 2"); a(f"v_mul_u32_u24 v{vGU}, {4*PROW}, v30"); a(f"v_lshl_add_u32 v{vGU}, v{vG2}, 6, v{vGU}")
    a("v_and_b32 v31, 3, v0"); a(f"v_lshl_add_u32 v{vGU}, v31, 4, v{vGU}")
    a(f"v_mul_u32_u24 v{vSR}, {PROW // 16}, v{vT}"); a(f"v_add_u32 v{vSR}, {L_P16}, v{vSR}")
    a(f"v_lshlrev_b32 v{vY2}, 1, v{vT}"); a(f"v_lshl_add_u32 v{vY2}, v{vG2}, 3, v{vY2}")
    M3 = MB3 + h3 * 8192
    a(f"s_and_b32 s{sT2}, s{sROLE}, -4"); a(f"s_add_u32 s{sT2}, s{sT2}, s{sROLE}"); a(f"s_lshl_b32 s{sT2}, s{sT2}, 11")
    a(f"s_lshl_b32 s{sT3}, s{sW}, 9"); a(f"s_add_u32 s{sT2}, s{sT2}, s{sT3}"); a(f"s_add_u32 s{sT2}, s{sT2}, {M3}")
    cm("final sum: waves 0, 1 of units 0..15 take 16 columns each; lane >> 2 (+ 16 t) is the partial")
    a(f"s_lshl1_add_u32 s{sFU}, s{sROLE}, s{sW}"); a(f"s_cmp_lt_u32 s{sW}, 2"); a(f"s_cselect_b32 s{sFU}, s{sFU}, 32")
    a(f"s_min_u32 s{sFU}, s{sFU}, 32")
    a(f"v_lshrrev_b32 v{vFA}, 2, v{vL}"); a(f"v_lshl_add_u32 v{vFA}, v{vG2}, 2, v{vFA}")
    a(f"v_lshlrev_b32 v{vFA}, 11, v{vFA}"); a(f"v_lshl_add_u32 v{vFA}, v31, 4, v{vFA}")
    a(f"v_lshl_add_u32 v{vFO}, v31, 2, v{vG2}"); a(f"s_lshl_b32 s{sT3}, s{sFU}, 4"); a(f"v_add_lshl_u32 v{vFO}, s{sT3}, v{vFO}, 1")
    a(f"s_lshl_b32 s{sF0}, s{sFU}, 6"); a(f"s_add_u32 s{sF0}, s{sF0}, {M3}"); a(f"s_add_u32 s{sF0+1}, s{sF0}, 0x10000"); a(f"s_add_u32 s{sF0+2}, s{sF0}, 0x20000")
    mksrd(rO, pOUT, 1024)
    a(f"s_mov_b32 s{sLO}, 0x05040100"); a(f"s_mov_b32 s{sHI}, 0x07060302")
    a(f"s_mov_b32 s{sNL}, {LOG2E ^ 0x80000000:#x}"); a(f"s_mov_b32 s{sNL+1}, {LOG2E ^ 0x80000000:#x}")
    a(f"s_mov_b32 s{sE}, 0xffff00ff"); a(f"s_mov_b32 s{sE+1}, 0x0000ff00")
    for r in range(4): a(f"v_mov_b32 v{vA+r}, 0x3f803f80")
    for r in range(16): a(f"v_mov_b32 v{AG+r}, 0")

    def transpose(dst, src):
        for q in range(4):
            for r in range(4):
                a(f"v_perm_b32 v{dst+8*q+r}, v{src+4*(2*r+1)+q}, v{src+4*(2*r)+q}, s{sLO}")
                a(f"v_perm_b32 v{dst+8*q+4+r}, v{src+4*(2*r+1)+q}, v{src+4*(2*r)+q}, s{sHI}")
    hloads = [f"buffer_load_dwordx2 {q2(RAW+2*t)}, v{vHA}, {srd(rWS)}, s{sT1 if t >= 2 else sT0} offen offset:{(t&1)*2048} sc1" for t in range(4)]
    cm("8 x 8 transposes make the row index the in-lane k index of the B operands")
    a(f"s_cmp_ge_u32 s{sW}, 4"); a("s_cbranch_scc1 L_tr_all")
    a("s_waitcnt vmcnt(8)")
    a("s_branch L_tr_gu")
    a("L_tr_all:")
    a("s_waitcnt vmcnt(0)")
    a("L_tr_gu:")
    transpose(BG, KREG)
    unpack(XF, XF + 1, XP)
    a("s_cbranch_scc1 L_tr_done")
    a("s_waitcnt vmcnt(0)")
    transpose(BD, RD)
    a("L_tr_done:")
    stamp("ready")

    def hcombine():
        pkadd(RAW, RAW, RAW + 2); pkadd(RAW + 4, RAW + 4, RAW + 6); pkadd(HS, RAW, RAW + 4)
    poll("poll_y", hloads, [RAW + 2 * t + 1 for t in range(4)], TMP, hcombine)
    stamp("got")
    cm("h pair; A rows 0-3 / 8-11 hold h (rows sh = 0 / 1), rows 4-7 / 12-15 ones: h @ W, column sums of W, sum h, sum h^2")
    a(f"s_cmp_ge_u32 s{sW}, 4")
    ror8_pair(HS)
    a(f"v_cvt_pk_bf16_f32 v{HS}, v{HS}, v{HS+1}")
    unpack(HS, HS + 1, HS)
    pkadd(HS, HS, XF)
    a(f"v_cvt_pk_bf16_f32 v{vPK}, v{HS}, v{HS+1}")
    a(f"ds_write_b32 v{vHW}, v{vPK} offset:{L_H}")
    for r in range(4): a(f"v_mov_b32_dpp v{vA+r}, v{vPK} row_newbcast:{r} row_mask:0xf bank_mask:0x1")
    for r in range(4): a(f"v_mov_b32_dpp v{vA+r}, v{vPK} row_newbcast:{4+r} row_mask:0xf bank_mask:0x4")
    mm(vD, vA, vA, True)
    for i in range(8): mm(ACC + 4 * i, vA, BG + 4 * i, True)
    a(f"s_mov_b64 exec, s[{sE}:{sE+1}]")
    a(f"ds_write_b32 v{vPW2}, v{vD} offset:256")
    for k in range(4): a(f"ds_write2_b32 v{vPW2}, v{ACC+8*k}, v{ACC+8*k+4} offset0:{16*k} offset1:{16*k+8}")
    a("s_mov_b64 exec, -1")
    a("s_waitcnt lgkmcnt(0)"); a("s_barrier")
    a("s_cbranch_scc1 L_epoch")
    cm("LN(h) @ W = (h @ W - mean * column sum) / sqrt(var + eps); act = g * sigmoid(g) * u")
    GU, CS, ST = BG, BG + 16, vA
    a(f"ds_read2_b32 {q2(ST)}, v{vSR} offset0:64 offset1:66")
    for t in range(4): a(f"ds_read_b128 {q4(CS+4*t)}, v{vGU} offset:{L_P16 + PROW*t + 320}")
    for t in range(4): a(f"ds_read_b128 {q4(GU+4*t)}, v{vGU} offset:{L_P16 + PROW*t}")
    a(f"ds_read_u16 v{vFH}, v{vFO} offset:{L_H}")
    a("s_waitcnt lgkmcnt(9)")
    steps = ("quad_perm:[1,0,3,2]", "quad_perm:[2,3,0,1]", "row_half_mirror", "row_mirror")

    def st_step(k):
        for i in range(2): a(f"v_add_f32_dpp v{ST+i}, v{ST+i}, v{ST+i} {steps[k]} {DPPF}")
    st_step(0); a("s_waitcnt lgkmcnt(7)"); pkadd(CS, CS, CS + 4)
    st_step(1); pkadd(CS + 2, CS + 2, CS + 6); a("s_waitcnt lgkmcnt(5)")
    st_step(2); pkadd(CS + 8, CS + 8, CS + 12)
    st_step(3); pkadd(CS + 10, CS + 10, CS + 14)
    MU, VAR = ST + 2, ST
    a(f"v_mul_f32 v{MU}, 0x3b000000, v{ST+1}"); a(f"v_mul_f32 v{VAR}, 0x3b000000, v{ST}")
    pkadd(CS, CS, CS + 8); pkadd(CS + 2, CS + 2, CS + 10)
    a(f"v_fma_f32 v{VAR}, -v{MU}, v{MU}, v{VAR}"); a(f"v_max_f32 v{VAR}, 0, v{VAR}")
    a(f"v_cvt_pk_bf16_f32 v{VAR}, v{VAR}, v{MU}")
    a("s_waitcnt lgkmcnt(3)")
    pkadd(GU, GU, GU + 4); pkadd(GU + 2, GU + 2, GU + 6)
    unpack(VAR, MU, VAR)
    a(f"v_add_f32 v{VAR}, {EPS:#x}, v{VAR}"); bf16r(VAR, VAR)
    a(f"v_sqrt_f32 v{VAR}, v{VAR}")
    a("s_waitcnt lgkmcnt(1)")
    pkadd(GU + 8, GU + 8, GU + 12); pkadd(GU + 10, GU + 10, GU + 14)
    for i in (0, 2): a(f"v_pk_fma_f32 {q2(GU+i)}, {q2(CS+i)}, {q2(MU)}, {q2(GU+i)} op_sel_hi:[1,0,1] neg_lo:[0,1,0] neg_hi:[0,1,0]")
    pkadd(GU, GU, GU + 8); pkadd(GU + 2, GU + 2, GU + 10)
    bf16r(VAR, VAR)
    for i in range(4): a(f"v_add_f32_dpp v{GU+i}, v{GU+i}, v{GU+i} row_ror:4 {DPPF}")
    a(f"v_rcp_f32 v{VAR}, v{VAR}")
    for i in range(4): a(f"v_add_f32_dpp v{GU+i}, v{GU+i}, v{GU+i} row_ror:8 {DPPF}")
    for i in (0, 2): a(f"v_pk_mul_f32 {q2(GU+i)}, {q2(GU+i)}, {q2(VAR)} op_sel_hi:[1,0]")
    a(f"v_pk_mul_f32 {q2(GU+4)}, {q2(GU)}, s[{sNL}:{sNL+1}]")
    for i in range(2): a(f"v_exp_f32 v{GU+4+i}, v{GU+4+i}")
    a(f"v_pk_mul_f32 {q2(GU)}, {q2(GU)}, {q2(GU+2)}")
    a(f"v_pk_add_f32 {q2(GU+4)}, {q2(GU+4)}, 1.0 op_sel_hi:[1,0]")
    for i in range(2): a(f"v_rcp_f32 v{GU+4+i}, v{GU+4+i}")
    a(f"v_pk_mul_f32 {q2(GU)}, {q2(GU)}, {q2(GU+4)}")
    a(f"v_cvt_pk_bf16_f32 v{vPK}, v{GU}, v{GU+1}")
    cm("act @ w_down rows: A operand G holds act in rows 4 G .. 4 G + 3 only, so lane (G, n) collects columns 8 n + 2 G, + 1")
    DE, DO = vD, vA + 4

    def ag(G, rs=range(4)):
        for r in rs: a(f"v_mov_b32_dpp v{AG+4*G+r}, v{vPK} row_newbcast:{r} row_mask:0xf bank_mask:{1 << G:#x}")
    ag(0); ag(1, (0, 1))
    for G in range(4):
        mm(DE, AG + 4 * G, BD + 8 * G, G == 0)
        if G < 3: ag(G + 1, (2, 3))
        mm(DO, AG + 4 * G, BD + 8 * G + 4, G == 0)
        if G < 2: ag(G + 2, (0, 1))
    FR = ACC
    a(f"s_cmp_ge_u32 s{sFU}, 32")
    put_tag(DE + 1, DO)
    a(f"buffer_store_dwordx2 {q2(DE)}, v{vY2}, {srd(rWS)}, s{sT2} offen sc1")
    stamp("pub")
    a("s_cbranch_scc1 L_exit")
    cm("out = h + sum of the 43 partials; a line read before its writer's store lands costs an extra round trip, hence the back-off")
    a(f"v_mov_b32 v{FR+8}, 0"); a(f"v_mov_b32 v{FR+10}, 0")
    a("s_waitcnt lgkmcnt(0)")
    a(f"v_lshlrev_b32 v{vFH}, 16, v{vFH}")
    a("s_waitcnt vmcnt(0)")

    def fcombine():
        for i in (0, 2): pkadd(FR + i, FR + i, FR + 4 + i)
        for i in (0, 2): pkadd(FR + i, FR + i, FR + 8 + i)
    poll("poll_d", ([f"s_sleep {fsleep}"] if fsleep else []) + [
        f"buffer_load_dwordx4 {q4(FR)}, v{vFA}, {srd(rWS)}, s{sF0} offen sc1",
        f"buffer_load_dwordx4 {q4(FR+4)}, v{vFA}, {srd(rWS)}, s{sF0+1} offen sc1",
        f"v_mov_b32 v{FR+9}, s{sTG8}", f"v_mov_b32 v{FR+11}, s{sTG8}",
        "s_mov_b32 exec_hi, 0xfff",
        f"buffer_load_dwordx4 {q4(FR+8)}, v{vFA}, {srd(rWS)}, s{sF0+2} offen sc1",
        "s_mov_b32 exec_hi, -1"], [FR + 2 * t + 1 for t in range(6)], TMP, fcombine)
    stamp("fgot")
    a(f"v_permlane32_swap_b32 v{FR}, v{FR+2}"); a(f"v_permlane32_swap_b32 v{FR+1}, v{FR+3}")
    pkadd(FR, FR, FR + 2)
    a(f"v_permlane16_swap_b32 v{FR}, v{FR+1}")
    a(f"v_add_f32 v{FR}, v{FR}, v{FR+1}")
    for m in ("row_ror:4", "row_ror:8"): a(f"v_add_f32_dpp v{FR}, v{FR}, v{FR} {m} {DPPF}")
    a("s_mov_b32 exec_lo, 0x000f000f"); a("s_mov_b32 exec_hi, 0x000f000f")
    a(f"v_add_f32 v{FR}, v{FR}, v{vFH}")
    a(f"v_cvt_pk_bf16_f32 v{FR}, v{FR}, v{FR}")
    a(f"buffer_store_short v{FR}, v{vFO}, {srd(rO)}, 0 offen")
    a("L_exit:")
    if stamps:
        a("s_mov_b64 exec, -1")
        stamp("exit")
        a(f"v_writelane_b32 v{vSTAMP}, s{sROLE}, 14")
        a(f"s_mul_i32 s{sT0}, s2, {NWAVE}"); a(f"s_add_u32 s{sT0}, s{sT0}, s{sW}"); a(f"s_add_u32 s{sT0}, s{sT0}, 1")
        a(f"s_lshl_b32 s{sT0}, s{sT0}, 6"); a(f"s_add_u32 s{sT0}, s{sT0}, {STAMP}")
        a(f"v_lshlrev_b32 v{vSTAMP+1}, 2, v{vL}")
        a("s_mov_b64 exec, 0xffff")
        a(f"buffer_store_dword v{vSTAMP}, v{vSTAMP+1}, {srd(rWS)}, s{sT0} offen")
    a("L_end:")
    a("s_endpgm")
    a("L_epoch:")
    cm("h is complete, so every workgroup has read the old word: one idle wave leaves this launch's tag")
    a(f"s_lshl3_add_u32 s{sT0}, s{sROLE}, s{sW}"); a(f"s_cmp_lg_u32 s{sT0}, 4"); a("s_cbranch_scc1 L_exit")
    a(f"s_mov_b32 s{sT0}, {EPOCH}"); a(f"v_mov_b32 v3, s{sEP}"); a("s_mov_b64 exec, 1")
    a(f"buffer_store_dword v3, off, {srd(rWS)}, s{sT0} sc1")
    a("L_last:")
    a("s_branch L_exit")
    assert not far

    out = HEADER + f"; @launch grid=(256,1,1) block=({64*NWAVE},1,1) lds={L_END}\n" + OVERVIEW
    out += f'.amdgcn_target "amdgcn-amd-amdhsa--gfx950"\n.text\n.globl {KNAME}\n.p2align 8\n.type {KNAME},@function\n'
    out += a.render()
    out += f'''.section .rodata,"a"
.p2align 6
.amdhsa_kernel {KNAME}
  .amdhsa_next_free_vgpr {NV}
  .amdhsa_next_free_sgpr {NS}
  .amdhsa_accum_offset {NV}
  .amdhsa_group_segment_fixed_size 0
  .amdhsa_kernarg_size 96
  .amdhsa_user_sgpr_count 2
  .amdhsa_user_sgpr_kernarg_segment_ptr 1
  .amdhsa_system_sgpr_workgroup_id_x 1
  .amdhsa_float_denorm_mode_32 3
.end_amdhsa_kernel
'''
    return out


if __name__ == "__main__":
    kw = {}
    for arg in sys.argv[2:]:
        k, v = arg.split("=")
        kw[k] = eval(v)
    open(sys.argv[1], "w").write(gen(**kw))
```

```python
import sys
from asmlib import Asm

KNAME = "sequential_preLN__sliding_block_cached__swiglu_ffn__decode_kernel"
HEADER = open("sequential_preLN__sliding_block_cached__swiglu_ffn__decode.s.ref").read().split("; Override launch")[0]

LOG2E = 0x3FB8AA3B
SCALE = 0x3DB504F3
EPS = 0x3727C5AC

SLOT = 512
MB1 = 0
MB2 = 0x20000
MBQ = 0x40000
MBM = 0x80000
EPOCH = 0x88004
MB3 = 0xa0000
STAMP = 1 << 20
WS_SIZE = 2 << 20
PROW = 576
L_QB, L_ST, L_F, L_MODE, L_CNT, L_C, L_H, L_OP, L_P16 = 0, 256, 320, 352, 356, 384, 512, 2048, 2048 + 8192
L_END = L_P16 + 8192

NT2 = 43
NWAVE = 9
W = 4
DPPF = "row_mask:0xf bank_mask:0xf"
STAMPS = ["start", "args", "x", "qpub", "qgot", "p", "cbar", "obar", "ready", "got", "pub", "fgot", "exit"]

sH, sSP, sW, sTAG, sBUD = 3, 4, 5, 6, 7
pX, pK, pV, pWQ, pWO, pWG, pWU, pWD, pOUT, pWS = 8, 10, 12, 14, 16, 20, 22, 24, 26, 30
sMW, sEP = 18, 19
rK, rV, rQ, rX, rWS, rO, rT = 32, 36, 40, 44, 48, 52, 56
sOFF = 60
sT0, sT1, sT2, sT3 = 76, 77, 78, 79
sROLE, sIDX = 80, 81
sE = 82
sXCC, sU = 84, 85
sST = 86
sUA, sMEM = 88, 89
sPFM = 90
sTG8, sMODE, sNA = 92, 93, 94
NS = 95
vL, vKV = 1, 2
vSEL, vA, vD, vPK, vB = 4, 8, 16, 20, 21
vT = 22
KREG, VREG, XREG = 48, 112, 144
vONE, vCT = 46, 47
vFF, vZERO = 164, 165
vSTAMP = 166
NV = 168

OVERVIEW = """\
; ------------------------------------------------------------------------------------------------
; ------------------------------------------------------------------------------------------------
"""


def q4(r): return f"v[{r}:{r+3}]"
def q2(r): return f"v[{r}:{r+1}]"
def srd(r): return f"s[{r}:{r+3}]"


def gen(stamps=False, only=None, budget=1 << 20, pat="jjsjssj", wx=3, wsx=(7, 0xc00), pfat=(12, 12, 13, 14), pford=(0, 2, 1, 3),
        e1=(14, 15, 15, 15), stages="ABdCD", un=(6, 6, 6, 5, 5, 5, 5, 5), h2=0, h3=0, fsleep=3, hsleep=2, wtafter=4):
    a = Asm()
    far = []

    def cm(text): a("; " + text)

    def stamp(name):
        if stamps and (not only or name in only or name == "exit"):
            a(f"s_memrealtime s[{sST}:{sST+1}]"); a("s_waitcnt lgkmcnt(0)"); a(f"v_writelane_b32 v{vSTAMP}, s{sST}, {STAMPS.index(name)}")

    def mksrd(r, p, size, add=None):
        if add is None:
            a(f"s_mov_b32 s{r}, s{p}"); a(f"s_mov_b32 s{r+1}, s{p+1}")
        else:
            a(f"s_add_u32 s{r}, s{p}, s{add}"); a(f"s_addc_u32 s{r+1}, s{p+1}, 0")
        a(f"s_mov_b32 s{r+2}, {size}"); a(f"s_mov_b32 s{r+3}, 0x20000")

    def bf16r(d, s):
        a(f"v_cvt_pk_bf16_f32 v{d}, v{s}, v{s}"); a(f"v_lshlrev_b32 v{d}, 16, v{d}")

    def unpack(lo, hi, s):
        a(f"v_and_b32 v{hi}, 0xffff0000, v{s}"); a(f"v_lshlrev_b32 v{lo}, 16, v{s}")

    def pkadd(d, x, y): a(f"v_pk_add_f32 {q2(d)}, {q2(x)}, {q2(y)}")

    def add64(v, d):
        a(f"s_mov_b32 s{sT0}, {d & 0xffffffff:#x}"); a(f"s_mov_b32 s{sT1}, {-1 if d < 0 else 0}")
        a(f"v_lshl_add_u64 {q2(v)}, {q2(v)}, 0, s[{sT0}:{sT0+1}]")

    def wave_red(op, v, s):
        for m in ("quad_perm:[1,0,3,2]", "quad_perm:[2,3,0,1]", "row_half_mirror", "row_mirror"):
            a(f"{op}_dpp v{v}, v{v}, v{v} {m} {DPPF}")
        a(f"{op}_dpp v{v}, v{v}, v{v} row_bcast:15 row_mask:0xa bank_mask:0xf")
        a(f"{op}_dpp v{v}, v{v}, v{v} row_bcast:31 row_mask:0xc bank_mask:0xf")
        a(f"v_readlane_b32 s{s}, v{v}, 63")

    def red8(op, v):
        for m in ("quad_perm:[1,0,3,2]", "quad_perm:[2,3,0,1]", "row_half_mirror"):
            a(f"{op}_dpp v{v}, v{v}, v{v} {m} {DPPF}")

    def ror8_pair(v):
        for i in range(2): a(f"v_add_f32_dpp v{v+i}, v{v+i}, v{v+i} row_ror:8 {DPPF}")

    def build_a(j):
        A = vA + 4 * (j & 1)
        a(f"v_mov_b32_dpp v{vB}, v{vPK} row_newbcast:{j} {DPPF}")
        for r in range(4):
            a(f"v_perm_b32 v{A+r}, v{vB}, v{vB}, v{vSEL+r}")

    def mm(d, x, y, first):
        a(f"v_mfma_f32_16x16x32_bf16 {q4(d)}, {q4(x)}, {q4(y)}, {'0' if first else q4(d)}")

    def mfma(j, b, first): mm(vD, vA + 4 * (j & 1), b, first)

    def count_in(k):
        a("s_mov_b64 exec, 1")
        a(f"ds_add_rtn_u32 v{vCT}, v{vZERO}, v{vONE} offset:{L_CNT + 4*k}")
        a("s_mov_b64 exec, -1")

    def unless_last(n, label):
        a(f"s_waitcnt lgkmcnt({n})")
        a(f"v_cmp_eq_u32 vcc, 6, v{vCT}")
        a(f"s_cbranch_vccz {label}")

    def vor(tmp, rs):
        rs = list(rs)
        a(f"v_or3_b32 v{tmp}, v{rs[0]}, v{rs[1]}, v{rs[2]}"); rs = rs[3:]
        while rs:
            if len(rs) >= 2:
                a(f"v_or3_b32 v{tmp}, v{tmp}, v{rs[0]}, v{rs[1]}"); rs = rs[2:]
            else:
                a(f"v_or_b32 v{tmp}, v{tmp}, v{rs[0]}"); rs = rs[1:]

    def spend():
        a(f"s_sub_u32 s{sBUD}, s{sBUD}, 1"); a("s_cbranch_scc1 L_exit")

    def poll(name, loads, tagged, tmp, after):
        a(f"L_{name}:")
        for ld in loads: a(ld)
        spend()
        a("s_waitcnt vmcnt(0)")
        for r in tagged: a(f"v_xor_b32 v{r}, s{sTG8}, v{r}")
        vor(tmp, tagged)
        a(f"v_cmp_ne_u32_sdwa vcc, v{tmp}, v{vZERO} src0_sel:BYTE_0 src1_sel:DWORD")
        after()
        a(f"s_cbranch_vccnz L_{name}")

    def poll_tag(name, loads, tmp, slack=0, retry=None):
        for t in range(len(loads)): a(f"s_mov_b64 s[{sOFF+2*t}:{sOFF+2*t+1}], -1")
        a(f"L_{name}:")
        for t, ld in enumerate(loads):
            a(f"s_mov_b64 exec, s[{sOFF+2*t}:{sOFF+2*t+1}]"); a(ld[0])
        a("s_mov_b64 exec, -1")
        spend()
        a("s_waitcnt vmcnt(0)")
        a(f"s_mov_b64 s[{sE}:{sE+1}], 0")
        for t, (_, rs) in enumerate(loads):
            m = f"s[{sOFF+2*t}:{sOFF+2*t+1}]"
            a(f"v_xor_b32 v{tmp}, s{sTAG}, v{rs[0]}"); a(f"v_xor_b32 v{tmp+1}, s{sTAG}, v{rs[1]}"); a(f"v_or_b32 v{tmp}, v{tmp}, v{tmp+1}")
            a(f"v_cmp_lt_u32 {m}, {(1 << slack) - 1}, v{tmp}")
            a(f"s_or_b64 s[{sE}:{sE+1}], s[{sE}:{sE+1}], {m}")
        if retry is None:
            a(f"s_cbranch_scc1 L_{name}")
        else:
            a(f"s_cbranch_scc1 L_{name}_again")

            def again():
                a(f"L_{name}_again:"); retry(); a(f"s_branch L_{name}")
            far.append(again)

    def lds_wait(name, read, rs, sleep=0):
        a(f"L_{name}:")
        a(read)
        a("s_waitcnt lgkmcnt(0)")
        if len(rs) == 2: a(f"v_max_u32 v{vB}, v{rs[0]}, v{rs[1]}")
        else: a(f"v_max3_u32 v{vB}, v{rs[0]}, v{rs[1]}, v{rs[2]}"); a(f"v_max_u32 v{vB}, v{vB}, v{rs[3]}")
        a(f"v_cmp_eq_u32 vcc, -1, v{vB}")
        a(f"s_cbranch_vccnz L_{name}_again")

        def again():
            a(f"L_{name}_again:")
            if sleep: a(f"s_sleep {sleep}")
            spend(); a(f"s_branch L_{name}")
        far.append(again)

    def put_tag(d, s):
        a(f"v_bfi_b32 v{d}, v{vFF}, s{sTG8}, v{s}")

    def mode_store(name, text):
        a(f"s_cbranch_scc1 L_{name}_through")
        a(text)
        a(f"L_{name}_done:")

        def other():
            a(f"L_{name}_through:"); a(text + " sc1"); a(f"s_branch L_{name}_done")
        far.append(other)

    def emit_far():
        for f in list(far): f()
        far.clear()

    def selectors():
        cm("byte selectors that place one bf16 of a broadcast pair at this lane's k position")
        t0, t1, t2 = 32, 33, 34
        a(f"v_and_b32 v{t0}, 8, v0"); a(f"v_mov_b32 v{t1}, 0x0100"); a(f"v_mov_b32 v{t2}, 0x0302")
        a(f"v_cmp_ne_u32 vcc, 0, v{t0}"); a(f"v_cndmask_b32 v{t1}, v{t1}, v{t2}, vcc")
        a(f"v_or_b32 v{t2}, 0x0c0c0000, v{t1}")
        a(f"v_lshlrev_b32 v{t1}, 16, v{t1}"); a(f"v_or_b32 v{t1}, 0x0c0c, v{t1}")
        a(f"v_and_b32 v{t0}, 1, v0"); a(f"v_cmp_ne_u32 vcc, 0, v{t0}"); a(f"v_cndmask_b32 v{t1}, v{t2}, v{t1}, vcc")
        a(f"v_bfe_u32 v{t0}, v0, 1, 2"); a(f"v_mov_b32 v{t2}, 0x0c0c0c0c")
        for r in range(4):
            a(f"v_cmp_eq_u32 vcc, {r}, v{t0}"); a(f"v_cndmask_b32 v{vSEL+r}, v{t2}, v{t1}, vcc")

    def tag_from_epoch():
        cm("launch tag: four byte counters with co-prime periods, each one step past the word found on entry")
        a(f"s_add_u32 s{sTG8}, s{sTAG}, 1"); a(f"s_and_b32 s{sTG8}, s{sTG8}, 0xff"); a(f"s_mov_b32 s{sEP}, s{sTG8}")
        for k, m in ((1, 255), (2, 253), (3, 251)):
            a(f"s_bfe_u32 s{sT1}, s{sTAG}, {0x80000 | 8*k:#x}"); a(f"s_add_u32 s{sT1}, s{sT1}, 1")
            a(f"s_cmp_lt_u32 s{sT1}, {m}"); a(f"s_cselect_b32 s{sT1}, s{sT1}, 0")
            a(f"s_lshl_b32 s{sT1}, s{sT1}, {8*k}"); a(f"s_or_b32 s{sEP}, s{sEP}, s{sT1}")
        a(f"s_and_b32 s{sTAG}, s{sEP}, -8")

    seq = [("k", j) for j in range(16)] + [("v", j) for j in range(16)]
    issued, done = [0], [0]
    def vreg(j): return VREG + 4 * j if j < 8 else KREG + 16 + 4 * (j - 8)

    def issue_to(n):
        while issued[0] < min(n, len(seq)):
            kind, j = seq[issued[0]]
            if kind == "k": a.vmem(f"buffer_load_dwordx4 {q4(KREG+4*j)}, v{vKV}, {srd(rK)}, s{sOFF+j} offen nt", (kind, j))
            else: a.vmem(f"buffer_load_dwordx4 {q4(vreg(j))}, v{vKV}, {srd(rV)}, s{sOFF+j} offen nt", (kind, j))
            issued[0] += 1

    def advance(upto):
        while done[0] <= seq.index(upto):
            a.wait_vm(seq[done[0]]); done[0] += 1
            issue_to(done[0] + W)

    def scatter(x, ch):
        return sum(((x >> k) & 1) << p for k, p in enumerate(13 + i for i, c in enumerate(pat) if c == ch))
    KVSIZE = scatter(15, "j") + 8192
    assert pat.startswith("j" * wx.bit_length())

    def offsets(js):
        for j in js:
            if j: a(f"s_xor_b32 s{sOFF+j}, s{sOFF}, {scatter(j, 'j'):#x}")
            else: a(f"s_lshl_b32 s{sOFF}, s{sW}, 7"); a(f"s_and_b32 s{sOFF}, s{sOFF}, {wx << 13:#x}")

    def kv_base():
        ps = [13 + i for i, c in enumerate(pat) if c == "s"]
        a(f"s_lshl3_add_u32 s{sT0}, s{sH}, 7"); a(f"s_lshl_b32 s{sT0}, s{sT0}, 20")
        k = 0
        while k < 3:
            n = 1
            while k + n < 3 and ps[k + n] == ps[k] + n: n += 1
            if n == 3: a(f"s_lshl_b32 s{sT1}, s{sSP}, {ps[0]}")
            elif k == 0: a(f"s_and_b32 s{sT1}, s{sSP}, {(1 << n) - 1}"); a(f"s_lshl_b32 s{sT1}, s{sT1}, {ps[k]}")
            elif k + n == 3: a(f"s_lshr_b32 s{sT1}, s{sSP}, {k}"); a(f"s_lshl_b32 s{sT1}, s{sT1}, {ps[k]}")
            else: a(f"s_bfe_u32 s{sT1}, s{sSP}, {(n << 16) | k:#x}"); a(f"s_lshl_b32 s{sT1}, s{sT1}, {ps[k]}")
            a(f"s_add_u32 s{sT0}, s{sT0}, s{sT1}")
            k += n

    def ids():
        a(f"s_and_b32 s{sH}, s2, 31"); a(f"s_lshr_b32 s{sSP}, s2, 5")

    def ids2():
        a(f"s_mov_b32 s{sBUD}, {budget}"); a(f"s_lshl3_add_u32 s{sIDX}, s{sH}, s{sSP}")
        a(f"s_getreg_b32 s{sXCC}, hwreg(HW_REG_XCC_ID, 0, 3)"); a(f"v_and_b32 v{vL}, 63, v0")

    T, MM = 26, 30
    allargs = "s_load_dwordx16 s[8:23], s[0:1], 0\ns_load_dwordx8 s[24:31], s[0:1], 64"

    a(f"{KNAME}:")
    cm("the first 256 bytes reach the first K loads")
    if stamps: a(f"s_memrealtime s[{sST}:{sST+1}]")
    a(f"s_load_dwordx2 s[{rK}:{rK+1}], s[0:1], 8")
    a("s_cmpk_ge_u32 s2, 256"); a("s_cbranch_scc1 L_end")
    a(f"v_readfirstlane_b32 s{sW}, v0")
    a(f"s_cmpk_lt_u32 s{sW}, 64"); a("s_cbranch_scc1 L_helper_args")
    a("v_subrev_u32 v0, 64, v0")
    cm("pull the code into L2 while the kernel argument is in flight")
    a(f"s_getpc_b64 s[{sE}:{sE+1}]")
    a("L_pc:")
    a("v_lshlrev_b32 v24, 5, v0"); a("v_min_u32 v24, L_last-L_pc, v24")
    a(f"global_load_dword v3, v24, s[{sE}:{sE+1}]")
    ids()
    cm("key order: any bijection serves; this one spreads concurrent requests over channels and memory stacks")
    a(f"v_lshlrev_b32 v{vKV}, 4, v0")
    a(f"s_lshl_b32 s{sT1}, s2, {wsx[0]}"); a(f"s_and_b32 s{sT1}, s{sT1}, {wsx[1]:#x}"); a(f"v_xor_b32 v{vKV}, s{sT1}, v{vKV}")
    kv_base()
    offsets(range(W))
    a(f"s_mov_b32 s{rK+3}, 0x20000"); a(f"s_mov_b32 s{rK+2}, {KVSIZE:#x}")
    a("s_waitcnt lgkmcnt(0)")
    a(f"s_add_u32 s{rK}, s{rK}, s{sT0}"); a(f"s_addc_u32 s{rK+1}, s{rK+1}, 0")
    issue_to(W)
    a("s_branch L_stream")
    a("L_helper_args:"); a(allargs); a("s_branch L_helper0")
    a(".p2align 8")

    a("L_helper0:")
    a("s_setprio 1")
    vXA, vXO, vQO = 22, 23, 3
    XA, XO = 28, 27
    cm("clear the LDS words that waves wait on (q, statistics, rescale factors, store mode, arrival counts)")
    a("v_lshlrev_b32 v24, 3, v0"); a("v_mov_b32 v30, -1"); a("v_mov_b32 v31, -1")
    a("ds_write_b64 v24, v[30:31]")
    ids()
    cm("x, and rows 64 s + 4 j + g of this head's 128 columns of wq")
    a(f"v_lshlrev_b32 v{vXA}, 4, v0")
    a("v_lshrrev_b32 v24, 4, v0"); a("v_and_b32 v25, 15, v0")
    a(f"s_lshl_b32 s{sT1}, s{sSP}, 6"); a(f"v_add_u32 v24, s{sT1}, v24")
    a(f"v_lshl_add_u32 v{vXO}, v25, 2, v24"); a(f"v_lshlrev_b32 v{vXO}, 1, v{vXO}")
    a(f"v_lshlrev_b32 v{vQO}, 13, v24"); a(f"v_lshl_add_u32 v{vQO}, v25, 4, v{vQO}")
    a(f"s_lshl_b32 s{sT0}, s{sH}, 8"); a(f"s_mov_b32 s{sT1}, 0x8000")
    a(f"s_mov_b32 s{rQ+2}, 0x400000"); a(f"s_mov_b32 s{rQ+3}, 0x20000")
    a("s_waitcnt lgkmcnt(0)")
    a("s_barrier")
    a(f"global_load_dwordx4 {q4(XA)}, v{vXA}, s[{pX}:{pX+1}]")
    a(f"global_load_ushort v{XO}, v{vXO}, s[{pX}:{pX+1}]")
    a(f"s_mov_b64 s[{rQ}:{rQ+1}], s[{pWQ}:{pWQ+1}]")
    for j in range(16):
        a(f"buffer_load_dwordx4 {q4(KREG+4*j)}, v{vQO}, {srd(rQ)}, s{sT0} offen nt")
        if j < 15: a(f"s_add_u32 s{sT0}, s{sT0}, s{sT1}")
    a(f"s_mov_b32 s{sW}, -1")
    a("s_branch L_helper")

    a("L_stream:")
    a(allargs)
    a("s_barrier")
    if stamps: a(f"v_mov_b32 v{vSTAMP}, 0"); a(f"v_writelane_b32 v{vSTAMP}, s{sST}, 0")
    stamp("args")
    offsets(range(W, 16))
    a(f"s_lshr_b32 s{sW}, s{sW}, 6"); a(f"s_sub_u32 s{sW}, s{sW}, 1")
    ids2()
    a("s_waitcnt lgkmcnt(0)")
    mksrd(rV, pV, KVSIZE, sT0); mksrd(rX, pX, 1024)
    selectors()
    cm("lane fields (lane = 16 g + 8 sh + j) and epilogue addresses")
    vG2, vJ, vSH, vOW, vOR, vOS, _, vPJ = range(XREG, XREG + 8)
    a(f"v_bfe_u32 v{vG2}, v0, 4, 2"); a(f"v_and_b32 v{vJ}, 7, v0"); a(f"v_bfe_u32 v{vSH}, v0, 3, 1")
    a(f"v_and_b32 v{vT}, 15, v0"); a(f"v_lshlrev_b32 v{vT}, 4, v{vT}")
    a(f"v_lshlrev_b32 v{vOW}, 4, v0"); a(f"v_lshlrev_b32 v{vOR}, 4, v{vL}")
    a(f"v_and_b32 v32, 1, v{vG2}"); a(f"v_lshlrev_b32 v{vOS}, 1, v{vT}"); a(f"v_lshl_add_u32 v{vOS}, v32, 4, v{vOS}")
    a(f"v_lshrrev_b32 v32, 1, v{vG2}"); a(f"v_lshl_add_u32 v{vOS}, v32, 3, v{vOS}")
    a(f"s_lshl_b32 s{sU}, s{sIDX}, 9")
    a(f"v_mov_b32 v{vONE}, 1"); a(f"v_mov_b32 v{vCT}, 0")
    a(f"v_mov_b32 v{vFF}, 0xff"); a(f"v_mov_b32 v{vZERO}, 0")
    a(f"v_lshl_add_u32 v{vPJ}, v{vG2}, 3, v{vJ}")
    advance(("k", 3))
    a(f"s_load_dword s{sTAG}, s[{pWS}:{pWS+1}], {EPOCH}")
    mksrd(rWS, pWS, WS_SIZE)
    cm("tail role: 64 + i for a wo unit, the FFN unit number, or 63")
    first = [sum(un[:g]) for g in range(8)]
    assert sum(un) == NT2 and max(un) <= 6
    a(f"s_and_b32 s{sT1}, s{sH}, 7"); a(f"s_lshl_b32 s{sT3}, s{sT1}, 3")
    a(f"s_mov_b32 s{sT0}, {sum(first[g] << (8 * g) for g in range(4)):#x}"); a(f"s_mov_b32 s{sT1}, {sum(first[g + 4] << (8 * g) for g in range(4)):#x}")
    a(f"s_lshr_b64 s[{sT0}:{sT0+1}], s[{sT0}:{sT0+1}], s{sT3}"); a(f"s_and_b32 s{sUA}, s{sT0}, 0xff")
    a(f"s_lshr_b32 s{sT3}, s{sT3}, 1"); a(f"s_lshr_b32 s{sNA}, {sum(un[g] << (4 * g) for g in range(8)):#x}, s{sT3}"); a(f"s_and_b32 s{sNA}, s{sNA}, 15")
    a(f"s_lshr_b32 s{sMEM}, s2, 3")
    a(f"s_sub_u32 s{sT1}, s{sMEM}, 8"); a(f"s_add_u32 s{sT3}, s{sT1}, s{sUA}")
    a(f"s_cmp_lt_u32 s{sT1}, s{sNA}"); a(f"s_cselect_b32 s{sROLE}, s{sT3}, 63")
    a(f"s_add_u32 s{sT3}, s{sMEM}, 64")
    a(f"s_cmp_lt_u32 s{sMEM}, 8"); a(f"s_cselect_b32 s{sROLE}, s{sT3}, s{sROLE}")
    vAD64, vPA = XREG + 18, 44
    cm("splits 4..7 fetch 32 rows each of their head's part of wo behind their last V loads (one word per line)")
    a(f"s_mov_b32 s{sE+1}, 0"); a("v_mov_b32 v33, 0")
    a(f"s_cmp_lt_u32 s{sSP}, 4"); a(f"s_cselect_b32 s{sPFM}, 1, 0x01010101"); a(f"s_cselect_b32 s{sPFM+1}, 0, 0x01010101")
    a(f"s_and_b32 s{sT2}, s{sSP}, 3"); a(f"s_lshl2_add_u32 s{sT1}, s{sH}, s{sT2}"); a(f"s_lshl_b32 s{sT1}, s{sT1}, 15")
    a(f"v_add_u32 v32, s{sT1}, v{vKV}")
    a(f"v_lshl_add_u64 {q2(vAD64)}, v[32:33], 0, s[{pWO}:{pWO+1}]")
    a(f"s_cmp_lt_u32 s{sROLE}, {NT2}"); a("s_cbranch_scc1 L_addr_ffn")
    a(f"s_cmp_lt_u32 s{sROLE}, 64"); a("s_cbranch_scc1 L_addr_fetch")
    cm("wo block: rows (a + 8 (w >> 1)) * 128 + 64 (w & 1) + 16 g + sh + 2 t, columns 64 i + 8 j")
    a(f"v_lshl_add_u32 v32, v{vG2}, 4, v{vSH}")
    a(f"s_and_b32 s{sT1}, s{sH}, 7"); a(f"s_lshl_b32 s{sT1}, s{sT1}, 17")
    a(f"s_lshr_b32 s{sT2}, s{sW}, 1"); a(f"s_lshl_b32 s{sT2}, s{sT2}, 20"); a(f"s_add_u32 s{sT1}, s{sT1}, s{sT2}")
    a(f"s_and_b32 s{sT2}, s{sW}, 1"); a(f"s_lshl_b32 s{sT2}, s{sT2}, 16"); a(f"s_add_u32 s{sT1}, s{sT1}, s{sT2}")
    a(f"s_and_b32 s{sT2}, s{sROLE}, 7"); a(f"s_lshl_b32 s{sT2}, s{sT2}, 7"); a(f"s_add_u32 s{sT1}, s{sT1}, s{sT2}")
    a("v_lshlrev_b32 v32, 10, v32"); a(f"v_lshl_add_u32 v32, v{vJ}, 4, v32"); a(f"v_add_u32 v32, s{sT1}, v32")
    a(f"v_lshl_add_u64 {q2(vPA)}, v[32:33], 0, s[{pWO}:{pWO+1}]")
    a(f"s_mov_b32 s{sE}, 2048")
    a("s_branch L_addr_done")
    a("L_addr_ffn:")
    cm("gate | up block: rows 64 w + 16 g + 2 sh + 4 (t >> 1) + (t & 1), columns 32 u + 8 (lane & 3), matrix = lane bit 2")
    a("v_and_b32 v32, 0x1f0, v0"); a(f"v_lshl_add_u32 v32, v{vSH}, 1, v32"); a("v_mul_u32_u24 v32, 2752, v32")
    a("v_and_b32 v34, 3, v0"); a("v_lshl_add_u32 v32, v34, 4, v32")
    a(f"s_lshl_b32 s{sT1}, s{sROLE}, 6")
    a("s_branch L_addr_gu")
    a("L_addr_fetch:")
    cm("one line per lane: rows 16 m + r of the group's gate / up columns (lane = r, matrix, line)")
    a(f"s_lshl_b32 s{sT1}, s{sNA}, 6"); a(f"s_sub_u32 s{sT1}, s{sT1}, 4")
    a("v_and_b32 v32, 3, v0"); a("v_lshlrev_b32 v32, 7, v32"); a(f"v_min_u32 v32, s{sT1}, v32")
    a("v_bfe_u32 v34, v0, 3, 3")
    a("v_mul_u32_u24 v34, 2752, v34"); a("v_add_u32 v32, v32, v34")
    a(f"s_and_b32 s{sT2}, s{sMEM}, 15")
    a(f"s_mul_i32 s{sT1}, s{sT2}, {16*2752}"); a(f"s_lshl_b32 s{sT3}, s{sUA}, 6"); a(f"s_add_u32 s{sT1}, s{sT1}, s{sT3}")
    a("L_addr_gu:")
    a(f"v_add_u32 v32, s{sT1}, v32")
    a(f"v_lshl_add_u64 {q2(vPA)}, v[32:33], 0, s[{pWG}:{pWG+1}]")
    a("s_mov_b32 exec_lo, 0xf0f0f0f0"); a("s_mov_b32 exec_hi, 0xf0f0f0f0")
    a(f"v_lshl_add_u64 {q2(vPA)}, v[32:33], 0, s[{pWU}:{pWU+1}]")
    a("s_mov_b64 exec, -1")
    a(f"s_mov_b32 s{sE}, {4*2752}")
    a("L_addr_done:")
    advance(("k", 7))
    a("s_waitcnt lgkmcnt(0)")
    tag_from_epoch()
    advance(("k", 15))

    cm("---- scores: lane (g, c) ends with the score of key g of load c")
    QP, SJ = 40, 24
    lds_wait("wait_q", f"ds_read_b128 {q4(QP)}, v{vT} offset:{L_QB}", list(range(QP, QP + 4)))
    stamp("qgot")
    for i in range(4):
        for j in range(16):
            a(f"v_dot2_f32_bf16 v{SJ+j}, v{KREG+4*j+i}, v{QP+i}, {'0' if i == 0 else 'v%d' % (SJ+j)}")
    for j in range(8):
        a(f"v_add_f32_dpp v{SJ+j}, v{SJ+j}, v{SJ+j} row_ror:8 row_mask:0xf bank_mask:0x3")
    for j in range(8):
        a(f"v_add_f32_dpp v{SJ+j}, v{SJ+j+8}, v{SJ+j+8} row_ror:8 row_mask:0xf bank_mask:0xc")
    for j in range(4):
        a(f"v_add_f32_dpp v{SJ+j}, v{SJ+j}, v{SJ+j} row_half_mirror row_mask:0xf bank_mask:0x5")
    for j in range(4):
        a(f"v_add_f32_dpp v{SJ+j}, v{SJ+j+4}, v{SJ+j+4} row_half_mirror row_mask:0xf bank_mask:0xa")
    for j in range(4):
        a(f"v_add_f32_dpp v{SJ+j}, v{SJ+j}, v{SJ+j} quad_perm:[1,0,3,2] {DPPF}")
    a("s_mov_b32 vcc_lo, 0xaaaaaaaa"); a("s_mov_b32 vcc_hi, 0xaaaaaaaa")
    a(f"v_cndmask_b32 v{SJ}, v{SJ}, v{SJ+1}, vcc"); a(f"v_cndmask_b32 v{SJ+2}, v{SJ+2}, v{SJ+3}, vcc")
    a(f"v_add_f32_dpp v{SJ}, v{SJ}, v{SJ} quad_perm:[2,3,0,1] {DPPF}")
    a(f"v_add_f32_dpp v{SJ+2}, v{SJ+2}, v{SJ+2} quad_perm:[2,3,0,1] {DPPF}")
    a("s_mov_b32 vcc_lo, 0xcccccccc"); a("s_mov_b32 vcc_hi, 0xcccccccc")
    SC = SJ
    a(f"v_cndmask_b32 v{SC}, v{SJ}, v{SJ+2}, vcc")
    bf16r(SC, SC); a(f"v_mul_f32 v{SC}, {SCALE:#x}, v{SC}"); bf16r(SC, SC)
    cm("p = exp(score - wave max), kept as a bf16 high and low part; (max, sum) go to LDS")
    a(f"v_mov_b32 v{T}, v{SC}"); wave_red("v_max_f32", T, sMW)
    a(f"v_subrev_f32 v{SC}, s{sMW}, v{SC}"); a(f"v_mul_f32 v{SC}, {LOG2E:#x}, v{SC}"); a(f"v_exp_f32 v{SC}, v{SC}")

    def split_p():
        bf16r(T, SC); a(f"v_sub_f32 v{T}, v{SC}, v{T}")
        a(f"v_cvt_pk_bf16_f32 v{vPK}, v{SC}, v{T}")
    split_p()
    a(f"v_mov_b32 v{T}, v{SC}"); wave_red("v_add_f32", T, sT2)
    a(f"v_mov_b32 v{T}, s{sMW}"); a(f"v_mov_b32 v{T+1}, s{sT2}")
    a(f"s_lshl_b32 s{sT1}, s{sW}, 3"); a(f"v_mov_b32 v{T+2}, s{sT1}")
    a("s_mov_b64 exec, 1"); a(f"ds_write_b64 v{T+2}, {q2(T)} offset:{L_ST}"); a("s_mov_b64 exec, -1")
    stamp("p")

    cm("---- o = p @ V")
    for j in range(12):
        build_a(j)
        advance(("v", j | 3))
        mfma(j, vreg(j), j == 0)
    assert issued[0] == len(seq)
    cm("move to the workgroup max: factor exp(wave max - workgroup max) from the helper wave")
    a(f"v_lshrrev_b32 v{T+2}, 1, v{T+2}")
    lds_wait("wait_f", f"ds_read_b32 v32, v{T+2} offset:{L_F}\nds_read_b32 v33, v{vZERO} offset:{L_MODE}", [32, 33])
    a(f"v_readfirstlane_b32 s{sMODE}, v33")
    a(f"v_mul_f32 v{SC}, v{SC}, v32")
    for r in range(4): a(f"v_mul_f32 v{vD+r}, v{vD+r}, v32")
    split_p()
    stamp("cbar")

    def w1reg(j): return KREG + 4 * j if j < 4 else VREG + 4 * j

    def tload(j, reg, pol):
        a(f"global_load_dwordx4 {q4(reg)}, {q2(vPA)}, off{pol}")
        if j < 7: a(f"v_lshl_add_u64 {q2(vPA)}, {q2(vPA)}, 0, s[{sE}:{sE+1}]")

    def pf_load(k):
        a(f"s_mov_b64 exec, s[{sPFM}:{sPFM+1}]")
        a(f"global_load_dword v3, {q2(vAD64)}, off")
        a("s_mov_b64 exec, -1")
        if k < 3: add64(vAD64, (pford[k + 1] - pford[k]) * 8192)

    def pv_tail(e, load):
        k = 0
        for j in range(12, 16):
            build_a(j)
            a(f"s_waitcnt vmcnt({15 - j + k})")
            mfma(j, vreg(j), False)
            for _ in range(e.count(j)):
                load(k); k += 1
    assert len(pfat) == 4 and sorted(pford) == [0, 1, 2, 3] and pford[0] == 0
    a(f"s_cmp_ge_u32 s{sROLE}, 64"); a("s_cbranch_scc1 L_pv_wo")
    pv_tail(pfat, pf_load)
    a("L_pv_done:")
    cm("every wave leaves its row; the last to arrive adds the rows in a fixed order, then the high and low halves, and publishes o")
    FS = 36
    R8 = [FS] + [KREG + 16 + 4 * t for t in range(3)] + [KREG + 48 + 4 * t for t in range(4)]
    a(f"s_cmp_lg_u32 s{sMODE}, 0")
    a(f"ds_write_b128 v{vOW}, {q4(vD)} offset:{L_OP}")
    count_in(0)
    for t in range(8): a(f"ds_read_b128 {q4(R8[t])}, v{vOR} offset:{L_OP + 1024*t}")
    unless_last(8, "L_published")
    for t in range(1, 8):
        a(f"s_waitcnt lgkmcnt({7 - t})")
        for i in (0, 2): pkadd(FS + i, FS + i, R8[t] + i)
    a(f"v_permlane32_swap_b32 v{FS}, v{FS+2}"); a(f"v_permlane32_swap_b32 v{FS+1}, v{FS+3}")
    pkadd(FS, FS, FS + 2)
    put_tag(FS + 1, FS + 1)
    mode_store("ost", f"buffer_store_dwordx2 {q2(FS)}, v{vOS}, {srd(rWS)}, s{sU} offen")
    stamp("x")
    a("L_published:")
    cm("the helper wave has ended and o is on its way when this barrier opens")
    a("s_waitcnt lgkmcnt(0)"); a("s_barrier")
    stamp("obar")
    a(f"s_cmp_ge_u32 s{sROLE}, 64"); a("s_cbranch_scc1 L_wo")
    a(f"s_cmp_lt_u32 s{sROLE}, {NT2}"); a("s_cbranch_scc1 L_ffn")
    cm("members 16..31: FFN lines into L2 in the order the FFN units ask for them")
    a(f"s_cmp_lg_u32 s{sW}, 2"); a("s_cbranch_scc1 L_exit")
    a(f"s_cmp_lt_u32 s{sMEM}, 16"); a("s_cbranch_scc1 L_refresh")
    at = 0
    for c in stages:
        if c == "d":
            mksrd(rT, pWD, 1376 * 1024)
            a(f"s_lshl_b32 s{sT0}, s{sNA}, 4"); a(f"s_and_b32 s{sT2}, s{sMEM}, 15"); a(f"s_mul_i32 s{sT2}, s{sT2}, s{sT0}")
            a(f"s_lshl_b32 s{sT3}, s{sUA}, 8"); a(f"s_add_u32 s{sT2}, s{sT2}, s{sT3}"); a(f"s_lshl_b32 s{sT2}, s{sT2}, 7")
            a(f"v_lshlrev_b32 v32, 7, v{vL}"); a(f"buffer_load_dword v3, v32, {srd(rT)}, s{sT2} offen")
            a(f"s_sub_u32 s{sT0}, s{sT0}, 1"); a(f"v_add_u32 v32, 64, v{vL}"); a(f"v_min_u32 v32, s{sT0}, v32"); a("v_lshlrev_b32 v32, 7, v32")
            a(f"buffer_load_dword v3, v32, {srd(rT)}, s{sT2} offen")
        else:
            row = {"A": 0, "B": 8, "C": 256, "D": 264}[c]
            if row != at: add64(vPA, (row - at) * 2752)
            at = row
            a(f"global_load_dword v3, {q2(vPA)}, off")
    a("s_branch L_exit")
    a("L_refresh:")
    cm("members 14, 15 keep the y lines this die reads in L2 until all are written, so the FFN units find them there")
    a(f"s_cmp_lt_u32 s{sMEM}, 14"); a("s_cbranch_scc1 L_exit")
    a(f"s_lshr_b32 s{sT1}, s{sXCC}, 2")
    if h2: a(f"s_xor_b32 s{sT1}, s{sT1}, 1")
    a(f"s_and_b32 s{sT0}, s{sMEM}, 1"); a(f"s_lshl1_add_u32 s{sT0}, s{sT0}, s{sT1}"); a(f"s_lshl_b32 s{sT0}, s{sT0}, 13"); a(f"s_add_u32 s{sT0}, s{sT0}, {MB2}")
    a(f"v_lshlrev_b32 v32, 7, v{vL}")
    a("L_refresh_loop:")
    a(f"buffer_load_ubyte v24, v32, {srd(rWS)}, s{sT0} offen offset:4 sc1")
    spend()
    a("s_waitcnt vmcnt(0)")
    a(f"v_cmp_ne_u32 vcc, s{sTG8}, v24")
    a("s_cbranch_vccnz L_refresh_loop")
    a("s_branch L_exit")
    emit_far()

    a("L_helper:")
    if stamps: a(f"v_mov_b32 v{vSTAMP}, 0"); a(f"v_writelane_b32 v{vSTAMP}, s{sST}, 0"); a(f"s_mov_b32 s{sROLE}, 63")
    a(f"s_load_dword s{sTAG}, s[{pWS}:{pWS+1}], {EPOCH}")
    ids2()
    selectors()
    mksrd(rWS, pWS, WS_SIZE)
    a("s_waitcnt vmcnt(16)")
    stamp("x")
    cm("LN(x), two passes, rounded like the reference")
    U = 32
    for i in range(4): unpack(U + 2 * i, U + 2 * i + 1, XA + i)
    S, M_, R_ = 40, 41, 42
    a(f"v_add_f32 v{S}, v{U}, v{U+1}")
    for i in range(2, 8): a(f"v_add_f32 v{S}, v{S}, v{U+i}")
    wave_red("v_add_f32", S, sT1)
    a(f"v_mov_b32 v{M_}, 0x3b000000"); a(f"v_mul_f32 v{M_}, s{sT1}, v{M_}")
    for i in range(8): a(f"v_sub_f32 v{U+i}, v{U+i}, v{M_}")
    a(f"v_mul_f32 v{S}, v{U}, v{U}")
    for i in range(1, 8): a(f"v_fmac_f32 v{S}, v{U+i}, v{U+i}")
    wave_red("v_add_f32", S, sT1)
    a(f"v_mov_b32 v{S}, 0x3b000000"); a(f"v_mul_f32 v{S}, s{sT1}, v{S}")
    bf16r(M_, M_); bf16r(S, S)
    a(f"v_add_f32 v{S}, {EPS:#x}, v{S}"); bf16r(S, S)
    a(f"v_sqrt_f32 v{S}, v{S}"); bf16r(S, S)
    a(f"v_rcp_f32 v{R_}, v{S}")
    a(f"v_lshlrev_b32 v{XO}, 16, v{XO}"); a(f"v_sub_f32 v{XO}, v{XO}, v{M_}"); bf16r(XO, XO)
    a(f"v_mul_f32 v{XO}, v{XO}, v{R_}")
    a(f"v_cvt_pk_bf16_f32 v{vPK}, v{XO}, 0")
    a("s_waitcnt lgkmcnt(0)")
    tag_from_epoch()
    cm("partial q over 64 rows")
    for j in range(16):
        build_a(j)
        if j % 4 == 0: a(f"s_waitcnt vmcnt({12 - j})")
        mfma(j, KREG + 4 * j, j == 0)
    cm("publish 128 x (value, tag); every second tag also names this die")
    a("v_and_b32 v24, 15, v0"); a("v_bfe_u32 v25, v0, 4, 1"); a("v_lshrrev_b32 v26, 5, v0")
    a("v_lshlrev_b32 v24, 6, v24"); a("v_lshl_add_u32 v24, v25, 5, v24"); a("v_lshl_add_u32 v24, v26, 4, v24")
    a(f"s_lshl_b32 s{sT2}, s{sIDX}, 10"); a(f"s_add_u32 s{sT2}, s{sT2}, {MBQ}")
    a(f"s_xor_b32 s{sT3}, s{sTAG}, s{sXCC}")
    a(f"v_permlane32_swap_b32 v{vD}, v{vD+2}"); a(f"v_permlane32_swap_b32 v{vD+1}, v{vD+3}")
    a(f"v_mov_b32 v{vD+2}, v{vD+1}"); a(f"v_mov_b32 v{vD+1}, s{sTAG}"); a(f"v_mov_b32 v{vD+3}, s{sT3}")
    qstore = f"buffer_store_dwordx4 {q4(vD)}, v24, {srd(rWS)}, s{sT2} offen"
    a(qstore)
    stamp("qpub")
    a(f"s_lshl_b32 s{sT0}, s{sH}, 13"); a(f"s_add_u32 s{sT0}, s{sT0}, {MBQ}"); a(f"s_add_u32 s{sU}, s{sT0}, 4096")
    a(f"s_mov_b32 s{sT1}, 0")
    GQ = KREG

    def q_retry():
        cm("a sibling that stays invisible may be on another die and cannot see the plain store either: write through")
        a(f"s_add_u32 s{sT1}, s{sT1}, 1"); a(f"s_cmp_lg_u32 s{sT1}, {wtafter}"); a("s_cbranch_scc1 L_gather_q")
        a(qstore + " sc1")
    a("s_waitcnt vmcnt(0)")
    poll_tag("gather_q", [(f"buffer_load_dwordx4 {q4(GQ+4*t)}, v{vXA}, {srd(rWS)}, s{sU if t >= 4 else sT0} offen offset:{(t&3)*1024} sc1", [GQ+4*t+1, GQ+4*t+3]) for t in range(8)],
             26, slack=3, retry=q_retry)
    cm("a sibling that names another die needs the written-through copy")
    for t in range(8): a(f"v_xor_b32 v{GQ+4*t+3}, s{sT3}, v{GQ+4*t+3}")
    vor(26, [GQ + 4 * t + 3 for t in range(8)])
    a("v_cmp_ne_u32 vcc, 0, v26"); a("s_cbranch_vccz L_same_die")
    a(qstore + " sc1")
    a("L_same_die:")
    for st in (16, 8, 4):
        for i in range(0, st, 2): a(f"v_add_f32 v{GQ+i}, v{GQ+i}, v{GQ+i+st}")
    a(f"v_cvt_pk_bf16_f32 v{GQ}, v{GQ}, v{GQ+2}"); a("v_lshlrev_b32 v25, 2, v0")
    cm("a NaN pair must not look like the cleared pattern")
    a(f"v_min_u32 v{GQ}, -2, v{GQ}")
    a(f"ds_write_b32 v25, v{GQ} offset:{L_QB}")
    stamp("qgot")
    cm("this workgroup's o slot comes into L2 now; die words of the group's eight wo units (head a + 8 (i & 3), split i >> 2)")
    a("v_and_b32 v25, 3, v0"); a("v_lshlrev_b32 v41, 7, v25"); a(f"s_lshl_b32 s{sT2}, s{sIDX}, 9")
    a(f"buffer_load_dword v43, v41, {srd(rWS)}, s{sT2} offen sc1")
    a("v_bfe_u32 v26, v0, 2, 1"); a("v_lshlrev_b32 v25, 16, v25"); a("v_lshl_add_u32 v25, v26, 10, v25")
    a(f"s_and_b32 s{sT0}, s{sH}, 7"); a(f"s_lshl_b32 s{sT1}, s{sT0}, 13"); a(f"s_add_u32 s{sT1}, s{sT1}, {MBQ}")
    a(f"buffer_load_dword v40, v25, {srd(rWS)}, s{sT1} offen offset:12 sc1")
    cm("workgroup max and sum from the eight waves' statistics")
    a(f"v_and_b32 v{T+2}, 7, v0"); a(f"v_lshlrev_b32 v{T+3}, 2, v{T+2}"); a(f"v_lshlrev_b32 v{T+2}, 3, v{T+2}")
    lds_wait("wait_stats", f"ds_read_b64 {q2(T)}, v{T+2} offset:{L_ST}", [T, T + 1], sleep=hsleep)
    a(f"v_mov_b32 v{MM}, v{T}"); red8("v_max_f32", MM)
    a(f"v_sub_f32 v{T}, v{T}, v{MM}"); a(f"v_mul_f32 v{T}, {LOG2E:#x}, v{T}"); a(f"v_exp_f32 v{T}, v{T}")
    a(f"ds_write_b32 v{T+3}, v{T} offset:{L_F}")
    a(f"v_mov_b32 v36, v{MM}"); a(f"v_mov_b32 v37, s{sTAG}"); a(f"v_mul_f32 v38, v{T}, v{T+1}"); a(f"v_mov_b32 v39, s{sTAG}")
    red8("v_add_f32", 38)
    a(f"s_lshl_b32 s{sT1}, s{sIDX}, 7"); a(f"s_add_u32 s{sT1}, s{sT1}, {MBM}")
    a("s_waitcnt vmcnt(0)")
    a(f"v_cmp_ne_u32 vcc, s{sT3}, v40"); a("s_cmp_lg_u64 vcc, 0"); a(f"s_cselect_b32 s{sMODE}, 1, 0")
    a(f"v_mov_b32 v40, s{sMODE}"); a("v_mov_b32 v41, 0")
    a("s_mov_b64 exec, 1")
    a(f"ds_write_b32 v41, v40 offset:{L_MODE}")
    mode_store("mst", f"buffer_store_dwordx4 v[36:39], off, {srd(rWS)}, s{sT1}")
    a("s_mov_b64 exec, -1")
    a("s_waitcnt lgkmcnt(0)")
    stamp("p")
    a(f"s_cmp_ge_u32 s{sSP}, 2"); a("s_cbranch_scc1 L_exit")
    cm("wo unit: weights exp(M - head max) / head sum of the group's 32 members (lane = 8 i + split, head a + 8 i)")
    a("v_bfe_u32 v24, v0, 3, 2"); a("v_and_b32 v25, 7, v0"); a("v_lshlrev_b32 v24, 13, v24"); a("v_lshl_add_u32 v24, v25, 7, v24")
    a(f"s_lshl_b32 s{sT0}, s{sT0}, 10"); a(f"s_add_u32 s{sT0}, s{sT0}, {MBM}")
    a("s_waitcnt vmcnt(0)")
    poll_tag("gather_m", [(f"buffer_load_dwordx4 v[32:35], v24, {srd(rWS)}, s{sT0} offen sc1", [33, 35])], 26)
    a("v_mov_b32 v36, v32"); red8("v_max_f32", 36)
    a("v_sub_f32 v32, v32, v36"); a(f"v_mul_f32 v32, {LOG2E:#x}, v32"); a("v_exp_f32 v32, v32")
    a("v_mul_f32 v34, v32, v34"); red8("v_add_f32", 34)
    a("v_rcp_f32 v34, v34"); a("v_and_b32 v24, 31, v0"); a("v_lshlrev_b32 v24, 2, v24")
    a("v_mul_f32 v32, v32, v34")
    a(f"ds_write_b32 v24, v32 offset:{L_C}")
    a("s_waitcnt lgkmcnt(0)")
    stamp("cbar")
    a("s_branch L_exit")
    emit_far()

    TMP = 3
    CW, vO, vPW, vYS, vCA, vRO = VREG, VREG + 4, VREG + 5, VREG + 6, VREG + 7, VREG + 8
    sOG, sYS, sPM = 60, 61, 62
    a("L_pv_wo:")
    cm("wave w takes half (w & 1) of head a + 8 (w >> 1); y row a has one copy on each value of address bit 13")
    a(f"s_lshr_b32 s{sT1}, s{sW}, 1"); a(f"s_lshl_b32 s{sT0}, s{sT1}, 5"); a(f"v_lshl_add_u32 v{vCA}, v{vSH}, 4, s{sT0}")
    a(f"s_and_b32 s{sT2}, s{sH}, 7"); a(f"s_lshl3_add_u32 s{sT3}, s{sT1}, s{sT2}")
    a(f"s_lshl_b32 s{sT3}, s{sT3}, 12"); a(f"s_and_b32 s{sT1}, s{sW}, 1"); a(f"s_lshl_b32 s{sT1}, s{sT1}, 8"); a(f"s_add_u32 s{sOG}, s{sT1}, s{sT3}")
    a(f"v_lshlrev_b32 v{vO}, 11, v{vSH}"); a(f"v_lshl_add_u32 v{vO}, v{vPJ}, 3, v{vO}")
    a(f"v_and_b32 v{vPW}, 0xf0, v{vOS}"); a("v_lshrrev_b32 v32, 5, v0"); a(f"v_lshl_add_u32 v{vPW}, v32, 9, v{vPW}")
    a("v_and_b32 v32, 1, v32"); a("v_and_b32 v33, 31, v0"); a("v_lshlrev_b32 v33, 3, v33")
    a(f"v_lshl_add_u32 v{vYS}, v32, 13, v33"); a(f"v_lshl_add_u32 v{vRO}, v32, 12, v33"); a(f"v_add_u32 v{vRO}, {L_P16}, v{vRO}")
    a(f"s_and_b32 s{sT3}, s{sT2}, 4"); a(f"s_add_u32 s{sT2}, s{sT2}, s{sT3}")
    a(f"s_lshl_b32 s{sT2}, s{sT2}, 11"); a(f"s_and_b32 s{sT3}, s{sROLE}, 7"); a(f"s_lshl_b32 s{sT3}, s{sT3}, 8")
    a(f"s_add_u32 s{sT2}, s{sT2}, s{sT3}"); a(f"s_add_u32 s{sYS}, s{sT2}, {MB2}")
    a(f"s_mov_b32 s{sPM}, 0x00ff00ff"); a(f"s_mov_b32 s{sPM+1}, 0xff00ff00")
    pv_tail(e1, lambda j: tload(j, w1reg(j), " nt"))
    a("s_branch L_pv_done")
    a("L_wo:")
    R1 = 32
    a(f"ds_read_b128 {q4(CW)}, v{vCA} offset:{L_C}")
    for j in range(len(e1), 8): tload(j, w1reg(j), " nt")
    stamp("ready")
    a("s_waitcnt lgkmcnt(0)")

    def ocombine():
        a(f"v_pk_mul_f32 {q2(R1)}, {q2(R1)}, {q2(CW)} op_sel_hi:[1,0]")
        a(f"v_pk_fma_f32 {q2(R1)}, {q2(R1+2)}, {q2(CW)}, {q2(R1)} op_sel:[0,1,0]")
        a(f"v_pk_fma_f32 {q2(R1)}, {q2(R1+4)}, {q2(CW+2)}, {q2(R1)} op_sel_hi:[1,0,1]")
        a(f"v_pk_fma_f32 {q2(R1)}, {q2(R1+6)}, {q2(CW+2)}, {q2(R1)} op_sel:[0,1,0]")
    cm("o pair (16 g + 2 j) of splits 4 sh .. 4 sh + 3, weighted and summed over the eight splits")
    poll("poll_o", [f"buffer_load_dwordx2 {q2(R1+2*t)}, v{vO}, {srd(rWS)}, s{sOG} offen offset:{t*SLOT} sc1" for t in range(4)],
         [R1 + 2 * t + 1 for t in range(4)], TMP, ocombine)
    stamp("got")
    ror8_pair(R1)
    a(f"v_cvt_pk_bf16_f32 v{vPK}, v{R1}, v{R1+1}")
    build_a(0)
    for j in range(8):
        if j < 7: build_a(j + 1)
        mfma(j, w1reg(j), j == 0)
    a(f"s_mov_b64 exec, s[{sPM}:{sPM+1}]")
    cm("16 rows of 64 columns; the last wave to arrive sums a column pair per lane (each half-wave eight rows) and publishes both copies")
    a(f"ds_write_b128 v{vPW}, {q4(vD)} offset:{L_P16}")
    count_in(1)
    v = 24
    for t in range(4): a(f"ds_read2st64_b64 {q4(v+4*t)}, v{vRO} offset0:{2*t} offset1:{2*t+1}")
    unless_last(4, "L_exit")
    a("s_waitcnt lgkmcnt(2)")
    pkadd(v, v, v + 2); pkadd(v + 4, v + 4, v + 6); pkadd(v, v, v + 4)
    a("s_waitcnt lgkmcnt(0)")
    pkadd(v + 8, v + 8, v + 10); pkadd(v + 12, v + 12, v + 14); pkadd(v + 8, v + 8, v + 12)
    pkadd(v + 2, v, v + 8); pkadd(v, v, v + 8)
    a(f"v_permlane32_swap_b32 v{v}, v{v+2}"); a(f"v_permlane32_swap_b32 v{v+1}, v{v+3}")
    pkadd(v, v, v + 2)
    put_tag(25, 25)
    a(f"buffer_store_dwordx2 v[24:25], v{vYS}, {srd(rWS)}, s{sYS} offen sc1")
    stamp("pub")
    a("s_branch L_exit")

    RD, BD, BG, ACC, AG, RAW, XF, HS = KREG + 32, KREG, VREG, KREG + 32, 24, 40, 12, 14
    XP, vHA, vGU, vY2, vSR, vHW, vFA, vFO, vFH, vPW2, vSW = range(XREG + 8, XREG + 19)
    sF0, sLO, sHI, sNL, sFU = 60, 64, 65, 66, 68
    a("L_ffn:")
    for j in range(8):
        a(f"global_load_dwordx4 {q4(KREG+4*j)}, {q2(vPA)}, off offset:{2752*(j&1)}")
        if j & 1 and j < 7: a(f"v_lshl_add_u64 {q2(vPA)}, {q2(vPA)}, 0, s[{sE}:{sE+1}]")
    a(f"s_lshl_b32 s{sT1}, s{sW}, 7")
    a(f"v_lshlrev_b32 v{vHW}, 2, v{vPJ}")
    a(f"buffer_load_dword v{XP}, v{vHW}, {srd(rX)}, s{sT1} offen")
    a(f"v_add_u32 v{vHW}, s{sT1}, v{vHW}")
    a(f"s_cmp_ge_u32 s{sW}, 4"); a("s_cbranch_scc1 L_no_down")
    cm("waves 0..3: rows 32 u + 8 g + t of w_down, columns 128 w + 8 c")
    mksrd(rT, pWD, 1376 * 1024)
    a(f"v_lshl_add_u32 v23, v{vG2}, 13, v{vT}")
    a(f"s_lshl_b32 s{sT3}, s{sROLE}, 15"); a(f"s_lshl_b32 s{sT2}, s{sW}, 8"); a(f"s_add_u32 s{sT3}, s{sT3}, s{sT2}")
    for t in range(8):
        a(f"buffer_load_dwordx4 {q4(RD+4*t)}, v23, {srd(rT)}, s{sT3} offen offset:{(t&3)*1024} nt")
        if t == 3: a(f"s_add_u32 s{sT3}, s{sT3}, 4096")
    a("L_no_down:")
    cm("either copy of y is valid; dies 0..3 and 4..7 read different ones")
    a(f"v_lshlrev_b32 v{vHA}, 3, v{vPJ}"); a(f"v_lshl_add_u32 v{vHA}, v{vSH}, 14, v{vHA}")
    a(f"s_lshl_b32 s{sT0}, s{sW}, 8"); a(f"s_add_u32 s{sT0}, s{sT0}, {MB2}")
    a(f"s_lshr_b32 s{sT1}, s{sXCC}, 2")
    if h2: a(f"s_xor_b32 s{sT1}, s{sT1}, 1")
    a(f"s_lshl_b32 s{sT1}, s{sT1}, 13"); a(f"s_add_u32 s{sT0}, s{sT0}, s{sT1}")
    a(f"s_add_u32 s{sT1}, s{sT0}, 4096")
    cm("partial row w: (gate, gate, up, up) per column pair; writer float 16 c2 + 2 matrix, + 72 for the column-sum lanes (g = 1)")
    a(f"s_mul_i32 s{sT2}, s{sW}, {PROW}"); a(f"s_add_u32 s{sT2}, s{sT2}, {L_P16}")
    a("v_and_b32 v31, 3, v0"); a(f"v_lshl_add_u32 v{vPW2}, v31, 6, s{sT2}")
    a("v_bfe_u32 v30, v0, 2, 1"); a(f"v_lshl_add_u32 v{vPW2}, v30, 3, v{vPW2}")
    a(f"v_and_b32 v30, 1, v{vG2}"); a("v_mul_u32_u24 v30, 288, v30"); a(f"v_add_u32 v{vPW2}, v30, v{vPW2}")
    a(f"v_lshl_add_u32 v{vSW}, v{vJ}, 2, v30"); a(f"v_add_u32 v{vSW}, s{sT2}, v{vSW}")
    cm("readers: lane (g, qd, j2) sums rows 2 qd, 2 qd + 1 at float 16 g + 4 j2; statistics of row lane & 7")
    a("v_bfe_u32 v30, v0, 2, 2"); a(f"v_mul_u32_u24 v{vGU}, {2*PROW}, v30"); a(f"v_lshl_add_u32 v{vGU}, v{vG2}, 6, v{vGU}")
    a(f"v_lshl_add_u32 v{vGU}, v31, 4, v{vGU}")
    a(f"v_mul_u32_u24 v{vSR}, {PROW}, v{vJ}"); a(f"v_add_u32 v{vSR}, {L_P16}, v{vSR}")
    a(f"v_lshlrev_b32 v{vY2}, 1, v{vT}"); a(f"v_lshl_add_u32 v{vY2}, v{vG2}, 3, v{vY2}")
    M3 = MB3 + h3 * 8192
    a(f"s_and_b32 s{sT2}, s{sROLE}, -4"); a(f"s_add_u32 s{sT2}, s{sT2}, s{sROLE}"); a(f"s_lshl_b32 s{sT2}, s{sT2}, 11")
    a(f"s_lshl_b32 s{sT3}, s{sW}, 9"); a(f"s_add_u32 s{sT2}, s{sT2}, s{sT3}"); a(f"s_add_u32 s{sT2}, s{sT2}, {M3}")
    cm("final sum: waves 0, 1 of units 0..15 take 16 columns each; lane >> 2 (+ 16 t) is the partial")
    a(f"s_lshl1_add_u32 s{sFU}, s{sROLE}, s{sW}"); a(f"s_cmp_lt_u32 s{sW}, 2"); a(f"s_cselect_b32 s{sFU}, s{sFU}, 32")
    a(f"s_min_u32 s{sFU}, s{sFU}, 32")
    a(f"v_lshrrev_b32 v{vFA}, 2, v{vL}"); a(f"v_lshl_add_u32 v{vFA}, v{vG2}, 2, v{vFA}")
    a(f"v_lshlrev_b32 v{vFA}, 11, v{vFA}"); a(f"v_lshl_add_u32 v{vFA}, v31, 4, v{vFA}")
    a(f"v_lshl_add_u32 v{vFO}, v31, 2, v{vG2}"); a(f"s_lshl_b32 s{sT3}, s{sFU}, 4"); a(f"v_add_lshl_u32 v{vFO}, s{sT3}, v{vFO}, 1")
    a(f"s_lshl_b32 s{sF0}, s{sFU}, 6"); a(f"s_add_u32 s{sF0}, s{sF0}, {M3}"); a(f"s_add_u32 s{sF0+1}, s{sF0}, 0x10000"); a(f"s_add_u32 s{sF0+2}, s{sF0}, 0x20000")
    mksrd(rO, pOUT, 1024)
    a(f"s_mov_b32 s{sLO}, 0x05040100"); a(f"s_mov_b32 s{sHI}, 0x07060302")
    a(f"s_mov_b32 s{sNL}, {LOG2E ^ 0x80000000:#x}"); a(f"s_mov_b32 s{sNL+1}, {LOG2E ^ 0x80000000:#x}")
    a(f"s_mov_b32 s{sE}, 0x00ff00ff"); a(f"s_mov_b32 s{sE+1}, 0")
    for r in range(4): a(f"v_mov_b32 v{vA+r}, 0x3f803f80")
    for r in range(16): a(f"v_mov_b32 v{AG+r}, 0")

    def transpose(dst, src):
        for q in range(4):
            for r in range(4):
                a(f"v_perm_b32 v{dst+8*q+r}, v{src+4*(2*r+1)+q}, v{src+4*(2*r)+q}, s{sLO}")
                a(f"v_perm_b32 v{dst+8*q+4+r}, v{src+4*(2*r+1)+q}, v{src+4*(2*r)+q}, s{sHI}")
    hloads = [f"buffer_load_dwordx2 {q2(RAW+2*t)}, v{vHA}, {srd(rWS)}, s{sT1 if t >= 2 else sT0} offen offset:{(t&1)*2048} sc1" for t in range(4)]
    cm("8 x 8 transposes make the row index the in-lane k index of the B operands")
    a(f"s_cmp_ge_u32 s{sW}, 4"); a("s_cbranch_scc1 L_tr_all")
    a("s_waitcnt vmcnt(8)")
    a("s_branch L_tr_gu")
    a("L_tr_all:")
    a("s_waitcnt vmcnt(0)")
    a("L_tr_gu:")
    transpose(BG, KREG)
    unpack(XF, XF + 1, XP)
    a("s_cbranch_scc1 L_tr_done")
    a("s_waitcnt vmcnt(0)")
    transpose(BD, RD)
    a("L_tr_done:")
    stamp("ready")

    def hcombine():
        pkadd(RAW, RAW, RAW + 2); pkadd(RAW + 4, RAW + 4, RAW + 6); pkadd(HS, RAW, RAW + 4)
    poll("poll_y", hloads, [RAW + 2 * t + 1 for t in range(4)], TMP, hcombine)
    stamp("got")
    cm("h pair; A rows 0 / 1 hold h for the rows of lanes sh = 0 / 1, rows 4.. ones: h @ W, column sums of W, sum h, sum h^2")
    a(f"s_cmp_ge_u32 s{sW}, 4")
    ror8_pair(HS)
    a(f"v_cvt_pk_bf16_f32 v{HS}, v{HS}, v{HS+1}")
    unpack(HS, HS + 1, HS)
    pkadd(HS, HS, XF)
    a(f"v_cvt_pk_bf16_f32 v{vPK}, v{HS}, v{HS+1}")
    a(f"ds_write_b32 v{vHW}, v{vPK} offset:{L_H}")
    a(f"v_mov_b32_dpp v{vA}, v{vPK} quad_perm:[0,1,2,3] row_mask:0xf bank_mask:0x1")
    for r in range(1, 4): a(f"v_mov_b32_dpp v{vA+r}, v{vPK} row_shl:{2*r} row_mask:0xf bank_mask:0x1")
    SM = RAW

    def join(i): a(f"v_add_f32_dpp v{SM+i}, v{ACC+4*i+1}, v{ACC+4*i} row_ror:8 {DPPF}")
    mm(vD, vA, vA, True)
    for i in range(8): mm(ACC + 4 * i, vA, BG + 4 * i, True)
    a(f"v_add_f32_dpp v{vD}, v{vD+1}, v{vD} row_shl:1 {DPPF}")
    for i in range(8): join(i)
    a(f"s_mov_b64 exec, s[{sE}:{sE+1}]")
    a(f"ds_write_b32 v{vSW}, v{vD} offset:256")
    for k in range(2): a(f"ds_write2_b64 v{vPW2}, {q2(SM+4*k)}, {q2(SM+4*k+2)} offset0:{4*k} offset1:{4*k+2}")
    a("s_mov_b64 exec, -1")
    a("s_waitcnt lgkmcnt(0)"); a("s_barrier")
    a("s_cbranch_scc1 L_epoch")
    cm("LN(h) @ W = (h @ W - mean * column sum) / sqrt(var + eps); act = g * sigmoid(g) * u")
    GU, CS, ST = BG, BG + 8, vA
    a(f"ds_read2_b32 {q2(ST)}, v{vSR} offset0:64 offset1:68")
    for t in range(2): a(f"ds_read_b128 {q4(CS+4*t)}, v{vGU} offset:{L_P16 + PROW*t + 288}")
    for t in range(2): a(f"ds_read_b128 {q4(GU+4*t)}, v{vGU} offset:{L_P16 + PROW*t}")
    a(f"ds_read_u16 v{vFH}, v{vFO} offset:{L_H}")
    a("s_waitcnt lgkmcnt(5)")
    steps = ("quad_perm:[1,0,3,2]", "quad_perm:[2,3,0,1]", "row_half_mirror")

    def st_step(k):
        for i in range(2): a(f"v_add_f32_dpp v{ST+i}, v{ST+i}, v{ST+i} {steps[k]} {DPPF}")
    st_step(0); a("s_waitcnt lgkmcnt(3)")
    st_step(1); pkadd(CS, CS, CS + 4)
    st_step(2); pkadd(CS + 2, CS + 2, CS + 6)
    MU, VAR = ST + 2, ST
    a(f"v_mul_f32 v{MU}, 0x3b000000, v{ST+1}"); a(f"v_mul_f32 v{VAR}, 0x3b000000, v{ST}")
    a(f"v_fma_f32 v{VAR}, -v{MU}, v{MU}, v{VAR}"); a(f"v_max_f32 v{VAR}, 0, v{VAR}")
    a(f"v_cvt_pk_bf16_f32 v{VAR}, v{VAR}, v{MU}")
    a("s_waitcnt lgkmcnt(1)")
    pkadd(GU, GU, GU + 4); pkadd(GU + 2, GU + 2, GU + 6)
    unpack(VAR, MU, VAR)
    a(f"v_add_f32 v{VAR}, {EPS:#x}, v{VAR}"); bf16r(VAR, VAR)
    a(f"v_sqrt_f32 v{VAR}, v{VAR}")
    for i in (0, 2): a(f"v_pk_fma_f32 {q2(GU+i)}, {q2(CS+i)}, {q2(MU)}, {q2(GU+i)} op_sel_hi:[1,0,1] neg_lo:[0,1,0] neg_hi:[0,1,0]")
    bf16r(VAR, VAR)
    for i in range(4): a(f"v_add_f32_dpp v{GU+i}, v{GU+i}, v{GU+i} row_ror:4 {DPPF}")
    a(f"v_rcp_f32 v{VAR}, v{VAR}")
    for i in range(4): a(f"v_add_f32_dpp v{GU+i}, v{GU+i}, v{GU+i} row_ror:8 {DPPF}")
    for i in (0, 2): a(f"v_pk_mul_f32 {q2(GU+i)}, {q2(GU+i)}, {q2(VAR)} op_sel_hi:[1,0]")
    a(f"v_pk_mul_f32 {q2(GU+4)}, {q2(GU)}, s[{sNL}:{sNL+1}]")
    for i in range(2): a(f"v_exp_f32 v{GU+4+i}, v{GU+4+i}")
    a(f"v_pk_mul_f32 {q2(GU)}, {q2(GU)}, {q2(GU+2)}")
    a(f"v_pk_add_f32 {q2(GU+4)}, {q2(GU+4)}, 1.0 op_sel_hi:[1,0]")
    for i in range(2): a(f"v_rcp_f32 v{GU+4+i}, v{GU+4+i}")
    a(f"v_pk_mul_f32 {q2(GU)}, {q2(GU)}, {q2(GU+4)}")
    a(f"v_cvt_pk_bf16_f32 v{vPK}, v{GU}, v{GU+1}")
    cm("act @ w_down rows: A operand G holds act in rows 4 G .. 4 G + 3 only, so lane (G, n) collects columns 8 n + 2 G, + 1")
    DE, DO = vD, vA + 4

    def ag(G, rs=range(4)):
        for r in rs: a(f"v_mov_b32_dpp v{AG+4*G+r}, v{vPK} row_newbcast:{r} row_mask:0xf bank_mask:{1 << G:#x}")
    ag(0); ag(1, (0, 1))
    for G in range(4):
        mm(DE, AG + 4 * G, BD + 8 * G, G == 0)
        if G < 3: ag(G + 1, (2, 3))
        mm(DO, AG + 4 * G, BD + 8 * G + 4, G == 0)
        if G < 2: ag(G + 2, (0, 1))
    FR = ACC
    a(f"s_cmp_ge_u32 s{sFU}, 32")
    put_tag(DE + 1, DO)
    a(f"buffer_store_dwordx2 {q2(DE)}, v{vY2}, {srd(rWS)}, s{sT2} offen sc1")
    stamp("pub")
    a("s_cbranch_scc1 L_exit")
    cm("out = h + sum of the 43 partials; a line read before its writer's store lands costs an extra round trip, hence the back-off")
    a(f"v_mov_b32 v{FR+8}, 0"); a(f"v_mov_b32 v{FR+10}, 0")
    a("s_waitcnt lgkmcnt(0)")
    a(f"v_lshlrev_b32 v{vFH}, 16, v{vFH}")
    a("s_waitcnt vmcnt(0)")

    def fcombine():
        for i in (0, 2): pkadd(FR + i, FR + i, FR + 4 + i)
        for i in (0, 2): pkadd(FR + i, FR + i, FR + 8 + i)
    poll("poll_d", ([f"s_sleep {fsleep}"] if fsleep else []) + [
        f"buffer_load_dwordx4 {q4(FR)}, v{vFA}, {srd(rWS)}, s{sF0} offen sc1",
        f"buffer_load_dwordx4 {q4(FR+4)}, v{vFA}, {srd(rWS)}, s{sF0+1} offen sc1",
        f"v_mov_b32 v{FR+9}, s{sTG8}", f"v_mov_b32 v{FR+11}, s{sTG8}",
        "s_mov_b32 exec_hi, 0xfff",
        f"buffer_load_dwordx4 {q4(FR+8)}, v{vFA}, {srd(rWS)}, s{sF0+2} offen sc1",
        "s_mov_b32 exec_hi, -1"], [FR + 2 * t + 1 for t in range(6)], TMP, fcombine)
    stamp("fgot")
    a(f"v_permlane32_swap_b32 v{FR}, v{FR+2}"); a(f"v_permlane32_swap_b32 v{FR+1}, v{FR+3}")
    pkadd(FR, FR, FR + 2)
    a(f"v_permlane16_swap_b32 v{FR}, v{FR+1}")
    a(f"v_add_f32 v{FR}, v{FR}, v{FR+1}")
    for m in ("row_ror:4", "row_ror:8"): a(f"v_add_f32_dpp v{FR}, v{FR}, v{FR} {m} {DPPF}")
    a("s_mov_b32 exec_lo, 0x000f000f"); a("s_mov_b32 exec_hi, 0x000f000f")
    a(f"v_add_f32 v{FR}, v{FR}, v{vFH}")
    a(f"v_cvt_pk_bf16_f32 v{FR}, v{FR}, v{FR}")
    a(f"buffer_store_short v{FR}, v{vFO}, {srd(rO)}, 0 offen")
    a("L_exit:")
    if stamps:
        a("s_mov_b64 exec, -1")
        stamp("exit")
        a(f"v_writelane_b32 v{vSTAMP}, s{sROLE}, 14")
        a(f"s_mul_i32 s{sT0}, s2, {NWAVE}"); a(f"s_add_u32 s{sT0}, s{sT0}, s{sW}"); a(f"s_add_u32 s{sT0}, s{sT0}, 1")
        a(f"s_lshl_b32 s{sT0}, s{sT0}, 6"); a(f"s_add_u32 s{sT0}, s{sT0}, {STAMP}")
        a(f"v_lshlrev_b32 v{vSTAMP+1}, 2, v{vL}")
        a("s_mov_b64 exec, 0xffff")
        a(f"buffer_store_dword v{vSTAMP}, v{vSTAMP+1}, {srd(rWS)}, s{sT0} offen")
    a("L_end:")
    a("s_endpgm")
    a("L_epoch:")
    cm("h is complete, so every workgroup has read the old word: one idle wave leaves this launch's tag")
    a(f"s_lshl3_add_u32 s{sT0}, s{sROLE}, s{sW}"); a(f"s_cmp_lg_u32 s{sT0}, 4"); a("s_cbranch_scc1 L_exit")
    a(f"s_mov_b32 s{sT0}, {EPOCH}"); a(f"v_mov_b32 v3, s{sEP}"); a("s_mov_b64 exec, 1")
    a(f"buffer_store_dword v3, off, {srd(rWS)}, s{sT0} sc1")
    a("L_last:")
    a("s_branch L_exit")
    assert not far

    out = HEADER + f"; @launch grid=(256,1,1) block=({64*NWAVE},1,1) lds={L_END}\n" + OVERVIEW
    out += f'.amdgcn_target "amdgcn-amd-amdhsa--gfx950"\n.text\n.globl {KNAME}\n.p2align 8\n.type {KNAME},@function\n'
    out += a.render()
    out += f'''.section .rodata,"a"
.p2align 6
.amdhsa_kernel {KNAME}
  .amdhsa_next_free_vgpr {NV}
  .amdhsa_next_free_sgpr {NS}
  .amdhsa_accum_offset {NV}
  .amdhsa_group_segment_fixed_size 0
  .amdhsa_kernarg_size 96
  .amdhsa_user_sgpr_count 2
  .amdhsa_user_sgpr_kernarg_segment_ptr 1
  .amdhsa_system_sgpr_workgroup_id_x 1
  .amdhsa_float_denorm_mode_32 3
.end_amdhsa_kernel
'''
    return out


if __name__ == "__main__":
    kw = {}
    for arg in sys.argv[2:]:
        k, v = arg.split("=")
        kw[k] = eval(v)
    open(sys.argv[1], "w").write(gen(**kw))
```

```python
import sys; sys.path.insert(0, 'gen')
import final
src = final.gen(budget=200000)
mark = "    s_cbranch_scc1 L_end\n"
def variant(name, code):
    i = src.index(mark) + len(mark)
    open(f"var/{name}.s", "w").write(src[:i] + code + src[i:])
def swap(x): return f"    s_lshr_b32 s3, s2, 1\n    s_cmp_eq_u32 s3, {x}\n    s_cselect_b32 s3, 1, 0\n    s_xor_b32 s2, s2, s3\n"
variant("m_none", "")
variant("m_t1", swap(5)); variant("m_t2", swap(36)); variant("m_pf", swap(100)); variant("m_ref", swap(57))
variant("m_hash", "    s_lshr_b32 s3, s2, 3\n    s_mul_i32 s3, s3, 0x9e3779b1\n    s_lshr_b32 s3, s3, 27\n    s_cmp_lt_u32 s3, 8\n    s_cselect_b32 s3, s3, 0\n    s_xor_b32 s2, s2, s3\n")
variant("m_head", "    s_bfe_u32 s3, s2, 0x20003\n    s_xor_b32 s2, s2, s3\n")
```
